```python
import torch

def _softmax(x, axis=-1):
    return torch.softmax(x, dim=axis)
def _gelu(x):
    return torch.nn.functional.gelu(x, approximate="tanh")
def _silu(x):
    return torch.nn.functional.silu(x)
def _sigmoid(x):
    return torch.sigmoid(x)
def _layernorm(x, axis=-1, eps=1e-5):
    m = x.mean(dim=axis, keepdim=True)
    v = x.var(dim=axis, keepdim=True, unbiased=False)
    return (x - m) / torch.sqrt(v + eps)
def _scatter_add(tgt, idx, src, axis=0):
    return tgt.clone().index_add_(axis, idx, src)
def _segment_sum(src, seg, n):
    out = torch.zeros((n,) + src.shape[1:], dtype=src.dtype)
    return out.index_add_(0, seg, src)
def _pad(x, pw):
    flat = tuple(v for pair in reversed(pw) for v in pair)
    return torch.nn.functional.pad(x, flat)

kernel_name = 'parallel_sum__ssm_conv_s4d__glu_gated_reglu__prompt'

def setup_inputs():

    _w = (lambda a: (lambda t: t.to(torch.bfloat16) if t.is_floating_point() else t)(torch.as_tensor(a)))
    def _A_setup():
        Bsz, L, D, N = 1, 2048, 448, 256
        return {
            "u": _w((lambda *s: torch.randn(*s, dtype=torch.bfloat16) * 0.05)(Bsz, L, D)),
            "log_A_real": _w((lambda *s: torch.randn(*s, dtype=torch.bfloat16) * 6.4)(D, N) * 0.5),
            "A_imag": _w((lambda *s: torch.randn(*s, dtype=torch.bfloat16) * 0.05)(D, N) * 3.14),
            "C_real": _w((lambda *s: torch.randn(*s, dtype=torch.bfloat16) * 0.1)(D, N) / N ** 0.5),
            "C_imag": _w((lambda *s: torch.randn(*s, dtype=torch.bfloat16) * 0.1)(D, N) / N ** 0.5),
            "log_dt": _w((lambda *s: torch.randn(*s, dtype=torch.bfloat16) * 0.05)(D) * 0.5 - 4.0),
            "D_skip": _w((lambda *s: torch.randn(*s, dtype=torch.bfloat16) * 0.05)(D)),
        }
    _A_in = _A_setup()

    def _B_setup():
        B, S, D, F = 1, 2048, 448, 1792
        return {
            "x": _w((lambda *s: torch.randn(*s, dtype=torch.bfloat16) * 0.05)(B, S, D)),
            "W_gate": _w((lambda *s: torch.randn(*s, dtype=torch.bfloat16) * 0.4)(D, F) * (2.0 / D) ** 0.5),
            "W_up": _w((lambda *s: torch.randn(*s, dtype=torch.bfloat16) * 0.4)(D, F) * (2.0 / D) ** 0.5),
            "W_down": _w((lambda *s: torch.randn(*s, dtype=torch.bfloat16) * 0.4)(F, D) * (1.0 / F) ** 0.5),
        }
    _B_in = _B_setup()

    return {
        "A_u": _A_in["u"],
        "A_log_A_real": _A_in["log_A_real"],
        "A_A_imag": _A_in["A_imag"],
        "A_C_real": _A_in["C_real"],
        "A_C_imag": _A_in["C_imag"],
        "A_log_dt": _A_in["log_dt"],
        "A_D_skip": _A_in["D_skip"],
        "B_x": _B_in["x"],
        "B_W_gate": _B_in["W_gate"],
        "B_W_up": _B_in["W_up"],
        "B_W_down": _B_in["W_down"],
    }

def reference(A_u, A_log_A_real, A_A_imag, A_C_real, A_C_imag, A_log_dt, A_D_skip, B_x, B_W_gate, B_W_up, B_W_down):
    def _A_ref(u, log_A_real, A_imag, C_real, C_imag, log_dt, D_skip):
        L = u.shape[1]
        dt = torch.exp(log_dt)
        A = -torch.exp(log_A_real) + 1j * A_imag
        C = (C_real + 1j * C_imag) * dt[:, None]
        pos = (lambda x, dt: x.to(dt))(torch.arange(L), log_dt.dtype)
        P = torch.exp((A * dt[:, None])[:, :, None] * pos[None, None, :])
        K = 2.0 * torch.einsum("dn,dnl->dl", C, P).real
        L2 = 2 * L
        u_t = (lambda x, *d: x.permute(*d))(u, 0, 2, 1)
        Kf = (lambda x, *a, **k: torch.fft.rfft(x.float(), *a, **k))(K, L2)
        Uf = (lambda x, *a, **k: torch.fft.rfft(x.float(), *a, **k))(u_t, L2)
        y = (lambda x, *a, **k: torch.fft.irfft(x, *a, **k).to(torch.bfloat16))(Uf * Kf[None, :, :], L2)[:, :, :L]
        y = (lambda x, *d: x.permute(*d))(y, 0, 2, 1)
        return y + u * D_skip[None, None, :]

    def _B_ref(x, W_gate, W_up, W_down):
        gate = torch.einsum("bsd,df->bsf", x, W_gate)
        up = torch.einsum("bsd,df->bsf", x, W_up)
        gate = gate * (lambda x, dt: x.to(dt))(gate > 0, gate.dtype)
        h = gate * up
        return torch.einsum("bsf,fd->bsd", h, W_down)

    x = A_u
    xn = _layernorm(x, axis=-1)
    return x + _A_ref(xn, A_log_A_real, A_A_imag, A_C_real, A_C_imag, A_log_dt, A_D_skip) + _B_ref(xn, B_W_gate, B_W_up, B_W_down)
```

```python
import re

REG_RE = re.compile(r"\b([vas])\[(\d+):(\d+)\]|\b([vas])(\d+)\b|\b(vcc_lo|vcc_hi|vcc|exec_lo|exec_hi|exec|m0|scc)\b")
def regs_of(txt):
    out = set()
    for m in REG_RE.finditer(txt):
        if m.group(1):
            for i in range(int(m.group(2)), int(m.group(3)) + 1): out.add((m.group(1), i))
        elif m.group(4):
            out.add((m.group(4), int(m.group(5))))
        else:
            n = m.group(6)
            if n.startswith("vcc"): out.add(("x", "vcc"))
            elif n.startswith("exec"): out.add(("x", "exec"))
            else: out.add(("x", n))
    return out

TRANS = ("v_exp_f32", "v_log_f32", "v_rcp_f32", "v_rsq_f32", "v_sqrt_f32", "v_sin_f32", "v_cos_f32", "v_rcp_iflag_f32")
def split_ops(s):
    ops, depth, cur = [], 0, ""
    for ch in s:
        if ch == "[": depth += 1
        if ch == "]": depth -= 1
        if ch == "," and depth == 0:
            ops.append(cur.strip()); cur = ""
        else: cur += ch
    if cur.strip(): ops.append(cur.strip())
    return ops

class Ins:
    def __init__(self, text):
        self.text = text
        t = text.split(";")[0].strip()
        self.label = None; self.op = None
        self.dst = set(); self.src = set(); self.srcA = set(); self.srcC = set()
        self.kind = "other"
        if not t or t.startswith("."):
            self.kind = "dir"; return
        if t.endswith(":"):
            self.kind = "label"; self.label = t[:-1]; return
        parts = t.split(None, 1)
        op = parts[0]; self.op = op
        rest = parts[1] if len(parts) > 1 else ""
        ops = split_ops(rest)
        self.ops = ops
        base = re.sub(r"_(e32|e64|dpp|sdwa)$", "", op)
        self.base = base
        R = regs_of
        if op.startswith("v_mfma"):
            self.kind = "mfma"
            self.dst = R(ops[0]); self.srcA = R(ops[1]) | R(ops[2]); self.srcC = R(ops[3].split()[0]); self.src = self.srcA | self.srcC
            self.passes = 8 if ("32x32" in op or "_4b" in op) else 4
        elif op.startswith("v_"):
            self.kind = "valu"
            nd = 1
            if re.match(r"v_(add|sub|subrev|addc|subb|subbrev)_co_", op) or op.startswith("v_div_scale") or op.startswith("v_mad_u64"): nd = 2
            for o in ops[:nd]: self.dst |= R(o)
            for o in ops[nd:]: self.src |= R(o)
            if base.startswith(("v_fmac", "v_dot2c", "v_pk_fmac", "v_writelane")) or "dpp" in op or "row_" in rest or "quad_perm" in rest or "d16" in op: self.src |= self.dst
            if base.startswith("v_permlane") and "swap" in base:
                self.dst |= R(ops[1]); self.src |= self.dst
            if base.startswith("v_cmpx"): self.dst.add(("x", "exec"))
            self.is_dpp = ("dpp" in op) or ("row_" in rest) or ("quad_perm" in rest) or ("wave_" in rest)
            self.is_trans = base in TRANS
            self.is_dot = base.startswith("v_dot")
            self.is_perml = base.startswith("v_permlane")
            self.is_rdl = base.startswith(("v_readlane", "v_readfirstlane"))
            self.is_opsel = ("sdwa" in op and "dst_sel" in rest and "dst_sel:DWORD" not in rest)
        elif op.startswith("ds_"):
            self.kind = "ds"
            if op.startswith(("ds_read", "ds_bpermute", "ds_permute", "ds_swizzle")) or "_rtn" in op:
                self.dst = R(ops[0])
                for o in ops[1:]: self.src |= R(o)
                if "d16" in op: self.src |= self.dst
            else:
                for o in ops: self.src |= R(o)
            if "addtid" in op: self.src.add(("x", "m0"))
        elif op.startswith(("buffer_", "global_", "flat_")):
            self.kind = "vmem"
            self.is_lds = bool(re.search(r"\blds\b", rest)) or "_lds_" in op
            isload = "_load" in op
            isatomic = "_atomic" in op
            if op in ("buffer_wbl2", "buffer_inv"):
                pass
            elif isload and not self.is_lds:
                self.dst = R(ops[0])
                for o in ops[1:]: self.src |= R(o)
                if "d16" in op: self.src |= self.dst
            else:
                for o in ops: self.src |= R(o)
                if isatomic and re.search(r"\bsc0\b", rest):
                    self.dst = R(ops[0])
            if self.is_lds: self.src.add(("x", "m0"))
            self.widestore = ("_store" in op) and ("x3" in op or "x4" in op)
            if self.widestore:
                self.stdata = R(ops[0]) if op.startswith("buffer_") else R(ops[1])
        elif op.startswith("s_"):
            self.kind = "salu"
            if op.startswith(("s_load", "s_buffer_load", "s_memtime", "s_memrealtime")):
                self.kind = "smem"; self.dst = R(ops[0])
                for o in ops[1:]: self.src |= R(o)
            elif op.startswith("s_waitcnt"): self.kind = "wait"
            elif op == "s_nop": self.kind = "nop"; self.n = int(ops[0], 0) + 1
            elif op.startswith(("s_branch", "s_cbranch")): self.kind = "branch"; self.target = ops[0]
            elif op == "s_endpgm": self.kind = "end"
            elif op.startswith(("s_cmp", "s_bitcmp", "s_barrier", "s_setprio", "s_sleep", "s_setreg")):
                for o in ops: self.src |= R(o)
            else:
                self.dst = R(ops[0])
                for o in ops[1:]: self.src |= R(o)
                if "saveexec" in op: self.dst.add(("x", "exec"))
    def states(self):
        if self.kind in ("dir", "label"): return 0
        if self.kind == "nop": return self.n
        return 1

def vg(s): return {r for r in s if r[0] in "va"}
def sg(s): return {r for r in s if r[0] == "s" or r == ("x", "vcc")}

def required(p, c):
    need = 0
    if p.kind == "valu":
        pv = vg(p.dst); ps = sg(p.dst)
        if c.kind == "mfma" and pv & c.src: need = max(need, 2)
        if c.kind == "valu":
            if p.is_trans and not c.is_trans and pv & c.src: need = max(need, 1)
            if p.is_trans and c.is_trans and pv & c.src: need = max(need, 1)
            if c.is_rdl and pv & c.src: need = max(need, 1)
            if c.is_perml and pv & c.src: need = max(need, 2)
            if c.is_dpp and pv & c.src: need = max(need, 2)
            if ps & c.src: need = max(need, 4 if c.base.startswith(("v_readlane", "v_writelane", "v_div_fmas")) else 2)
            if p.is_dot and pv & (c.src | c.dst):
                same = (p.base == c.base)
                onlyC = False
                if same:
                    ab = set()
                    for o in c.ops[1:3]: ab |= regs_of(o)
                    onlyC = not (pv & ab)
                if not onlyC: need = max(need, 3)
            if p.is_opsel and pv & (c.src | c.dst): need = max(need, 1)
            if ("x", "exec") in p.dst:
                if c.is_dpp: need = max(need, 5)
                if c.is_rdl or c.is_perml: need = max(need, 4)
        if p.is_dot and c.kind in ("ds", "vmem", "mfma") and pv & c.src: need = max(need, 3)
        if c.kind == "vmem" and ps & c.src: need = max(need, 5)
        if c.kind == "mfma" and ("x", "exec") in p.dst: need = max(need, 4)
        if c.kind in ("salu", "smem", "branch") and ps & c.src: need = max(need, 1)
    if p.kind == "mfma":
        n = p.passes
        if c.kind == "mfma":
            if p.dst & c.srcA: need = max(need, n + 4)
            if p.dst & c.srcC:
                if not (p.dst == c.srcC and p.passes == c.passes): need = max(need, n + 2)
        if c.kind in ("valu", "ds", "vmem") and p.dst & (c.src | c.dst): need = max(need, n + 4)
        if c.kind == "valu" and p.srcC & c.dst: need = max(need, n - 1)
    if p.kind == "salu" and ("x", "m0") in p.dst and c.kind in ("ds", "vmem") and ("x", "m0") in c.src: need = max(need, 1)
    if p.kind == "vmem" and getattr(p, "widestore", False):
        if c.kind == "valu" and p.stdata & c.dst: need = max(need, 2)
        elif p.stdata & c.dst: need = max(need, 1)
    return need

class Asm:
    def __init__(self):
        self.ins = []
    def __call__(self, *lines):
        for l in lines:
            for x in l.split("\n"):
                x = x.strip()
                if x: self.ins.append(Ins(x))
    def fix_hazards(self, verbose=False):
        out = []
        added = 0
        for c in self.ins:
            if c.kind in ("dir", "label"):
                out.append(c); continue
            need = 0; dist = 0
            for p in reversed(out):
                if dist >= 20: break
                if p.kind == "end" or (p.kind == "branch" and p.op == "s_branch"): break
                if p.kind in ("valu", "mfma", "salu", "vmem"):
                    r = required(p, c) - dist
                    if r > need: need = r
                dist += p.states()
            while need > 0:
                k = min(need, 16)
                out.append(Ins(f"s_nop {k-1}")); need -= k; added += k
            out.append(c)
        self.ins = out
        idx = {c.label: i for i, c in enumerate(out) if c.kind == "label"}
        for i, b in enumerate(out):
            if b.kind != "branch" or b.target not in idx: continue
            prods = []; dist = 1
            for p in reversed(out[:i]):
                if dist >= 20: break
                if p.kind == "end" or (p.kind == "branch" and p.op == "s_branch"): break
                if p.kind in ("valu", "mfma", "salu", "vmem"): prods.append((p, dist))
                dist += p.states()
            d2 = 0
            for c in out[idx[b.target]:]:
                if d2 >= 20: break
                if c.kind in ("dir", "label"): continue
                for p, d in prods:
                    if required(p, c) > d + d2:
                        raise RuntimeError(f"hazard across branch {b.text}: {p.text} -> {c.text}")
                if c.kind == "end" or (c.kind == "branch" and c.op == "s_branch"): break
                d2 += c.states()
        return added
    def check_waits(self):
        saved = {}
        vm, lg = [], []
        live = True
        errs = []
        for c in self.ins:
            if c.kind == "label":
                if c.label in saved:
                    svm, slg = saved[c.label]
                    if not live: vm, lg = list(svm), list(slg)
                    else:
                        if len(svm) > len(vm): vm = list(svm)
                        if len(slg) > len(lg): lg = list(slg)
                    live = True
                elif not live:
                    vm, lg = [], []; live = True
                continue
            if c.kind == "dir": continue
            if c.kind == "wait":
                m = re.search(r"vmcnt\((\d+)\)", c.text)
                if m:
                    n = int(m.group(1)); vm = vm[len(vm) - n:] if n < len(vm) and n > 0 else ([] if n == 0 else vm)
                m = re.search(r"lgkmcnt\((\d+)\)", c.text)
                if m:
                    n = int(m.group(1))
                    if n == 0: lg = []
                    else:
                        sm = [x for x in lg if x[2]]; ld = [x for x in lg if not x[2]]
                        if n < len(ld): ld = ld[len(ld) - n:]
                        lg = sm + ld
                continue
            touch = c.src | c.dst
            for q in (vm, lg):
                for (d, t, _) in q:
                    if d & touch:
                        errs.append(f"pending load not waited: '{t}' used by '{c.text}'")
            if c.kind == "vmem" and c.op not in ("buffer_wbl2", "buffer_inv"): vm.append((set(c.dst), c.text, False))
            if c.kind == "ds": lg.append((set(c.dst), c.text, False))
            if c.kind == "smem": lg.append((set(c.dst), c.text, True))
            if len(vm) > 63: errs.append(f"vmcnt overflow at {c.text}")
            if c.kind == "branch":
                t = c.target
                if t in saved:
                    svm, slg = saved[t]
                    saved[t] = (vm if len(vm) > len(svm) else svm, lg if len(lg) > len(slg) else slg)
                    saved[t] = (list(saved[t][0]), list(saved[t][1]))
                else: saved[t] = (list(vm), list(lg))
                if c.op == "s_branch": live = False
            if c.kind == "end": live = False
        return errs
    def text(self):
        out = []
        for c in self.ins:
            out.append(c.text if c.kind in ("label", "dir") else "    " + c.text)
        return "\n".join(out) + "\n"
    def max_regs(self):
        mv = ma = ms = -1
        for c in self.ins:
            for (k, i) in (c.src | c.dst):
                if k == "v": mv = max(mv, i)
                if k == "a": ma = max(ma, i)
                if k == "s": ms = max(ms, i)
        return mv, ma, ms

def kernel_desc(name, nvgpr, accum, nsgpr=102):
    return f""".section .rodata,"a"
.p2align 6
.amdhsa_kernel {name}
  .amdhsa_next_free_vgpr {nvgpr}
  .amdhsa_next_free_sgpr {nsgpr}
  .amdhsa_accum_offset {accum}
  .amdhsa_group_segment_fixed_size 0
  .amdhsa_kernarg_size 112
  .amdhsa_user_sgpr_count 2
  .amdhsa_user_sgpr_kernarg_segment_ptr 1
  .amdhsa_system_sgpr_workgroup_id_x 1
.end_amdhsa_kernel
.text
"""
```

```python
import sys, struct
from asmlib import Asm, kernel_desc
NAME = "parallel_sum__ssm_conv_s4d__glu_gated_reglu__prompt"

WS_H   = 0x0000000
WS_XNT = 0x0800000
WS_YT  = 0x0A00000
WS_CS  = 0x0C00000
WS_NM  = 0x0C10000
WS_R2  = 0x0C20000
WS_FH  = 0x0C30000
WS_FY  = 0x0C40000
WS_FX  = 0x0C50000
WS_ST  = 0xF000000
RING = 32768
def slot_addr(s): return RING + 16384 * s
QB = [0, 8320]
UB = [16640, 21248]
AUXCNT = 25856
XCH = slot_addr(7)
YL = 0
SPIN_MAX = 20000

def f32(x): return "0x%08x" % struct.unpack("<I", struct.pack("<f", x))[0]
LOG2E = 1.4426950408889634

S_X, S_WG, S_WU, S_WD, S_WS, S_OUT, S_DBG = 4, 8, 12, 16, 20, 24, 28
def srd(b): return f"s[{b}:{b+3}]"
S_P = 32
sW, sI, sJ, sI2, sJ2, sT, sC0, sTAG, sSPIN = 60, 61, 62, 63, 64, 65, 66, 67, 68
sA, sB, sC, sD, sE = 70, 71, 72, 73, 74
sEX = 76
S_STAMP = 80

class Gen:
    def __init__(self, stage=9, stamps=False, opts=()):
        self.a = Asm(); self.stage = stage; self.stamps = stamps; self.opts = set(opts)
        self.nlab = 0
        self.vm = []
    def lab(self, p="L"):
        self.nlab += 1; return f"{p}_{self.nlab}"
    def cstamp(self, k):
        if self.stamps and "cyc" in self.opts: self.a(f"s_memtime s[{S_STAMP+2*k}:{S_STAMP+2*k+1}]")
    def stamp(self, k):
        if self.stamps and "cyc" not in self.opts: self.a(f"s_memrealtime s[{S_STAMP+2*k}:{S_STAMP+2*k+1}]")
    def vmem(self, text, tag=None):
        self.a(text); self.vm.append(tag)
    def wait_vm(self, tag):
        idx = [i for i, t in enumerate(self.vm) if t == tag]
        if not idx: return
        n = len(self.vm) - 1 - idx[-1]
        assert n <= 63
        self.a(f"s_waitcnt vmcnt({n})")
        self.vm = self.vm[idx[-1] + 1:]
    def wait_vm_all(self):
        self.a("s_waitcnt vmcnt(0)"); self.vm = []

    def spin(self, loads, checks, first_issued_tag=None):
        a = self.a
        L0, L1 = self.lab("Lspin"), self.lab("Lok")
        a(f"s_mov_b32 s{sSPIN}, {SPIN_MAX}")
        if first_issued_tag is not None:
            self.wait_vm(first_issued_tag)
            self._check(checks)
            a(f"s_cbranch_vccz {L1}")
        a(f"{L0}:")
        for l in loads: a(l)
        a("s_waitcnt vmcnt(0)")
        self._check(checks)
        a(f"s_cbranch_vccz {L1}")
        a(f"s_sub_u32 s{sSPIN}, s{sSPIN}, 1", f"s_cmp_lg_u32 s{sSPIN}, 0", f"s_cbranch_scc1 {L0}")
        a(f"{L1}:")
        if first_issued_tag is None: self.vm = []
    def _check(self, checks):
        a = self.a
        a(f"v_cmp_ne_u32 vcc, s{sTAG}, v{checks[0]}")
        for c in checks[1:]:
            a(f"v_cmp_ne_u32 s[{sEX}:{sEX+1}], s{sTAG}, v{c}")
            a(f"s_or_b64 vcc, vcc, s[{sEX}:{sEX+1}]")
        a("s_nop 4" if len(checks) == 1 else "s_nop 0")
    def get_nonce(self, vt, issued=None):
        a = self.a
        L0, L1 = self.lab("Lnon"), self.lab("Lnok")
        a(f"s_mov_b32 s{sSPIN}, {SPIN_MAX}")
        if issued is not None:
            self.wait_vm(issued)
            a(f"v_readfirstlane_b32 s{sTAG}, v{vt}", "s_nop 0", f"s_cmp_lg_u32 s{sTAG}, 0", f"s_cbranch_scc1 {L1}")
        a(f"{L0}:")
        a(f"buffer_load_dword v{vt}, off, {srd(S_DBG)}, 0 sc1", "s_waitcnt vmcnt(0)")
        a(f"v_readfirstlane_b32 s{sTAG}, v{vt}", "s_nop 0", f"s_cmp_lg_u32 s{sTAG}, 0", f"s_cbranch_scc1 {L1}")
        a(f"s_sub_u32 s{sSPIN}, s{sSPIN}, 1", f"s_cmp_lg_u32 s{sSPIN}, 0", f"s_cbranch_scc1 {L0}")
        a(f"{L1}:")
        if issued is None: self.vm = []
    def write_stamps(self, which):
        if not self.stamps: return
        a = self.a
        L = self.lab("Lst")
        a("s_waitcnt lgkmcnt(0)")
        a(f"s_cmp_lg_u32 s{sW}, {4*which}", f"s_cbranch_scc1 {L}")
        a(f"s_lshl_b32 s{sA}, s2, 8", f"s_add_u32 s{sA}, s{sA}, {WS_ST + 128*which}")
        a(f"s_mov_b64 s[{sEX}:{sEX+1}], exec", "s_mov_b64 exec, 1")
        for k in range(10):
            a(f"v_mov_b32 v2, s{S_STAMP+2*k}", f"v_mov_b32 v3, s{S_STAMP+2*k+1}")
            a(f"buffer_store_dwordx2 v[2:3], off, {srd(S_WS)}, s{sA} offset:{8*k}")
        a(f"s_mov_b64 exec, s[{sEX}:{sEX+1}]")
        a(f"{L}:")

    def prologue(self):
        a = self.a
        a("s_cmp_ge_u32 s2, 256", "s_cbranch_scc1 L_exit")
        a(f"s_load_dwordx16 s[{S_P}:{S_P+15}], s[0:1], 0")
        a("s_load_dwordx8 s[48:55], s[0:1], 64")
        a("s_load_dwordx4 s[56:59], s[0:1], 96")
        if self.stamps:
            for k in range(1, 10): a(f"s_mov_b64 s[{S_STAMP+2*k}:{S_STAMP+2*k+1}], 0")
        self.stamp(0)
        a(f"s_memrealtime s[{sA}:{sA+1}]")
        a("v_lshrrev_b32 v2, 6, v0", "v_and_b32 v1, 63, v0")
        a(f"v_readfirstlane_b32 s{sW}, v2")
        for (r, sz) in ((S_X, 1835008), (S_WG, 1605632), (S_WU, 1605632), (S_WD, 1605632), (S_WS, 0x10000000), (S_OUT, 1835008), (S_DBG, 256)):
            a(f"s_mov_b32 s{r+2}, {sz}", f"s_mov_b32 s{r+3}, 0x20000")
        a("s_waitcnt lgkmcnt(0)")
        for (r, p) in ((S_X, S_P), (S_WG, 48), (S_WU, 50), (S_WD, 52), (S_OUT, 54), (S_DBG, 56), (S_WS, 58)):
            a(f"s_mov_b32 s{r}, s{p}", f"s_mov_b32 s{r+1}, s{p+1}")
        a("s_cmp_ge_u32 s2, 32", "s_cbranch_scc1 L_main")

    def colsum_partial(self, R, C, vt, area):
        a = self.a
        for i in range(4):
            a(f"v_lshlrev_b32 v{C+2*i}, 16, v{R+i}", f"v_and_b32 v{C+2*i+1}, 0xffff0000, v{R+i}")
        for t in range(1, 7):
            for i in range(4):
                a(f"v_lshlrev_b32 v{vt}, 16, v{R+4*t+i}", f"v_and_b32 v{vt+1}, 0xffff0000, v{R+4*t+i}")
                a(f"v_add_f32 v{C+2*i}, v{C+2*i}, v{vt}", f"v_add_f32 v{C+2*i+1}, v{C+2*i+1}, v{vt+1}")
        for i in range(4): a(f"v_permlane32_swap_b32 v{C+i}, v{C+i+4}")
        for i in range(4): a(f"v_add_f32 v{C+i}, v{C+i}, v{C+i+4}")
        for i in range(2): a(f"v_permlane16_swap_b32 v{C+i}, v{C+i+2}")
        for i in range(2): a(f"v_add_f32 v{C+i}, v{C+i}, v{C+i+2}")
        for i in range(2): a(f"v_add_f32_dpp v{C+2+i}, v{C+i}, v{C+i} row_ror:8 row_mask:0xf bank_mask:0xf")
        a(f"v_and_b32 v{vt}, 8, v1", f"v_cmp_ne_u32 vcc, 0, v{vt}")
        a(f"v_cndmask_b32 v{C}, v{C+2}, v{C+3}, vcc")
        a(f"ds_write_b32 v{self.hCSW}, v{C} offset:{area}")
    def colsum_final(self, wave, area, blk, C, vt):
        a = self.a
        L = self.lab("Lcs")
        a(f"s_cmp_lg_u32 s{sW}, {wave}", f"s_cbranch_scc1 {L}")
        a(f"v_lshlrev_b32 v{vt}, 2, v1")
        for w in range(8): a(f"ds_read_b32 v{C+w}, v{vt} offset:{area + 256*w}")
        a("s_waitcnt lgkmcnt(0)")
        for (x, y) in ((0,1),(2,3),(4,5),(6,7),(0,2),(4,6),(0,4)): a(f"v_add_f32 v{C+x}, v{C+x}, v{C+y}")
        a(f"v_cvt_pk_bf16_f32 v{C+1}, v{C}, v{C}", f"v_lshlrev_b32 v{C+2}, 16, v{C+1}", f"v_sub_f32 v{C+3}, v{C}, v{C+2}")
        a(f"v_cvt_pk_bf16_f32 v{C+4}, v{C+2}, v{C+3}", f"v_mov_b32 v{C+5}, s{sTAG}")
        a(f"v_lshlrev_b32 v{vt}, 3, v1")
        a(f"s_lshl_b32 s{sA}, s2, 10", f"s_add_u32 s{sA}, s{sA}, {WS_CS + 512*blk}")
        a(f"buffer_store_dwordx2 v[{C+4}:{C+5}], v{vt}, {srd(S_WS)}, s{sA} offen sc1")
        a(f"{L}:")

    def helper(self):
        a = self.a
        self.vm = []
        WA, XR, WB, C, XF = 4, 32, 60, 88, 100
        vt = 96; vR, vP = 160, 161; voW, voX = 162, 163; self.hCSW = 164
        vS, vM, vMB, vQ, vRr = 165, 166, 167, 168, 169
        TS = 928; CSA = 61440
        Ln = self.lab("Lnn")
        a(f"s_or_b32 s{sB}, s2, s{sW}", f"s_cmp_lg_u32 s{sB}, 0", f"s_cbranch_scc1 {Ln}")
        a(f"s_or_b32 s{sA}, s{sA}, 1", f"v_mov_b32 v2, s{sA}")
        a(f"buffer_store_dword v2, off, {srd(S_DBG)}, 0 sc1")
        a(f"{Ln}:")
        a(f"v_lshrrev_b32 v{vR}, 3, v0", f"v_and_b32 v{vP}, 7, v0")
        a(f"v_lshlrev_b32 v{vt}, 4, v{vP}")
        a(f"v_mul_u32_u24 v{voW}, 3584, v{vR}", f"v_add_u32 v{voW}, v{voW}, v{vt}")
        a(f"v_mul_u32_u24 v{voX}, 896, v{vR}", f"v_add_u32 v{voX}, v{voX}, v{vt}")
        a("s_cmp_ge_u32 s2, 14", f"s_cselect_b32 s{S_WG}, s{S_WU}, s{S_WG}", f"s_cselect_b32 s{S_WG+1}, s{S_WU+1}, s{S_WG+1}")
        a(f"s_cselect_b32 s{sB}, 14, 0", f"s_sub_u32 s{sB}, s2, s{sB}", f"s_lshl_b32 s{sB}, s{sB}, 8")
        a("s_cmp_ge_u32 s2, 28", f"s_cselect_b32 s{S_WG+2}, 0, s{S_WG+2}")
        a(f"s_mul_i32 s{sC}, s2, {64*896}")
        for t in range(7):
            a(f"s_add_u32 s{sD}, s{sB}, {t*64*3584}")
            self.vmem(f"buffer_load_dwordx4 v[{WA+4*t}:{WA+4*t+3}], v{voW}, {srd(S_WG)}, s{sD} offen", "WA")
        for t in range(7):
            self.vmem(f"buffer_load_dwordx4 v[{XR+4*t}:{XR+4*t+3}], v{voX}, {srd(S_X)}, s{sC} offen offset:{128*t}", "XR")
        self.vmem(f"buffer_load_dword v{vQ}, off, {srd(S_DBG)}, 0 sc1", "non")
        for t in range(7):
            a(f"s_add_u32 s{sD}, s{sB}, {t*64*3584}")
            self.vmem(f"buffer_load_dwordx4 v[{WB+4*t}:{WB+4*t+3}], v{voW}, {srd(S_WG)}, s{sD} offen offset:128", "WB")
        a(f"v_lshrrev_b32 v{vt}, 3, v1", f"v_lshl_add_u32 v{vt}, v{vP}, 3, v{vt}", f"v_lshlrev_b32 v{vt}, 2, v{vt}")
        a(f"s_lshl_b32 s{sD}, s{sW}, 8", f"v_add_u32 v{self.hCSW}, s{sD}, v{vt}")
        self.wait_vm("WA")
        self.stamp(1)
        self.colsum_partial(WA, C, vt, CSA)
        self.wait_vm("XR")
        for i in range(28):
            a(f"v_lshlrev_b32 v{XF+2*i}, 16, v{XR+i}", f"v_and_b32 v{XF+2*i+1}, 0xffff0000, v{XR+i}")
        for k in range(4): a(f"v_add_f32 v{C+k}, v{XF+k}, v{XF+4+k}")
        for i in range(8, 56): a(f"v_add_f32 v{C+i%4}, v{C+i%4}, v{XF+i}")
        a(f"v_add_f32 v{C}, v{C}, v{C+1}", f"v_add_f32 v{C+2}, v{C+2}, v{C+3}", f"v_add_f32 v{vS}, v{C}, v{C+2}")
        def red8(v):
            for ctl in ("quad_perm:[1,0,3,2]", "quad_perm:[2,3,0,1]", "row_half_mirror"):
                a(f"v_add_f32_dpp v{v}, v{v}, v{v} {ctl} row_mask:0xf bank_mask:0xf")
        red8(vS)
        a(f"v_mul_f32 v{vM}, {f32(-1.0/448)}, v{vS}")
        a(f"v_cvt_pk_bf16_f32 v{C+4}, v{vM}, v{vM}")
        a(f"v_lshlrev_b32 v{vMB}, 16, v{C+4}")
        self.get_nonce(vQ, issued="non")
        a(f"v_mov_b32 v{C+5}, s{sTAG}")
        a(f"v_lshlrev_b32 v{vt+2}, 3, v{vR}")
        a(f"s_lshl_b32 s{sE}, s2, 9")
        a(f"s_add_u32 s{sA}, s{sE}, {WS_NM}")
        self.vmem(f"buffer_store_dwordx2 v[{C+4}:{C+5}], v{vt+2}, {srd(S_WS)}, s{sA} offen sc1", "st")
        a("s_waitcnt lgkmcnt(0)", "s_barrier")
        self.colsum_final(0, CSA, 0, WA, vt)
        self.stamp(2)
        for i in range(56): a(f"v_add_f32 v{XF+i}, v{XF+i}, v{vMB}")
        for k in range(4): a(f"v_mul_f32 v{C+k}, v{XF+k}, v{XF+k}")
        for i in range(4, 56): a(f"v_fmac_f32 v{C+i%4}, v{XF+i}, v{XF+i}")
        a(f"v_add_f32 v{C}, v{C}, v{C+1}", f"v_add_f32 v{C+2}, v{C+2}, v{C+3}", f"v_add_f32 v{vS}, v{C}, v{C+2}")
        red8(vS)
        a(f"v_sub_f32 v{vM}, v{vM}, v{vMB}")
        a(f"v_mul_f32 v{vM}, v{vM}, v{vM}")
        a(f"v_mul_f32 v{vS}, {f32(1.0/448)}, v{vS}")
        a(f"v_sub_f32 v{vS}, v{vS}, v{vM}", f"v_max_f32 v{vS}, 0, v{vS}")
        def rbf(v): a(f"v_cvt_pk_bf16_f32 v{v}, v{v}, v{v}", f"v_lshlrev_b32 v{v}, 16, v{v}")
        rbf(vS); a(f"v_add_f32 v{vS}, {f32(1e-5)}, v{vS}"); rbf(vS)
        a(f"v_sqrt_f32 v{vS}, v{vS}"); rbf(vS)
        a(f"v_rcp_f32 v{vRr}, v{vS}")
        a(f"v_mul_f32 v{C+6}, v{vRr}, v{vRr}", f"v_mov_b32 v{C+7}, s{sTAG}")
        a(f"s_add_u32 s{sA}, s{sE}, {WS_R2}")
        a(f"buffer_store_dwordx2 v[{C+6}:{C+7}], v{vt+2}, {srd(S_WS)}, s{sA} offen sc1")
        for i in range(28):
            a(f"v_cvt_pk_bf16_f32 v{XR+i}, v{XF+2*i}, v{XF+2*i+1}")
            a(f"v_lshlrev_b32 v{XF+2*i}, 16, v{XR+i}", f"v_and_b32 v{XF+2*i+1}, 0xffff0000, v{XR+i}")
            a(f"v_mul_f32 v{XF+2*i}, v{XF+2*i}, v{vRr}", f"v_mul_f32 v{XF+2*i+1}, v{XF+2*i+1}, v{vRr}")
            a(f"v_cvt_pk_bf16_f32 v{XR+i}, v{XF+2*i}, v{XF+2*i+1}")
        a(f"v_mul_u32_u24 v{vt}, {TS}, v{vR}", f"v_lshl_add_u32 v{vt}, v{vP}, 4, v{vt}")
        for t in range(7): a(f"ds_write_b128 v{vt}, v[{XR+4*t}:{XR+4*t+3}] offset:{128*t}")
        a("s_waitcnt vmcnt(2)"); self.vm = []
        self.colsum_partial(WB, C, vt, CSA + 2048)
        a("s_waitcnt lgkmcnt(0)", "s_barrier")
        self.colsum_final(1, CSA + 2048, 1, WA, vt)
        self.stamp(3)
        a(f"v_lshrrev_b32 v{vt}, 4, v1", f"v_lshlrev_b32 v{vt}, 3, v{vt}")
        a(f"v_bfe_u32 v{vt+1}, v1, 2, 2", f"v_add_u32 v{vt+1}, v{vt+1}, v{vt}")
        a(f"v_mul_u32_u24 v{vt+1}, {TS}, v{vt+1}")
        a(f"v_and_b32 v{vt+2}, 3, v1", f"v_lshl_add_u32 v{vt+1}, v{vt+2}, 3, v{vt+1}")
        a(f"s_and_b32 s{sA}, s{sW}, 1", f"s_lshr_b32 s{sB}, s{sW}, 1")
        a(f"s_mul_i32 s{sC}, s{sA}, {32*TS}", f"s_lshl_b32 s{sD}, s{sB}, 5", f"s_add_u32 s{sC}, s{sC}, s{sD}")
        a(f"v_add_u32 v{vt+1}, s{sC}, v{vt+1}")
        for n in range(7):
            for t in range(2):
                a(f"ds_read_b64_tr_b16 v[{WB+4*n+2*t}:{WB+4*n+2*t+1}], v{vt+1} offset:{128*n + 4*TS*t}")
        a(f"v_and_b32 v{vt+2}, 15, v1", f"v_lshlrev_b32 v{vt+2}, 7, v{vt+2}", f"v_lshl_add_u32 v{vt+2}, v{vt}, 1, v{vt+2}")
        a(f"s_mul_i32 s{sC}, s2, {448*128}", f"s_lshl_b32 s{sA}, s{sA}, 6", f"s_add_u32 s{sC}, s{sC}, s{sA}")
        a(f"s_lshl_b32 s{sB}, s{sB}, 11", f"s_add_u32 s{sC}, s{sC}, s{sB}", f"s_add_u32 s{sC}, s{sC}, {WS_XNT}")
        for n in range(7):
            a(f"s_waitcnt lgkmcnt({12-2*n})")
            a(f"buffer_store_dwordx4 v[{WB+4*n}:{WB+4*n+3}], v{vt+2}, {srd(S_WS)}, s{sC} offen sc1")
            if n < 6: a(f"s_add_u32 s{sC}, s{sC}, {4*16*128}")
        a("s_waitcnt vmcnt(0)", "s_barrier")
        L = self.lab("Lfx")
        a(f"s_cmp_lg_u32 s{sW}, 0", f"s_cbranch_scc1 {L}")
        a(f"v_mov_b32 v2, s{sTAG}", f"s_lshl_b32 s{sA}, s2, 2", f"s_add_u32 s{sA}, s{sA}, {WS_FX}")
        a(f"buffer_store_dword v2, off, {srd(S_WS)}, s{sA} sc1")
        a(f"{L}:")
        self.stamp(4)
        self.write_stamps(0)
        a("s_endpgm")

    def main_ids(self):
        a = self.a
        a("L_main:")
        a(f"s_and_b32 s{sA}, s2, 7", f"s_lshr_b32 s{sB}, s2, 3", f"s_sub_u32 s{sB}, s{sB}, 4")
        a(f"s_mul_i32 s{sC}, s{sB}, 37", f"s_lshr_b32 s{sC}, s{sC}, 8")
        a(f"s_mul_i32 s{sD}, s{sC}, 7", f"s_sub_u32 s{sJ2}, s{sB}, s{sD}")
        a(f"s_lshr_b32 s{sD}, s{sA}, 1", f"s_lshl_b32 s{sD}, s{sD}, 2", f"s_add_u32 s{sI}, s{sD}, s{sC}")
        a(f"s_and_b32 s{sD}, s{sA}, 1", f"s_mul_i32 s{sD}, s{sD}, 7", f"s_add_u32 s{sJ}, s{sD}, s{sJ2}")
        a(f"s_lshl_b32 s{sD}, s{sA}, 2", f"s_add_u32 s{sI2}, s{sD}, s{sC}")
        a(f"s_sub_u32 s{sT}, s2, 32")
        a(f"s_lshl_b32 s{sD}, s{sC}, 1", f"s_add_u32 s{sC0}, s{sD}, s{sJ2}")
        a(f"s_cmp_ge_u32 s{sC0}, 7", f"s_cselect_b32 s{sD}, 7, 0", f"s_sub_u32 s{sC0}, s{sC0}, s{sD}")
        a(f"s_cmp_ge_u32 s{sW}, 4", "s_cbranch_scc1 L_aux")

    @staticmethod
    def uslot(u): return (u + 3) % 8

    def mwave(self):
        a = self.a
        self.vm = []
        X, ACC, AB, CSX, NMX = 4, 116, 180, 212, 220
        vAX, vAW = 238, 242
        vt = 250; vHO = 2; vCSO = 3
        def acc(mat, ft, b): return ACC + 4 * (b + 2 * (mat + 2 * ft))
        a(f"v_and_b32 v{vt}, 15, v1", f"v_lshrrev_b32 v{vt+1}, 4, v1", f"v_bfe_u32 v{vt+2}, v1, 1, 3")
        a(f"v_xor_b32 v{vt+2}, v{vt+2}, v{vt+1}", f"v_lshlrev_b32 v{vt+2}, 4, v{vt+2}")
        a(f"s_lshl_b32 s{sA}, s{sW}, 12", f"s_add_u32 s{sA}, s{sA}, {RING}")
        a(f"v_lshl_add_u32 v{vt+3}, v{vt}, 7, s{sA}")
        for s_ in range(2):
            a(f"v_xor_b32 v{vAX+s_}, {64*s_}, v{vt+2}", f"v_add_u32 v{vAX+s_}, v{vAX+s_}, v{vt+3}")
            a(f"v_add_u32 v{vAX+2+s_}, 0x10000, v{vAX+s_}")
        a(f"v_bfe_u32 v{vt+2}, v1, 2, 2", f"v_lshl_add_u32 v{vt+2}, v{vt+1}, 3, v{vt+2}", f"v_lshlrev_b32 v{vt+2}, 7, v{vt+2}")
        a(f"v_and_b32 v{vt+3}, 3, v1", f"v_lshl_add_u32 v{vt+2}, v{vt+3}, 3, v{vt+2}")
        a(f"v_bfe_u32 v{vt+3}, v1, 3, 2", f"v_lshl_add_u32 v{vt+2}, v{vt+3}, 5, v{vt+2}")
        a(f"v_add_u32 v{vt+2}, {RING}, v{vt+2}")
        for ft in range(4):
            a(f"v_xor_b32 v{vAW+ft}, {32*ft}, v{vt+2}", f"v_add_u32 v{vAW+4+ft}, 0x10000, v{vAW+ft}")
        a(f"v_lshlrev_b32 v{vCSO}, 3, v1")
        a(f"v_lshlrev_b32 v{vHO}, 4, v1")
        a(f"v_lshlrev_b32 v{vt+4}, 3, v{vt}")
        for r in (CSX + 2, CSX + 3, CSX + 6, CSX + 7): a(f"v_mov_b32 v{r}, 0")
        self.get_nonce(vt)
        if "noprio" not in self.opts: a("s_setprio 1")
        self.stamp(1)
        FR = [(ft, mat) for ft in range(4) for mat in range(2)]
        def reads(p, g):
            n, s_ = divmod(g, 2)
            out = []
            grp = []
            if p == 0:
                sl = self.uslot(2 * n); win = sl // 4
                for b in range(2):
                    grp.append(f"ds_read_b128 v[{X+8*g+4*b}:{X+8*g+4*b+3}], v{vAX+2*win+s_} offset:{16384*(sl%4) + 2048*b}")
            sl = self.uslot(2 * n + 1 if p == 0 else 14 + n); win = sl // 4
            for k, (ft, mat) in enumerate(FR):
                for t in range(2):
                    off = 16384 * (sl % 4) + 4096 * s_ + 512 * t + 8192 * mat
                    grp.append(f"ds_read_b64_tr_b16 v[{AB+4*k+2*t}:{AB+4*k+2*t+1}], v{vAW+4*win+ft} offset:{off}")
                out.append(grp); grp = []
            return out
        def mfma(g, k, b):
            ft, mat = FR[k]
            d = acc(mat, ft, b)
            c = "0" if g == 0 else f"v[{d}:{d+3}]"
            return f"v_mfma_f32_16x16x32_bf16 v[{d}:{d+3}], v[{AB+4*k}:{AB+4*k+3}], v[{X+8*g+4*b}:{X+8*g+4*b+3}], {c}"
        def corr_loads(p):
            L = []
            for mat in range(2):
                L.append(f"buffer_load_dwordx2 v[{CSX+4*mat}:{CSX+4*mat+1}], v{vCSO}, {srd(S_WS)}, s{sB if mat == 0 else sC} offen offset:{512*p} sc1")
            if p == 0:
                for b in range(2):
                    L.append(f"buffer_load_dwordx2 v[{vt+2*b}:{vt+2*b+1}], v{vt+4}, {srd(S_WS)}, s{sD} offen offset:{128*b} sc1")
            return L
        a(f"s_lshl_b32 s{sB}, s{sJ}, 10", f"s_add_u32 s{sB}, s{sB}, {WS_CS}", f"s_add_u32 s{sC}, s{sB}, {1792*8}")
        a(f"s_lshl_b32 s{sA}, s{sI}, 2", f"s_add_u32 s{sA}, s{sA}, s{sW}")
        a(f"s_lshl_b32 s{sD}, s{sA}, 8", f"s_add_u32 s{sD}, s{sD}, {WS_NM}")
        a(f"s_mul_i32 s{sE}, s{sA}, 56", f"s_lshl_b32 s69, s{sJ}, 2", f"s_add_u32 s{sE}, s{sE}, s69", f"s_lshl_b32 s{sE}, s{sE}, 10")
        a(f"s_lshl_b32 s75, s{sA}, 7", f"s_add_u32 s75, s75, s69", f"s_add_u32 s75, s75, {WS_FH}")
        a("s_barrier")
        self.stamp(2)
        q = []
        def issue(grp, key):
            for r in grp: a(r); q.append(key)
        def need(key):
            idx = [i for i, t in enumerate(q) if t == key]
            if not idx: return
            n = len(q) - 1 - idx[-1]
            a(f"s_waitcnt lgkmcnt({min(n, 15)})")
            del q[:len(q) - min(n, 15)]
        for k, grp in enumerate(reads(0, 0)): issue(grp, (0, k))
        steps = [(p, g) for p in range(2) for g in range(14)]
        DELAY = int([o[2:] for o in self.opts if o.startswith('dl')][0]) if any(o.startswith('dl') for o in self.opts) else 3
        pend = []
        for si, (p, g) in enumerate(steps):
            nxt = steps[si + 1] if si + 1 < len(steps) else None
            rd = reads(*nxt) if nxt else [[]] * 8
            if "nords" in self.opts: rd = [[]] * 8
            boundary = nxt is not None and nxt[1] % 2 == 0
            if g == 0 and ("cycp%d" % p) in self.opts: self.cstamp(0)
            if g == 10:
                for l in corr_loads(p): self.vmem(l, "corr")
            WG_ = int([o[2:] for o in self.opts if o.startswith("wg")][0]) if any(o.startswith("wg") for o in self.opts) else 4
            def drain(maxn):
                n = 0
                while pend and n < maxn:
                    r, key = pend.pop(0); a(r); q.append(key); n += 1
            xr = [r for r in rd[0] if "b128" in r]
            blocked = boundary
            if not blocked: pend += [(r, (si + 1, 0)) for r in xr]
            held = []
            for k in range(8):
                for b in range(2):
                    if k % WG_ == 0 and b == 0:
                        key = (si, k + WG_ - 1)
                        while any(x[1][0] == si and x[1][1] <= key[1] for x in pend): drain(1)
                        need(key)
                    a(mfma(g, k, b))
                    if b == 1:
                        new_r = [(r, (si + 1, k)) for r in rd[k] if "b128" not in r]
                        if blocked: held += new_r
                        else: pend += new_r
                        if blocked and k == DELAY - 1:
                            drain(99)
                            a("s_waitcnt lgkmcnt(0)"); q.clear()
                            if "nobar" not in self.opts: a("s_barrier")
                            if ("cycp%d" % p) in self.opts: self.cstamp(1 + g // 2)
                            pend += [(r, (si + 1, 0)) for r in xr] + held
                            blocked = False
                    drain(2 if len(pend) > 2 else 1)
            if g == 13: drain(99)
            if g == 13:
                self.stamp(3 + 2 * p)
                if ("cycp%d" % p) in self.opts: self.cstamp(8)
                chk = [CSX + 1, CSX + 5] + ([vt + 1, vt + 3] if p == 0 else [])
                self.spin(corr_loads(p), chk, first_issued_tag="corr")
                a(f"v_mov_b32 v{CSX+1}, 0", f"v_mov_b32 v{CSX+5}, 0")
                if p == 0:
                    a(f"v_lshrrev_b32 v{vt+1}, 4, v1")
                    for ft in range(4):
                        a(f"v_cmp_eq_u32 vcc, {ft}, v{vt+1}")
                        for b in range(2):
                            a(f"v_cndmask_b32 v{NMX+2*(2*ft+b)}, 0, v{vt+2*b}, vcc", f"v_mov_b32 v{NMX+2*(2*ft+b)+1}, 0")
                    a(f"v_mov_b32 v{NMX+16}, 0", f"v_mov_b32 v{NMX+17}, 0")
                for ft in range(4):
                    for b in range(2):
                        for mat in range(2):
                            d = acc(mat, ft, b); nb = NMX + 2 * (2 * ft + b)
                            a(f"v_mfma_f32_16x16x32_bf16 v[{d}:{d+3}], v[{CSX+4*mat}:{CSX+4*mat+3}], v[{nb}:{nb+3}], v[{d}:{d+3}]")
                for e in range(2):
                    for b in range(2):
                        o = acc(0, 2 * e, b)
                        for ft in (2 * e, 2 * e + 1):
                            g_, u_ = acc(0, ft, b), acc(1, ft, b)
                            for i in range(4): a(f"v_max_f32 v{g_+i}, 0, v{g_+i}")
                            for i in (0, 2): a(f"v_pk_mul_f32 v[{u_+i}:{u_+i+1}], v[{g_+i}:{g_+i+1}], v[{u_+i}:{u_+i+1}]")
                        for ft in (2 * e, 2 * e + 1):
                            u_ = acc(1, ft, b)
                            for i in range(2): a(f"v_cvt_pk_bf16_f32 v{o+2*(ft&1)+i}, v{u_+2*i}, v{u_+2*i+1}")
                        self.vmem(f"buffer_store_dwordx4 v[{o}:{o+3}], v{vHO}, {srd(S_WS)}, s{sE} offen offset:{1024*(2*e+b)} sc1", "hst")
                if p == 0:
                    a(f"s_add_u32 s{sE}, s{sE}, {64*56*1024}")
                self.stamp(4 + 2 * p)
                if ("cycp%d" % p) in self.opts: self.cstamp(9)
            if p == 1 and g == 12 and self.stage >= 4:
                self.fh_setup(255)
                self.vmem(f"buffer_load_dword v254, v255, {srd(S_WS)}, 0 offen sc1", "fl0")
            if p == 1 and g == 5:
                self.wait_vm("hst")
                a(f"v_mov_b32 v{vt}, s{sTAG}")
                self.vmem(f"buffer_store_dword v{vt}, off, {srd(S_WS)}, s75 sc1", "flag")
        if self.stage < 4:
            a("s_barrier")
            self.wait_vm_all()
            a(f"v_mov_b32 v{vt}, s{sTAG}")
            a(f"buffer_store_dword v{vt}, off, {srd(S_WS)}, s75 offset:64 sc1")
            self.stamp(7)
            self.write_stamps(0)
            a("s_endpgm")
            return
        self.gemm2()

    def final_pre(self, vX, vR2, vt):
        a = self.a
        a(f"s_and_b32 s{sA}, s{sW}, 3", f"s_lshl_b32 s{sA}, s{sA}, 4", f"s_lshl_b32 s{sB}, s{sI2}, 6", f"s_add_u32 s{sA}, s{sA}, s{sB}")
        a(f"v_and_b32 v{vt+1}, 15, v1", f"v_add_u32 v{vt+1}, s{sA}, v{vt+1}")
        a(f"v_mul_u32_u24 v{vt}, 896, v{vt+1}")
        a(f"v_and_b32 v{vt+2}, 48, v1", f"v_add_u32 v{vt}, v{vt}, v{vt+2}")
        a(f"s_lshr_b32 s{sA}, s{sW}, 2", f"s_lshl_b32 s{sA}, s{sA}, 6", f"s_lshl_b32 s{sB}, s{sJ2}, 7", f"s_add_u32 s{sA}, s{sA}, s{sB}")
        a(f"v_add_u32 v{vt}, s{sA}, v{vt}")
        a(f"v_lshlrev_b32 v{vt+1}, 3, v{vt+1}", f"v_add_u32 v{vt+1}, {WS_R2}, v{vt+1}")
        self.vmem(f"buffer_load_dwordx4 v[{vX}:{vX+3}], v{vt}, {srd(S_X)}, 0 offen", "fx")
        self.r2load = f"buffer_load_dwordx2 v[{vR2}:{vR2+1}], v{vt+1}, {srd(S_WS)}, 0 offen sc1"
        self.vmem(self.r2load, "fx")

    def final(self, vX, vR2, vO, T, which):
        a = self.a
        self.spin([self.r2load], [vR2 + 1], first_issued_tag="fx")
        vA, vB = T, T + 1
        P = T + 4; Y = T + 36
        a(f"s_and_b32 s{sA}, s{sW}, 3", f"s_lshr_b32 s{sB}, s{sW}, 2")
        a(f"v_and_b32 v{vA}, 15, v1", f"v_mul_u32_u24 v{vA}, 272, v{vA}", f"v_lshrrev_b32 v{vB}, 4, v1", f"v_lshl_add_u32 v{vA}, v{vB}, 5, v{vA}")
        a(f"s_mul_i32 s{sC}, s{sA}, {16*272}", f"s_lshl_b32 s{sD}, s{sB}, 7", f"s_add_u32 s{sC}, s{sC}, s{sD}", f"s_add_u32 s{sC}, s{sC}, {RING}")
        a(f"v_add_u32 v{vA}, s{sC}, v{vA}", f"v_add_u32 v{vA+2}, {2*28672}, v{vA}")
        a(f"v_lshrrev_b32 v{vB}, 5, v1", f"v_mul_u32_u24 v{vB}, 2304, v{vB}")
        a(f"v_bfe_u32 v{vA+3}, v1, 4, 1", f"v_lshlrev_b32 v{vA+3}, 3, v{vA+3}", f"v_bfe_u32 v{Y}, v1, 2, 2", f"v_add_u32 v{vA+3}, v{vA+3}, v{Y}")
        a(f"v_mul_u32_u24 v{vA+3}, 144, v{vA+3}", f"v_add_u32 v{vB}, v{vB}, v{vA+3}")
        a(f"v_and_b32 v{vA+3}, 3, v1", f"v_lshl_add_u32 v{vB}, v{vA+3}, 3, v{vB}")
        a(f"s_mul_i32 s{sC}, s{sB}, 8320", f"s_lshl_b32 s{sD}, s{sA}, 5", f"s_add_u32 s{sC}, s{sC}, s{sD}")
        a(f"v_add_u32 v{vB}, s{sC}, v{vB}")
        a("s_waitcnt lgkmcnt(0)", "s_barrier")
        self.stamp(8)
        for m in range(4):
            for h in range(2):
                a(f"ds_read_b128 v[{P+8*m+4*h}:{P+8*m+4*h+3}], v{vA + 2*(m//2)} offset:{28672*(m%2) + 16*h}")
        for t in range(2): a(f"ds_read_b64_tr_b16 v[{Y+2*t}:{Y+2*t+1}], v{vB} offset:{4*144*t}")
        E = Y + 4
        for i in range(4): a(f"v_lshlrev_b32 v{E+2*i}, 16, v{vX+i}", f"v_and_b32 v{E+2*i+1}, 0xffff0000, v{vX+i}")
        a("s_waitcnt lgkmcnt(6)")
        for i in range(0, 8, 2): a(f"v_pk_add_f32 v[{P+i}:{P+i+1}], v[{P+i}:{P+i+1}], v[{P+8+i}:{P+8+i+1}]")
        a("s_waitcnt lgkmcnt(2)")
        for i in range(0, 8, 2): a(f"v_pk_add_f32 v[{P+16+i}:{P+16+i+1}], v[{P+16+i}:{P+16+i+1}], v[{P+24+i}:{P+24+i+1}]")
        for i in range(0, 8, 2): a(f"v_pk_add_f32 v[{P+i}:{P+i+1}], v[{P+i}:{P+i+1}], v[{P+16+i}:{P+16+i+1}]")
        a("s_waitcnt lgkmcnt(0)")
        for i in range(4): a(f"v_lshlrev_b32 v{P+8+2*i}, 16, v{Y+i}", f"v_and_b32 v{P+8+2*i+1}, 0xffff0000, v{Y+i}")
        for i in range(0, 8, 2): a(f"v_pk_add_f32 v[{E+i}:{E+i+1}], v[{E+i}:{E+i+1}], v[{P+8+i}:{P+8+i+1}]")
        for i in range(8): a(f"v_fmac_f32 v{E+i}, v{P+i}, v{vR2}")
        for i in range(4): a(f"v_cvt_pk_bf16_f32 v{P+16+i}, v{E+2*i}, v{E+2*i+1}")
        a(f"buffer_store_dwordx4 v[{P+16}:{P+19}], v{vO}, {srd(S_OUT)}, 0 offen")
        self.stamp(9)
        self.write_stamps(which)
        a("s_endpgm")

    def fh_setup(self, vFO):
        a = self.a
        a(f"s_mul_i32 s{sA}, s{sW}, 7", f"s_lshr_b32 s{sA}, s{sA}, 1", f"s_lshl_b32 s{sA}, s{sA}, 2")
        a(f"s_lshl_b32 s69, s{sI2}, 8", f"s_add_u32 s{sA}, s{sA}, s69", f"s_add_u32 s{sA}, s{sA}, {WS_FH}")
        a(f"v_bfe_u32 v{vFO}, v1, 2, 1", f"v_lshlrev_b32 v{vFO}, 5, v{vFO}", f"v_and_or_b32 v{vFO}, v1, 3, v{vFO}")
        a(f"v_lshl_add_u32 v{vFO}, v{vFO}, 2, s{sA}")

    def gemm2(self):
        a = self.a
        WD, ACC, HB = 4, 116, 180
        vHO = 2; vFO = 255; vFL = 254
        vAD = 244
        voD = 3; vt = 248; vX = 248
        vR2 = 252; vO = 0
        sH0, sH1, sDo, sJa, sJb, sM = 48, 49, 50, 51, 52, 53
        a(f"v_lshrrev_b32 v{vt}, 2, v1", f"v_lshlrev_b32 v{vt}, 7, v{vt}", f"v_and_b32 v{vt+1}, 3, v1", f"v_lshl_add_u32 v{vt}, v{vt+1}, 3, v{vt}")
        a(f"v_bfe_u32 v{vt+1}, v1, 3, 2", f"v_lshl_add_u32 v{vt}, v{vt+1}, 5, v{vt}")
        a(f"s_mul_i32 s{sM}, s{sW}, 28672", f"s_add_u32 s{sM}, s{sM}, {RING}", f"v_add_u32 v{vt}, s{sM}, v{vt}")
        for dt in range(4): a(f"v_xor_b32 v{vAD+dt}, {32*dt}, v{vt}")
        def wdread(n):
            return [f"ds_read_b64_tr_b16 v[{WD+16*n+4*dt+2*t}:{WD+16*n+4*dt+2*t+1}], v{vAD+dt} offset:{4096*n + 2048*t}" for dt in range(4) for t in range(2)]
        a(f"s_mul_i32 s{sH0}, s{sI2}, 56", f"s_mul_i32 s{sA}, s{sW}, 7", f"s_add_u32 s{sH0}, s{sH0}, s{sA}", f"s_lshl_b32 s{sH0}, s{sH0}, 11")
        a(f"s_add_u32 s{sH1}, s{sH0}, {28*2048}")
        def hload(s_):
            buf = HB + 16 * (s_ % 4)
            if s_ == 7:
                for r in (sH0, sH1): a(f"s_add_u32 s{r}, s{r}, {64*56*1024 - 6*2048}")
            elif s_ % 7 and (s_ % 7) % 2 == 0:
                for r in (sH0, sH1): a(f"s_add_u32 s{r}, s{r}, 4096")
            for lt in range(2):
                for b in range(2):
                    off = 2048 * ((s_ % 7) % 2) + 1024 * b
                    self.vmem(f"buffer_load_dwordx4 v[{buf+8*lt+4*b}:{buf+8*lt+4*b+3}], v{vHO}, {srd(S_WS)}, s{sH1 if lt else sH0} offen offset:{off} sc1", f"h{s_}")
        fl = lambda p: f"buffer_load_dword v{vFL}, v{vFO}, {srd(S_WS)}, 0 offen offset:{64*p} sc1"
        self.spin([fl(0)], [vFL], first_issued_tag="fl0")
        for s_ in range(4): hload(s_)
        a("s_barrier")
        self.stamp(7)
        for n in range(7):
            for r in wdread(n): a(r)
        a(f"v_lshrrev_b32 v{vt}, 3, v1", f"v_mul_u32_u24 v{vt}, 896, v{vt}", f"v_lshrrev_b32 v{vt+1}, 4, v1", f"v_lshlrev_b32 v{vt+1}, 1, v{vt+1}")
        a(f"v_and_b32 v{vt+2}, 7, v1", f"v_xor_b32 v{vt+1}, v{vt+1}, v{vt+2}", f"v_lshl_add_u32 v{voD}, v{vt+1}, 4, v{vt}")
        a(f"s_mul_i32 s{sA}, s{sW}, 28", f"s_lshr_b32 s{sB}, s{sA}, 3", f"s_lshl_b32 s{sB}, s{sB}, 7", f"s_and_b32 s{sA}, s{sA}, 7", f"s_lshl_b32 s{sA}, s{sA}, 3")
        a(f"s_add_u32 s{sA}, s{sA}, s{sB}", f"s_add_u32 s{sA}, s{sA}, 64", f"s_mul_i32 s{sDo}, s{sA}, 896", f"s_lshl_b32 s{sA}, s{sJ2}, 7", f"s_add_u32 s{sDo}, s{sDo}, s{sA}")
        a(f"s_and_b32 s{sA}, s{sW}, 1", f"s_mul_i32 s{sA}, s{sA}, {64*896}")
        a(f"s_add_u32 s{sJb}, s{sA}, {8*896}", f"s_sub_u32 s{sJa}, {72*896}, s{sA}")
        def d2(n):
            for k in range(4):
                i = 4 * n + k
                if i:
                    inc = f"s{sJa}" if i % 8 == 0 else (f"s{sJb}" if i % 8 == 4 else f"{8*896}")
                    a(f"s_add_u32 s{sDo}, s{sDo}, {inc}")
                a(f"s_add_u32 m0, s{sM}, {1024*i}")
                self.vmem(f"buffer_load_dwordx4 v{voD}, {srd(S_WD)}, s{sDo} offen lds", f"d{n}")
        self.wait_vm("hst")
        a(f"v_mov_b32 v{vt}, s{sTAG}")
        self.vmem(f"buffer_store_dword v{vt}, off, {srd(S_WS)}, s75 offset:64 sc1", "flag")
        a("s_waitcnt lgkmcnt(0)")
        d2(0); d2(1)
        for s_ in range(14):
            n = s_ % 7
            self.wait_vm(f"h{s_}")
            if 7 <= s_ <= 10: a("s_waitcnt lgkmcnt(8)")
            if s_ == 11: a("s_waitcnt lgkmcnt(0)")
            if 3 <= s_ < 10: self.wait_vm(f"d{s_-3}")
            rd = wdread(s_ - 3) if 3 <= s_ < 10 else []
            buf = HB + 16 * (s_ % 4)
            i = 0
            for lb in range(4):
                for dt in range(4):
                    d = ACC + 4 * (4 * dt + lb)
                    c = "0" if s_ == 0 else f"v[{d}:{d+3}]"
                    a(f"v_mfma_f32_16x16x32_bf16 v[{d}:{d+3}], v[{WD+16*n+4*dt}:{WD+16*n+4*dt+3}], v[{buf+4*lb}:{buf+4*lb+3}], {c}")
                    if rd and i % 2 == 0: a(rd.pop(0))
                    i += 1
            if s_ == 3: self.spin([fl(1)], [vFL], first_issued_tag="fl1")
            if s_ + 4 < 14: hload(s_ + 4)
            if s_ + 2 < 7: d2(s_ + 2)
            if s_ == 1: self.vmem(fl(1), "fl1")
        self.final_pre(vX, vR2, 244)
        a(f"v_mov_b32 v{vO}, v244")
        a(f"v_and_b32 v246, 15, v1", f"v_mul_u32_u24 v246, 272, v246", f"v_and_b32 v247, 48, v1", f"v_add3_u32 v246, v246, v247, s{sM}")
        for lb in range(4):
            for dt in range(4):
                d = ACC + 4 * (4 * dt + lb)
                a(f"ds_write_b128 v246, v[{d}:{d+3}] offset:{16*272*lb + 64*dt}")
        self.final(vX, vR2, vO, 4, 0)

    def dma_unit(self, u):
        a = self.a
        if "nodma" in self.opts: return
        if "nod1" in self.opts and u >= 21: return
        base = slot_addr(self.uslot(u))
        tag = f"u{u}"
        if u < 14 and u % 2 == 0:
            n = u // 2
            a(f"s_lshl_b32 s{sA}, s{self.sCH+n}, 7", f"s_add_u32 s{sA}, s{sA}, s{self.sXB}")
            for k in range(4):
                a(f"s_add_u32 m0, s{self.sM0}, {base + 4096*k}")
                if k: a(f"s_add_u32 s{sA}, s{sA}, {32*896}")
                self.vmem(f"buffer_load_dwordx4 v{self.voX}, {srd(S_X)}, s{sA} offen lds", tag)
        elif u < 21:
            p, n = (0, u // 2) if u < 14 else (1, u - 14)
            a(f"s_mul_i32 s{sA}, s{self.sCH+n}, {64*3584}", f"s_add_u32 s{sA}, s{sA}, s{self.sWB}")
            if p: a(f"s_add_u32 s{sA}, s{sA}, 128")
            a(f"s_add_u32 s{sB}, s{sA}, {32*3584}")
            for up in range(2):
                for k in range(2):
                    a(f"s_add_u32 m0, s{self.sM0}, {base + 8192*up + 4096*k}")
                    self.vmem(f"buffer_load_dwordx4 v{self.voW}, {srd(S_WU if up else S_WG)}, s{sB if k else sA} offen lds", tag)
        else:
            t = u - 21
            for k in range(4):
                f0 = 128 * (2 * t + (k >> 1)) + 32 * (k & 1)
                a(f"s_add_u32 m0, s{self.sM0}, {base + 4096*k}")
                a(f"s_add_u32 s{sA}, s{self.sDB}, {f0*896}")
                self.vmem(f"buffer_load_dwordx4 v{self.voD}, {srd(S_WD)}, s{sA} offen lds", tag)

    def aux(self):
        a = self.a
        self.vm = []
        a("L_aux:")
        self.voX, self.voW, self.voD = 2, 3, 4
        self.sCH = 48
        self.sXB, self.sWB, self.sDB, self.sM0 = 55, 56, 57, 58
        sAW = 59
        self.sAW = sAW
        vt = 5
        a(f"s_sub_u32 s{sAW}, s{sW}, 4")
        a(f"s_lshl_b32 s{self.sM0}, s{sAW}, 10")
        a(f"s_mov_b32 s{self.sCH}, s{sC0}")
        for n in range(1, 7):
            a(f"s_add_u32 s{self.sCH+n}, s{self.sCH+n-1}, 1", f"s_cmp_eq_u32 s{self.sCH+n}, 7", f"s_cselect_b32 s{self.sCH+n}, 0, s{self.sCH+n}")
        a(f"v_lshrrev_b32 v{vt}, 3, v1", f"v_and_b32 v{vt+1}, 7, v1", f"v_lshrrev_b32 v{vt+2}, 4, v1")
        a(f"s_and_b32 s{sA}, s{sAW}, 1", f"s_lshl_b32 s{sA}, s{sA}, 2")
        a(f"v_add_u32 v{vt+3}, s{sA}, v{vt+2}", f"v_xor_b32 v{vt+3}, v{vt+3}, v{vt+1}")
        a(f"v_mul_u32_u24 v{vt+4}, 896, v{vt}", f"v_lshl_add_u32 v{self.voX}, v{vt+3}, 4, v{vt+4}")
        a(f"v_lshlrev_b32 v{vt+3}, 1, v{vt+2}", f"v_xor_b32 v{vt+3}, v{vt+3}, v{vt+1}")
        a(f"v_lshl_add_u32 v{self.voD}, v{vt+3}, 4, v{vt+4}")
        a(f"v_and_b32 v{vt+3}, 1, v{vt+2}", f"v_lshlrev_b32 v{vt+3}, 1, v{vt+3}", f"v_or_b32 v{vt+3}, s{sA}, v{vt+3}", f"v_xor_b32 v{vt+3}, v{vt+3}, v{vt+1}")
        a(f"v_mul_u32_u24 v{vt+4}, 3584, v{vt}", f"v_lshl_add_u32 v{self.voW}, v{vt+3}, 4, v{vt+4}")
        a(f"s_lshl_b32 s{sA}, s{sI}, 4", f"s_add_u32 s{sA}, s{sA}, s{sAW}", f"s_mul_i32 s{self.sXB}, s{sA}, {8*896}")
        a(f"s_mul_i32 s{sA}, s{sAW}, {8*3584}", f"s_lshl_b32 s{sB}, s{sJ}, 8", f"s_add_u32 s{self.sWB}, s{sA}, s{sB}")
        a(f"s_mul_i32 s{sA}, s{sAW}, {8*896}", f"s_lshl_b32 s{sB}, s{sJ2}, 7", f"s_add_u32 s{self.sDB}, s{sA}, s{sB}")
        ssm = self.ssm_pre() if self.stage >= 3 else None
        for u in range(4): self.dma_unit(u)
        self.stamp(1)
        nxt = 4
        for n in range(15):
            if ssm: ssm(n)
            need = 2 * n + 1 if n < 7 else (14 + n - 7 if n < 14 else 27)
            self.wait_vm(f"u{need}")
            if "nobar" not in self.opts or n in (0, 14): a("s_barrier")
            if n == 0: self.stamp(2)
            lim = 8 + (2 * n if n <= 7 else 14 + (n - 7))
            cnt = 0
            while nxt < min(lim, 28) and cnt < 3:
                self.dma_unit(nxt); nxt += 1; cnt += 1
        assert nxt == 28
        self.stamp(3)
        if self.stage < 3:
            self.write_stamps(1)
            a("s_endpgm"); return
        self.conv()

    def ssm_pre(self):
        a = self.a
        sAW = self.sAW
        PRM, vWA, vRA, KD, BF, AF, T = 10, 18, 34, 44, 60, 92, 124
        self.KD = KD
        vt = 5
        sLD, sDS = 78, 79
        a(f"s_lshl_b32 s{sA}, s{sT}, 2")
        a(f"s_load_dword s{sLD}, s[42:43], s{sA}", f"s_load_dword s{sDS}, s[44:45], s{sA}")
        a(f"s_lshl_b32 s{sA}, s{sT}, 10", f"s_lshl_b32 s{sB}, s{sAW}, 8", f"s_add_u32 s{sA}, s{sA}, s{sB}")
        a(f"v_lshl_add_u32 v{vt}, v1, 1, s{sA}")
        for b in range(2):
            for k in range(4):
                self.vmem(f"global_load_ushort v{PRM+4*b+k}, v{vt}, s[{34+2*k}:{35+2*k}] offset:{128*b}", "prm")
        L = []
        e = lambda *x: L.extend(x)
        e(f"s_lshl_b32 s{sC}, s{sAW}, 13")
        e(f"v_lshlrev_b32 v{vt}, 2, v1")
        for k in range(16): e(f"v_xor_b32 v{vWA+k}, {16*k}, v{vt}", f"v_add_u32 v{vWA+k}, s{sC}, v{vWA+k}")
        e(f"v_and_b32 v{vt}, 15, v1", f"v_lshrrev_b32 v{vt+1}, 5, v1", f"v_xor_b32 v{vt}, v{vt}, v{vt+1}", f"v_lshlrev_b32 v{vt}, 4, v{vt}")
        e(f"v_and_b32 v{vt+1}, 31, v1", f"v_lshl_add_u32 v{vt+1}, v{vt+1}, 8, s{sC}")
        for k in range(8): e(f"v_xor_b32 v{vRA+k}, {32*k}, v{vt}", f"v_add_u32 v{vRA+k}, v{vRA+k}, v{vt+1}")
        vDT = 42
        e("s_waitcnt lgkmcnt(0)")
        e(f"s_lshr_b32 s{sC}, s{sAW}, 1", f"s_lshl_b32 s{sC}, s{sC}, 4")
        for r in (sLD, sDS): e(f"s_lshr_b32 s{r}, s{r}, s{sC}", f"s_lshl_b32 s{r}, s{r}, 16")
        import numpy as np
        chi = float(np.frombuffer(np.uint32(np.float32(LOG2E).view(np.uint32) & 0xFFFFFF00).tobytes(), np.float32)[0]); clo = LOG2E - chi
        e(f"v_mov_b32 v{vt}, s{sLD}", f"v_mul_f32 v{vt+1}, {f32(chi)}, v{vt}", f"v_mul_f32 v{vt}, {f32(clo)}, v{vt}")
        e(f"v_exp_f32 v{vt+1}, v{vt+1}", f"v_exp_f32 v{vt}, v{vt}", f"v_mul_f32 v{vDT}, v{vt}, v{vt+1}")
        e(f"v_cvt_pk_bf16_f32 v{vDT}, v{vDT}, v{vDT}", f"v_lshlrev_b32 v{vDT}, 16, v{vDT}")
        e("@prm")
        def cmul(d, x, y, conj=False):
            t0, t1 = T + 60, T + 61
            if not conj:
                e(f"v_mul_f32 v{t0}, v{x+1}, v{y+1}", f"v_mul_f32 v{t1}, v{x+1}, v{y}")
                e(f"v_fma_f32 v{t1}, v{x}, v{y+1}, v{t1}" if d == x else f"v_fma_f32 v{d+1}, v{x}, v{y+1}, v{t1}")
                e(f"v_fma_f32 v{d}, v{x}, v{y}, -v{t0}")
                if d == x: e(f"v_mov_b32 v{d+1}, v{t1}")
        def cmul_inplace(x, y, tt):
            e(f"v_mul_f32 v{tt}, v{x+1}, v{y+1}", f"v_mul_f32 v{tt+1}, v{x}, v{y+1}")
            e(f"v_fma_f32 v{x}, v{x}, v{y}, -v{tt}", f"v_fma_f32 v{x+1}, v{x+1}, v{y}, v{tt+1}")
        def cmul_to(d, x, y, tt):
            e(f"v_mul_f32 v{tt}, v{x+1}, v{y+1}", f"v_mul_f32 v{tt+1}, v{x}, v{y+1}")
            e(f"v_fma_f32 v{d}, v{x}, v{y}, -v{tt}", f"v_fma_f32 v{d+1}, v{x+1}, v{y}, v{tt+1}")
        pk = [0]
        def put(x, rows):
            r = T + 50 + (pk[0] % 4); pk[0] += 1
            e(f"v_cvt_pk_bf16_f32 v{r}, v{x}, v{x+1}")
            for row in rows: e(f"ds_write_b32 v{vWA + (row & 15)}, v{r} offset:{256*row}")
        def arow(hh, reg): return 8 * (reg >> 2) + 4 * hh + (reg & 3)
        P1 = {}
        for reg, p in enumerate(list(range(9)) + [512, 516, 520, 1024, 1032, 1536, 1544]): P1.setdefault(p, []).append(arow(0, reg))
        for reg, p in enumerate([256, 256, 258, 260, 260, 260, 262, 264, 264, 768, 772, 776, 1280, 1288, 1792, 1800]): P1.setdefault(p, []).append(arow(1, reg))
        va, vb = T, T + 1
        W1, W8, W32, W256, Q8 = T + 2, T + 4, T + 6, T + 8, T + 10
        E = T + 12
        V = T + 20
        tt = T + 40
        for b in range(2):
            p_ = PRM + 4 * b
            for k in range(4): e(f"v_lshlrev_b32 v{p_+k}, 16, v{p_+k}")
            e(f"v_mul_f32 v{va}, {f32(LOG2E)}, v{p_}", f"v_exp_f32 v{va}, v{va}")
            e(f"v_mul_f32 v{vb}, v{p_+1}, v{vDT}")
            e(f"v_cvt_pk_bf16_f32 v{va}, v{va}, v{va}", f"v_mul_f32 v{vb}, 0.15915494, v{vb}", f"v_lshlrev_b32 v{va}, 16, v{va}")
            e(f"v_mul_f32 v{va}, v{va}, v{vDT}", f"v_mul_f32 v{V}, v{p_+2}, v{vDT}", f"v_mul_f32 v{V+1}, v{p_+3}, v{vDT}")
            e(f"v_mul_f32 v{va}, {f32(-LOG2E)}, v{va}", f"v_add_f32 v{V}, v{V}, v{V}", f"v_add_f32 v{V+1}, v{V+1}, v{V+1}")
            for (w, p) in ((W8, 8), (W32, 32), (W1, 1), (W256, 256)):
                if p == 1:
                    e(f"v_exp_f32 v{tt}, v{va}", f"v_fract_f32 v{tt+1}, v{vb}")
                else:
                    e(f"v_mul_f32 v{tt}, {f32(p)}, v{va}", f"v_mul_f32 v{tt+1}, {f32(p)}, v{vb}")
                    e(f"v_exp_f32 v{tt}, v{tt}", f"v_fract_f32 v{tt+1}, v{tt+1}")
                e(f"v_cos_f32 v{w}, v{tt+1}", f"v_sin_f32 v{w+1}, v{tt+1}")
                e(f"v_mul_f32 v{w}, v{w}, v{tt}")
                e(f"v_mul_f32 v{w+1}, v{w+1}, v{tt}" if p != 32 else f"v_mul_f32_e64 v{w+1}, -v{w+1}, v{tt}")
            e(f"v_mov_b32 v{E}, 1.0", f"v_mov_b32 v{E+1}, 0", f"v_mov_b32 v{E+2}, v{W8}", f"v_sub_f32 v{E+3}, 0, v{W8+1}")
            cmul_to(E + 4, E + 2, E + 2, tt); cmul_to(E + 6, E + 4, E + 2, tt + 2)
            for j in range(32):
                c = E + 2 * (j % 4)
                put(c, [j])
                if j + 4 < 32: cmul_inplace(c, W32, tt + 2 * (j % 4))
            for k in range(8): e(f"ds_read_b128 v[{BF+4*k}:{BF+4*k+3}], v{vRA+k}")
            cmul_to(V + 16, V, W8, tt)
            for k in range(1, 8): cmul_to(V + 2 * k, V + 2 * k - 2, W1, tt + 2 * (k % 4))
            for k in range(9): put(V + 2 * k, P1[k])
            for base, ks in ((256, (0, 2, 4, 6, 8)), (512, (0, 4, 8)), (768, (0, 4, 8)), (1024, (0, 8)), (1280, (0, 8)), (1536, (0, 8)), (1792, (0, 8))):
                for i, k in enumerate(ks): cmul_inplace(V + 2 * k, W256, tt + 2 * (i % 4))
                for k in ks: put(V + 2 * k, P1[base + k])
            for k in range(8): e(f"ds_read_b128 v[{AF+4*k}:{AF+4*k+3}], v{vRA+k}")
            for k in range(8):
                e(f"s_waitcnt lgkmcnt({7-k})")
                c = "0" if (b == 0 and k == 0) else f"v[{KD}:{KD+15}]"
                e(f"v_mfma_f32_32x32x16_bf16 v[{KD}:{KD+15}], v[{AF+4*k}:{AF+4*k+3}], v[{BF+4*k}:{BF+4*k+3}], {c}")
        NS = 10
        first = int(len(L) * 0.25)
        cuts = [0, first] + [first + (len(L) - first) * i // (NS - 1) for i in range(1, NS)]
        def ssm(n):
            if n < NS:
                for x in L[cuts[n]:cuts[n + 1]]:
                    if x == "@prm": self.wait_vm("prm")
                    else: a(x)
            vA = vt
            if n == 10:
                a(f"s_lshl_b32 s{sC}, s{sAW}, 13", f"v_lshl_add_u32 v{vA}, v1, 4, s{sC}")
                for k in range(4): a(f"ds_write_b128 v{vA}, v[{KD+4*k}:{KD+4*k+3}] offset:{1024*k}")
                self.vmem(f"buffer_load_dword v43, off, {srd(S_DBG)}, 0 sc1", "non")
                a("s_waitcnt lgkmcnt(0)")
            if n == 11:
                a(f"v_xor_b32 v{vA}, 0x2000, v{vA}")
                for k in range(4): a(f"ds_read_b128 v[{BF+4*k}:{BF+4*k+3}], v{vA} offset:{1024*k}")
                a("s_waitcnt lgkmcnt(0)")
                for k in range(16): a(f"v_add_f32 v{KD+k}, v{KD+k}, v{BF+k}")
                a(f"v_cmp_eq_u32 vcc, 0, v1", f"v_mov_b32 v{vA+1}, s{sDS}", f"v_cndmask_b32 v{vA+1}, 0, v{vA+1}, vcc", f"v_add_f32 v{KD}, v{KD}, v{vA+1}")
            if n == 12:
                O = AF
                a(f"s_lshr_b32 s{sC}, s{sAW}, 1", f"s_mul_i32 s{sD}, s{sC}, {QB[1]}")
                a(f"v_lshl_add_u32 v{vA}, v1, 5, s{sD}")
                a(f"v_and_b32 v{vA+1}, 1, v1", f"v_cmp_eq_u32 vcc, 1, v{vA+1}")
                blocks = [[KD + i for i in range(9)], [KD + 9] * 3 + [KD + 10] * 3 + [KD + 11] * 3]
                for k, r0 in enumerate((KD + 12, KD + 14)):
                    a(f"v_cndmask_b32 v{vA+2+k}, v{r0}, v{r0+1}, vcc")
                    blocks.append([r0] * 4 + [vA + 2 + k] + [r0 + 1] * 4)
                for bi, v in enumerate(blocks):
                    for e_ in range(8): a(f"v_cvt_pk_bf16_f32 v{O+8*bi+e_}, v{v[e_+1]}, v{v[e_]}")
                    for h in range(2): a(f"ds_write_b128 v{vA}, v[{O+8*bi+4*h}:{O+8*bi+4*h+3}] offset:{64 + 2048*bi + 16*h}")
                a(f"v_readfirstlane_b32 s{sE}, v{O}")
                a(f"s_lshr_b32 s{sE}, s{sE}, 16", f"v_mov_b32 v{vA+1}, s{sE}", f"v_and_b32 v{vA+2}, 15, v1", f"v_cmp_eq_u32 vcc, 15, v{vA+2}")
                a(f"v_cndmask_b32 v{vA+1}, 0, v{vA+1}, vcc", f"v_lshl_add_u32 v{vA+2}, v{vA+2}, 2, s{sD}")
                a(f"ds_write_b32 v{vA+2}, v{vA+1}")
                a(f"s_mul_i32 s{sD}, s{sC}, {UB[1]-UB[0]}", f"v_lshl_add_u32 v{vA+2}, v1, 3, s{sD}")
                a(f"v_mov_b32 v{O+32}, 0", f"v_mov_b32 v{O+33}, 0")
                a(f"ds_write_b64 v{vA+2}, v[{O+32}:{O+33}] offset:{UB[0]}")
                a(f"v_mov_b32 v{vA+2}, {AUXCNT}", f"ds_write_b64 v{vA+2}, v[{O+32}:{O+33}]")
                a("s_waitcnt lgkmcnt(0)")
            if n == 13:
                self.get_nonce(43, issued="non")
        return ssm

    def conv(self):
        a = self.a
        sAW = self.sAW
        vt = 5
        ACC, AF, BF, vQA, vUA = 12, 44, 108, 172, 180
        sCH_, sPT = 48, 49
        a(f"s_lshr_b32 s{sCH_}, s{sAW}, 1", f"s_and_b32 s{sPT}, s{sAW}, 1")
        a(f"v_and_b32 v{vt}, 31, v1", f"v_lshlrev_b32 v{vt}, 2, v{vt}", f"v_add_u32 v{vt}, {WS_FX}, v{vt}")
        self.spin([f"buffer_load_dword v{vt+1}, v{vt}, {srd(S_WS)}, 0 offen sc1"], [vt + 1])
        self.stamp(4)
        a(f"v_lshrrev_b32 v{vt}, 3, v1", f"v_mul_u32_u24 v{vt}, {448*128}, v{vt}", f"v_and_b32 v{vt+1}, 7, v1", f"v_lshl_add_u32 v{vt}, v{vt+1}, 4, v{vt}")
        a(f"s_lshl_b32 s{sA}, s{sT}, 1", f"s_add_u32 s{sE}, s{sA}, s{sCH_}", f"s_lshl_b32 s{sA}, s{sE}, 7", f"s_add_u32 s{sA}, s{sA}, {WS_XNT}")
        for k in range(4):
            self.vmem(f"buffer_load_dwordx4 v[{BF+4*k}:{BF+4*k+3}], v{vt}, {srd(S_WS)}, s{sA} offen sc1", f"u{k}")
            if k < 3: a(f"s_add_u32 s{sA}, s{sA}, {8*448*128}")
        a(f"v_and_b32 v{vt+1}, 15, v1", f"v_lshrrev_b32 v{vt+2}, 4, v1")
        a(f"v_lshlrev_b32 v{vt+3}, 3, v{vt+2}", f"v_sub_u32 v{vt+3}, v{vt+1}, v{vt+3}")
        a(f"s_mul_i32 s{sA}, s{sCH_}, {QB[1]}", f"s_lshl_b32 s{sB}, s{sPT}, 9", f"s_add_u32 s{sA}, s{sA}, s{sB}", f"s_add_u32 s{sA}, s{sA}, 100")
        a(f"v_lshl_add_u32 v{vQA}, v{vt+3}, 2, s{sA}")
        for q in range(1, 8): a(f"v_add_u32 v{vQA+q}, {1024*q}, v{vQA}")
        a(f"s_mul_i32 s{sA}, s{sCH_}, {UB[1]-UB[0]}", f"s_add_u32 s{sC}, s{sA}, {UB[0] + 512}")
        a(f"s_lshl_b32 s{sB}, s{sPT}, 8", f"s_sub_u32 s{sA}, s{sA}, s{sB}", f"s_add_u32 s{sA}, s{sA}, {UB[0] + 480 - 192}")
        a(f"v_lshlrev_b32 v{vt+3}, 5, v{vt+1}", f"v_lshl_add_u32 v{vt+3}, v{vt+2}, 4, v{vt+3}", f"v_add_u32 v{vUA}, s{sA}, v{vt+3}")
        a(f"v_lshl_add_u32 v{vt+4}, v1, 4, s{sC}")
        def areads(rr):
            buf = AF + 32 * (rr & 1); R = []
            for q in range(8):
                R.append(f"ds_read2_b32 v[{buf+4*q}:{buf+4*q+1}], v{vQA+q} offset0:{32*rr+6} offset1:{32*rr+4}")
                R.append(f"ds_read2_b32 v[{buf+4*q+2}:{buf+4*q+3}], v{vQA+q} offset0:{32*rr+2} offset1:{32*rr}")
            return R
        def breads(rr):
            buf = BF + 32 * (rr & 1)
            return [f"ds_read_b128 v[{buf+4*c}:{buf+4*c+3}], v{vUA} offset:{512*c + 192 - 64*rr}" for c in range(8)]
        for r in areads(0): a(r)
        for k in range(4):
            self.wait_vm(f"u{k}")
            a(f"ds_write_b128 v{vt+4}, v[{BF+4*k}:{BF+4*k+3}] offset:{1024*k}")
        a("s_waitcnt lgkmcnt(0)")
        for r in breads(0): a(r)
        self.stamp(5)
        for rr in range(4):
            a("s_waitcnt lgkmcnt(0)")
            pend = (breads(rr + 1) + areads(rr + 1)) if rr < 3 else []
            ab, bb = AF + 32 * (rr & 1), BF + 32 * (rr & 1)
            for q in range(8):
                for c in range(q, 8):
                    d = ACC + 4 * c
                    cc = "0" if (rr == 0 and q == 0) else f"v[{d}:{d+3}]"
                    a(f"v_mfma_f32_16x16x32_bf16 v[{d}:{d+3}], v[{ab+4*q}:{ab+4*q+3}], v[{bb+4*(c-q)}:{bb+4*(c-q)+3}], {cc}")
                    if pend: a(pend.pop(0))
        self.stamp(6)
        KP = AF; RX = AF + 16
        a(f"s_lshl_b32 s{sA}, s{sAW}, 12", f"s_add_u32 s{sA}, s{sA}, {XCH}", f"v_lshl_add_u32 v{vt}, v1, 4, s{sA}")
        L1, L2 = self.lab("Lx"), self.lab("Lx")
        a(f"s_cmp_eq_u32 s{sPT}, 0", f"s_cbranch_scc0 {L1}")
        for pt in range(2):
            if pt: a(f"{L1}:", "s_nop 7")
            for t in range(4): a(f"ds_write_b128 v{vt}, v[{ACC+16*(1-pt)+4*t}:{ACC+16*(1-pt)+4*t+3}] offset:{1024*t}")
            for i in range(0, 16, 2): a(f"v_mov_b64 v[{KP+i}:{KP+i+1}], v[{ACC+16*pt+i}:{ACC+16*pt+i+1}]")
            if not pt: a(f"s_branch {L2}")
        a(f"{L2}:")
        a(f"s_lshl_b32 s{sA}, s{sCH_}, 2", f"s_add_u32 s{sA}, s{sA}, {AUXCNT}", f"v_mov_b32 v{vt+1}, s{sA}", f"v_mov_b32 v{vt+2}, 1")
        a("s_waitcnt lgkmcnt(0)", f"ds_add_u32 v{vt+1}, v{vt+2}")
        L0, L3 = self.lab("Lps"), self.lab("Lpe")
        a(f"s_mov_b32 s{sSPIN}, {SPIN_MAX*10}")
        a(f"{L0}:", f"ds_read_b32 v{vt+2}, v{vt+1}", "s_waitcnt lgkmcnt(0)", f"v_readfirstlane_b32 s{sA}, v{vt+2}", "s_nop 0")
        a(f"s_cmp_ge_u32 s{sA}, 128", f"s_cbranch_scc1 {L3}")
        a(f"s_sub_u32 s{sSPIN}, s{sSPIN}, 1", f"s_cmp_lg_u32 s{sSPIN}, 0", f"s_cbranch_scc1 {L0}")
        a(f"{L3}:")
        a(f"v_xor_b32 v{vt}, 0x1000, v{vt}")
        for t in range(4): a(f"ds_read_b128 v[{RX+4*t}:{RX+4*t+3}], v{vt} offset:{1024*t}")
        a(f"v_bfe_u32 v{vt+1}, v1, 2, 2", f"v_mul_u32_u24 v{vt+1}, {448*128}, v{vt+1}", f"v_and_b32 v{vt+2}, 3, v1", f"v_lshl_add_u32 v{vt+1}, v{vt+2}, 5, v{vt+1}")
        a(f"v_lshrrev_b32 v{vt+2}, 4, v1", f"v_lshl_add_u32 v{vt+1}, v{vt+2}, 3, v{vt+1}")
        a(f"s_mul_i32 s{sA}, s{sPT}, {16*448*128}", f"s_lshl_b32 s{sB}, s{sE}, 7", f"s_add_u32 s{sA}, s{sA}, s{sB}", f"s_add_u32 s{sA}, s{sA}, {WS_YT}")
        for t in range(4):
            a(f"s_waitcnt lgkmcnt({3-t})")
            for i in range(4): a(f"v_add_f32 v{KP+4*t+i}, v{KP+4*t+i}, v{RX+4*t+i}")
            a(f"v_cvt_pk_bf16_f32 v{KP+4*t}, v{KP+4*t}, v{KP+4*t+1}", f"v_cvt_pk_bf16_f32 v{KP+4*t+1}, v{KP+4*t+2}, v{KP+4*t+3}")
            self.vmem(f"buffer_store_dwordx2 v[{KP+4*t}:{KP+4*t+1}], v{vt+1}, {srd(S_WS)}, s{sA} offen sc1", "yst")
            if t < 3: a(f"s_add_u32 s{sA}, s{sA}, {4*448*128}")
        self.wait_vm_all()
        a(f"s_lshl_b32 s{sA}, s{sPT}, 9", f"s_add_u32 s{sA}, s{sA}, s{sE}", f"s_lshl_b32 s{sA}, s{sA}, 2", f"s_add_u32 s{sA}, s{sA}, {WS_FY}")
        a(f"v_mov_b32 v{vt}, s{sTAG}")
        self.vmem(f"buffer_store_dword v{vt}, off, {srd(S_WS)}, s{sA} sc1", "flag")
        self.stamp(7)
        if self.stage < 4:
            self.write_stamps(1)
            a("s_endpgm"); return
        vX, vR2, vO = 12, 16, 20
        self.final_pre(vX, vR2, vO)
        a(f"s_lshr_b32 s{sA}, s{sI2}, 4", f"s_lshl_b32 s{sA}, s{sA}, 9", f"s_lshl_b32 s{sB}, s{sJ2}, 6", f"s_lshl_b32 s{sC}, s{sAW}, 4", f"s_add_u32 s{sB}, s{sB}, s{sC}")
        a(f"s_add_u32 s{sA}, s{sA}, s{sB}", f"s_lshl_b32 s{sA}, s{sA}, 2", f"s_add_u32 s{sA}, s{sA}, {WS_FY}")
        a(f"v_and_b32 v{vt}, 15, v1", f"v_lshl_add_u32 v{vt}, v{vt}, 2, s{sA}")
        self.spin([f"buffer_load_dword v{vt+1}, v{vt}, {srd(S_WS)}, 0 offen sc1"], [vt + 1])
        self.vm = ["fx"]
        a(f"s_mul_i32 s{sA}, s{sI2}, 448", f"s_add_u32 s{sA}, s{sA}, s{sB}", f"s_lshl_b32 s{sA}, s{sA}, 7", f"s_add_u32 s{sA}, s{sA}, {WS_YT}")
        a(f"v_lshlrev_b32 v{vt}, 4, v1")
        for k in range(2): self.vmem(f"buffer_load_dwordx4 v[{24+4*k}:{27+4*k}], v{vt}, {srd(S_WS)}, s{sA} offen offset:{1024*k} sc1", "yt")
        a(f"v_lshrrev_b32 v{vt}, 3, v1", f"v_mul_u32_u24 v{vt}, 144, v{vt}", f"v_and_b32 v{vt+1}, 7, v1", f"v_lshl_add_u32 v{vt}, v{vt+1}, 4, v{vt}")
        a(f"s_mul_i32 s{sA}, s{sCH_}, {QB[1]}", f"s_mul_i32 s{sB}, s{sPT}, 2304", f"s_add_u32 s{sA}, s{sA}, s{sB}", f"v_add_u32 v{vt}, s{sA}, v{vt}")
        self.wait_vm("yt")
        self.vm = ["fx"]
        for k in range(2): a(f"ds_write_b128 v{vt}, v[{24+4*k}:{27+4*k}] offset:{8*144*k}")
        self.final(vX, vR2, vO, 32, 1)

    def build(self):
        a = self.a
        a(".text", f".globl {NAME}_kernel", ".p2align 8", f".type {NAME}_kernel,@function", f"{NAME}_kernel:")
        self.prologue()
        self.helper()
        self.main_ids()
        if self.stage >= 2:
            self.mwave()
            self.aux()
        else:
            a("L_aux:", "s_endpgm")
        a("L_exit:", "s_endpgm")
        added = a.fix_hazards()
        errs = a.check_waits()
        for e in errs: print("WAITERR:", e, file=sys.stderr)
        mv, ma, ms = a.max_regs()
        print(f"instrs {sum(1 for c in a.ins if c.kind not in ('dir','label'))} nops added {added} maxv {mv} maxs {ms}", file=sys.stderr)
        head = f"; fused LN + S4D conv + ReGLU FFN\n; @launch grid=(256,1,1) block=(512,1,1) lds=163840\n.amdgcn_target \"amdgcn-amd-amdhsa--gfx950\"\n"
        return head + a.text() + kernel_desc(NAME + "_kernel", 256, 256)

if __name__ == "__main__":
    import argparse
    ap = argparse.ArgumentParser()
    ap.add_argument("--stage", type=int, default=9); ap.add_argument("--stamps", action="store_true"); ap.add_argument("-o", default="k.s"); ap.add_argument("--opts", default="")
    x = ap.parse_args()
    open(x.o, "w").write(Gen(x.stage, x.stamps, [o for o in x.opts.split(',') if o]).build())
```

```python
import sys, subprocess
import gen
NAME = gen.NAME
def reporter(wg, which, ka, wgb, whichb, kb, M):
    offa = gen.WS_ST + wg * 256 + which * 128 + 8 * ka
    offb = gen.WS_ST + wgb * 256 + whichb * 128 + 8 * kb
    base = gen.WS_ST + wgb * 256
    t = f""".text
.globl rep_kernel
.p2align 8
.type rep_kernel,@function
rep_kernel:
    s_cmp_ge_u32 s2, 1
    s_cbranch_scc1 L_rend
    s_load_dwordx4 s[4:7], s[0:1], 96
    s_waitcnt lgkmcnt(0)
    s_mov_b32 s8, s6
    s_mov_b32 s9, s7
    s_mov_b32 s10, 0x10000000
    s_mov_b32 s11, 0x20000
    s_mov_b32 s12, s4
    s_mov_b32 s13, s5
    s_mov_b32 s14, 256
    s_mov_b32 s15, 0x20000
    s_mov_b32 s16, {offa}
    s_mov_b32 s17, {offb}
    s_mov_b32 s18, {base}
    buffer_load_dword v1, off, s[8:11], s16
    buffer_load_dword v2, off, s[8:11], s17
    v_and_b32 v3, 7, v0
    v_add_u32 v3, 2, v3
    v_lshlrev_b32 v3, 3, v3
    v_bfe_u32 v4, v0, 3, 1
    v_lshl_add_u32 v3, v4, 7, v3
    buffer_load_dword v5, v3, s[8:11], s18 offen
    buffer_load_dword v6, off, s[8:11], s18
    s_waitcnt vmcnt(0)
    v_sub_u32 v5, v5, v6
    v_lshlrev_b32 v3, 2, v0
    buffer_store_dword v5, v3, s[12:15], 0 offen
    v_sub_u32 v1, v2, v1
    s_nop 1
    v_readfirstlane_b32 s20, v1
    s_nop 3
    s_min_u32 s20, s20, 20000
    s_mul_i32 s20, s20, {M}
    s_memrealtime s[22:23]
    s_waitcnt lgkmcnt(0)
L_rl:
    s_memrealtime s[24:25]
    s_waitcnt lgkmcnt(0)
    s_sub_u32 s26, s24, s22
    s_cmp_lt_u32 s26, s20
    s_cbranch_scc1 L_rl
L_rend:
    s_endpgm
.section .rodata,"a"
.p2align 6
.amdhsa_kernel rep_kernel
  .amdhsa_next_free_vgpr 8
  .amdhsa_next_free_sgpr 32
  .amdhsa_accum_offset 8
  .amdhsa_group_segment_fixed_size 0
  .amdhsa_kernarg_size 112
  .amdhsa_user_sgpr_count 2
  .amdhsa_user_sgpr_kernarg_segment_ptr 1
  .amdhsa_system_sgpr_workgroup_id_x 1
.end_amdhsa_kernel
.text
"""
    return t
def make(fn, spec, opts=(), M=10):
    src = gen.Gen(9, True, opts).build()
    old = "; @launch grid=(256,1,1) block=(512,1,1) lds=163840\n"
    L1 = f"; @launch kernel={NAME}_kernel grid=(256,1,1) block=(512,1,1) lds=163840\n"
    LR = "; @launch kernel=rep_kernel grid=(1,1,1) block=(64,1,1) lds=0\n"
    open(fn, "w").write(src.replace(old, L1 + LR) + reporter(*spec, M))
if __name__ == "__main__":
    opts = []
    specs = []
    for x in sys.argv[1:]:
        if x.startswith("--opts="): opts = x[7:].split(",")
        else: specs.append(x)
    for i, sp in enumerate(specs):
        role, k = sp[0], int(sp[1:])
        wg = 10 if role == "H" else 100
        which = 1 if role == "A" else 0
        make(f"../cdna_kernels/cal{i}.s", (wg, 0, 0, wg, which, k), opts)
        print(f"cal{i}.s = {sp}")
```

```python
import sys, struct
import numpy as np
from asmlib import Asm, kernel_desc
NAME = "parallel_sum__ssm_conv_s4d__glu_gated_reglu__prompt"

HS     = 225 * 1024
WS_H   = 0x0000000
WS_XNT = 0x0800000
WS_YT  = 0x0A00000
WS_CS  = 0x0E00000
WS_NM  = 0x0E10000
WS_R2  = 0x0E20000
WS_FH  = 0x0E30000
WS_FX  = 0x0E50000
WS_ST  = 0xF000000
RING = 0
def slot_addr(s): return RING + 16384 * s
DBASE = slot_addr(3)
QB = [0, 8320]
UB = [16640, 21248]
AUXCNT = 32256
XCH = slot_addr(2)
SPIN_MAX = 20000

def f32(x): return "0x%08x" % struct.unpack("<I", struct.pack("<f", x))[0]
LOG2E = 1.4426950408889634

S_X, S_WG, S_WU, S_WD, S_WS, S_OUT, S_DBG = 4, 8, 12, 16, 20, 24, 28
def srd(b): return f"s[{b}:{b+3}]"
S_P = 32
sCH = 48
sXB, sWB, sDB, sM0, sAW, sSB = 55, 56, 57, 58, 59, 46
sW, sI, sJ, sI2, sJ2, sT, sST, sTAG, sSPIN = 60, 61, 62, 63, 64, 65, 44, 67, 68
sF, sA, sB, sC, sD, sE, sG = 69, 70, 71, 72, 73, 74, 75
sEX = 76
sLD, sDS = 78, 79
S_STAMP = 80
voX, voW, voD = 240, 244, 248

class Gen:
    def __init__(self, stage=9, stamps=False, opts=()):
        self.a = Asm(); self.stage = stage; self.stamps = stamps; self.opts = set(opts)
        self.nlab = 0; self.role = ''
        self.vm = []
    def opt(self, name, default):
        for o in self.opts:
            if o.startswith(name + "="): return int(o[len(name) + 1:])
        return default
    def lab(self, p="L"):
        self.nlab += 1; return f"{p}_{self.nlab}"
    def cstamp(self, k):
        if self.stamps and "cyc" in self.opts: self.a(f"s_memtime s[{S_STAMP+2*k}:{S_STAMP+2*k+1}]")
    def stamp2(self, k):
        if self.stamps and "g2" in self.opts: self.a(f"s_memrealtime s[{S_STAMP+2*k}:{S_STAMP+2*k+1}]")
    def stamp3(self, k):
        if self.stamps and "g3" in self.opts: self.a(f"s_memrealtime s[{S_STAMP+2*k}:{S_STAMP+2*k+1}]")
    def stamp(self, k):
        if "spins" in self.opts: return
        if "g3" in self.opts and self.role == "A" and 1 <= k <= 7: return
        if "g2" in self.opts and self.role == "M" and 1 <= k <= 7: return
        if self.stamps and "cyc" not in self.opts: self.a(f"s_memrealtime s[{S_STAMP+2*k}:{S_STAMP+2*k+1}]")
    def vmem(self, text, tag=None):
        self.a(text); self.vm.append(tag)
    def wait_vm(self, tag):
        idx = [i for i, t in enumerate(self.vm) if t == tag]
        if not idx: return
        n = len(self.vm) - 1 - idx[-1]
        assert n <= 63
        self.a(f"s_waitcnt vmcnt({n})")
        self.vm = self.vm[idx[-1] + 1:]
    def wait_vm_all(self):
        self.a("s_waitcnt vmcnt(0)"); self.vm = []

    def spin(self, loads, checks, first_issued_tag=None, sleep=2, note=None):
        a = self.a
        L0, L1 = self.lab("Lspin"), self.lab("Lok")
        if "spins" in self.opts: a(f"s_mov_b32 s{sSPIN}, {SPIN_MAX+1}")
        if first_issued_tag is not None:
            self.wait_vm(first_issued_tag)
            self._check(checks)
            a(f"s_cbranch_vccz {L1}")
        a(f"s_mov_b32 s{sSPIN}, {SPIN_MAX}")
        a(f"{L0}:")
        for l in loads: a(l)
        a("s_waitcnt vmcnt(0)")
        self._check(checks)
        a(f"s_cbranch_vccz {L1}")
        if sleep: a(f"s_sleep {sleep}")
        a(f"s_sub_u32 s{sSPIN}, s{sSPIN}, 1", f"s_cmp_lg_u32 s{sSPIN}, 0", f"s_cbranch_scc1 {L0}")
        a(f"{L1}:")
        if "spins" in self.opts and note is not None: a(f"s_sub_u32 s{S_STAMP+2*note}, {SPIN_MAX+2}, s{sSPIN}")
        if first_issued_tag is None: self.vm = []
    def _check(self, checks):
        a = self.a
        a(f"v_cmp_ne_u32 vcc, s{sTAG}, v{checks[0]}")
        for c in checks[1:]:
            a(f"v_cmp_ne_u32 s[{sEX}:{sEX+1}], s{sTAG}, v{c}")
            a(f"s_or_b64 vcc, vcc, s[{sEX}:{sEX+1}]")
        a("s_nop 4" if len(checks) == 1 else "s_nop 0")
    def nonce_load(self, vt): return f"buffer_load_dword v{vt}, off, {srd(S_DBG)}, 0 sc1"
    def get_nonce(self, vt, issued=None):
        a = self.a
        L0, L1, L2 = self.lab("Lnon"), self.lab("Lnok"), self.lab("Lnx")
        def test():
            a(f"v_readfirstlane_b32 s{sTAG}, v{vt}", "s_nop 0")
            a(f"s_sub_u32 s{sEX}, s{sST}, s{sTAG}", f"s_cmp_lt_i32 s{sEX}, s{sEX+1}", f"s_cselect_b32 s{sEX}, s{sTAG}, 0")
            a(f"s_cmp_lg_u32 s{sEX}, 0", f"s_cbranch_scc1 {L1}")
        a(f"s_movk_i32 s{sEX+1}, 600")
        if issued is not None:
            self.wait_vm(issued); test()
        a(f"s_mov_b32 s{sSPIN}, {SPIN_MAX}")
        a(f"{L0}:")
        a(self.nonce_load(vt), "s_waitcnt vmcnt(0)")
        test()
        a(f"s_sub_u32 s{sSPIN}, s{sSPIN}, 1", f"s_cmp_lt_u32 s{sSPIN}, {SPIN_MAX-100}", f"s_cselect_b32 s{sEX+1}, 0x7fffffff, s{sEX+1}")
        a(f"s_cmp_lg_u32 s{sSPIN}, 0", f"s_cbranch_scc1 {L0}")
        a(f"{L1}:")
        if issued is None: self.vm = []
    def write_stamps(self, which):
        if not self.stamps: return
        a = self.a
        L = self.lab("Lst")
        a("s_waitcnt lgkmcnt(0)")
        a(f"s_cmp_lg_u32 s{sW}, {4*which}", f"s_cbranch_scc1 {L}")
        a(f"s_lshl_b32 s{sA}, s2, 8", f"s_add_u32 s{sA}, s{sA}, {WS_ST + 128*which}")
        a(f"s_mov_b64 s[{sEX}:{sEX+1}], exec", "s_mov_b64 exec, 1")
        for k in range(10):
            a(f"v_mov_b32 v2, s{S_STAMP+2*k}", f"v_mov_b32 v3, s{S_STAMP+2*k+1}")
            a(f"buffer_store_dwordx2 v[2:3], off, {srd(S_WS)}, s{sA} offset:{8*k}")
        a(f"s_mov_b64 exec, s[{sEX}:{sEX+1}]")
        a(f"{L}:")

    def prologue(self):
        a = self.a
        for (r, off) in ((S_X, 0), (S_WG, 64), (S_WU, 72)):
            a(f"s_load_dwordx2 s[{r}:{r+1}], s[0:1], {off}")
        a(f"s_load_dwordx8 s[{S_P}:{S_P+7}], s[0:1], 8", f"s_load_dwordx4 s[{S_P+8}:{S_P+11}], s[0:1], 40")
        a("s_cmp_ge_u32 s2, 256", "s_cbranch_scc1 L_exit")
        if "nopf" not in self.opts:
            L = self.lab("Lpc"); L2 = self.lab("Lpc")
            a(f"s_getpc_b64 s[{sA}:{sB}]", f"{L}:")
            a("v_lshlrev_b32 v254, 7, v0", f"v_cmp_gt_u32 vcc, L_exit-{L}, v254")
            a(f"s_and_saveexec_b64 s[{sEX}:{sEX+1}], vcc", f"s_cbranch_execz {L2}")
            a(f"global_load_dword v255, v254, s[{sA}:{sB}]")
            a(f"{L2}:", f"s_mov_b64 exec, s[{sEX}:{sEX+1}]")
        for (r, off) in ((S_WD, 80), (S_OUT, 88), (S_DBG, 96), (S_WS, 104)):
            a(f"s_load_dwordx2 s[{r}:{r+1}], s[0:1], {off}")
        a(f"s_memrealtime s[{sST}:{sST+1}]")
        if self.stamps:
            for k in range(1, 10): a(f"s_mov_b64 s[{S_STAMP+2*k}:{S_STAMP+2*k+1}], 0")
        self.stamp(0)
        vt = 5
        a(f"v_lshrrev_b32 v{vt}, 6, v0", "v_and_b32 v1, 63, v0")
        a(f"v_readfirstlane_b32 s{sW}, v{vt}")
        a(f"s_mov_b32 s{S_X+2}, 1835008", f"s_mov_b32 s{S_X+3}, 0x20000", f"s_mov_b32 s{S_WG+2}, 1605632", f"s_mov_b32 s{S_WG+3}, 0x20000")
        a(f"s_mov_b64 s[{S_WU+2}:{S_WU+3}], s[{S_WG+2}:{S_WG+3}]", f"s_mov_b64 s[{S_WD+2}:{S_WD+3}], s[{S_WG+2}:{S_WG+3}]", f"s_mov_b64 s[{S_OUT+2}:{S_OUT+3}], s[{S_X+2}:{S_X+3}]")
        a(f"s_mov_b32 s{S_WS+2}, 0x10000000", f"s_mov_b32 s{S_WS+3}, s{S_X+3}", f"s_movk_i32 s{S_DBG+2}, 256", f"s_mov_b32 s{S_DBG+3}, s{S_X+3}")
        a(f"s_and_b32 s{sA}, s2, 7", f"s_lshr_b32 s{sB}, s2, 3")
        a("s_cmp_lt_u32 s2, 32", "s_cbranch_scc1 L_helper")
        a(f"s_sub_u32 s{sB}, s{sB}, 4")
        a(f"s_mul_i32 s{sC}, s{sB}, 37", f"s_lshr_b32 s{sC}, s{sC}, 8")
        a(f"s_mul_i32 s{sD}, s{sC}, 7", f"s_sub_u32 s{sJ2}, s{sB}, s{sD}")
        a(f"s_lshr_b32 s{sD}, s{sA}, 1", f"s_lshl2_add_u32 s{sI}, s{sD}, s{sC}")
        a(f"s_and_b32 s{sD}, s{sA}, 1", f"s_mul_i32 s{sD}, s{sD}, 7", f"s_add_u32 s{sJ}, s{sD}, s{sJ2}")
        a(f"s_lshl2_add_u32 s{sI2}, s{sA}, s{sC}")
        a(f"s_sub_u32 s{sT}, s2, 32")
        a(f"s_and_b32 s{sAW}, s{sW}, 3")
        a(f"v_lshrrev_b32 v{vt}, 3, v1", f"v_and_b32 v{vt+1}, 7, v1", f"v_lshrrev_b32 v{vt+2}, 4, v1")
        a(f"v_mul_u32_u24 v15, 896, v{vt}")
        a(f"v_lshlrev_b32 v14, 1, v{vt+2}", f"v_xor_b32 v14, v14, v{vt+1}", f"v_lshl_add_u32 v{voD}, v14, 4, v15")
        a(f"s_lshl_b32 s{sM0}, s{sAW}, 12")
        a(f"s_cmp_lt_u32 s{sW}, 4", "s_cbranch_scc1 L_m")
        a(f"v_xor_b32 v14, v{vt+2}, v{vt+1}", f"v_lshl_add_u32 v{voX}, v14, 4, v15")
        a(f"v_xor_b32 v14, 64, v{voX}", f"v_add_u32 v{voX+1}, {7168-1024}, v14", f"v_add_u32 v{voX+2}, {2*(7168-1024)}, v{voX}", f"v_add_u32 v{voX+3}, {3*(7168-1024)}, v14")
        a(f"v_lshlrev_b32 v14, 1, v{vt+2}", f"v_and_b32 v15, 15, v1", f"v_xor_b32 v14, v14, v15")
        a(f"v_mul_u32_u24 v15, 3584, v{vt+2}", f"v_lshl_add_u32 v{voW}, v14, 4, v15")
        a(f"v_xor_b32 v14, 0x80, v{voW}", f"v_add_u32 v{voW+1}, {14336-1024}, v{voW}", f"v_add_u32 v{voW+2}, {2*(14336-1024)}, v14", f"v_add_u32 v{voW+3}, {3*(14336-1024)}, v14")
        a(f"s_lshl2_add_u32 s{sA}, s{sI}, s{sAW}", f"s_mul_i32 s{sXB}, s{sA}, {32*896}")
        a(f"s_and_b32 s{sA}, s{sAW}, 1", f"s_mul_i32 s{sA}, s{sA}, {16*3584}", f"s_lshl_b32 s{sB}, s{sJ}, 8", f"s_add_u32 s{sWB}, s{sA}, s{sB}")
        a(f"s_lshl_b32 s{sD}, s{sT}, 10", f"s_lshl_b32 s{sE}, s{sAW}, 8", f"s_add_u32 s{sD}, s{sD}, s{sE}")
        a(f"v_lshl_add_u32 v19, v1, 1, s{sD}", f"s_lshl_b32 s{sF}, s{sT}, 2")
        a(f"s_cmp_ge_u32 s{sAW}, 2")
        a("s_waitcnt lgkmcnt(0)")
        a(f"s_cselect_b32 s{S_WG}, s{S_WU}, s{S_WG}", f"s_cselect_b32 s{S_WG+1}, s{S_WU+1}, s{S_WG+1}")
        self.vm = ["pf"]

    def colsum_partial(self, R, C, vt, area):
        a = self.a
        for i in range(4):
            a(f"v_lshlrev_b32 v{C+2*i}, 16, v{R+i}", f"v_and_b32 v{C+2*i+1}, 0xffff0000, v{R+i}")
        for t in range(1, 7):
            for i in range(4):
                a(f"v_dot2c_f32_bf16 v{C+2*i}, s{self.sLO}, v{R+4*t+i}", f"v_dot2c_f32_bf16 v{C+2*i+1}, s{self.sHI}, v{R+4*t+i}")
        for i in range(4): a(f"v_permlane32_swap_b32 v{C+i}, v{C+i+4}")
        for i in range(4): a(f"v_add_f32 v{C+i}, v{C+i}, v{C+i+4}")
        for i in range(2): a(f"v_permlane16_swap_b32 v{C+i}, v{C+i+2}")
        for i in range(2): a(f"v_add_f32 v{C+i}, v{C+i}, v{C+i+2}")
        a(f"v_and_b32 v{vt}, 8, v1", f"v_cmp_ne_u32 vcc, 0, v{vt}")
        for i in range(2): a(f"v_add_f32_dpp v{C+2+i}, v{C+i}, v{C+i} row_ror:8 row_mask:0xf bank_mask:0xf")
        a(f"v_cndmask_b32 v{C}, v{C+2}, v{C+3}, vcc")
        a(f"ds_write_b32 v{self.hCSW}, v{C} offset:{area}")
    def colsum_final(self, wave, area, blk, C, vt):
        a = self.a
        L = self.lab("Lcs")
        a(f"s_cmp_lg_u32 s{sW}, {wave}", f"s_cbranch_scc1 {L}")
        a(f"v_lshlrev_b32 v{vt}, 2, v1")
        for w in range(8): a(f"ds_read_b32 v{C+w}, v{vt} offset:{area + 256*w}")
        a(f"v_lshlrev_b32 v{vt}, 3, v1")
        a(f"s_lshl_b32 s{sA}, s{sJ}, 10", f"s_add_u32 s{sA}, s{sA}, {WS_CS + 512*blk}")
        a("s_waitcnt lgkmcnt(0)")
        for (x, y) in ((0,1),(2,3),(4,5),(6,7),(0,2),(4,6),(0,4)): a(f"v_add_f32 v{C+x}, v{C+x}, v{C+y}")
        a(f"v_mov_b32 v{C+1}, s{sTAG}")
        a(f"buffer_store_dwordx2 v[{C}:{C+1}], v{vt}, {srd(S_WS)}, s{sA} offen sc1")
        a(f"{L}:")

    def helper(self):
        a = self.a
        self.vm = []; self.role = 'H'
        a("L_helper:")
        WA, XR, WB, C, XF = 4, 32, 60, 88, 100
        vt = 96; vR, vP = 160, 161; vW, vX = 162, 163; self.hCSW = 164
        vS, vM, vMB, vQ, vRr = 165, 166, 172, 168, 170
        self.sLO, self.sHI, sONE = 48, 49, 50
        TS = 912; CSA = 61440
        a(f"v_lshrrev_b32 v{vR}, 3, v0", f"v_and_b32 v{vP}, 7, v0")
        a(f"v_lshlrev_b32 v{vt}, 4, v{vP}")
        a(f"v_mul_u32_u24 v{vW}, 3584, v{vR}", f"v_add_u32 v{vW}, v{vW}, v{vt}")
        a(f"v_mul_u32_u24 v{vX}, 896, v{vR}", f"v_add_u32 v{vX}, v{vX}, v{vt}")
        a(f"s_lshl2_add_u32 s{sI}, s{sA}, s{sB}")
        a(f"s_lshr_b32 s{sC}, s{sA}, 1", f"s_lshl2_add_u32 s{sT}, s{sC}, s{sB}")
        a(f"s_and_b32 s{sA}, s{sA}, 1", f"s_mul_i32 s{sA}, s{sA}, 7", f"s_add_u32 s{sA}, s{sA}, s{sT}")
        a(f"s_cmp_ge_u32 s{sT}, 7", f"s_cselect_b32 s{sB}, 7, 0", f"s_add_u32 s{sJ}, s{sA}, s{sB}", f"s_sub_u32 s{sB}, s{sA}, s{sB}", f"s_lshl_b32 s{sB}, s{sB}, 8")
        a(f"s_cmp_ge_u32 s{sT}, 14", f"s_cselect_b32 s{S_WG+2}, 0, s{S_WG+2}", f"s_cselect_b32 s{sJ}, 28, s{sJ}")
        a(f"s_mul_i32 s{sC}, s{sI}, {64*896}")
        a("s_waitcnt lgkmcnt(0)")
        Ln = self.lab("Lnn")
        a(f"s_or_b32 s{sD}, s2, s{sW}", f"s_cmp_lg_u32 s{sD}, 0", f"s_cbranch_scc1 {Ln}")
        a(f"s_or_b32 s{sA}, s{sST}, 1", f"v_mov_b32 v2, s{sA}")
        a(f"buffer_store_dword v2, off, {srd(S_DBG)}, 0 sc1")
        a(f"{Ln}:")
        a(f"s_cmp_ge_u32 s{sT}, 7", f"s_cselect_b32 s{S_WG}, s{S_WU}, s{S_WG}", f"s_cselect_b32 s{S_WG+1}, s{S_WU+1}, s{S_WG+1}")
        for t in range(7):
            self.vmem(f"buffer_load_dwordx4 v[{XR+4*t}:{XR+4*t+3}], v{vX}, {srd(S_X)}, s{sC} offen offset:{128*t}", "XR")
        a(f"s_mov_b32 s{self.sLO}, 0x3f80", f"s_mov_b32 s{self.sHI}, 0x3f800000", f"s_mov_b32 s{sONE}, 0x3f803f80")
        a(f"v_lshrrev_b32 v{vt}, 3, v1", f"v_lshl_add_u32 v{vt}, v{vP}, 3, v{vt}", f"v_lshlrev_b32 v{vt}, 2, v{vt}")
        a(f"s_lshl_b32 s{sD}, s{sW}, 8", f"v_add_u32 v{self.hCSW}, s{sD}, v{vt}")
        for k in range(4): a(f"v_mov_b32 v{C+k}, 0")
        a(f"v_lshlrev_b32 v{vt+2}, 3, v{vR}")
        a(f"s_lshl_b32 s{sE}, s{sI}, 9")
        self.wait_vm("XR")
        self.stamp(1)
        for i in range(28): a(f"v_dot2c_f32_bf16 v{C+i%4}, s{sONE}, v{XR+i}")
        a(f"v_add_f32 v{C}, v{C}, v{C+1}", f"v_add_f32 v{C+2}, v{C+2}, v{C+3}", f"v_add_f32 v{vS}, v{C}, v{C+2}")
        for ctl in ("quad_perm:[1,0,3,2]", "quad_perm:[2,3,0,1]", "row_half_mirror"):
            a(f"v_add_f32_dpp v{vS}, v{vS}, v{vS} {ctl} row_mask:0xf bank_mask:0xf")
        a(f"v_mul_f32 v{vM}, {f32(-1.0/448)}, v{vS}")
        a(f"v_cvt_pk_bf16_f32 v{vMB}, 0, v{vM}")
        self.vmem(self.nonce_load(vQ), "non")
        wl = [(blk, R, t) for blk, R in ((0, WA), (1, WB)) for t in range(7)]
        def wload():
            if not wl: return
            blk, R, t = wl.pop(0)
            a(f"s_add_u32 s{sD}, s{sB}, {t*64*3584}")
            self.vmem(f"buffer_load_dwordx4 v[{R+4*t}:{R+4*t+3}], v{vW}, {srd(S_WG)}, s{sD} offen offset:{128*blk}", "W")
        for i in range(28):
            a(f"v_dot2_f32_bf16 v{XF+2*i}, v{XR+i}, s{self.sLO}, v{vMB}", f"v_dot2_f32_bf16 v{XF+2*i+1}, v{XR+i}, s{self.sHI}, v{vMB}")
            if i % 7 == 6: wload()
        for k in range(2): a(f"v_pk_mul_f32 v[{C+2*k}:{C+2*k+1}], v[{XF+2*k}:{XF+2*k+1}], v[{XF+2*k}:{XF+2*k+1}]")
        for i in range(2, 28):
            k = i % 2
            a(f"v_pk_fma_f32 v[{C+2*k}:{C+2*k+1}], v[{XF+2*i}:{XF+2*i+1}], v[{XF+2*i}:{XF+2*i+1}], v[{C+2*k}:{C+2*k+1}]")
            if i % 13 == 12: wload()
        a(f"v_add_f32 v{C}, v{C}, v{C+1}", f"v_add_f32 v{C+2}, v{C+2}, v{C+3}", f"v_add_f32 v{vS}, v{C}, v{C+2}")
        a(f"v_sub_f32 v{vM}, v{vM}, v{vMB}")
        rnd = [f"v_cvt_pk_bf16_f32 v{XF+i}, 0, v{XF+i}" for i in range(56)]
        def fill(n):
            for _ in range(n):
                if rnd: a(rnd.pop(0))
        chain = []
        for ctl in ("quad_perm:[1,0,3,2]", "quad_perm:[2,3,0,1]", "row_half_mirror"):
            chain.append(f"v_add_f32_dpp v{vS}, v{vS}, v{vS} {ctl} row_mask:0xf bank_mask:0xf")
        chain += [f"v_mul_f32 v{vM}, v{vM}, v{vM}", f"v_mul_f32 v{vS}, {f32(1.0/448)}, v{vS}", f"v_sub_f32 v{vS}, v{vS}, v{vM}", f"v_max_f32 v{vS}, 0, v{vS}",
                  f"v_cvt_pk_bf16_f32 v{vS}, 0, v{vS}", f"v_add_f32 v{vS}, {f32(1e-5)}, v{vS}", f"v_cvt_pk_bf16_f32 v{vS}, 0, v{vS}",
                  f"v_sqrt_f32 v{vS}, v{vS}", f"v_cvt_pk_bf16_f32 v{vS}, 0, v{vS}", f"v_rcp_f32 v{vRr}, v{vS}",
                  f"v_mul_f32 v{C+6}, v{vRr}, v{vRr}", f"v_mov_b32 v{vRr+1}, v{vRr}"]
        for i, c in enumerate(chain):
            fill(2); a(c)
            if i % 5 == 4: wload()
        self.get_nonce(vQ, issued="non")
        a(f"v_mov_b32 v{C+7}, s{sTAG}", f"v_mov_b32 v{vMB+1}, s{sTAG}", f"s_add_u32 s{sA}, s{sE}, {WS_R2}", f"s_add_u32 s{sD}, s{sE}, {WS_NM}")
        self.vmem(f"buffer_store_dwordx2 v[{vMB}:{vMB+1}], v{vt+2}, {srd(S_WS)}, s{sD} offen sc1", "st")
        self.vmem(f"buffer_store_dwordx2 v[{C+6}:{C+7}], v{vt+2}, {srd(S_WS)}, s{sA} offen sc1", "st")
        self.stamp(2)
        fill(13); wload(); fill(99)
        a(f"v_mul_u32_u24 v{vt}, {TS}, v{vR}", f"v_lshl_add_u32 v{vt}, v{vP}, 4, v{vt}")
        for t in range(7):
            for i in range(4 * t, 4 * t + 4): a(f"v_pk_mul_f32 v[{XF+2*i}:{XF+2*i+1}], v[{XF+2*i}:{XF+2*i+1}], v[{vRr}:{vRr+1}]")
            for i in range(4 * t, 4 * t + 4): a(f"v_cvt_pk_bf16_f32 v{XR+i}, v{XF+2*i}, v{XF+2*i+1}")
            a(f"ds_write_b128 v{vt}, v[{XR+4*t}:{XR+4*t+3}] offset:{128*t}")
            wload()
        assert not wl
        a(f"v_bfe_u32 v{vt+1}, v1, 4, 1", f"v_and_b32 v{vt+3}, 3, v1", f"v_lshl_add_u32 v{vt+1}, v{vt+1}, 2, v{vt+3}")
        a(f"v_bfe_u32 v{vt+3}, v1, 2, 2", f"v_lshl_add_u32 v{vt+1}, v{vt+1}, 3, v{vt+3}", f"v_mul_u32_u24 v{vt+1}, {TS}, v{vt+1}")
        a(f"v_lshrrev_b32 v{vt+3}, 5, v1", f"v_lshl_add_u32 v{vt+1}, v{vt+3}, 3, v{vt+1}")
        a(f"s_lshl_b32 s{sD}, s{sW}, 4", f"v_add_u32 v{vt+1}, s{sD}, v{vt+1}")
        a(f"v_lshlrev_b32 v{vt+2}, 4, v1")
        a(f"s_mul_i32 s{sC}, s{sI}, {448*128}", f"s_lshl_b32 s{sA}, s{sW}, 10", f"s_add_u32 s{sC}, s{sC}, s{sA}", f"s_add_u32 s{sC}, s{sC}, {WS_XNT}")
        a("s_waitcnt lgkmcnt(0)", "s_barrier")
        self.stamp(3)
        for n in range(7):
            for t in range(2):
                a(f"ds_read_b64_tr_b16 v[{XR+4*n+2*t}:{XR+4*n+2*t+1}], v{vt+1} offset:{128*n + 4*TS*t}")
        for n in range(7):
            a(f"s_waitcnt lgkmcnt({12-2*n})")
            self.vmem(f"buffer_store_dwordx4 v[{XR+4*n}:{XR+4*n+3}], v{vt+2}, {srd(S_WS)}, s{sC} offen sc1", "st")
            if n < 6: a(f"s_add_u32 s{sC}, s{sC}, 8192")
        self.wait_vm("W")
        self.colsum_partial(WA, C, vt, CSA)
        a("s_waitcnt vmcnt(0)", "s_barrier")
        L = self.lab("Lfx")
        a(f"s_cmp_lg_u32 s{sW}, 0", f"s_cbranch_scc1 {L}")
        a(f"v_mov_b32 v2, s{sTAG}", f"s_lshl_b32 s{sA}, s2, 2", f"s_add_u32 s{sA}, s{sA}, {WS_FX}")
        a(f"buffer_store_dword v2, off, {srd(S_WS)}, s{sA} sc1")
        a(f"{L}:")
        self.stamp(5)
        self.colsum_partial(WB, C, vt, CSA + 2048)
        a("s_waitcnt lgkmcnt(0)", "s_barrier")
        self.colsum_final(0, CSA, 0, WA, vt)
        self.colsum_final(1, CSA + 2048, 1, WA, vt)
        self.stamp(4)
        self.write_stamps(0)
        a("s_endpgm")

    @staticmethod
    def uslot(u): return (u + 6) % 8 if u < 26 else u - 18

    def kgen_setup(self):
        base = 8
        PRM, vDT, vt, vRA, vRB, KD, BF, AF, T = base + 12, base + 4, base + 5, base + 8, base + 9, 28, 44, 76, 200
        self.KD, self.kBF, self.kAF, self.kvt = KD, BF, AF, vt
        self.kregs = (PRM, vDT, vt, vRA, vRB, KD, BF, AF, T)
        L = []
        e = lambda *x: L.extend(x)
        e(f"s_lshl_b32 s{sSB}, s{sAW}, 8")
        def rowaddr(dst, sig):
            e(f"v_and_b32 v{dst}, 15, v{sig}", f"v_mul_u32_u24 v{dst}, 2064, v{dst}", f"v_lshrrev_b32 v{sig}, 4, v{sig}", f"v_lshl_add_u32 v{dst}, v{sig}, 10, v{dst}")
            e(f"v_add_u32 v{dst}, v{dst}, v{vt+2}")
        e(f"v_lshrrev_b32 v{vt+2}, 5, v1", f"v_lshlrev_b32 v{vt+2}, 4, v{vt+2}", f"v_and_b32 v{vt}, 31, v1")
        e(f"v_cmp_eq_u32 vcc, 5, v{vt}", f"v_cndmask_b32_e64 v{vt+1}, v{vt}, 4, vcc", f"v_cmp_eq_u32 vcc, 31, v{vt}", f"v_cndmask_b32_e64 v{vt+1}, v{vt+1}, 5, vcc")
        rowaddr(vRA, vt + 1)
        e(f"v_add_u32 v{vRA}, s{sSB}, v{vRA}")
        e(f"v_add_u32 v{vt+1}, -1, v{vt}", f"v_and_b32 v{vt+1}, 31, v{vt+1}")
        rowaddr(vRB, vt + 1)
        e(f"v_cmp_eq_u32 vcc, 0, v{vt}", f"v_mov_b32 v{vt}, s{sSB}", f"v_cndmask_b32_e64 v{vt}, v{vt}, 0, vcc", f"v_add_u32 v{vRB}, v{vRB}, v{vt}")
        e("s_waitcnt lgkmcnt(0)")
        e(f"s_lshr_b32 s{sC}, s{sAW}, 1", f"s_lshl_b32 s{sC}, s{sC}, 4")
        for r in (sLD, sDS): e(f"s_lshr_b32 s{r}, s{r}, s{sC}", f"s_lshl_b32 s{r}, s{r}, 16")
        chi = float(np.frombuffer(np.uint32(np.float32(LOG2E).view(np.uint32) & 0xFFFFFF00).tobytes(), np.float32)[0]); clo = LOG2E - chi
        e(f"v_mov_b32 v{vt+2}, s{sLD}", f"v_mul_f32 v{vDT}, {f32(chi)}, v{vt+2}", f"v_mul_f32 v{vt+2}, {f32(clo)}, v{vt+2}")
        e(f"v_exp_f32 v{vDT}, v{vDT}", f"v_exp_f32 v{vt+2}, v{vt+2}", f"v_mul_f32 v{vDT}, v{vDT}, v{vt+2}")
        e(f"v_cvt_pk_bf16_f32 v{vDT}, 0, v{vDT}")
        return L

    @staticmethod
    def soff(sig): return (sig & 15) * 2064 + (sig >> 4) * 1024

    def kgen_scale(self):
        PRM, vDT, vt, vRA, vRB, KD, BF, AF, T = self.kregs
        L = []
        e = lambda *x: L.extend(x)
        e(f"v_and_b32 v{T}, 0x7fff, v{PRM+2}", f"v_and_b32 v{T+1}, 0x7fff, v{PRM+3}", f"v_and_b32 v{T+2}, 0x7fff, v{PRM+6}", f"v_and_b32 v{T+3}, 0x7fff, v{PRM+7}")
        e(f"v_max_u32 v{T}, v{T}, v{T+1}", f"v_max3_u32 v{T}, v{T}, v{T+2}, v{T+3}")
        sh = [f"v_lshlrev_b32 v{PRM+k}, 16, v{PRM+k}" for k in range(8)]
        for ctl in ("row_shr:1", "row_shr:2", "row_shr:4", "row_shr:8", "row_bcast:15 row_mask:0xa", "row_bcast:31 row_mask:0xc"):
            for _ in range(2):
                if sh: e(sh.pop(0))
            e(f"v_max_u32_dpp v{T}, v{T}, v{T} {ctl}" + (" row_mask:0xf" if "row_mask" not in ctl else "") + " bank_mask:0xf")
        e(f"v_readlane_b32 s50, v{T}, 63")
        e("s_lshr_b32 s50, s50, 7", "s_sub_u32 s50, 267, s50", "s_min_u32 s50, s50, 253", f"s_sub_u32 s51, 255, s50")
        e("s_lshl_b32 s50, s50, 23", "s_lshl_b32 s51, s51, 23", f"v_mul_f32 v18, s51, v{vDT}")
        return L

    def kgen_body(self, czero, batch):
        PRM, vDT, vt, vRA, vRB, KD, BF, AF, T = self.kregs
        L = []
        e = lambda *x: L.extend(x)
        tt = 172; ti = [0]
        pendf = []
        def cmul(d, x, y):
            t = tt + ti[0] % 8; ti[0] += 1
            if any(x == p[0] or y == p[0] for p in pendf): flush()
            e(f"v_pk_mul_f16 v{t}, v{x}, v{y} op_sel:[1,1] op_sel_hi:[0,1]")
            flush()
            pendf.append((d, f"v_pk_fma_f16 v{d}, v{x}, v{y}, v{t} op_sel_hi:[1,0,1] neg_lo:[0,0,1]"))
        def flush():
            for p in pendf: e(p[1])
            pendf.clear()
        BF += 64 * batch; AF += 64 * batch
        def arow(hh, reg): return 8 * (reg >> 2) + 4 * hh + (reg & 3)
        P1 = {}
        for reg, p in enumerate(list(range(9)) + [512, 516, 520, 1024, 1032, 1536, 1544]): P1.setdefault(p, []).append(arow(0, reg))
        for reg, p in enumerate([256, 256, 258, 260, 260, 260, 262, 264, 264, 768, 772, 776, 1280, 1288, 1792, 1800]): P1.setdefault(p, []).append(arow(1, reg))
        assert P1[256] == [4, 5] and P1[1800] == [31]
        P1[256] = [4]; P1[1800] = [5]
        E = {j: BF + j for j in range(1, 32)}
        V = {p: AF + i for i, p in enumerate(sorted(P1))}
        va, vb = T, T + 1
        S = T + 2
        A = T + 10
        W1, W8, W256 = T + 18, T + 19, T + 20
        p_ = PRM + 4 * batch
        e(f"v_mul_f32 v{va}, {f32(LOG2E)}, v{p_}", f"v_mul_f32 v{vb}, v{p_+1}, v{vDT}", f"v_exp_f32 v{va}, v{va}")
        e(f"v_mul_f32 v{vb}, 0.15915494, v{vb}", f"v_mul_f32 v{p_+2}, s50, v{p_+2}")
        e(f"v_cvt_pk_bf16_f32 v{va}, 0, v{va}", f"v_mul_f32 v{p_+3}, s50, v{p_+3}")
        e(f"v_mul_f32 v{va}, v{va}, v{vDT}", f"v_cvt_pk_f16_f32 v{V[0]}, v{p_+2}, v{p_+3}")
        e(f"v_mul_f32 v{va}, {f32(-LOG2E)}, v{va}")
        seeds = (8, 32, 1, 256)
        for i, p in enumerate(seeds):
            if p != 1: e(f"v_mul_f32 v{A+2*i+1}, {f32(p)}, v{vb}", f"v_mul_f32 v{A+2*i}, {f32(p)}, v{va}")
        for i, p in enumerate(seeds):
            e(f"v_fract_f32 v{A+2*i+1}, v{A+2*i+1 if p != 1 else vb}", f"v_exp_f32 v{A+2*i}, v{A+2*i if p != 1 else va}")
        for i, p in enumerate(seeds):
            e(f"v_cos_f32 v{S+2*i}, v{A+2*i+1}", f"v_sin_f32 v{S+2*i+1}, v{A+2*i+1}")
        for i, p in enumerate(seeds):
            e(f"v_mul_f32 v{S+2*i}, v{S+2*i}, v{A+2*i}", f"v_mul_f32 v{S+2*i+1}, v{S+2*i+1}, v{A+2*i}")
        e(f"v_cvt_pk_f16_f32 v{E[1]}, v{S}, -v{S+1}", f"v_cvt_pk_f16_f32 v{W8}, v{S}, v{S+1}", f"v_cvt_pk_f16_f32 v{E[4]}, v{S+2}, -v{S+3}")
        e(f"v_cvt_pk_f16_f32 v{W1}, v{S+4}, v{S+5}", f"v_cvt_pk_f16_f32 v{W256}, v{S+6}, v{S+7}")
        jobs = [(E[2], E[1], E[1]), (V[8], V[0], W8), (V[1], V[0], W1), (E[3], E[2], E[1])]
        vj = [(V[k], V[k - 1], W1) for k in range(2, 8)]
        far = [(V[p], V[p - 256], W256) for p in sorted(P1) if p >= 256]
        far.sort(key=lambda x: 0)
        f08 = [(V[p], V[p - 256], W256) for p in sorted(P1) if p >= 256 and p % 256 in (0, 8)]
        fo = [(V[p], V[p - 256], W256) for p in sorted(P1) if p >= 256 and p % 256 not in (0, 8)]
        ej = [(E[j], E[j - 4], E[4]) for j in range(5, 32)]
        while ej or vj or f08 or fo:
            for q_ in (ej, vj, ej, f08) if vj else (ej, fo, ej, f08):
                if q_: jobs.append(q_.pop(0))
        for j in jobs: cmul(*j)
        flush()
        B = [f"ds_write_addtid_b32 v{E[j]} offset:{self.soff(j-1)}" for j in range(1, 32)]
        B += [f"ds_read_b128 v[{BF+4*k}:{BF+4*k+3}], v{vRB} offset:{32*k}" for k in range(8)]
        B += [f"ds_write_addtid_b32 v{V[p]} offset:{self.soff(sig)}" for p in sorted(P1) for sig in P1[p]]
        B += [f"ds_read_b128 v[{AF+4*k}:{AF+4*k+3}], v{vRA} offset:{32*k}" for k in range(8)]
        M = []
        for k in range(8):
            c = "0" if (czero and k == 0) else f"v[{KD}:{KD+15}]"
            M.append(f"v_mfma_f32_32x32x16_f16 v[{KD}:{KD+15}], v[{AF+4*k}:{AF+4*k+3}], v[{BF+4*k}:{BF+4*k+3}], {c}")
        return L, B, M

    def mwave(self):
        a = self.a
        self.role = 'M'
        ACC, AB, XB, CSX, NMX = 4, 132, 164, 196, 200
        vAX, vAW = 208, 212
        vt = 222; vHO = 2; vCSO = 3; vNMO = 220; vN = 221
        sLH, sFH = 48, 49
        def acc(mat, b, ft): return ACC + 4 * (ft + 4 * (b + 4 * mat))
        a("L_m:")
        a(f"v_mov_b32 v0, v{voD}")
        a(f"s_lshr_b32 s{sLH}, s{sW}, 1", f"s_and_b32 s{sFH}, s{sW}, 1")
        a(f"v_and_b32 v{vt}, 15, v1", f"v_lshlrev_b32 v{vNMO}, 3, v{vt}")
        a(f"v_lshrrev_b32 v{vt+2}, 4, v1", f"v_bfe_u32 v{vt+3}, v1, 1, 3")
        a(f"v_xor_b32 v{vt+3}, v{vt+3}, v{vt+2}", f"v_lshlrev_b32 v{vt+3}, 4, v{vt+3}")
        a(f"s_lshl_b32 s{sA}, s{sLH}, 13")
        a(f"v_lshl_add_u32 v{vt}, v{vt}, 7, s{sA}")
        for s_ in range(2):
            a(f"v_xad_u32 v{vAX+s_}, v{vt+3}, {64*s_}, v{vt}", f"v_add_u32 v{vAX+2+s_}, 0x10000, v{vAX+s_}")
        a(f"v_bfe_u32 v{vt}, v1, 2, 2", f"v_lshl_add_u32 v{vt}, v{vt+2}, 3, v{vt}", f"v_lshlrev_b32 v{vt}, 8, v{vt}")
        a(f"v_and_b32 v{vt+3}, 3, v1", f"v_lshl_add_u32 v{vt}, v{vt+3}, 3, v{vt}")
        a(f"v_bfe_u32 v{vt+3}, v1, 2, 3", f"v_lshl_add_u32 v{vt}, v{vt+3}, 5, v{vt}")
        a(f"s_lshl_b32 s{sA}, s{sFH}, 7", f"v_xor_b32 v{vt}, s{sA}, v{vt}")
        for ft in range(4):
            a(f"v_xor_b32 v{vAW+ft}, {32*ft}, v{vt}", f"v_add_u32 v{vAW+4+ft}, 0x10000, v{vAW+ft}")
        a(f"v_lshlrev_b32 v{vCSO}, 3, v1", f"v_lshlrev_b32 v{vHO}, 4, v1")
        a(f"s_lshl1_add_u32 s{sF}, s{sJ}, s{sFH}")
        a(f"s_lshl_b32 s{sB}, s{sF}, 9", f"s_add_u32 s{sB}, s{sB}, {WS_CS}")
        a(f"s_lshl1_add_u32 s{sA}, s{sI}, s{sLH}")
        a(f"s_lshl_b32 s{sD}, s{sA}, 9", f"s_add_u32 s{sD}, s{sD}, {WS_NM}")
        a(f"s_mul_i32 s{sE}, s{sA}, {HS}", f"s_lshl_b32 s{sC}, s{sF}, 13", f"s_add_u32 s{sE}, s{sE}, s{sC}")
        a(f"s_lshl_b32 s{sG}, s{sA}, 7", f"s_lshl2_add_u32 s{sG}, s{sF}, s{sG}", f"s_add_u32 s{sG}, s{sG}, {WS_FH}")
        a(f"s_add_u32 s{sC}, s{sB}, {1792*8}")
        self.vm = []
        if self.opt("mp", 0): a(f"s_setprio {self.opt('mp', 0)}")
        FR = [(ft, mat) for ft in range(4) for mat in range(2)]
        def reads(g):
            c, s_ = divmod(g, 2)
            sl = self.uslot(3 * c + 1); win = sl // 4
            xb = XB + 16 * (g & 1)
            xr = [f"ds_read_b128 v[{xb+4*b}:{xb+4*b+3}], v{vAX+2*win+s_} offset:{16384*(sl%4) + 2048*b}" for b in range(4)]
            sl = self.uslot(3 * c + 2 * s_); win = sl // 4
            wr = []
            for k, (ft, mat) in enumerate(FR):
                wr.append([f"ds_read_b64_tr_b16 v[{AB+4*k+2*t}:{AB+4*k+2*t+1}], v{vAW+4*win+ft} offset:{16384*(sl%4) + 1024*t + 8192*mat}" for t in range(2)])
            return xr, wr
        def mfma(g, k, b):
            ft, mat = FR[k]
            d = acc(mat, b, ft); xb = XB + 16 * (g & 1)
            c = "0" if g == 0 else f"v[{d}:{d+3}]"
            return f"v_mfma_f32_16x16x32_bf16 v[{d}:{d+3}], v[{AB+4*k}:{AB+4*k+3}], v[{xb+4*b}:{xb+4*b+3}], {c}"
        corr_loads = [f"buffer_load_dwordx2 v[{CSX+2*mat}:{CSX+2*mat+1}], v{vCSO}, {srd(S_WS)}, s{sB if mat == 0 else sC} offen sc1" for mat in range(2)]
        corr_loads += [f"buffer_load_dwordx2 v[{NMX+2*b}:{NMX+2*b+1}], v{vNMO}, {srd(S_WS)}, s{sD} offen offset:{128*b} sc1" for b in range(4)]
        a("s_waitcnt lgkmcnt(0)", "s_barrier")
        self.stamp(2)
        q = []; pend = []
        def need(key):
            idx = [i for i, t in enumerate(q) if t == key]
            if not idx: return
            n = len(q) - 1 - idx[-1]
            a(f"s_waitcnt lgkmcnt({min(n, 15)})")
            del q[:len(q) - min(n, 15)]
        def drain(maxn):
            n = 0
            while pend and n < maxn:
                r, key = pend.pop(0); a(r); q.append(key); n += 1
        xr, wr = reads(0)
        for r in xr: a(r); q.append((0, 0))
        for k in range(8):
            for r in wr[k]: a(r); q.append((0, k))
        DELAY = self.opt("dl", 5); WG_ = self.opt("wg", 2)
        cl = list(corr_loads)
        for g in range(14):
            xr, wr = reads(g + 1) if g < 13 else ([], [[]] * 8)
            if g == 0: self.cstamp(0)
            blocked = True; held = []
            i = 0
            for k in range(8):
                for b in range(4):
                    if k % WG_ == 0 and b == 0:
                        key = (g, k + WG_ - 1)
                        while any(x[1][0] == g and x[1][1] <= key[1] for x in pend): drain(1)
                        need(key)
                    a(mfma(g, k, b)); i += 1
                    if b == 3:
                        new_r = [(r, (g + 1, k)) for r in wr[k]]
                        if blocked: held += new_r
                        else: pend += new_r
                    if blocked and i == DELAY:
                        drain(99)
                        a("s_waitcnt lgkmcnt(0)"); q.clear()
                        a("s_barrier")
                        if g % 2 == 1: self.cstamp(1 + g // 2)
                        pend += held + [(r, (g + 1, 0)) for r in xr]
                        blocked = False
                    drain(1)
                    if g == self.opt("corr", 11) and cl and i % 4 == 2: self.vmem(cl.pop(0), "corr")
                    if g == self.opt("corr", 11) - 1 and i == 30: self.vmem(self.nonce_load(vN), "non")
        self.stamp(3)
        self.cstamp(8)
        self.get_nonce(vN, issued="non")
        self.spin(corr_loads, [CSX + 1, CSX + 3] + [NMX + 2 * b + 1 for b in range(4)], first_issued_tag="corr", note=1)
        for b in range(4):
            for mat in range(2):
                d = acc(mat, b, 0)
                a(f"v_mfma_f32_16x16x1_4b_f32 v[{d}:{d+15}], v{CSX+2*mat}, v{NMX+2*b}, v[{d}:{d+15}]")
        a(f"s_setprio {self.opt('ep', 3)}")
        for b in range(4):
            for e in range(2):
                o = acc(0, b, 2 * e)
                g_, u_ = acc(0, b, 2 * e), acc(1, b, 2 * e)
                for i in range(8): a(f"v_max_f32 v{g_+i}, 0, v{g_+i}")
                for i in range(8): a(f"v_mul_f32 v{u_+i}, v{g_+i}, v{u_+i}")
                for i in range(4): a(f"v_cvt_pk_bf16_f32 v{o+i}, v{u_+2*i}, v{u_+2*i+1}")
                if (b, e) == (0, 1): a(f"s_add_u32 s{sF}, s{sE}, 4096")
                self.vmem(f"buffer_store_dwordx4 v[{o}:{o+3}], v{vHO}, {srd(S_WS)}, s{sF if e else sE} offen offset:{1024*b} sc1", "hst")
        self.stamp(4)
        self.cstamp(9)
        self.gemm2()

    def final_pre(self, vX, vR2, vt):
        a = self.a
        a(f"s_lshl_b32 s{sA}, s{sW}, 3", f"s_lshl_b32 s{sB}, s{sI2}, 6", f"s_add_u32 s{sA}, s{sA}, s{sB}")
        a(f"v_lshrrev_b32 v{vt+1}, 3, v1", f"v_add_u32 v{vt+1}, s{sA}, v{vt+1}")
        a(f"v_mul_u32_u24 v{vt}, 896, v{vt+1}")
        a(f"s_lshl_b32 s{sA}, s{sJ2}, 7")
        a(f"v_and_b32 v{vR2}, 7, v1", f"v_lshlrev_b32 v{vR2}, 4, v{vR2}", f"v_add3_u32 v{vt}, v{vt}, v{vR2}, s{sA}")
        a(f"v_lshlrev_b32 v{vt+1}, 3, v{vt+1}", f"v_add_u32 v{vt+1}, {WS_R2}, v{vt+1}")
        self.vmem(f"buffer_load_dwordx4 v[{vX}:{vX+3}], v{vt}, {srd(S_X)}, 0 offen", "fx")
        self.r2load = f"buffer_load_dwordx2 v[{vR2}:{vR2+1}], v{vt+1}, {srd(S_WS)}, 0 offen sc1"
        self.vmem(self.r2load, "fx")

    def final_addr(self, T):
        a = self.a
        vA, vB = T, T + 1
        a(f"v_lshrrev_b32 v{vA+2}, 3, v1", f"s_lshl_b32 s{sC}, s{sW}, 3", f"v_add_u32 v{vA+2}, s{sC}, v{vA+2}")
        a(f"v_mul_u32_u24 v{vB}, 48, v{vA+2}")
        a(f"v_and_b32 v{vA+2}, 15, v{vA+2}", f"v_and_b32 v{vA+3}, 7, v1", f"v_lshlrev_b32 v{vA+3}, 1, v{vA+3}", f"v_xor_b32 v{vA+3}, v{vA+3}, v{vA+2}")
        a(f"v_lshlrev_b32 v{vA+3}, 4, v{vA+3}", f"v_lshl_add_u32 v{vA}, v{vA+2}, 8, v{vA+3}")
        a(f"s_lshr_b32 s{sC}, s{sW}, 1", f"s_lshl_b32 s{sC}, s{sC}, 14", f"s_add_u32 s{sC}, s{sC}, {DBASE}")
        a(f"v_add_u32 v{vA}, s{sC}, v{vA}", f"v_xor_b32 v{vA+2}, 16, v{vA}")
        a(f"v_bfe_u32 v{vA+3}, v1, 2, 1", f"v_mul_u32_u24 v{vA+3}, {QB[1]}, v{vA+3}", f"v_add_u32 v{vB}, v{vB}, v{vA+3}")
        a(f"v_bfe_u32 v{vA+3}, v1, 1, 1", f"v_lshl_add_u32 v{vB}, v{vA+3}, 12, v{vB}")
        a(f"v_and_b32 v{vA+3}, 1, v1", f"v_lshl_add_u32 v{vB}, v{vA+3}, 4, v{vB}")

    def final(self, vX, vR2, vO, T, which):
        a = self.a
        vA, vB = T, T + 1
        P = T + 4; Y = T + 36; E = Y + 4
        self.spin([self.r2load], [vR2 + 1], first_issued_tag="fx", note=3)
        for i in range(4): a(f"v_lshlrev_b32 v{E+2*i}, 16, v{vX+i}", f"v_and_b32 v{E+2*i+1}, 0xffff0000, v{vX+i}")
        a("s_waitcnt lgkmcnt(0)", "s_barrier")
        self.stamp(8)
        a(f"ds_read_b128 v[{Y}:{Y+3}], v{vB}")
        for m in range(4):
            for h in range(2):
                a(f"ds_read_b128 v[{P+8*m+4*h}:{P+8*m+4*h+3}], v{vA + 2*h} offset:{4096*m}")
        a("s_waitcnt lgkmcnt(8)")
        for i in range(4):
            a(f"v_lshlrev_b32 v{vX}, 16, v{Y+i}", f"v_and_b32 v{vX+1}, 0xffff0000, v{Y+i}")
            a(f"v_pk_add_f32 v[{E+2*i}:{E+2*i+1}], v[{E+2*i}:{E+2*i+1}], v[{vX}:{vX+1}]")
        a("s_waitcnt lgkmcnt(4)")
        for i in range(0, 8, 2): a(f"v_pk_add_f32 v[{P+i}:{P+i+1}], v[{P+i}:{P+i+1}], v[{P+8+i}:{P+8+i+1}]")
        a("s_waitcnt lgkmcnt(0)")
        for i in range(0, 8, 2): a(f"v_pk_add_f32 v[{P+16+i}:{P+16+i+1}], v[{P+16+i}:{P+16+i+1}], v[{P+24+i}:{P+24+i+1}]")
        for i in range(0, 8, 2): a(f"v_pk_add_f32 v[{P+i}:{P+i+1}], v[{P+i}:{P+i+1}], v[{P+16+i}:{P+16+i+1}]")
        for i in range(0, 8, 2): a(f"v_pk_fma_f32 v[{E+i}:{E+i+1}], v[{P+i}:{P+i+1}], v[{vR2}:{vR2+1}], v[{E+i}:{E+i+1}] op_sel_hi:[1,0,1]")
        for i in range(4): a(f"v_cvt_pk_bf16_f32 v{P+16+i}, v{E+2*i}, v{E+2*i+1}")
        a(f"buffer_store_dwordx4 v[{P+16}:{P+19}], v{vO}, {srd(S_OUT)}, 0 offen")
        self.stamp(9)
        self.write_stamps(which)
        a("s_endpgm")

    def gemm2(self):
        a = self.a
        ACC = 180
        POOL = [4 + 16 * i for i in range(11)]
        vHO = 2; vFO = 3; vFL = 255; vD = [0, 252, 253, 254]
        vAD = 244
        vt = 252
        sH, sDo, sM = 50, 51, 52
        self.stamp2(1)
        a(f"v_lshrrev_b32 v{vt}, 2, v1", f"v_lshlrev_b32 v{vt}, 7, v{vt}", f"v_and_b32 v{vt+1}, 3, v1", f"v_lshl_add_u32 v{vt}, v{vt+1}, 3, v{vt}")
        a(f"v_bfe_u32 v{vt+1}, v1, 3, 2", f"v_lshl_add_u32 v{vt}, v{vt+1}, 5, v{vt}")
        a(f"s_lshl_b32 s{sM}, s{sW}, 12", f"s_add_u32 s{sM}, s{sM}, {DBASE}", f"v_add_u32 v{vt}, s{sM}, v{vt}")
        for dt in range(4): a(f"v_xor_b32 v{vAD+dt}, {32*dt}, v{vt}", f"v_add_u32 v{vAD+4+dt}, 0x10000, v{vAD+dt}")
        for k in range(1, 4): a(f"v_add_u32 v{vD[k]}, {k*(7168-1024)}, v0")
        a(f"s_mul_i32 s{sDo}, s{sW}, {448*896}", f"s_lshl_b32 s{sA}, s{sJ2}, 7", f"s_add_u32 s{sDo}, s{sDo}, s{sA}")
        a(f"s_mul_i32 s{sH}, s{sI2}, {HS}", f"s_mul_i32 s{sA}, s{sW}, {14*4096}", f"s_add_u32 s{sH}, s{sH}, s{sA}")
        a(f"s_mul_i32 s{sA}, s{sW}, 28", f"s_lshl_b32 s{sB}, s{sI2}, 7", f"s_add_u32 s{sA}, s{sA}, s{sB}", f"s_add_u32 s{sA}, s{sA}, {WS_FH}")
        a(f"v_and_b32 v{vFO}, 7, v1", f"v_min_u32 v{vFO}, 6, v{vFO}", f"v_lshl_add_u32 v{vFO}, v{vFO}, 2, s{sA}")
        free = list(POOL[::-1])
        wbuf, hbuf = {}, {}
        lq = []
        def wdread(ks):
            wbuf[ks] = buf = free.pop(0); n = ks % 7; win = n // 4
            return [(f"ds_read_b64_tr_b16 v[{buf+4*dt+2*t}:{buf+4*dt+2*t+1}], v{vAD+4*win+dt} offset:{16384*(n%4) + 2048*t}", ks) for dt in range(4) for t in range(2)]
        def lds(r): a(r[0]); lq.append(r[1])
        def need_w(ks):
            if ks not in lq: return
            k = len(lq) - 1 - max(i for i, x in enumerate(lq) if x == ks)
            a(f"s_waitcnt lgkmcnt({min(k, 15)})")
            del lq[:len(lq) - min(k, 15)]
        def dd(ks):
            out = []
            for k in range(4):
                pre = [f"s_add_u32 m0, s{sM}, {16384*(ks%7)}", f"s_add_u32 s{sA}, s{sDo}, {32*ks*896}"] if k == 0 else []
                out.append((pre, f"buffer_load_dwordx4 v{vD[k]}, {srd(S_WD)}, s{sA} offen offset:{1024*k} lds", f"d{ks}"))
            return out
        def hl(ks):
            hbuf[ks] = buf = free.pop(0)
            return [([f"s_add_u32 s{sH}, s{sH}, 4096"] if (b == 0 and ks) else [],
                     f"buffer_load_dwordx4 v[{buf+4*b}:{buf+4*b+3}], v{vHO}, {srd(S_WS)}, s{sH} offen offset:{1024*b} sc1", f"h{ks}") for b in range(4)]
        def vm(x):
            for y in x[0]: a(y)
            self.vmem(x[1], x[2])
        fl = f"buffer_load_dword v{vFL}, v{vFO}, {srd(S_WS)}, 0 offen sc1"
        for ks in range(7):
            for r in wdread(ks): lds(r)
        a("s_setprio 0")
        FS = self.opt("fs", 7); FP = self.opt("fp", 11); FC = self.opt("fc", 13)
        for ks in range(7, 15):
            if ks == FS:
                self.wait_vm("hst")
                a(f"v_mov_b32 v{vFL}, s{sTAG}")
                self.vmem(f"buffer_store_dword v{vFL}, off, {srd(S_WS)}, s{sG} sc1", "flag")
                self.stamp2(2)
            if ks == FP: self.vmem(fl, "fl")
            if ks == FC:
                self.stamp2(3)
                self.spin([fl], [vFL], first_issued_tag="fl", sleep=1, note=2)
                self.stamp2(4)
                nh = 0
                for _ in range(2):
                    for x in hl(nh): vm(x)
                    nh += 1
            if ks < 14:
                need_w(ks - 7)
                for x in dd(ks): vm(x)
        while free:
            for x in hl(nh): vm(x)
            nh += 1
        nw = 7
        for s_ in range(14):
            self.wait_vm(f"h{s_}")
            need_w(s_)
            if s_ in (0, 7): self.stamp2({0: 5, 7: 6}[s_])
            rd = []; vq = []
            while nw < 14 and nw <= s_ + 2 and free:
                self.wait_vm(f"d{nw}")
                rd += wdread(nw); nw += 1
            while nh < 14 and len(free) > (1 if (nw < 14 and s_ >= 3) else 0):
                vq += hl(nh); nh += 1
            if s_ == 9: self.final_pre(vt - 4 if False else free[0], free[0] + 4, free[0] + 6); fin = free.pop(0)
            wb, hb = wbuf[s_], hbuf[s_]
            i = 0
            for lb in range(4):
                for dt in range(4):
                    d = ACC + 4 * (4 * lb + dt)
                    c = "0" if s_ == 0 else f"v[{d}:{d+3}]"
                    a(f"v_mfma_f32_16x16x32_bf16 v[{d}:{d+3}], v[{wb+4*dt}:{wb+4*dt+3}], v[{hb+4*lb}:{hb+4*lb+3}], {c}")
                    if rd: lds(rd.pop(0))
                    if vq and i % 2 == 1: vm(vq.pop(0))
                    i += 1
            for x in vq: vm(x)
            free += [wb, hb]
        self.stamp2(7)
        T = sorted(x for x in free)
        T = [x for x in T if all((x + 16 * k) in free for k in range(3))][0]
        a(f"v_and_b32 v{vt}, 15, v1", f"v_lshrrev_b32 v{vt+1}, 4, v1", f"v_xor_b32 v{vt+1}, v{vt+1}, v{vt}", f"v_lshlrev_b32 v{vt+1}, 4, v{vt+1}")
        a(f"v_lshl_add_u32 v{vt}, v{vt}, 8, s{sM}", f"v_add_u32 v{vt}, v{vt}, v{vt+1}")
        for dt in range(1, 4): a(f"v_xor_b32 v{vt+dt}, {64*dt}, v{vt}")
        self.final_addr(T)
        for lb in range(4):
            for dt in range(4):
                d = ACC + 4 * (4 * lb + dt)
                a(f"ds_write_b128 v{vt+dt}, v[{d}:{d+3}] offset:{16384*lb}")
        self.final(fin, fin + 4, fin + 6, T, 0)

    def dma_ops(self, u):
        base = slot_addr(self.uslot(u))
        tag = f"u{u}"
        if u < 21 and u % 3 == 1:   vo, sr, sb, off = voX, S_X, sXB, 128 * (u // 3)
        elif u < 21:                vo, sr, sb, off = voW, S_WG, sWB, (64 * (u // 3) + 16 * (u % 3)) * 3584
        else:                       vo, sr, sb, off = voD, S_WD, sDB, 32 * (u - 21) * 896
        self.m0cmd = f"s_add_u32 m0, s{sM0}, {base}"
        return [([f"s_add_u32 s{sA}, s{sb}, {off}"] if k == 0 else [], f"buffer_load_dwordx4 v{vo+k}, {srd(sr)}, s{sA} offen offset:{1024*k} lds", tag, self.m0cmd) for k in range(4)]
    def emit_aux(self, x):
        a = self.a
        if isinstance(x, tuple):
            if self.m0 != x[3]: a(x[3]); self.m0 = x[3]
            for y in x[0]: a(y)
            self.vmem(x[1], x[2])
        elif x == "@prm": self.wait_vm("prm")
        else:
            if x.startswith("ds_write_addtid") and self.m0 != "sb":
                a(f"s_mov_b32 m0, s{sSB}"); self.m0 = "sb"
            a(x)

    def auxbar(self, k, vt, pair=False, extra=()):
        a = self.a
        L0, L1 = self.lab("Lab"), self.lab("Lae")
        a(f"s_lshl_b32 s{sA}, s{sAW}, 2", f"v_mov_b32 v{vt}, s{sA}", f"v_mov_b32 v{vt+1}, s{sTAG}")
        a(f"ds_write_b32 v{vt}, v{vt+1} offset:{AUXCNT + 16*k}")
        if pair: a(f"v_xor_b32 v{vt}, 4, v{vt}")
        else: a(f"v_and_b32 v{vt}, 3, v1", f"v_lshlrev_b32 v{vt}, 2, v{vt}")
        a(f"s_mov_b32 s{sSPIN}, {SPIN_MAX*10}")
        a(f"{L0}:", f"ds_read_b32 v{vt+1}, v{vt} offset:{AUXCNT + 16*k}")
        for x in extra: a(x)
        a("s_waitcnt lgkmcnt(0)", f"v_cmp_ne_u32 vcc, s{sTAG}, v{vt+1}", f"s_sub_u32 s{sSPIN}, s{sSPIN}, 1", "s_nop 3", f"s_cbranch_vccz {L1}")
        a(f"s_cmp_lg_u32 s{sSPIN}, 0", f"s_cbranch_scc1 {L0}")
        a(f"{L1}:")

    def aux(self):
        a = self.a
        self.role = 'A'; self.m0 = None
        N0 = self.opt("n0", 3)
        for u in range(N0):
            for x in self.dma_ops(u): self.emit_aux(x)
        setup = self.kgen_setup()
        PRM = self.kregs[0]
        for b in range(2):
            for k in range(4):
                self.vmem(f"global_load_ushort v{PRM+4*b+k}, v19, s[{S_P+2*k}:{S_P+2*k+1}] offset:{128*b}", "prm")
        a(f"s_load_dword s{sLD}, s[{S_P+8}:{S_P+9}], s{sF}", f"s_load_dword s{sDS}, s[{S_P+10}:{S_P+11}], s{sF}")
        for k in range(1, 4): a(f"v_add_u32 v{voD+k}, {k*(7168-1024)}, v{voD}")
        a(f"s_mul_i32 s{sA}, s{sAW}, {448*896}", f"s_lshl_b32 s{sB}, s{sJ2}, 7", f"s_add_u32 s{sDB}, s{sA}, s{sB}")
        self.sCH_, self.sPT = 48, 47
        a(f"s_lshr_b32 s{self.sCH_}, s{sAW}, 1", f"s_and_b32 s{self.sPT}, s{sAW}, 1")
        if self.opt("ap", 1): a(f"s_setprio {self.opt('ap', 1)}")
        V0, B0, M0 = self.kgen_body(True, 0); V1, B1, M1 = self.kgen_body(False, 1)
        work = setup + ["@prm"] + self.kgen_scale() + V0 + V1; self.nV1 = len(V1)
        SL = self.opt("sl", 30)
        self.cACC, self.cAF, self.cBF, self.vQA, self.vUA = 12, 44, 108, 172, 180
        vN, vt, UR = 181, 182, 192
        fx = f"buffer_load_dword v{vt+1}, v{vt}, {srd(S_WS)}, 0 offen sc1"
        nxt = N0
        lim = self.opt("n1", 5)
        for n in range(15):
            ops = []
            cnt = 0
            while nxt < min(lim, 26) and cnt < 3:
                ops += self.dma_ops(nxt); nxt += 1; cnt += 1
            if n == self.opt("xd", 5): ops += self.dma_ops(26)
            if n == self.opt("xd", 5) + 2: ops += self.dma_ops(27)
            nsl = len(setup) if n == 0 else SL
            sl = work[:nsl]; del work[:nsl]
            gap = max(1, len(sl) // (len(ops) + 1)) if ops else 0
            if "noil" in self.opts:
                for o in ops: self.emit_aux(o)
                ops = []
            if "dlast" in self.opts: gap = 10000; sl = sl and [sl[0]] + sl[1:]
            if "nolds" in self.opts and n > 0: sl = [x for x in sl if not x.startswith(("ds_", "v_mfma"))]
            if "notrans" in self.opts and n > 0: sl = [x for x in sl if not x.startswith(("ds_", "v_mfma", "v_exp", "v_sin", "v_cos", "s_waitcnt"))]
            for i, x in enumerate(sl):
                if ops and i % gap == 0: self.emit_aux(ops.pop(0))
                self.emit_aux(x)
            for o in ops: self.emit_aux(o)
            if n == 0: self.stamp(1)
            for half, at in ((0, self.opt("t1", 99)), (1, self.opt("t2", 99))):
                if n == at:
                    a(f"s_and_b32 s{sB}, s{sI2}, 3", f"s_mul_i32 s{sB}, s{sB}, 448", f"s_mul_i32 s{sC}, s{sAW}, 56", f"s_add_u32 s{sB}, s{sB}, s{sC}")
                    a(f"s_mul_i32 s{sB}, s{sB}, 896", f"s_lshl_b32 s{sC}, s{sJ2}, 7", f"s_add_u32 s{sB}, s{sB}, s{sC}", f"s_add_u32 s{sB}, s{sB}, {224*896*half}")
                    a(f"v_min_u32 v252, 55, v1", f"v_mul_u32_u24 v252, 896, v252")
                    self.vmem(f"buffer_load_dword v{253+half}, v252, {srd(S_WD)}, s{sB} offen", "tch")
            if n == 8: self.vmem(self.nonce_load(vN), "non")
            if n == 12:
                self.get_nonce(vN, issued="non")
                a(f"v_and_b32 v{vt}, 31, v1", f"v_lshlrev_b32 v{vt}, 2, v{vt}", f"v_add_u32 v{vt}, {WS_FX}, v{vt}")
            if n == 13: self.vmem(fx, "fxf")
            need = (3 * (n // 2) + 1 + (n % 2)) if n < 14 else 25
            self.wait_vm(f"u{need}")
            a("s_barrier")
            if n == 0: self.stamp(2)
            lim = 8 + 3 * (n // 2) + (n % 2)
        assert nxt == 26
        self.stamp(3)
        print("K-gen instrs left after GEMM1:", len(work), file=sys.stderr)
        sCH_ = self.sCH_
        self.spin([fx], [vt + 1], first_issued_tag="fxf", note=1)
        self.stamp(4)
        a(f"v_lshrrev_b32 v{vt}, 4, v1", f"v_mul_u32_u24 v{vt}, {448*128}, v{vt}", f"v_bfe_u32 v{vt+1}, v1, 1, 3", f"v_lshl_add_u32 v{vt}, v{vt+1}, 6, v{vt}")
        a(f"v_and_b32 v{vt+1}, 1, v1", f"v_lshl_add_u32 v{vt}, v{vt+1}, 4, v{vt}")
        a(f"s_lshl1_add_u32 s{sE}, s{sT}, s{sCH_}")
        a(f"s_lshr_b32 s{sA}, s{sT}, 1", f"s_lshl_b32 s{sA}, s{sA}, 9", f"s_and_b32 s{sB}, s{sT}, 1", f"s_lshl_b32 s{sB}, s{sB}, 5", f"s_add_u32 s{sA}, s{sA}, s{sB}")
        a(f"s_mul_i32 s{sB}, s{sAW}, {8*448*128}", f"s_add_u32 s{sA}, s{sA}, s{sB}", f"s_add_u32 s{sA}, s{sA}, {WS_XNT}", f"s_add_u32 s{sB}, s{sA}, {4*448*128}")
        for k in range(2):
            self.vmem(f"buffer_load_dwordx4 v[{UR+4*k}:{UR+4*k+3}], v{vt}, {srd(S_WS)}, s{sB if k else sA} offen sc1", "uu")
        self.final_pre(184, 188, 190)
        assert len(work) <= self.nV1
        self.stamp3(1)
        kv = self.kvt
        a(f"v_lshlrev_b32 v{kv}, 2, v1", f"v_mov_b32 v{kv+1}, 0x3c00", f"ds_write_b32 v{kv}, v{kv+1} offset:31984")
        while B0 or work:
            if B0: self.emit_aux(B0.pop(0))
            for _ in range(2):
                if work: self.emit_aux(work.pop(0))
        self.stamp3(2)
        for i, x in enumerate(B1):
            self.emit_aux(x)
            if i == 14: a("s_waitcnt lgkmcnt(15)")
            if i >= 14 and i % 4 == 2 and M0: a(M0.pop(0))
        assert not M0
        for k, x in enumerate(M1):
            a(f"s_waitcnt lgkmcnt({7-k})"); a(x)
        self.stamp3(3)
        self.image(UR, vt)
        self.conv()

    def image(self, UR, vt):
        a = self.a
        KD, BF, AF, vA = self.KD, self.kBF, self.kAF, self.kvt
        sCH_, sPT = self.sCH_, self.sPT
        def by_part(f):
            L1, L2 = self.lab("Lp"), self.lab("Lp")
            a(f"s_cmp_eq_u32 s{sPT}, 0", f"s_cbranch_scc0 {L1}")
            f(0); a(f"s_branch {L2}", f"{L1}:"); f(1); a(f"{L2}:")
        keep = {0: range(0, 12), 1: range(12, 16)}
        a(f"s_add_u32 s{sC}, s{sM0}, {XCH}", f"v_lshl_add_u32 v{vA}, v1, 4, s{sC}")
        self.conv_addr(200)
        for r in range(16): a(f"v_mul_f32 v{KD+r}, v{KD+r}, v18")
        def f(pt):
            for r in list(keep[1 - pt])[::4]: a(f"ds_write_b128 v{vA}, v[{KD+r}:{KD+r+3}] offset:{256*r}")
        by_part(f)
        self.auxbar(1, vA + 1)
        self.stamp3(4)
        a(f"v_xor_b32 v{vA}, 0x1000, v{vA}")
        O = AF
        blocks = [[KD + i for i in range(9)], [KD + 9] * 3 + [KD + 10] * 3 + [KD + 11] * 3]
        for k, r0 in enumerate((KD + 12, KD + 14)):
            blocks.append([r0] * 4 + [BF + k] + [r0 + 1] * 4)
        a(f"s_mul_i32 s{sD}, s{sCH_}, {QB[1]}")
        def f(pt):
            K = list(keep[pt])
            for r in K[::4]: a(f"ds_read_b128 v[{BF+16+r}:{BF+16+r+3}], v{vA} offset:{256*r}")
            a(f"v_lshl_add_u32 v{vA}, v1, 5, s{sD}")
            if pt == 0:
                a(f"v_cmp_eq_u32 vcc, 0, v1", f"v_mov_b32 v{vA+2}, s{sDS}", f"v_cndmask_b32 v{vA+2}, 0, v{vA+2}, vcc", f"v_add_f32 v{KD}, v{KD}, v{vA+2}")
            else:
                a(f"v_and_b32 v{vA+1}, 1, v1", f"v_cmp_eq_u32 vcc, 1, v{vA+1}")
            a("s_waitcnt lgkmcnt(0)")
            for r in K: a(f"v_add_f32 v{KD+r}, v{KD+r}, v{BF+16+r}")
            if pt:
                for k, r0 in enumerate((KD + 12, KD + 14)): a(f"v_cndmask_b32 v{BF+k}, v{r0}, v{r0+1}, vcc")
            for bi in (2 * pt, 2 * pt + 1):
                v = blocks[bi]
                for e_ in range(8): a(f"v_cvt_pk_bf16_f32 v{O+8*bi+e_}, v{v[e_+1]}, v{v[e_]}")
                for h in range(2): a(f"ds_write_b128 v{vA}, v[{O+8*bi+4*h}:{O+8*bi+4*h+3}] offset:{64 + 2048*bi + 16*h}")
            if pt == 0:
                a(f"v_readfirstlane_b32 s{sA}, v{O}")
                a(f"s_lshr_b32 s{sA}, s{sA}, 16", f"v_mov_b32 v{vA+1}, s{sA}", f"v_and_b32 v{vA+2}, 15, v1", f"v_cmp_eq_u32 vcc, 15, v{vA+2}")
                a(f"v_cndmask_b32 v{vA+1}, 0, v{vA+1}, vcc", f"v_lshl_add_u32 v{vA+2}, v{vA+2}, 2, s{sD}")
                a(f"ds_write_b32 v{vA+2}, v{vA+1}")
            else:
                a(f"s_mul_i32 s{sD}, s{sCH_}, {UB[1]-UB[0]}", f"v_lshl_add_u32 v{vA+2}, v1, 3, s{sD}")
                a(f"v_mov_b32 v{O}, 0", f"v_mov_b32 v{O+1}, 0")
                a(f"ds_write_b64 v{vA+2}, v[{O}:{O+1}] offset:{UB[0]}")
        by_part(f)
        a(f"v_and_b32 v{vt}, 1, v1", f"v_mul_u32_u24 v{vt}, {UB[1]-UB[0]}, v{vt}", f"v_lshrrev_b32 v{vt+1}, 1, v1", f"v_lshl_add_u32 v{vt}, v{vt+1}, 4, v{vt}")
        a(f"s_lshl_b32 s{sA}, s{sAW}, 10", f"s_add_u32 s{sA}, s{sA}, {UB[0] + 512}", f"v_add_u32 v{vt}, s{sA}, v{vt}")
        self.stamp3(5)
        self.wait_vm("uu")
        self.stamp3(6)
        for k in range(2): a(f"ds_write_b128 v{vt}, v[{UR+4*k}:{UR+4*k+3}] offset:{512*k}")
        self.auxbar(2, vA + 1)
        self.stamp3(7)
        for r in self.areads(0)[:2] + self.breads(0) + self.areads(0)[2:]: a(r)

    def conv_addr(self, vt):
        a = self.a
        sCH_, sPT, vQA, vUA = self.sCH_, self.sPT, self.vQA, self.vUA
        a(f"v_and_b32 v{vt+1}, 15, v1", f"v_lshrrev_b32 v{vt+2}, 4, v1")
        a(f"v_lshlrev_b32 v{vt+3}, 3, v{vt+2}", f"v_sub_u32 v{vt+3}, v{vt+1}, v{vt+3}")
        a(f"s_mul_i32 s{sC}, s{sCH_}, {QB[1]}", f"s_lshl_b32 s{sD}, s{sPT}, 9", f"s_add_u32 s{sC}, s{sC}, s{sD}", f"s_add_u32 s{sC}, s{sC}, 100")
        a(f"v_lshl_add_u32 v{vQA}, v{vt+3}, 2, s{sC}")
        for q in range(1, 8): a(f"v_add_u32 v{vQA+q}, {1024*q}, v{vQA}")
        a(f"s_mul_i32 s{sC}, s{sCH_}, {UB[1]-UB[0]}")
        a(f"s_lshl_b32 s{sD}, s{sPT}, 8", f"s_sub_u32 s{sC}, s{sC}, s{sD}", f"s_add_u32 s{sC}, s{sC}, {UB[0] + 480 - 192}")
        a(f"v_lshlrev_b32 v{vt+3}, 5, v{vt+1}", f"v_lshl_add_u32 v{vt+3}, v{vt+2}, 4, v{vt+3}", f"v_add_u32 v{vUA}, s{sC}, v{vt+3}")
    def areads(self, rr):
        buf = self.cAF + 32 * (rr & 1); R = []
        for q in range(8):
            R.append(f"ds_read2_b32 v[{buf+4*q}:{buf+4*q+1}], v{self.vQA+q} offset0:{32*rr+6} offset1:{32*rr+4}")
            R.append(f"ds_read2_b32 v[{buf+4*q+2}:{buf+4*q+3}], v{self.vQA+q} offset0:{32*rr+2} offset1:{32*rr}")
        return R
    def breads(self, rr):
        buf = self.cBF + 32 * (rr & 1)
        return [f"ds_read_b128 v[{buf+4*c}:{buf+4*c+3}], v{self.vUA} offset:{512*c + 192 - 64*rr}" for c in range(8)]

    def conv(self):
        a = self.a
        vt = 5
        ACC, AF, BF = self.cACC, self.cAF, self.cBF
        sCH_, sPT = self.sCH_, self.sPT
        self.stamp(5)
        for rr in range(4):
            a("s_waitcnt lgkmcnt(0)")
            pend = (self.breads(rr + 1) + self.areads(rr + 1)) if rr < 3 else []
            ab, bb = AF + 32 * (rr & 1), BF + 32 * (rr & 1)
            for q in range(8):
                for c in range(q, 8):
                    d = ACC + 4 * c
                    cc = "0" if (rr == 0 and q == 0) else f"v[{d}:{d+3}]"
                    a(f"v_mfma_f32_16x16x32_bf16 v[{d}:{d+3}], v[{ab+4*q}:{ab+4*q+3}], v[{bb+4*(c-q)}:{bb+4*(c-q)+3}], {cc}")
                    if pend: a(pend.pop(0))
        self.stamp(6)
        KP = AF; RX = AF + 16
        a(f"s_lshl_b32 s{sA}, s{sAW}, 12", f"s_add_u32 s{sA}, s{sA}, {XCH}", f"v_lshl_add_u32 v{vt}, v1, 4, s{sA}")
        a("s_nop 3")
        L1, L2 = self.lab("Lx"), self.lab("Lx")
        a(f"s_cmp_eq_u32 s{sPT}, 0", f"s_cbranch_scc0 {L1}")
        for pt in range(2):
            if pt: a(f"{L1}:")
            for t in range(4): a(f"ds_write_b128 v{vt}, v[{ACC+16*(1-pt)+4*t}:{ACC+16*(1-pt)+4*t+3}] offset:{1024*t}")
            for i in range(0, 16, 2): a(f"v_mov_b64 v[{KP+i}:{KP+i+1}], v[{ACC+16*pt+i}:{ACC+16*pt+i+1}]")
            if not pt: a(f"s_branch {L2}")
        a(f"{L2}:")
        a(f"v_bfe_u32 v{vt+3}, v1, 2, 2", f"v_mul_u32_u24 v{vt+3}, {448*256}, v{vt+3}", f"v_and_b32 v{vt+4}, 3, v1", f"v_lshl_add_u32 v{vt+3}, v{vt+4}, 4, v{vt+3}")
        a(f"v_and_b32 v{vt+4}, 48, v1", f"v_lshl_add_u32 v{vt+3}, v{vt+4}, 2, v{vt+3}")
        a(f"s_mul_i32 s{sC}, s{sPT}, {16*448*256}", f"s_lshl_b32 s{sB}, s{sE}, 8", f"s_add_u32 s{sC}, s{sC}, s{sB}", f"s_add_u32 s{sC}, s{sC}, {WS_YT}")
        a(f"v_xor_b32 v{vt}, 0x1000, v{vt}")
        self.auxbar(3, vt + 1, pair=True, extra=[f"ds_read_b128 v[{RX+4*t}:{RX+4*t+3}], v{vt} offset:{1024*t}" for t in range(4)])
        for t in range(4):
            k = KP + 4 * t
            for i in range(4): a(f"v_add_f32 v{k+i}, v{k+i}, v{RX+4*t+i}")
            a(f"v_cvt_pk_bf16_f32 v{k}, v{k}, v{k+1}", f"v_cvt_pk_bf16_f32 v{k+2}, v{k+2}, v{k+3}", f"v_mov_b32 v{k+1}, s{sTAG}", f"v_mov_b32 v{k+3}, s{sTAG}")
            self.vmem(f"buffer_store_dwordx4 v[{k}:{k+3}], v{vt+3}, {srd(S_WS)}, s{sC} offen sc1", "yst")
            if t < 3: a(f"s_add_u32 s{sC}, s{sC}, {4*448*256}")
        a("s_setprio 0")
        self.stamp(7)
        if self.stage < 4:
            self.write_stamps(1)
            a("s_endpgm"); return
        YR = 12
        self.final_addr(100)
        a(f"s_lshl_b32 s{sB}, s{sJ2}, 6", f"s_lshl_b32 s{sC}, s{sAW}, 4", f"s_add_u32 s{sB}, s{sB}, s{sC}")
        a(f"s_mul_i32 s{sA}, s{sI2}, 448", f"s_add_u32 s{sA}, s{sA}, s{sB}", f"s_lshl_b32 s{sA}, s{sA}, 8", f"s_add_u32 s{sA}, s{sA}, {WS_YT}")
        a(f"v_lshlrev_b32 v{vt}, 4, v1")
        a(f"v_lshrrev_b32 v{vt+1}, 4, v1", f"v_mul_u32_u24 v{vt+1}, 144, v{vt+1}", f"v_and_b32 v{vt+2}, 3, v1", f"v_lshl_add_u32 v{vt+1}, v{vt+2}, 5, v{vt+1}")
        a(f"v_bfe_u32 v{vt+3}, v1, 2, 2", f"v_lshl_add_u32 v{vt+1}, v{vt+3}, 3, v{vt+1}")
        a(f"s_mul_i32 s{sC}, s{sCH_}, {QB[1]}", f"s_lshl_b32 s{sB}, s{sPT}, 12", f"s_add_u32 s{sC}, s{sC}, s{sB}", f"v_add_u32 v{vt+1}, s{sC}, v{vt+1}")
        a(f"v_mul_u32_u24 v{vt+3}, 144, v{vt+3}", f"v_lshl_add_u32 v{vt+3}, v{vt+2}, 3, v{vt+3}", f"v_and_b32 v{vt+2}, 48, v1", f"v_lshl_add_u32 v{vt+3}, v{vt+2}, 1, v{vt+3}")
        a(f"v_add_u32 v{vt+3}, s{sC}, v{vt+3}", f"v_mul_u32_u24 v{vt+4}, 48, v1", f"v_add_u32 v{vt+4}, s{sC}, v{vt+4}")
        a(f"v_add_u32 v{vt+2}, 1152, v{vt+1}")
        if self.opt("ysl", 10): a(f"s_sleep {self.opt('ysl', 10)}")
        loads = [f"buffer_load_dwordx4 v[{YR+4*k}:{YR+4*k+3}], v{vt}, {srd(S_WS)}, s{sA} offen offset:{1024*k} sc1" for k in range(4)]
        self.spin(loads, [YR + 2 * i + 1 for i in range(8)], sleep=self.opt("ysp", 4), note=2)
        self.vm = ["fx"]
        for k in range(4): a(f"ds_write2_b32 v{vt+1}, v{YR+4*k}, v{YR+4*k+2} offset0:{144*k} offset1:{144*k+1}" if 144 * k + 1 < 256 else
                             f"ds_write2_b32 v{vt+2}, v{YR+4*k}, v{YR+4*k+2} offset0:{144*(k-2)} offset1:{144*(k-2)+1}")
        for t in range(4): a(f"ds_read_b64_tr_b16 v[{YR+16+2*t}:{YR+17+2*t}], v{vt+3} offset:{4*144*t}")
        a("s_waitcnt lgkmcnt(0)")
        for h in range(2): a(f"ds_write_b128 v{vt+4}, v[{YR+16+4*h}:{YR+19+4*h}] offset:{16*h}")
        self.final(184, 188, 190, 100, 1)

    def build(self):
        a = self.a
        a(".text", f".globl {NAME}_kernel", ".p2align 8", f".type {NAME}_kernel,@function", f"{NAME}_kernel:")
        self.prologue()
        self.aux()
        self.mwave()
        self.helper()
        a("L_exit:", "s_endpgm")
        added = a.fix_hazards()
        errs = a.check_waits()
        for e in errs: print("WAITERR:", e, file=sys.stderr)
        mv, ma, ms = a.max_regs()
        print(f"instrs {sum(1 for c in a.ins if c.kind not in ('dir','label'))} nops added {added} maxv {mv} maxs {ms}", file=sys.stderr)
        head = f"; fused LN + S4D conv + ReGLU FFN\n; @launch grid=(256,1,1) block=(512,1,1) lds=163840\n.amdgcn_target \"amdgcn-amd-amdhsa--gfx950\"\n"
        return head + a.text() + kernel_desc(NAME + "_kernel", 256, 256)

if __name__ == "__main__":
    import argparse
    ap = argparse.ArgumentParser()
    ap.add_argument("--stage", type=int, default=9); ap.add_argument("--stamps", action="store_true"); ap.add_argument("-o", default="k.s"); ap.add_argument("--opts", default="")
    x = ap.parse_args()
    open(x.o, "w").write(Gen(x.stage, x.stamps, [o for o in x.opts.split(',') if o]).build())
```

```python
import sys, struct
import numpy as np
from asmlib import Asm, kernel_desc
NAME = "parallel_sum__ssm_conv_s4d__glu_gated_reglu__prompt"

HS     = 225 * 1024
WS_H   = 0x0000000
WS_XNT = 0x0800000
WS_YT  = 0x0A00400
WS_CS  = 0x0E00000
WS_NM  = 0x0E10000
WS_R2  = 0x0E20000
WS_FH  = 0x0E30000
WS_FX  = 0x0E58000
WS_ST  = 0xF000000
RING = 32768
def slot_addr(s): return RING + 16384 * s
DBASE = RING
QB = [0, 8320]
UB = [16640, 21248]
AUXCNT = 32256
XCH = slot_addr(7)
SPIN_MAX = 20000

def f32(x): return "0x%08x" % struct.unpack("<I", struct.pack("<f", x))[0]
LOG2E = 1.4426950408889634

S_X, S_WG, S_WU, S_WD, S_WS, S_OUT, S_DBG = 4, 8, 12, 16, 20, 24, 28
def srd(b): return f"s[{b}:{b+3}]"
S_P = 32
sCH = 48
sXB, sWB, sDB, sM0, sAW, sSB = 55, 56, 57, 58, 59, 46
sW, sI, sJ, sI2, sJ2, sT, sST, sTAG, sSPIN = 60, 61, 62, 63, 64, 65, 44, 67, 68
sF, sA, sB, sC, sD, sE, sG = 69, 70, 71, 72, 73, 74, 75
sEX = 76
sLD, sDS = 78, 79
sKS = 32
sQI = 53
S_STAMP = 80
voX, voW, voD = 240, 244, 248

class Gen:
    def __init__(self, stage=9, stamps=False, opts=()):
        self.a = Asm(); self.stage = stage; self.stamps = stamps; self.opts = set(opts)
        self.nlab = 0; self.role = ''
        self.NDA = self.opt('nda', 3)
        self.vm = []
    def opt(self, name, default):
        for o in self.opts:
            if o.startswith(name + "="): return int(o[len(name) + 1:])
        return default
    def lab(self, p="L"):
        self.nlab += 1; return f"{p}_{self.nlab}"
    def cstamp(self, k):
        if self.stamps and "cyc" in self.opts: self.a(f"s_memtime s[{S_STAMP+2*k}:{S_STAMP+2*k+1}]")
    def stamp2(self, k):
        if self.stamps and "g2" in self.opts: self.a(f"s_memrealtime s[{S_STAMP+2*k}:{S_STAMP+2*k+1}]")
    def stamp3(self, k):
        if self.stamps and "g3" in self.opts: self.a(f"s_memrealtime s[{S_STAMP+2*k}:{S_STAMP+2*k+1}]")
    def stampk(self, k):
        if self.stamps: self.a(f"s_memrealtime s[{S_STAMP+2*k}:{S_STAMP+2*k+1}]")
    def stamp(self, k):
        if "k1" in self.opts and self.role in "MA" and self.role and 3 <= k <= 7: return
        if "spins" in self.opts: return
        if "g3" in self.opts and self.role == "A" and 1 <= k <= 7: return
        if "g2" in self.opts and self.role == "M" and 1 <= k <= 7: return
        if self.stamps and "cyc" not in self.opts: self.a(f"s_memrealtime s[{S_STAMP+2*k}:{S_STAMP+2*k+1}]")
    def vmem(self, text, tag=None):
        self.a(text); self.vm.append(tag)
    def wait_vm(self, tag):
        idx = [i for i, t in enumerate(self.vm) if t == tag]
        if not idx: return
        n = len(self.vm) - 1 - idx[-1]
        assert n <= 63
        self.a(f"s_waitcnt vmcnt({n})")
        self.vm = self.vm[idx[-1] + 1:]
    def wait_vm_all(self):
        self.a("s_waitcnt vmcnt(0)"); self.vm = []

    def spin(self, loads, checks, first_issued_tag=None, sleep=2, note=None):
        a = self.a
        L0, L1 = self.lab("Lspin"), self.lab("Lok")
        if "spins" in self.opts: a(f"s_mov_b32 s{sSPIN}, {SPIN_MAX+1}")
        if first_issued_tag is not None:
            self.wait_vm(first_issued_tag)
            self._check(checks)
            a(f"s_cbranch_vccz {L1}")
        a(f"s_mov_b32 s{sSPIN}, {SPIN_MAX}")
        a(f"{L0}:")
        for l in loads: a(l)
        a("s_waitcnt vmcnt(0)")
        self._check(checks)
        a(f"s_cbranch_vccz {L1}")
        if sleep: a(f"s_sleep {sleep}")
        a(f"s_sub_u32 s{sSPIN}, s{sSPIN}, 1", f"s_cmp_lg_u32 s{sSPIN}, 0", f"s_cbranch_scc1 {L0}")
        a(f"{L1}:")
        if "spins" in self.opts and note is not None: a(f"s_sub_u32 s{S_STAMP+2*note}, {SPIN_MAX+2}, s{sSPIN}")
        if first_issued_tag is None: self.vm = []
    def _check(self, checks):
        a = self.a
        a(f"v_cmp_ne_u32 vcc, s{sTAG}, v{checks[0]}")
        for c in checks[1:]:
            a(f"v_cmp_ne_u32 s[{sEX}:{sEX+1}], s{sTAG}, v{c}")
            a(f"s_or_b64 vcc, vcc, s[{sEX}:{sEX+1}]")
        a("s_nop 4" if len(checks) == 1 else "s_nop 0")
    def nonce_load(self, vt): return f"buffer_load_dword v{vt}, off, {srd(S_DBG)}, 0 sc1"
    def get_nonce(self, vt, issued=None):
        a = self.a
        L0, L1, L2 = self.lab("Lnon"), self.lab("Lnok"), self.lab("Lnx")
        def test():
            a(f"v_readfirstlane_b32 s{sTAG}, v{vt}", "s_nop 0")
            a(f"s_sub_u32 s{sEX}, s{sST}, s{sTAG}", f"s_cmp_lt_i32 s{sEX}, s{sEX+1}", f"s_cselect_b32 s{sEX}, s{sTAG}, 0")
            a(f"s_cmp_lg_u32 s{sEX}, 0", f"s_cbranch_scc1 {L1}")
        a(f"s_movk_i32 s{sEX+1}, 600")
        if issued is not None:
            self.wait_vm(issued); test()
        a(f"s_mov_b32 s{sSPIN}, {SPIN_MAX}")
        a(f"{L0}:")
        a(self.nonce_load(vt), "s_waitcnt vmcnt(0)")
        test()
        a(f"s_sub_u32 s{sSPIN}, s{sSPIN}, 1", f"s_cmp_lt_u32 s{sSPIN}, {SPIN_MAX-100}", f"s_cselect_b32 s{sEX+1}, 0x7fffffff, s{sEX+1}")
        a(f"s_cmp_lg_u32 s{sSPIN}, 0", f"s_cbranch_scc1 {L0}")
        a(f"{L1}:")
        if issued is None: self.vm = []
    def write_stamps(self, which):
        if not self.stamps: return
        a = self.a
        L = self.lab("Lst")
        a("s_waitcnt lgkmcnt(0)")
        a(f"s_cmp_lg_u32 s{sW}, {4*which}", f"s_cbranch_scc1 {L}")
        a(f"s_lshl_b32 s{sA}, s2, 8", f"s_add_u32 s{sA}, s{sA}, {WS_ST + 128*which}")
        a(f"s_mov_b64 s[{sEX}:{sEX+1}], exec", "s_mov_b64 exec, 1")
        for k in range(10):
            a(f"v_mov_b32 v2, s{S_STAMP+2*k}", f"v_mov_b32 v3, s{S_STAMP+2*k+1}")
            a(f"buffer_store_dwordx2 v[2:3], off, {srd(S_WS)}, s{sA} offset:{8*k}")
        a(f"s_mov_b64 exec, s[{sEX}:{sEX+1}]")
        a(f"{L}:")

    def prologue(self):
        a = self.a
        for (r, off) in ((S_X, 0), (S_WG, 64), (S_WU, 72)):
            a(f"s_load_dwordx2 s[{r}:{r+1}], s[0:1], {off}")
        a(f"s_load_dwordx8 s[{S_P}:{S_P+7}], s[0:1], 8", f"s_load_dwordx4 s[{S_P+8}:{S_P+11}], s[0:1], 40")
        a("s_cmp_ge_u32 s2, 256", "s_cbranch_scc1 L_exit")
        if "nopf" not in self.opts:
            L = self.lab("Lpc"); L2 = self.lab("Lpc")
            a(f"s_getpc_b64 s[{sA}:{sB}]", f"{L}:")
            a("v_lshlrev_b32 v254, 7, v0", f"v_cmp_gt_u32 vcc, L_exit-{L}, v254")
            a(f"s_and_saveexec_b64 s[{sEX}:{sEX+1}], vcc", f"s_cbranch_execz {L2}")
            a(f"global_load_dword v255, v254, s[{sA}:{sB}]")
            a(f"{L2}:", f"s_mov_b64 exec, s[{sEX}:{sEX+1}]")
        for (r, off) in ((S_WD, 80), (S_OUT, 88), (S_DBG, 96), (S_WS, 104)):
            a(f"s_load_dwordx2 s[{r}:{r+1}], s[0:1], {off}")
        a(f"s_memrealtime s[{sST}:{sST+1}]")
        if self.stamps:
            for k in range(1, 10): a(f"s_mov_b64 s[{S_STAMP+2*k}:{S_STAMP+2*k+1}], 0")
        self.stamp(0)
        vt = 5
        a(f"v_lshrrev_b32 v{vt}, 6, v0", "v_and_b32 v1, 63, v0")
        a(f"v_readfirstlane_b32 s{sW}, v{vt}")
        a(f"s_mov_b32 s{S_X+2}, 1835008", f"s_mov_b32 s{S_X+3}, 0x20000", f"s_mov_b32 s{S_WG+2}, 1605632", f"s_mov_b32 s{S_WG+3}, 0x20000")
        a(f"s_mov_b64 s[{S_WU+2}:{S_WU+3}], s[{S_WG+2}:{S_WG+3}]", f"s_mov_b64 s[{S_WD+2}:{S_WD+3}], s[{S_WG+2}:{S_WG+3}]", f"s_mov_b64 s[{S_OUT+2}:{S_OUT+3}], s[{S_X+2}:{S_X+3}]")
        a(f"s_mov_b32 s{S_WS+2}, 0x10000000", f"s_mov_b32 s{S_WS+3}, s{S_X+3}", f"s_movk_i32 s{S_DBG+2}, 256", f"s_mov_b32 s{S_DBG+3}, s{S_X+3}")
        a(f"s_and_b32 s{sA}, s2, 7", f"s_lshr_b32 s{sB}, s2, 3")
        a("s_cmp_lt_u32 s2, 32", "s_cbranch_scc1 L_helper")
        a(f"s_sub_u32 s{sB}, s{sB}, 4")
        a(f"s_mul_i32 s{sC}, s{sB}, 37", f"s_lshr_b32 s{sC}, s{sC}, 8")
        a(f"s_mul_i32 s{sD}, s{sC}, 7", f"s_sub_u32 s{sJ2}, s{sB}, s{sD}")
        a(f"s_lshr_b32 s{sD}, s{sA}, 1", f"s_lshl2_add_u32 s{sI}, s{sD}, s{sC}")
        a(f"s_and_b32 s{sD}, s{sA}, 1", f"s_mul_i32 s{sD}, s{sD}, 7", f"s_add_u32 s{sJ}, s{sD}, s{sJ2}")
        a(f"s_lshl2_add_u32 s{sI2}, s{sA}, s{sC}")
        a(f"s_sub_u32 s{sT}, s2, 32")
        a(f"s_mov_b32 s{sQI}, s{sC}", f"s_and_b32 s{sAW}, s{sW}, 3")
        a(f"s_lshl_b32 s{sD}, s{sT}, 10", f"s_lshl_b32 s{sE}, s{sAW}, 8", f"s_add_u32 s{sD}, s{sD}, s{sE}")
        a(f"v_lshl_add_u32 v19, v1, 1, s{sD}", f"s_lshl_b32 s{sF}, s{sT}, 2")
        a(f"v_lshrrev_b32 v{vt}, 3, v1", f"v_and_b32 v{vt+1}, 7, v1", f"v_lshrrev_b32 v{vt+2}, 4, v1")
        a(f"v_mul_u32_u24 v15, 896, v{vt}")
        a(f"v_lshlrev_b32 v14, 1, v{vt+2}", f"v_xor_b32 v14, v14, v{vt+1}", f"v_lshl_add_u32 v{voD}, v14, 4, v15")
        a(f"s_lshl_b32 s{sM0}, s{sAW}, 12")
        a(f"s_cmp_lt_u32 s{sW}, 4", "s_cbranch_scc1 L_m")
        a(f"v_xor_b32 v14, v{vt+2}, v{vt+1}", f"v_lshl_add_u32 v{voX}, v14, 4, v15")
        a(f"v_xor_b32 v14, 64, v{voX}", f"v_add_u32 v{voX+1}, {7168-1024}, v14", f"v_add_u32 v{voX+2}, {2*(7168-1024)}, v{voX}", f"v_add_u32 v{voX+3}, {3*(7168-1024)}, v14")
        a(f"v_lshlrev_b32 v14, 1, v{vt+2}", f"v_and_b32 v15, 15, v1", f"v_xor_b32 v14, v14, v15")
        a(f"v_mul_u32_u24 v15, 3584, v{vt+2}", f"v_lshl_add_u32 v{voW}, v14, 4, v15")
        a(f"v_xor_b32 v14, 0x80, v{voW}", f"v_add_u32 v{voW+1}, {14336-1024}, v{voW}", f"v_add_u32 v{voW+2}, {2*(14336-1024)}, v14", f"v_add_u32 v{voW+3}, {3*(14336-1024)}, v14")
        a(f"s_lshl2_add_u32 s{sA}, s{sI}, s{sAW}", f"s_mul_i32 s{sXB}, s{sA}, {32*896}")
        a(f"s_and_b32 s{sA}, s{sAW}, 1", f"s_mul_i32 s{sA}, s{sA}, {16*3584}", f"s_lshl_b32 s{sB}, s{sJ}, 8", f"s_add_u32 s{sWB}, s{sA}, s{sB}")
        a(f"s_cmp_ge_u32 s{sAW}, 2")
        a("s_waitcnt lgkmcnt(0)")
        self.vm = ["pf"]
        a(f"s_cselect_b32 s{S_WG}, s{S_WU}, s{S_WG}", f"s_cselect_b32 s{S_WG+1}, s{S_WU+1}, s{S_WG+1}")

    def ks_table(self):
        L = []
        for p in range(7):
            lo, mod = (0, 4) if p < 4 else (4, 3)
            d = sKS + p
            if self.opt("rot2", 1):
                L += [f"s_add_u32 s{d}, s{sQI}, {p - lo}", f"s_cmp_ge_u32 s{d}, {mod}", f"s_cselect_b32 s{sB}, {mod}, 0", f"s_sub_u32 s{d}, s{d}, s{sB}"]
                L += [f"s_add_u32 s{d}, s{d}, s{sJ2}"]
                if lo: L += [f"s_add_u32 s{d}, s{d}, {lo}"]
                L += [f"s_cmp_ge_u32 s{d}, 7", f"s_cselect_b32 s{sB}, 7, 0", f"s_sub_u32 s{d}, s{d}, s{sB}"]
            else: L += [f"s_mov_b32 s{d}, {p}"]
        return L

    def colsum_partial(self, R, C, vt, area):
        a = self.a
        for i in range(4):
            a(f"v_lshlrev_b32 v{C+2*i}, 16, v{R+i}", f"v_and_b32 v{C+2*i+1}, 0xffff0000, v{R+i}")
        for t in range(1, 7):
            for i in range(4):
                a(f"v_dot2c_f32_bf16 v{C+2*i}, s{self.sLO}, v{R+4*t+i}", f"v_dot2c_f32_bf16 v{C+2*i+1}, s{self.sHI}, v{R+4*t+i}")
        for i in range(4): a(f"v_permlane32_swap_b32 v{C+i}, v{C+i+4}")
        for i in range(4): a(f"v_add_f32 v{C+i}, v{C+i}, v{C+i+4}")
        for i in range(2): a(f"v_permlane16_swap_b32 v{C+i}, v{C+i+2}")
        for i in range(2): a(f"v_add_f32 v{C+i}, v{C+i}, v{C+i+2}")
        a(f"v_and_b32 v{vt}, 8, v1", f"v_cmp_ne_u32 vcc, 0, v{vt}")
        for i in range(2): a(f"v_add_f32_dpp v{C+2+i}, v{C+i}, v{C+i} row_ror:8 row_mask:0xf bank_mask:0xf")
        a(f"v_cndmask_b32 v{C}, v{C+2}, v{C+3}, vcc")
        a(f"ds_write_b32 v{self.hCSW}, v{C} offset:{area}")
    def colsum_final(self, wave, area, blk, C, vt):
        a = self.a
        L = self.lab("Lcs")
        a(f"s_cmp_lg_u32 s{sW}, {wave}", f"s_cbranch_scc1 {L}")
        a(f"v_lshlrev_b32 v{vt}, 2, v1")
        for w in range(8): a(f"ds_read_b32 v{C+w}, v{vt} offset:{area + 256*w}")
        a(f"v_lshlrev_b32 v{vt}, 4, v1")
        a(f"s_add_u32 s{sA}, s{sJ}, {WS_CS + 1024*blk}")
        a("s_waitcnt lgkmcnt(0)")
        for (x, y) in ((0,1),(2,3),(4,5),(6,7),(0,2),(4,6),(0,4)): a(f"v_add_f32 v{C+x}, v{C+x}, v{C+y}")
        a(f"v_mov_b32 v{C+1}, s{sTAG}")
        a(f"buffer_store_dwordx2 v[{C}:{C+1}], v{vt}, {srd(S_WS)}, s{sA} offen sc1")
        a(f"{L}:")

    def helper(self):
        a = self.a
        self.vm = []; self.role = 'H'
        a("L_helper:")
        WA, XR, WB, C, XF = 4, 32, 60, 88, 100
        vt = 96; vR, vP = 160, 161; vW, vX = 162, 163; self.hCSW = 164
        vS, vM, vMB, vQ, vRr = 165, 166, 172, 168, 170
        self.sLO, self.sHI, sONE = 48, 49, 50
        TS = 912; CSA = 61440
        a(f"v_lshrrev_b32 v{vR}, 3, v0", f"v_and_b32 v{vP}, 7, v0")
        a(f"v_lshlrev_b32 v{vt}, 4, v{vP}")
        a(f"v_mul_u32_u24 v{vW}, 3584, v{vR}", f"v_add_u32 v{vW}, v{vW}, v{vt}")
        a(f"v_mul_u32_u24 v{vX}, 896, v{vR}", f"v_add_u32 v{vX}, v{vX}, v{vt}")
        a(f"s_lshl2_add_u32 s{sI}, s{sA}, s{sB}")
        a(f"s_lshr_b32 s{sC}, s{sA}, 1", f"s_lshl2_add_u32 s{sT}, s{sC}, s{sB}")
        a(f"s_and_b32 s{sA}, s{sA}, 1", f"s_mul_i32 s{sA}, s{sA}, 7", f"s_add_u32 s{sA}, s{sA}, s{sT}")
        a(f"s_cmp_ge_u32 s{sT}, 7", f"s_cselect_b32 s{sB}, 7, 0", f"s_cselect_b32 s{sJ}, 8, 0", f"s_sub_u32 s{sB}, s{sA}, s{sB}", f"s_lshl_b32 s{sB}, s{sB}, 8")
        a(f"s_lshl3_add_u32 s{sJ}, s{sB}, s{sJ}")
        a(f"s_cmp_ge_u32 s{sT}, 14", f"s_cselect_b32 s{S_WG+2}, 0, s{S_WG+2}", f"s_cselect_b32 s{sJ}, 0x8000, s{sJ}")
        a(f"s_mul_i32 s{sC}, s{sI}, {64*896}")
        a("s_waitcnt lgkmcnt(0)")
        Ln = self.lab("Lnn")
        a(f"s_or_b32 s{sD}, s2, s{sW}", f"s_cmp_lg_u32 s{sD}, 0", f"s_cbranch_scc1 {Ln}")
        a(f"s_or_b32 s{sA}, s{sST}, 1", f"v_mov_b32 v2, s{sA}")
        a("s_mov_b64 exec, 1", f"buffer_store_dword v2, off, {srd(S_DBG)}, 0 sc1", "s_mov_b64 exec, -1")
        a(f"{Ln}:")
        a(f"s_cmp_ge_u32 s{sT}, 7", f"s_cselect_b32 s{S_WG}, s{S_WU}, s{S_WG}", f"s_cselect_b32 s{S_WG+1}, s{S_WU+1}, s{S_WG+1}")
        for t in range(7):
            self.vmem(f"buffer_load_dwordx4 v[{XR+4*t}:{XR+4*t+3}], v{vX}, {srd(S_X)}, s{sC} offen offset:{128*t}", "XR")
        a(f"s_mov_b32 s{self.sLO}, 0x3f80", f"s_mov_b32 s{self.sHI}, 0x3f800000", f"s_mov_b32 s{sONE}, 0x3f803f80")
        a(f"v_lshrrev_b32 v{vt}, 3, v1", f"v_lshl_add_u32 v{vt}, v{vP}, 3, v{vt}", f"v_lshlrev_b32 v{vt}, 2, v{vt}")
        a(f"s_lshl_b32 s{sD}, s{sW}, 8", f"v_add_u32 v{self.hCSW}, s{sD}, v{vt}")
        for k in range(4): a(f"v_mov_b32 v{C+k}, 0")
        a(f"v_lshlrev_b32 v{vt+2}, 3, v{vR}")
        a(f"s_lshl_b32 s{sE}, s{sI}, 9")
        self.wait_vm("XR")
        self.stamp(1)
        for i in range(28): a(f"v_dot2c_f32_bf16 v{C+i%4}, s{sONE}, v{XR+i}")
        a(f"v_add_f32 v{C}, v{C}, v{C+1}", f"v_add_f32 v{C+2}, v{C+2}, v{C+3}", f"v_add_f32 v{vS}, v{C}, v{C+2}")
        for ctl in ("quad_perm:[1,0,3,2]", "quad_perm:[2,3,0,1]", "row_half_mirror"):
            a(f"v_add_f32_dpp v{vS}, v{vS}, v{vS} {ctl} row_mask:0xf bank_mask:0xf")
        a(f"v_mul_f32 v{vM}, {f32(-1.0/448)}, v{vS}")
        a(f"v_cvt_pk_bf16_f32 v{vMB}, 0, v{vM}")
        self.vmem(self.nonce_load(vQ), "non")
        wl = [(blk, R, t) for blk, R in ((0, WA), (1, WB)) for t in range(7)]
        def wload():
            if not wl: return
            blk, R, t = wl.pop(0)
            a(f"s_add_u32 s{sD}, s{sB}, {t*64*3584}")
            self.vmem(f"buffer_load_dwordx4 v[{R+4*t}:{R+4*t+3}], v{vW}, {srd(S_WG)}, s{sD} offen offset:{128*blk}", "W")
        for i in range(28):
            a(f"v_dot2_f32_bf16 v{XF+2*i}, v{XR+i}, s{self.sLO}, v{vMB}", f"v_dot2_f32_bf16 v{XF+2*i+1}, v{XR+i}, s{self.sHI}, v{vMB}")
            if i % 7 == 6: wload()
        for k in range(2): a(f"v_pk_mul_f32 v[{C+2*k}:{C+2*k+1}], v[{XF+2*k}:{XF+2*k+1}], v[{XF+2*k}:{XF+2*k+1}]")
        for i in range(2, 28):
            k = i % 2
            a(f"v_pk_fma_f32 v[{C+2*k}:{C+2*k+1}], v[{XF+2*i}:{XF+2*i+1}], v[{XF+2*i}:{XF+2*i+1}], v[{C+2*k}:{C+2*k+1}]")
            if i % 13 == 12: wload()
        a(f"v_add_f32 v{C}, v{C}, v{C+1}", f"v_add_f32 v{C+2}, v{C+2}, v{C+3}", f"v_add_f32 v{vS}, v{C}, v{C+2}")
        a(f"v_sub_f32 v{vM}, v{vM}, v{vMB}")
        rnd = [f"v_cvt_pk_bf16_f32 v{XF+i}, 0, v{XF+i}" for i in range(56)]
        def fill(n):
            for _ in range(n):
                if rnd: a(rnd.pop(0))
        chain = []
        for ctl in ("quad_perm:[1,0,3,2]", "quad_perm:[2,3,0,1]", "row_half_mirror"):
            chain.append(f"v_add_f32_dpp v{vS}, v{vS}, v{vS} {ctl} row_mask:0xf bank_mask:0xf")
        chain += [f"v_mul_f32 v{vM}, v{vM}, v{vM}", f"v_mul_f32 v{vS}, {f32(1.0/448)}, v{vS}", f"v_sub_f32 v{vS}, v{vS}, v{vM}", f"v_max_f32 v{vS}, 0, v{vS}",
                  f"v_cvt_pk_bf16_f32 v{vS}, 0, v{vS}", f"v_add_f32 v{vS}, {f32(1e-5)}, v{vS}", f"v_cvt_pk_bf16_f32 v{vS}, 0, v{vS}",
                  f"v_sqrt_f32 v{vS}, v{vS}", f"v_cvt_pk_bf16_f32 v{vS}, 0, v{vS}", f"v_rcp_f32 v{vRr}, v{vS}",
                  f"v_mul_f32 v{C+6}, v{vRr}, v{vRr}", f"v_mov_b32 v{vRr+1}, v{vRr}"]
        for i, c in enumerate(chain):
            fill(2); a(c)
            if i % 5 == 4: wload()
        self.get_nonce(vQ, issued="non")
        a(f"v_mov_b32 v{C+7}, s{sTAG}", f"v_mov_b32 v{vMB+1}, s{sTAG}", f"s_add_u32 s{sA}, s{sE}, {WS_R2}", f"s_add_u32 s{sD}, s{sE}, {WS_NM}")
        a("s_mov_b32 exec_lo, 0x01010101", "s_mov_b32 exec_hi, 0x01010101")
        self.vmem(f"buffer_store_dwordx2 v[{vMB}:{vMB+1}], v{vt+2}, {srd(S_WS)}, s{sD} offen sc1", "st")
        self.vmem(f"buffer_store_dwordx2 v[{C+6}:{C+7}], v{vt+2}, {srd(S_WS)}, s{sA} offen sc1", "st")
        a("s_mov_b64 exec, -1")
        self.stamp(2)
        fill(13); wload(); fill(99)
        a(f"v_mul_u32_u24 v{vt}, {TS}, v{vR}", f"v_lshl_add_u32 v{vt}, v{vP}, 4, v{vt}")
        for t in range(7):
            for i in range(4 * t, 4 * t + 4): a(f"v_pk_mul_f32 v[{XF+2*i}:{XF+2*i+1}], v[{XF+2*i}:{XF+2*i+1}], v[{vRr}:{vRr+1}]")
            for i in range(4 * t, 4 * t + 4): a(f"v_cvt_pk_bf16_f32 v{XR+i}, v{XF+2*i}, v{XF+2*i+1}")
            a(f"ds_write_b128 v{vt}, v[{XR+4*t}:{XR+4*t+3}] offset:{128*t}")
            wload()
        assert not wl
        a(f"v_bfe_u32 v{vt+1}, v1, 4, 1", f"v_and_b32 v{vt+3}, 3, v1", f"v_lshl_add_u32 v{vt+1}, v{vt+1}, 2, v{vt+3}")
        a(f"v_bfe_u32 v{vt+3}, v1, 2, 2", f"v_lshl_add_u32 v{vt+1}, v{vt+1}, 3, v{vt+3}", f"v_mul_u32_u24 v{vt+1}, {TS}, v{vt+1}")
        a(f"v_lshrrev_b32 v{vt+3}, 5, v1", f"v_lshl_add_u32 v{vt+1}, v{vt+3}, 3, v{vt+1}")
        a(f"s_lshl_b32 s{sD}, s{sW}, 4", f"v_add_u32 v{vt+1}, s{sD}, v{vt+1}")
        a(f"v_lshlrev_b32 v{vt+2}, 4, v1")
        a(f"s_mul_i32 s{sC}, s{sI}, {448*128}", f"s_lshl_b32 s{sA}, s{sW}, 10", f"s_add_u32 s{sC}, s{sC}, s{sA}", f"s_add_u32 s{sC}, s{sC}, {WS_XNT}")
        a("s_waitcnt lgkmcnt(0)", "s_barrier")
        self.stamp(3)
        for n in range(7):
            for t in range(2):
                a(f"ds_read_b64_tr_b16 v[{XR+4*n+2*t}:{XR+4*n+2*t+1}], v{vt+1} offset:{128*n + 4*TS*t}")
        for n in range(7):
            a(f"s_waitcnt lgkmcnt({12-2*n})")
            self.vmem(f"buffer_store_dwordx4 v[{XR+4*n}:{XR+4*n+3}], v{vt+2}, {srd(S_WS)}, s{sC} offen sc1", "st")
            if n < 6: a(f"s_add_u32 s{sC}, s{sC}, 8192")
        self.wait_vm("W")
        self.colsum_partial(WA, C, vt, CSA)
        a("s_waitcnt vmcnt(0)", "s_barrier")
        L = self.lab("Lfx")
        a(f"s_cmp_lg_u32 s{sW}, 0", f"s_cbranch_scc1 {L}")
        a(f"v_mov_b32 v2, s{sTAG}", f"s_lshl_b32 s{sA}, s{sI}, 7", f"s_add_u32 s{sA}, s{sA}, {WS_FX}")
        a("v_lshlrev_b32 v3, 2, v1", "s_mov_b32 exec_hi, 0", f"buffer_store_dword v2, v3, {srd(S_WS)}, s{sA} offen sc1", "s_mov_b32 exec_hi, -1")
        a(f"{L}:")
        self.stamp(5)
        self.colsum_partial(WB, C, vt, CSA + 2048)
        a("s_waitcnt lgkmcnt(0)", "s_barrier")
        self.colsum_final(0, CSA, 0, WA, vt)
        self.colsum_final(1, CSA + 2048, 1, WA, vt)
        self.stamp(4)
        self.write_stamps(0)
        a("s_endpgm")

    @staticmethod
    def uslot(u): return (u + 3) % 8

    def kgen_setup(self):
        base = 8
        PRM, vDT, vt, vRA, vRB, KD, BF, AF, T = base + 12, base + 4, base + 5, base + 8, base + 9, 28, 44, 76, 200
        self.KD, self.kBF, self.kAF, self.kvt = KD, BF, AF, vt
        self.kregs = (PRM, vDT, vt, vRA, vRB, KD, BF, AF, T)
        L = []
        e = lambda *x: L.extend(x)
        e(f"s_lshl_b32 s{sSB}, s{sAW}, 8")
        def rowaddr(dst, sig):
            e(f"v_and_b32 v{dst}, 15, v{sig}", f"v_mul_u32_u24 v{dst}, 2064, v{dst}", f"v_lshrrev_b32 v{sig}, 4, v{sig}", f"v_lshl_add_u32 v{dst}, v{sig}, 10, v{dst}")
            e(f"v_add_u32 v{dst}, v{dst}, v{vt+2}")
        e(f"v_lshrrev_b32 v{vt+2}, 5, v1", f"v_lshlrev_b32 v{vt+2}, 4, v{vt+2}", f"v_and_b32 v{vt}, 31, v1")
        e(f"v_cmp_eq_u32 vcc, 5, v{vt}", f"v_cndmask_b32_e64 v{vt+1}, v{vt}, 4, vcc", f"v_cmp_eq_u32 vcc, 31, v{vt}", f"v_cndmask_b32_e64 v{vt+1}, v{vt+1}, 5, vcc")
        rowaddr(vRA, vt + 1)
        e(f"v_add_u32 v{vRA}, s{sSB}, v{vRA}")
        e(f"v_add_u32 v{vt+1}, -1, v{vt}", f"v_and_b32 v{vt+1}, 31, v{vt+1}")
        rowaddr(vRB, vt + 1)
        e(f"v_cmp_eq_u32 vcc, 0, v{vt}", f"v_mov_b32 v{vt}, s{sSB}", f"v_cndmask_b32_e64 v{vt}, v{vt}, 0, vcc", f"v_add_u32 v{vRB}, v{vRB}, v{vt}")
        e("s_waitcnt lgkmcnt(0)")
        e(f"s_lshr_b32 s{sC}, s{sAW}, 1", f"s_lshl_b32 s{sC}, s{sC}, 4")
        for r in (sLD, sDS): e(f"s_lshr_b32 s{r}, s{r}, s{sC}", f"s_lshl_b32 s{r}, s{r}, 16")
        chi = float(np.frombuffer(np.uint32(np.float32(LOG2E).view(np.uint32) & 0xFFFFFF00).tobytes(), np.float32)[0]); clo = LOG2E - chi
        e(f"v_mov_b32 v{vt+2}, s{sLD}", f"v_mul_f32 v{vDT}, {f32(chi)}, v{vt+2}", f"v_mul_f32 v{vt+2}, {f32(clo)}, v{vt+2}")
        e(f"v_exp_f32 v{vDT}, v{vDT}", f"v_exp_f32 v{vt+2}, v{vt+2}", f"v_mul_f32 v{vDT}, v{vDT}, v{vt+2}")
        e(f"v_cvt_pk_bf16_f32 v{vDT}, 0, v{vDT}")
        return L

    @staticmethod
    def soff(sig): return (sig & 15) * 2064 + (sig >> 4) * 1024

    def kgen_scale(self):
        PRM, vDT, vt, vRA, vRB, KD, BF, AF, T = self.kregs
        L = []
        e = lambda *x: L.extend(x)
        e(f"v_and_b32 v{T}, 0x7fff, v{PRM+2}", f"v_and_b32 v{T+1}, 0x7fff, v{PRM+3}", f"v_and_b32 v{T+2}, 0x7fff, v{PRM+6}", f"v_and_b32 v{T+3}, 0x7fff, v{PRM+7}")
        e(f"v_max_u32 v{T}, v{T}, v{T+1}", f"v_max3_u32 v{T}, v{T}, v{T+2}, v{T+3}")
        sh = [f"v_lshlrev_b32 v{PRM+k}, 16, v{PRM+k}" for k in range(8)]
        for ctl in ("row_shr:1", "row_shr:2", "row_shr:4", "row_shr:8", "row_bcast:15 row_mask:0xa", "row_bcast:31 row_mask:0xc"):
            for _ in range(2):
                if sh: e(sh.pop(0))
            e(f"v_max_u32_dpp v{T}, v{T}, v{T} {ctl}" + (" row_mask:0xf" if "row_mask" not in ctl else "") + " bank_mask:0xf")
        e(f"v_readlane_b32 s50, v{T}, 63")
        e("s_lshr_b32 s50, s50, 7", "s_sub_u32 s50, 267, s50", "s_min_u32 s50, s50, 253", f"s_sub_u32 s51, 255, s50")
        e("s_lshl_b32 s50, s50, 23", "s_lshl_b32 s51, s51, 23", f"v_mul_f32 v18, s51, v{vDT}")
        return L

    def kgen_body(self, czero, batch):
        PRM, vDT, vt, vRA, vRB, KD, BF, AF, T = self.kregs
        L = []
        e = lambda *x: L.extend(x)
        tt = 172; ti = [0]
        pendf = []
        def cmul(d, x, y):
            t = tt + ti[0] % 8; ti[0] += 1
            if any(x == p[0] or y == p[0] for p in pendf): flush()
            e(f"v_pk_mul_f16 v{t}, v{x}, v{y} op_sel:[1,1] op_sel_hi:[0,1]")
            flush()
            pendf.append((d, f"v_pk_fma_f16 v{d}, v{x}, v{y}, v{t} op_sel_hi:[1,0,1] neg_lo:[0,0,1]"))
        def flush():
            for p in pendf: e(p[1])
            pendf.clear()
        BF += 64 * batch; AF += 64 * batch
        def arow(hh, reg): return 8 * (reg >> 2) + 4 * hh + (reg & 3)
        P1 = {}
        for reg, p in enumerate(list(range(9)) + [512, 516, 520, 1024, 1032, 1536, 1544]): P1.setdefault(p, []).append(arow(0, reg))
        for reg, p in enumerate([256, 256, 258, 260, 260, 260, 262, 264, 264, 768, 772, 776, 1280, 1288, 1792, 1800]): P1.setdefault(p, []).append(arow(1, reg))
        assert P1[256] == [4, 5] and P1[1800] == [31]
        P1[256] = [4]; P1[1800] = [5]
        E = {j: BF + j for j in range(1, 32)}
        V = {p: AF + i for i, p in enumerate(sorted(P1))}
        va, vb = T, T + 1
        S = T + 2
        A = T + 10
        W1, W8, W256 = T + 18, T + 19, T + 20
        p_ = PRM + 4 * batch
        e(f"v_mul_f32 v{va}, {f32(LOG2E)}, v{p_}", f"v_mul_f32 v{vb}, v{p_+1}, v{vDT}", f"v_exp_f32 v{va}, v{va}")
        e(f"v_mul_f32 v{vb}, 0.15915494, v{vb}", f"v_mul_f32 v{p_+2}, s50, v{p_+2}")
        e(f"v_cvt_pk_bf16_f32 v{va}, 0, v{va}", f"v_mul_f32 v{p_+3}, s50, v{p_+3}")
        e(f"v_mul_f32 v{va}, v{va}, v{vDT}", f"v_cvt_pk_f16_f32 v{V[0]}, v{p_+2}, v{p_+3}")
        e(f"v_mul_f32 v{va}, {f32(-LOG2E)}, v{va}")
        seeds = (8, 32, 1, 256)
        for i, p in enumerate(seeds):
            if p != 1: e(f"v_mul_f32 v{A+2*i+1}, {f32(p)}, v{vb}", f"v_mul_f32 v{A+2*i}, {f32(p)}, v{va}")
        for i, p in enumerate(seeds):
            e(f"v_fract_f32 v{A+2*i+1}, v{A+2*i+1 if p != 1 else vb}", f"v_exp_f32 v{A+2*i}, v{A+2*i if p != 1 else va}")
        for i, p in enumerate(seeds):
            e(f"v_cos_f32 v{S+2*i}, v{A+2*i+1}", f"v_sin_f32 v{S+2*i+1}, v{A+2*i+1}")
        for i, p in enumerate(seeds):
            e(f"v_mul_f32 v{S+2*i}, v{S+2*i}, v{A+2*i}", f"v_mul_f32 v{S+2*i+1}, v{S+2*i+1}, v{A+2*i}")
        e(f"v_cvt_pk_f16_f32 v{E[1]}, v{S}, -v{S+1}", f"v_cvt_pk_f16_f32 v{W8}, v{S}, v{S+1}", f"v_cvt_pk_f16_f32 v{E[4]}, v{S+2}, -v{S+3}")
        e(f"v_cvt_pk_f16_f32 v{W1}, v{S+4}, v{S+5}", f"v_cvt_pk_f16_f32 v{W256}, v{S+6}, v{S+7}")
        jobs = [(E[2], E[1], E[1]), (V[8], V[0], W8), (V[1], V[0], W1), (E[3], E[2], E[1])]
        vj = [(V[k], V[k - 1], W1) for k in range(2, 8)]
        far = [(V[p], V[p - 256], W256) for p in sorted(P1) if p >= 256]
        far.sort(key=lambda x: 0)
        f08 = [(V[p], V[p - 256], W256) for p in sorted(P1) if p >= 256 and p % 256 in (0, 8)]
        fo = [(V[p], V[p - 256], W256) for p in sorted(P1) if p >= 256 and p % 256 not in (0, 8)]
        ej = [(E[j], E[j - 4], E[4]) for j in range(5, 32)]
        while ej or vj or f08 or fo:
            for q_ in (ej, vj, ej, f08) if vj else (ej, fo, ej, f08):
                if q_: jobs.append(q_.pop(0))
        for j in jobs: cmul(*j)
        flush()
        B = [f"ds_write_addtid_b32 v{E[j]} offset:{self.soff(j-1)}" for j in range(1, 32)]
        B += [f"ds_read_b128 v[{BF+4*k}:{BF+4*k+3}], v{vRB} offset:{32*k}" for k in range(8)]
        B += [f"ds_write_addtid_b32 v{V[p]} offset:{self.soff(sig)}" for p in sorted(P1) for sig in P1[p]]
        B += [f"ds_read_b128 v[{AF+4*k}:{AF+4*k+3}], v{vRA} offset:{32*k}" for k in range(8)]
        M = []
        for k in range(8):
            c = "0" if (czero and k == 0) else f"v[{KD}:{KD+15}]"
            M.append(f"v_mfma_f32_32x32x16_f16 v[{KD}:{KD+15}], v[{AF+4*k}:{AF+4*k+3}], v[{BF+4*k}:{BF+4*k+3}], {c}")
        return L, B, M

    def mwave(self):
        a = self.a
        self.role = 'M'
        a("L_m:")
        ACC, AB, XB, CSX, NMX = 4, 132, 164, 228, 232
        vAX, vAW = 234, 248
        vt = 239; vHO = 2; vCSO = 3; vN = 238
        sLH, sFH = 48, 49
        def acc(mat, b, ft): return ACC + 4 * (b + 4 * (ft + 4 * mat))
        a(f"v_mov_b32 v0, v{voD}")
        a(f"s_lshr_b32 s{sLH}, s{sW}, 1", f"s_and_b32 s{sFH}, s{sW}, 1")
        a(f"v_and_b32 v{vt}, 15, v1")
        a(f"v_lshrrev_b32 v{vt+2}, 4, v1", f"v_bfe_u32 v{vt+3}, v1, 1, 3")
        a(f"v_xor_b32 v{vt+3}, v{vt+3}, v{vt+2}", f"v_lshlrev_b32 v{vt+3}, 4, v{vt+3}")
        a(f"s_lshl_b32 s{sA}, s{sLH}, 13", f"s_add_u32 s{sA}, s{sA}, {RING}")
        a(f"v_lshl_add_u32 v{vt}, v{vt}, 7, s{sA}")
        for s_ in range(2):
            a(f"v_xad_u32 v{vAX+s_}, v{vt+3}, {64*s_}, v{vt}", f"v_add_u32 v{vAX+2+s_}, 0x10000, v{vAX+s_}")
        a(f"v_bfe_u32 v{vt}, v1, 2, 2", f"v_lshl_add_u32 v{vt}, v{vt+2}, 3, v{vt}", f"v_lshlrev_b32 v{vt}, 8, v{vt}")
        a(f"v_and_b32 v{vt+3}, 3, v1", f"v_lshl_add_u32 v{vt}, v{vt+3}, 3, v{vt}")
        a(f"v_bfe_u32 v{vt+3}, v1, 2, 3", f"v_lshl_add_u32 v{vt}, v{vt+3}, 5, v{vt}")
        a(f"s_lshl_b32 s{sA}, s{sFH}, 7", f"v_xor_b32 v{vt}, s{sA}, v{vt}", f"v_add_u32 v{vt}, {RING}, v{vt}")
        a("s_waitcnt vmcnt(0)")
        for ft in range(4):
            a(f"v_xor_b32 v{vAW+ft}, {32*ft}, v{vt}", f"v_add_u32 v{vAW+4+ft}, 0x10000, v{vAW+ft}")
        a(f"v_lshlrev_b32 v{vCSO}, 3, v1", f"v_lshlrev_b32 v{vHO}, 4, v1")
        self.vm = []
        self.gemm2_setup(vt)
        a(f"s_setprio {self.opt('mp', 2)}")
        a("s_waitcnt lgkmcnt(0)")
        for x in self.ks_table(): a(x)
        a(f"s_lshl1_add_u32 s{sF}, s{sJ}, s{sFH}")
        a(f"s_lshl_b32 s{sB}, s{sF}, 10", f"s_add_u32 s{sB}, s{sB}, {WS_CS}")
        a(f"s_lshl1_add_u32 s{sA}, s{sI}, s{sLH}")
        a(f"s_lshl_b32 s{sD}, s{sA}, 9", f"s_add_u32 s{sD}, s{sD}, {WS_NM}")
        a(f"s_mul_i32 s{sE}, s{sA}, {HS}", f"s_lshl_b32 s{sC}, s{sF}, 13", f"s_add_u32 s{sE}, s{sE}, s{sC}")
        a(f"s_lshl4_add_u32 s{sG}, s{sI}, s{sJ}", f"s_lshl_b32 s{sG}, s{sG}, 7", f"s_add_u32 s{sG}, s{sG}, {WS_FH}")
        FR = [(ft, mat) for ft in range(4) for mat in range(2)]
        def reads(g):
            c, s_ = divmod(g, 2)
            sl = self.uslot(3 * c + 1); win = sl // 4
            xb = XB + 16 * (g & 1)
            xr = [f"ds_read_b128 v[{xb+4*b}:{xb+4*b+3}], v{vAX+2*win+s_} offset:{16384*(sl%4) + 2048*b}" for b in range(4)]
            sl = self.uslot(3 * c + 2 * s_); win = sl // 4
            wr = []
            for k, (ft, mat) in enumerate(FR):
                wr.append([f"ds_read_b64_tr_b16 v[{AB+4*k+2*t}:{AB+4*k+2*t+1}], v{vAW+4*win+ft} offset:{16384*(sl%4) + 1024*t + 8192*mat}" for t in range(2)])
            return xr, wr
        def mfma(g, k, b):
            ft, mat = FR[k]
            d = acc(mat, b, ft); xb = XB + 16 * (g & 1)
            c = "0" if g == 0 else f"v[{d}:{d+3}]"
            return f"v_mfma_f32_16x16x32_bf16 v[{d}:{d+3}], v[{AB+4*k}:{AB+4*k+3}], v[{xb+4*b}:{xb+4*b+3}], {c}"
        corr_loads = [f"buffer_load_dwordx4 v[{CSX}:{CSX+3}], v{vHO}, {srd(S_WS)}, s{sB} offen sc1",
                      f"buffer_load_dwordx2 v[{NMX}:{NMX+1}], v{vCSO}, {srd(S_WS)}, s{sD} offen sc1"]
        a("s_waitcnt lgkmcnt(0)")
        if "k1" in self.opts: self.stampk(7)
        a("s_barrier")
        self.stamp(2)
        q = []; pend = []
        def need(key):
            idx = [i for i, t in enumerate(q) if t[0] == key[0] and t[1] <= key[1]]
            if not idx: return
            n = len(q) - 1 - idx[-1]
            a(f"s_waitcnt lgkmcnt({min(n, 15)})")
            del q[:len(q) - min(n, 15)]
        def drain(maxn):
            n = 0
            while pend and n < maxn:
                r, key = pend.pop(0); a(r); q.append(key); n += 1
        xr, wr = reads(0)
        for r in xr: a(r); q.append((0, 0))
        for k in range(8):
            for r in wr[k]: a(r); q.append((0, k))
        self.vmem(self.nonce_load(vN), "non")
        if self.opt("tlb", 0) == 1: self.tlbtouch(vt)
        DELAY = self.opt("dl", 8); WG_ = self.opt("wg", 2)
        cl = list(corr_loads); extra = []
        for g in range(14):
            xr, wr = reads(g + 1) if g < 13 else ([], [[]] * 8)
            if g == 0: self.cstamp(0)
            if g == 8: self.get_nonce(vN, issued="non")
            blocked = True; held = []
            i = 0
            for k in range(8):
                for b in range(4):
                    if k % WG_ == 0 and b == 0:
                        key = (g, k + WG_ - 1)
                        while any(x[1][0] == g and x[1][1] <= key[1] for x in pend): drain(1)
                        need(key)
                    a(mfma(g, k, b)); i += 1
                    if b == 3:
                        new_r = [(r, (g + 1, k)) for r in wr[k]]
                        if blocked: held += new_r
                        else: pend += new_r
                    if blocked and i == DELAY:
                        pend += [(x, (-1, 0)) for x in extra]; extra = []
                        drain(99)
                        LB = self.opt("lb", 11)
                        if g + 1 <= LB:
                            a("s_waitcnt lgkmcnt(0)"); q.clear()
                            a("s_barrier")
                        elif g == 11 and self.NDA > 3:
                            self.signal(8, vt); q.append((-1, 0))
                        if g % 2 == 1: self.cstamp(1 + g // 2)
                        pend += held + [(r, (g + 1, 0)) for r in xr]
                        if g in (LB - 3, LB - 2): extra += [r[0] for r in self.G.wdread(g - LB + 3)]
                        blocked = False
                    if not pend and extra: pend.append((extra.pop(0), (-1, 0)))
                    drain(1)
                    if g == self.opt("corr", 10) and cl and i % 4 == 2: self.vmem(cl.pop(0), "corr")
        self.stamp(3)
        self.cstamp(8)
        self.spin(corr_loads, [CSX + 1, CSX + 3, NMX + 1], first_issued_tag="corr", note=1)
        for ft in range(4):
            for mat in range(2):
                d = acc(mat, 0, ft)
                a(f"v_mfma_f32_16x16x1_4b_f32 v[{d}:{d+15}], v{CSX+2*mat}, v{NMX}, v[{d}:{d+15}] cbsz:2 abid:{ft}")
        self.signal(9, vt)
        a(f"s_add_u32 s{sC}, s{sE}, 4096")
        for e in range(2):
            for b in range(4):
                o = acc(0, b, 2 * e)
                T_ = [(acc(0, b, ft), acc(1, b, ft)) for ft in (2 * e, 2 * e + 1)]
                for g_, u_ in T_:
                    for i in range(4): a(f"v_max_f32 v{g_+i}, 0, v{g_+i}")
                for g_, u_ in T_:
                    if "epk" in self.opts:
                        for i in (0, 2): a(f"v_pk_mul_f32 v[{u_+i}:{u_+i+1}], v[{g_+i}:{g_+i+1}], v[{u_+i}:{u_+i+1}]")
                    else:
                        for i in range(4): a(f"v_mul_f32 v{u_+i}, v{g_+i}, v{u_+i}")
                for t, (g_, u_) in enumerate(T_):
                    for i in range(2): a(f"v_cvt_pk_bf16_f32 v{o+2*t+i}, v{u_+2*i}, v{u_+2*i+1}")
                SG = self.opt("sg", 99)
                if len(self.vm) > SG: a(f"s_waitcnt vmcnt({SG})"); self.vm = self.vm[-SG:]
                self.vmem(f"buffer_store_dwordx4 v[{o}:{o+3}], v{vHO}, {srd(S_WS)}, s{sC if e else sE} offen offset:{1024*b} sc1", "hst")
        self.stamp(4)
        self.cstamp(9)
        self.gemm2()

    def mtouch(self, vt):
        mask = self.opt("tm", 0)
        if not mask: return
        a = self.a
        for w, (sr, n) in enumerate(((S_WD, 56), (S_WG, 56), (S_WU, 56), (S_X, 64))):
            if not (mask >> w) & 1: continue
            L = self.lab("Lt")
            a(f"s_cmp_lg_u32 s{sW}, {w}", f"s_cbranch_scc1 {L}")
            a(f"s_mul_i32 s{sA}, s{sT}, {n*128}", f"v_min_u32 v{vt}, {n-1}, v1", f"v_lshlrev_b32 v{vt}, 7, v{vt}")
            a(f"buffer_load_dword v{vt+1+w}, v{vt}, {srd(sr)}, s{sA} offen")
            a(f"{L}:")

    def tlbtouch(self, vt):
        a = self.a
        L = self.lab("Lt")
        a(f"s_cmp_lg_u32 s{sW}, 0", f"s_cbranch_scc1 {L}")
        holes = [229376, 10*HS + 229376, 19*HS + 229376, 28*HS + 229376, 0x9F0000, 0xA00000, 0xDF0000, 0xFF0000]
        a(f"v_mov_b32 v{vt}, {holes[0]}")
        for i, h in enumerate(holes[1:]):
            a(f"s_mov_b32 s{sA}, {h}", f"v_writelane_b32 v{vt}, s{sA}, {i+1}")
        a(f"buffer_load_dword v{vt+6}, v{vt}, {srd(S_WS)}, 0 offen")
        a(f"buffer_load_dword v{vt+7}, off, {srd(S_OUT)}, 0")
        a(f"{L}:")

    FX_, FR_, FO_ = 222, 230, 234
    def final_pre(self):
        a = self.a
        vX, vR2, vt = self.FX_, self.FR_, self.FO_
        a(f"s_lshl_b32 s{sA}, s{sAW}, 4", f"s_lshl_b32 s{sB}, s{sI2}, 6", f"s_add_u32 s{sA}, s{sA}, s{sB}")
        a(f"v_lshrrev_b32 v{vt+1}, 3, v1", f"v_add_u32 v{vt+1}, s{sA}, v{vt+1}")
        a(f"v_mul_u32_u24 v{vt}, 896, v{vt+1}")
        a(f"s_lshl_b32 s{sA}, s{sJ2}, 7", f"s_movk_i32 s{sB}, {8*896}")
        a(f"v_and_b32 v{vR2}, 7, v1", f"v_lshlrev_b32 v{vR2}, 4, v{vR2}", f"v_add3_u32 v{vt}, v{vt}, v{vR2}, s{sA}")
        a(f"v_lshlrev_b32 v{vt+1}, 3, v{vt+1}", f"v_add_u32 v{vt+1}, {WS_R2}, v{vt+1}")
        self.vmem(f"buffer_load_dwordx4 v[{vX}:{vX+3}], v{vt}, {srd(S_X)}, 0 offen", "fx")
        self.vmem(f"buffer_load_dwordx4 v[{vX+4}:{vX+7}], v{vt}, {srd(S_X)}, s{sB} offen", "fx")
        self.r2load = [f"buffer_load_dwordx2 v[{vR2+2*h}:{vR2+2*h+1}], v{vt+1}, {srd(S_WS)}, 0 offen offset:{64*h} sc1" for h in range(2)]

    def final_addr(self, T):
        a = self.a
        vA, vB = T, T + 4
        a(f"v_lshrrev_b32 v{vA+2}, 3, v1", f"s_lshl_b32 s{sC}, s{sAW}, 4", f"v_add_u32 v{vA+3}, s{sC}, v{vA+2}")
        a(f"v_mul_u32_u24 v{vB}, 48, v{vA+3}")
        a(f"v_and_b32 v{vA+3}, 7, v1", f"v_lshlrev_b32 v{vA+3}, 1, v{vA+3}", f"v_xor_b32 v{vA+3}, v{vA+3}, v{vA+2}")
        a(f"v_lshlrev_b32 v{vA+3}, 4, v{vA+3}", f"v_lshl_add_u32 v{vA}, v{vA+2}, 8, v{vA+3}")
        a(f"s_lshl_b32 s{sC}, s{sAW}, 14", f"s_add_u32 s{sC}, s{sC}, {DBASE}")
        a(f"v_bfe_u32 v{vA+3}, v1, 2, 1", f"v_mul_u32_u24 v{vA+3}, {QB[1]}, v{vA+3}", f"v_add_u32 v{vB}, v{vB}, v{vA+3}")
        a(f"v_bfe_u32 v{vA+3}, v1, 1, 1", f"v_lshl_add_u32 v{vB}, v{vA+3}, 12, v{vB}")
        a(f"v_and_b32 v{vA+3}, 1, v1", f"v_lshl_add_u32 v{vB}, v{vA+3}, 4, v{vB}")
        a(f"v_add_u32 v{vA}, s{sC}, v{vA}", f"v_xor_b32 v{vA+1}, 16, v{vA}", f"v_xor_b32 v{vA+2}, {2048+128}, v{vA}", f"v_xor_b32 v{vA+3}, {2048+128+16}, v{vA}")

    def final(self, T):
        a = self.a
        vX, vR2, vO = self.FX_, self.FR_, self.FO_
        vA, vB = T, T + 4
        E = T + 8; Y = T + 24; P = T + 32
        self.spin(self.r2load, [vR2 + 1, vR2 + 3], first_issued_tag="fx", note=3)
        for i in range(8): a(f"v_lshlrev_b32 v{E+2*i}, 16, v{vX+i}", f"v_and_b32 v{E+2*i+1}, 0xffff0000, v{vX+i}")
        self.auxbar(7, T + 6, extra=[f"ds_read_b128 v[{Y+4*h}:{Y+4*h+3}], v{vB} offset:{8*48*h}" for h in range(2)])
        for i in range(8):
            a(f"v_lshlrev_b32 v{vX}, 16, v{Y+i}", f"v_and_b32 v{vX+1}, 0xffff0000, v{Y+i}")
            a(f"v_add_f32 v{E+2*i}, v{E+2*i}, v{vX}", f"v_add_f32 v{E+2*i+1}, v{E+2*i+1}, v{vX+1}")
        a(f"s_movk_i32 s{sB}, {8*896}")
        a("s_barrier")
        self.stamp(8)
        for h in range(2):
            for m in range(4):
                for q in range(2):
                    r = P + 32 * h + 8 * m + 4 * q
                    a(f"ds_read_b128 v[{r}:{r+3}], v{vA + 2*h + q} offset:{4096*m}")
        for h in range(2):
            p = P + 32 * h; e = E + 8 * h
            a(f"s_waitcnt lgkmcnt({12 - 8*h})")
            for i in range(0, 8, 2): a(f"v_pk_add_f32 v[{p+i}:{p+i+1}], v[{p+i}:{p+i+1}], v[{p+8+i}:{p+8+i+1}]")
            a(f"s_waitcnt lgkmcnt({8 - 8*h})")
            for i in range(0, 8, 2): a(f"v_pk_add_f32 v[{p+16+i}:{p+16+i+1}], v[{p+16+i}:{p+16+i+1}], v[{p+24+i}:{p+24+i+1}]")
            for i in range(0, 8, 2): a(f"v_pk_add_f32 v[{p+i}:{p+i+1}], v[{p+i}:{p+i+1}], v[{p+16+i}:{p+16+i+1}]")
            for i in range(0, 8, 2): a(f"v_pk_fma_f32 v[{e+i}:{e+i+1}], v[{p+i}:{p+i+1}], v[{vR2+2*h}:{vR2+2*h+1}], v[{e+i}:{e+i+1}] op_sel_hi:[1,0,1]")
            for i in range(4): a(f"v_cvt_pk_bf16_f32 v{p+16+i}, v{e+2*i}, v{e+2*i+1}")
            a(f"buffer_store_dwordx4 v[{p+16}:{p+19}], v{vO}, {srd(S_OUT)}, {'s%d' % sB if h else 0} offen")
        self.stamp(9)
        self.write_stamps(1)
        a("s_endpgm")

    def gemm2_setup(self, vt):
        a = self.a
        vAD = 244; vD = [0, 252, 253, 254]
        sH, sDo, sM = 50, 51, 52
        a(f"v_lshrrev_b32 v{vt}, 2, v1", f"v_lshlrev_b32 v{vt}, 7, v{vt}", f"v_and_b32 v{vt+1}, 3, v1", f"v_lshl_add_u32 v{vt}, v{vt+1}, 3, v{vt}")
        a(f"v_bfe_u32 v{vt+1}, v1, 3, 2", f"v_lshl_add_u32 v{vt}, v{vt+1}, 5, v{vt}")
        a(f"v_add_u32 v{vt}, s{sM0}, v{vt}", f"s_add_u32 s{sM}, s{sM0}, {DBASE}")
        for dt in range(4): a(f"v_xor_b32 v{vAD+dt}, {32*dt}, v{vt}")
        a(f"s_mul_i32 s{sDo}, s{sW}, {448*896}", f"s_lshl_b32 s{sA}, s{sJ2}, 7", f"s_add_u32 s{sDo}, s{sDo}, s{sA}")
        a(f"s_mul_i32 s{sH}, s{sI2}, {HS}", f"s_mul_i32 s{sA}, s{sW}, {14*4096}", f"s_add_u32 s{sH}, s{sH}, s{sA}")
        G = self.G = type("G", (), {})()
        G.free = [196, 212]; G.wbuf = {}; G.hbuf = {}; G.lq = []
        def wdread(ks):
            G.wbuf[ks] = buf = G.free.pop(0); n = ks if ks < 2 else (ks - 2) % 7; win = n // 4
            return [(f"ds_read_b64_tr_b16 v[{buf+4*dt+2*t}:{buf+4*dt+2*t+1}], v{vAD+4*win+dt} offset:{16384*(n%4) + 2048*t}", ks) for dt in range(4) for t in range(2)]
        def lds(r): a(r[0]); G.lq.append(r[1])
        def need_w(ks):
            lq = G.lq
            if ks not in lq: return
            k = len(lq) - 1 - max(i for i, x in enumerate(lq) if x == ks)
            a(f"s_waitcnt lgkmcnt({min(k, 15)})")
            del lq[:len(lq) - min(k, 15)]
        def dd(ks):
            out = []
            for k in range(4):
                pre = [f"s_add_u32 m0, s{sM}, {16384*((ks-2)%7)}"] + self.ksoff(ks, 32 * 896, sDo) if k == 0 else []
                out.append((pre, f"buffer_load_dwordx4 v{vD[k]}, {srd(S_WD)}, s{sA} offen offset:{1024*k} lds", f"d{ks}"))
            return out
        def hl(ks):
            G.hbuf[ks] = buf = G.free.pop(0)
            return [(self.ksoff(ks, 4096, sH, sD) if b == 0 else [],
                     f"buffer_load_dwordx4 v[{buf+4*b}:{buf+4*b+3}], v2, {srd(S_WS)}, s{sD} offen offset:{1024*b} sc1", f"h{ks}") for b in range(4)]
        def vm(x):
            for y in x[0]: a(y)
            self.vmem(x[1], x[2])
        G.wdread, G.lds, G.need_w, G.dd, G.hl, G.vm = wdread, lds, need_w, dd, hl, vm

    def gemm2(self):
        a = self.a
        G = self.G
        wdread, lds, need_w, dd, hl, vm = G.wdread, G.lds, G.need_w, G.dd, G.hl, G.vm
        free, wbuf, hbuf, lq = G.free, G.wbuf, G.hbuf, G.lq
        ACC = 68
        vFO = 3; vFL = 255; vt = 252; sM = 52
        self.stamp2(1)
        a(f"s_lshr_b32 s{sB}, s{sI2}, 1", f"s_lshl_b32 s{sB}, s{sB}, 11", f"s_add_u32 s{sA}, s{sB}, {WS_FH}")
        a(f"v_lshrrev_b32 v{vFO}, 2, v1", f"v_min_u32 v{vFO}, 13, v{vFO}", f"v_lshl_add_u32 v{vFO}, v{vFO}, 7, s{sA}")
        for dt in range(4): a(f"v_add_u32 v{244+dt}, {DBASE}, v{244+dt}", f"v_add_u32 v{248+dt}, 0x10000, v{244+dt}")
        for k in range(1, 4): a(f"v_add_u32 v{251+k}, {k*(7168-1024)}, v0")
        free += [132, 148, 164, 180, 228, 4, 20, 36, 52]
        fl = f"buffer_load_dword v{vFL}, v{vFO}, {srd(S_WS)}, 0 offen sc1"
        self.await_(0, ACC, "same")
        NDA = self.NDA + 2
        for ks in range(2, NDA):
            for r in wdread(ks): lds(r)
        self.wait_vm("hst")
        self.signal(5, ACC)
        self.stamp2(2)
        self.await_(5, ACC, "all"); lq.clear()
        Lw = self.lab("Lg")
        a(f"s_cmp_lg_u32 s{sW}, 0", f"s_cbranch_scc1 {Lw}")
        a(f"v_mov_b32 v{vFL}, s{sTAG}", f"v_lshlrev_b32 v{ACC}, 2, v1", "s_mov_b32 exec_hi, 0")
        a(f"buffer_store_dword v{vFL}, v{ACC}, {srd(S_WS)}, s{sG} offen sc1")
        a("s_mov_b32 exec_hi, -1", f"{Lw}:")
        a("s_setprio 0")
        ND = min(self.opt("nd", 14), 7 + NDA)
        for ks in range(NDA, ND):
            for x in dd(ks): vm(x)
        self.stamp2(3)
        Lw, Lj = self.lab("Lg"), self.lab("Lg")
        vm0 = list(self.vm)
        a(f"s_cmp_lg_u32 s{sW}, 0", f"s_cbranch_scc1 {Lw}")
        self.spin([fl], [vFL], sleep=self.opt("fsl", 1), note=2)
        self.signal(6, ACC)
        a(f"s_branch {Lj}", f"{Lw}:")
        self.vm = vm0
        self.await_(6, ACC, "zero", sleep=1)
        a(f"{Lj}:")
        self.stamp2(4)
        nh = 0
        while free and nh < self.opt("h0", 4):
            for x in hl(nh): vm(x)
            nh += 1
        nw = NDA; nd = ND
        for s_ in range(14):
            self.wait_vm(f"h{s_}")
            need_w(s_)
            if s_ in (0, 7): self.stamp2({0: 5, 7: 6}[s_])
            rd = []; vq = []
            if nd < 14 and nd - 7 < nw:
                need_w(nd - 7); vq += dd(nd); nd += 1
            while nw < 14 and (nw <= s_ + 2 or (nw < 7 and not rd)) and free:
                self.wait_vm(f"d{nw}")
                rd += wdread(nw); nw += 1
            while nh < 14 and nh < s_ + self.opt("hd", 5) and len(free) > (1 if nw < 14 else 0):
                vq += hl(nh); nh += 1
            if s_ == self.opt("ys", 6):
                self.signal(4, vt); lq.append(-1)
            if s_ == 12:
                a(f"v_and_b32 v{vt}, 15, v1", f"v_lshrrev_b32 v{vt+1}, 4, v1", f"v_xor_b32 v{vt+1}, v{vt+1}, v{vt}", f"v_lshlrev_b32 v{vt+1}, 4, v{vt+1}")
                a(f"v_lshl_add_u32 v{vt}, v{vt}, 8, s{sM}", f"v_add_u32 v{vt}, v{vt}, v{vt+1}")
                for dt in range(1, 4): a(f"v_xor_b32 v{vt+dt}, {64*dt}, v{vt}")
            wb, hb = wbuf[s_], hbuf[s_]
            i = 0; nvq = len(vq)
            for lb in range(4):
                for dt in range(4):
                    d = ACC + 4 * (4 * lb + dt)
                    c = "0" if s_ == 0 else f"v[{d}:{d+3}]"
                    a(f"v_mfma_f32_16x16x32_bf16 v[{d}:{d+3}], v[{wb+4*dt}:{wb+4*dt+3}], v[{hb+4*lb}:{hb+4*lb+3}], {c}")
                    if rd: lds(rd.pop(0))
                    if s_ == 13 and i >= 8:
                        l2, d2 = divmod(i - 8, 4); r = ACC + 4 * (4 * l2 + d2)
                        a(f"ds_write_b128 v{vt+d2}, v[{r}:{r+3}] offset:{16384*l2}")
                    if vq and i % (4 if nvq <= 4 else 2) == 1: vm(vq.pop(0))
                    i += 1
            for x in vq: vm(x)
            free += [wb, hb]
        self.stamp2(7)
        for lb in range(2, 4):
            for dt in range(4):
                d = ACC + 4 * (4 * lb + dt)
                a(f"ds_write_b128 v{vt+dt}, v[{d}:{d+3}] offset:{16384*lb}")
        a("s_waitcnt lgkmcnt(0)", "s_barrier")
        self.stamp(8)
        self.write_stamps(0)
        a("s_endpgm")

    def dma_ops(self, u):
        base = slot_addr(self.uslot(u)) if u < 26 else 16384 * (u - 26)
        tag = f"u{u}"
        if u < 21 and u % 3 == 1: vo, sr, pre = voX, S_X, [f"s_add_u32 s{sA}, s{sXB}, {128 * (u // 3)}"]
        elif u < 21:              vo, sr, pre = voW, S_WG, [f"s_add_u32 s{sA}, s{sWB}, {(64 * (u // 3) + 16 * (u % 3)) * 3584}"]
        else:                     vo, sr, pre = voD, S_WD, self.ksoff(u - 19 if u < 26 else u - 26, 32 * 896, sDB)
        m0cmd = f"s_add_u32 m0, s{sM0}, {base}"
        return [(pre if k == 0 else [], f"buffer_load_dwordx4 v{vo+k}, {srd(sr)}, s{sA} offen offset:{1024*k} lds", tag, m0cmd) for k in range(4)]
    @staticmethod
    def ksoff(step, mul, sbase, dst=sA):
        return [f"s_mul_i32 s{dst}, s{sKS + step // 2}, {2*mul}", f"s_add_u32 s{dst}, s{dst}, s{sbase}"] + ([f"s_add_u32 s{dst}, s{dst}, {mul}"] if step & 1 else [])
    def emit_aux(self, x):
        a = self.a
        if isinstance(x, tuple):
            if self.m0 != x[3]: a(x[3]); self.m0 = x[3]
            for y in x[0]: a(y)
            self.vmem(x[1], x[2])
        elif x == "@prm": self.wait_vm("prm")
        else:
            if x.startswith("ds_write_addtid") and self.m0 != "sb":
                a(f"s_mov_b32 m0, s{sSB}"); self.m0 = "sb"
            a(x)

    def signal(self, k, vt):
        a = self.a
        a(f"s_lshl_b32 s{sA}, s{sAW}, 2", f"v_mov_b32 v{vt}, s{sA}", f"v_mov_b32 v{vt+1}, s{sTAG}")
        a(f"ds_write_b32 v{vt}, v{vt+1} offset:{AUXCNT + 16*k}")
    def await_(self, k, vt, who, extra=(), sleep=0):
        a = self.a
        L0, L1 = self.lab("Lab"), self.lab("Lae")
        if who == "all": a(f"v_and_b32 v{vt}, 3, v1", f"v_lshlrev_b32 v{vt}, 2, v{vt}")
        elif who == "zero": a(f"v_mov_b32 v{vt}, 0")
        else:
            a(f"s_lshl_b32 s{sA}, s{sAW}, 2")
            if who == "pair": a(f"s_xor_b32 s{sA}, s{sA}, 4")
            a(f"v_mov_b32 v{vt}, s{sA}")
        a(f"s_mov_b32 s{sSPIN}, {SPIN_MAX*10}")
        a(f"{L0}:", f"ds_read_b32 v{vt+1}, v{vt} offset:{AUXCNT + 16*k}")
        for x in extra: a(x)
        a("s_waitcnt lgkmcnt(0)", f"v_cmp_ne_u32 vcc, s{sTAG}, v{vt+1}", f"s_sub_u32 s{sSPIN}, s{sSPIN}, 1", "s_nop 3", f"s_cbranch_vccz {L1}")
        if sleep: a(f"s_sleep {sleep}")
        a(f"s_cmp_lg_u32 s{sSPIN}, 0", f"s_cbranch_scc1 {L0}")
        a(f"{L1}:")
    def auxbar(self, k, vt, pair=False, extra=()):
        self.signal(k, vt)
        self.await_(k, vt, "pair" if pair else "all", extra)

    def aux(self):
        a = self.a
        self.role = 'A'; self.m0 = None
        self.sCH_, self.sPT = sCH_, sPT = 48, 47
        self.cACC, self.cAF, self.cBF, self.vQA, self.vUA = 12, 44, 108, 172, 180
        vN, vt, UR = 181, 182, 192
        GATE = self.opt("gate", 8)
        def gate():
            if len(self.vm) > GATE:
                a(f"s_waitcnt vmcnt({GATE})"); self.vm = self.vm[-GATE:]
        def units(us, g=True):
            for u in us:
                if g: gate()
                for x in self.dma_ops(u): self.emit_aux(x)
        N0 = self.opt("n0", 3)
        units(range(N0), False)
        setup = self.kgen_setup()
        PRM = self.kregs[0]; kv = self.kvt
        a(f"s_load_dword s{sLD}, s[{S_P+8}:{S_P+9}], s{sF}", f"s_load_dword s{sDS}, s[{S_P+10}:{S_P+11}], s{sF}")
        for k in range(1, 4): a(f"v_add_u32 v{voD+k}, {k*(7168-1024)}, v{voD}")
        a(f"s_mul_i32 s{sA}, s{sAW}, {448*896}", f"s_lshl_b32 s{sB}, s{sJ2}, 7", f"s_add_u32 s{sDB}, s{sA}, s{sB}")
        a(f"s_lshr_b32 s{sCH_}, s{sAW}, 1", f"s_and_b32 s{sPT}, s{sAW}, 1")
        for x in setup: a(x)
        V0, B0, M0 = self.kgen_body(True, 0); V1, B1, M1 = self.kgen_body(False, 1)
        work = ["@prm"] + self.kgen_scale() + V0 + V1; nV1 = len(V1)
        SL = self.opt("sl", 28); KS = self.opt("ks", 2); PI = self.opt("pi", 0)
        fx = f"buffer_load_dword v{vt+1}, v{vt}, {srd(S_WS)}, 0 offen sc1"
        LB = self.opt("lb", 11)
        SCHED = {0: [[3,4],[5,6,7],[8],[9,10],[26],[11,12],[13,14],[27],[15,16],[17,18],[19,20],[21]],
                 1: [[3,4],[5,6,7],[8,26],[9,10],[11],[12,13],[14,27],[15,16],[17],[18,19],[20],[21]],
                 2: [[3,4],[5,6],[7,8],[9,10],[11,26],[12,13],[14,27],[15,16],[17],[18,19],[20],[21,22]],
                 3: [[3,4],[5,6],[7,8],[9,10],[26],[11,12],[13,14],[27],[15,16],[17,18],[19,20],[21]],
                }[self.opt("sch", 3)]
        IG = self.opt("ig", 0)
        done = set(range(N0))
        for n in range(LB + 1):
            if n == LB: self.vmem(fx, "fxf")
            us = [u for u in SCHED[n] if u not in done]; done.update(us)
            nsl = 0 if n < KS else SL
            sl = work[:nsl]; del work[:nsl]
            ops = []
            for u in us: ops += self.dma_ops(u)
            gap = max(1, len(sl) // (len(ops) + 1)) if ops else 0
            if "noil" in self.opts: gap = 0
            for i, x in enumerate(sl):
                while ops and (gap == 0 or i % gap == 0):
                    self.emit_aux(ops.pop(0))
                    if gap: break
                self.emit_aux(x)
            for o in ops: self.emit_aux(o)
            if n == PI:
                for b in range(2):
                    for k in range(4):
                        self.vmem(f"global_load_ushort v{PRM+4*b+k}, v19, s[{S_P+2*k}:{S_P+2*k+1}] offset:{128*b}", "prm")
                for x in self.ks_table(): a(x)
            if n == 0: self.stamp(1)
            if n == self.opt("xi", 4): self.final_pre()
            if n == self.opt("fw", 8):
                L = self.lab("Lfw")
                a(f"s_cmp_lg_u32 s{sAW}, 0", f"s_cbranch_scc1 {L}")
                a(f"s_lshl4_add_u32 s{sB}, s{sI}, s{sJ}", f"s_lshl_b32 s{sB}, s{sB}, 7", f"s_add_u32 s{sB}, s{sB}, {WS_FH}")
                a(f"v_mov_b32 v253, 0", f"v_lshlrev_b32 v252, 2, v1", "s_mov_b32 exec_hi, 0", f"buffer_store_dword v253, v252, {srd(S_WS)}, s{sB} offen sc1", "s_mov_b32 exec_hi, -1")
                a(f"{L}:")
            if n == 5: self.vmem(self.nonce_load(vN), "non")
            if n == 1:
                a(f"s_lshl_b32 s{sB}, s{sAW}, 10", f"s_add_u32 s{sB}, s{sB}, {WS_FX}", f"v_lshrrev_b32 v{vt}, 3, v1", f"v_lshl_add_u32 v{vt}, v{vt}, 7, s{sB}")
                a(f"v_lshrrev_b32 v{vt+2}, 4, v1", f"v_mul_u32_u24 v{vt+2}, {448*128}, v{vt+2}", f"v_bfe_u32 v{vt+3}, v1, 1, 3", f"v_lshl_add_u32 v{vt+2}, v{vt+3}, 6, v{vt+2}")
                a(f"v_and_b32 v{vt+3}, 1, v1", f"v_lshl_add_u32 v{vt+2}, v{vt+3}, 4, v{vt+2}")
                a(f"v_mul_u32_u24 v{vt+3}, {UB[1]-UB[0]}, v{vt+3}", f"v_lshrrev_b32 v{vt+4}, 1, v1", f"v_lshl_add_u32 v{vt+3}, v{vt+4}, 4, v{vt+3}")
                a(f"s_lshl_b32 s{sB}, s{sAW}, 10", f"s_add_u32 s{sB}, s{sB}, {UB[0] + 512}", f"v_add_u32 v{vt+3}, s{sB}, v{vt+3}")
                a(f"s_lshl1_add_u32 s{sE}, s{sT}, s{sCH_}")
                a(f"s_lshr_b32 s{sC}, s{sT}, 1", f"s_lshl_b32 s{sC}, s{sC}, 9", f"s_and_b32 s{sB}, s{sT}, 1", f"s_lshl_b32 s{sB}, s{sB}, 5", f"s_add_u32 s{sC}, s{sC}, s{sB}")
                a(f"s_mul_i32 s{sB}, s{sAW}, {8*448*128}", f"s_add_u32 s{sC}, s{sC}, s{sB}", f"s_add_u32 s{sC}, s{sC}, {WS_XNT}", f"s_add_u32 s{sD}, s{sC}, {4*448*128}")
            if n == 10: self.get_nonce(vN, issued="non")
            if n == LB - 2: self.wait_vm("u26")
            if n == LB - 1: self.wait_vm("u27")
            self.wait_vm(f"u{3 * (n // 2) + 1 + (n % 2)}" if n < LB else "u20")
            a("s_barrier")
            if n == 0: self.stamp(2)
        self.stamp(3)
        print("K-gen instrs left after the last barrier:", len(work), file=sys.stderr)
        self.spin([fx], [vt + 1], first_issued_tag="fxf", note=1)
        self.stamp(4)
        for k in range(2):
            self.vmem(f"buffer_load_dwordx4 v[{UR+4*k}:{UR+4*k+3}], v{vt+2}, {srd(S_WS)}, s{sD if k else sC} offen sc1", "uu")
        for x in self.r2load: self.vmem(x, "fx")
        NDA = self.NDA
        for x in work: self.emit_aux(x)
        self.conv_addr(236)
        units([u for u in (22, 23) if u not in done])
        if NDA > 3:
            self.await_(8, kv, "all", sleep=1)
            units(range(24, 21 + NDA))
        if "auxidle" in self.opts:
            self.wait_vm_all(); self.signal(0, kv); a("s_barrier"); self.write_stamps(1); a("s_endpgm"); return
        self.stamp3(1)
        a(f"s_setprio {self.opt('ap2', 1)}")
        a(f"v_lshlrev_b32 v{kv}, 2, v1", f"v_mov_b32 v{kv+1}, 0x3c00", f"ds_write_b32 v{kv}, v{kv+1} offset:31984")
        for x in B0: self.emit_aux(x)
        self.wait_vm(f"u{20 + NDA}")
        self.signal(0, kv)
        self.stamp3(2)
        for i, x in enumerate(B1):
            self.emit_aux(x)
            if i == 14: a("s_waitcnt lgkmcnt(15)")
            if i >= 14 and i % 4 == 2 and M0: a(M0.pop(0))
        assert not M0
        for k, x in enumerate(M1):
            a(f"s_waitcnt lgkmcnt({7-k})"); a(x)
        self.stamp3(3)
        self.await_(9, kv + 1, "all")
        self.image(UR, vt)
        self.conv()

    def image(self, UR, vt):
        a = self.a
        KD, BF, AF, vA = self.KD, self.kBF, self.kAF, self.kvt
        sCH_, sPT = self.sCH_, self.sPT
        def by_part(f):
            L1, L2 = self.lab("Lp"), self.lab("Lp")
            a(f"s_cmp_eq_u32 s{sPT}, 0", f"s_cbranch_scc0 {L1}")
            f(0); a(f"s_branch {L2}", f"{L1}:"); f(1); a(f"{L2}:")
        keep = {0: range(0, 12), 1: range(12, 16)}
        a(f"s_add_u32 s{sC}, s{sM0}, {XCH}", f"v_lshl_add_u32 v{vA}, v1, 4, s{sC}")
        for r in range(16): a(f"v_mul_f32 v{KD+r}, v{KD+r}, v18")
        def f(pt):
            for r in list(keep[1 - pt])[::4]: a(f"ds_write_b128 v{vA}, v[{KD+r}:{KD+r+3}] offset:{256*r}")
        by_part(f)
        self.auxbar(1, vA + 1)
        self.stamp3(4)
        a(f"v_xor_b32 v{vA}, 0x1000, v{vA}")
        O = AF
        blocks = [[KD + i for i in range(9)], [KD + 9] * 3 + [KD + 10] * 3 + [KD + 11] * 3]
        for k, r0 in enumerate((KD + 12, KD + 14)):
            blocks.append([r0] * 4 + [BF + k] + [r0 + 1] * 4)
        a(f"s_mul_i32 s{sD}, s{sCH_}, {QB[1]}")
        def f(pt):
            K = list(keep[pt])
            for r in K[::4]: a(f"ds_read_b128 v[{BF+16+r}:{BF+16+r+3}], v{vA} offset:{256*r}")
            a(f"v_lshl_add_u32 v{vA}, v1, 5, s{sD}")
            if pt == 0:
                a(f"v_cmp_eq_u32 vcc, 0, v1", f"v_mov_b32 v{vA+2}, s{sDS}", f"v_cndmask_b32 v{vA+2}, 0, v{vA+2}, vcc", f"v_add_f32 v{KD}, v{KD}, v{vA+2}")
            else:
                a(f"v_and_b32 v{vA+1}, 1, v1", f"v_cmp_eq_u32 vcc, 1, v{vA+1}")
            a("s_waitcnt lgkmcnt(0)")
            for r in K: a(f"v_add_f32 v{KD+r}, v{KD+r}, v{BF+16+r}")
            if pt:
                for k, r0 in enumerate((KD + 12, KD + 14)): a(f"v_cndmask_b32 v{BF+k}, v{r0}, v{r0+1}, vcc")
            for bi in (2 * pt, 2 * pt + 1):
                v = blocks[bi]
                for e_ in range(8): a(f"v_cvt_pk_bf16_f32 v{O+8*bi+e_}, v{v[e_+1]}, v{v[e_]}")
                for h in range(2): a(f"ds_write_b128 v{vA}, v[{O+8*bi+4*h}:{O+8*bi+4*h+3}] offset:{64 + 2048*bi + 16*h}")
            if pt == 0:
                a(f"v_readfirstlane_b32 s{sA}, v{O}")
                a(f"s_lshr_b32 s{sA}, s{sA}, 16", f"v_mov_b32 v{vA+1}, s{sA}", f"v_and_b32 v{vA+2}, 15, v1", f"v_cmp_eq_u32 vcc, 15, v{vA+2}")
                a(f"v_cndmask_b32 v{vA+1}, 0, v{vA+1}, vcc", f"v_lshl_add_u32 v{vA+2}, v{vA+2}, 2, s{sD}")
                a(f"ds_write_b32 v{vA+2}, v{vA+1}")
            else:
                a(f"s_mul_i32 s{sD}, s{sCH_}, {UB[1]-UB[0]}", f"v_lshl_add_u32 v{vA+2}, v1, 3, s{sD}")
                a(f"v_mov_b32 v{O}, 0", f"v_mov_b32 v{O+1}, 0")
                a(f"ds_write_b64 v{vA+2}, v[{O}:{O+1}] offset:{UB[0]}")
        by_part(f)
        self.stamp3(5)
        self.wait_vm("uu")
        self.stamp3(6)
        for k in range(2): a(f"ds_write_b128 v{vt+3}, v[{UR+4*k}:{UR+4*k+3}] offset:{512*k}")
        self.auxbar(2, vA + 1)
        self.stamp3(7)
        for r in self.areads(0)[:2] + self.breads(0) + self.areads(0)[2:]: a(r)

    def conv_addr(self, vt):
        a = self.a
        sCH_, sPT, vQA, vUA = self.sCH_, self.sPT, self.vQA, self.vUA
        a(f"v_and_b32 v{vt+1}, 15, v1", f"v_lshrrev_b32 v{vt+2}, 4, v1")
        a(f"v_lshlrev_b32 v{vt+3}, 3, v{vt+2}", f"v_sub_u32 v{vt+3}, v{vt+1}, v{vt+3}")
        a(f"s_mul_i32 s{sC}, s{sCH_}, {QB[1]}", f"s_lshl_b32 s{sD}, s{sPT}, 9", f"s_add_u32 s{sC}, s{sC}, s{sD}", f"s_add_u32 s{sC}, s{sC}, 100")
        a(f"v_lshl_add_u32 v{vQA}, v{vt+3}, 2, s{sC}")
        for q in range(1, 8): a(f"v_add_u32 v{vQA+q}, {1024*q}, v{vQA}")
        a(f"s_mul_i32 s{sC}, s{sCH_}, {UB[1]-UB[0]}")
        a(f"s_lshl_b32 s{sD}, s{sPT}, 8", f"s_sub_u32 s{sC}, s{sC}, s{sD}", f"s_add_u32 s{sC}, s{sC}, {UB[0] + 480 - 192}")
        a(f"v_lshlrev_b32 v{vt+3}, 5, v{vt+1}", f"v_lshl_add_u32 v{vt+3}, v{vt+2}, 4, v{vt+3}", f"v_add_u32 v{vUA}, s{sC}, v{vt+3}")
    def areads(self, rr):
        buf = self.cAF + 32 * (rr & 1); R = []
        for q in range(8):
            R.append(f"ds_read2_b32 v[{buf+4*q}:{buf+4*q+1}], v{self.vQA+q} offset0:{32*rr+6} offset1:{32*rr+4}")
            R.append(f"ds_read2_b32 v[{buf+4*q+2}:{buf+4*q+3}], v{self.vQA+q} offset0:{32*rr+2} offset1:{32*rr}")
        return R
    def breads(self, rr):
        buf = self.cBF + 32 * (rr & 1)
        return [f"ds_read_b128 v[{buf+4*c}:{buf+4*c+3}], v{self.vUA} offset:{512*c + 192 - 64*rr}" for c in range(8)]

    def conv(self):
        a = self.a
        vt = 5
        ACC, AF, BF = self.cACC, self.cAF, self.cBF
        sCH_, sPT = self.sCH_, self.sPT
        self.stamp(5)
        for rr in range(4):
            a("s_waitcnt lgkmcnt(0)")
            pend = (self.breads(rr + 1) + self.areads(rr + 1)) if rr < 3 else []
            ab, bb = AF + 32 * (rr & 1), BF + 32 * (rr & 1)
            for q in range(8):
                for c in range(q, 8):
                    d = ACC + 4 * c
                    cc = "0" if (rr == 0 and q == 0) else f"v[{d}:{d+3}]"
                    a(f"v_mfma_f32_16x16x32_bf16 v[{d}:{d+3}], v[{ab+4*q}:{ab+4*q+3}], v[{bb+4*(c-q)}:{bb+4*(c-q)+3}], {cc}")
                    if pend: a(pend.pop(0))
        self.stamp(6)
        KP = AF; RX = AF + 16
        a(f"s_lshl_b32 s{sA}, s{sAW}, 12", f"s_add_u32 s{sA}, s{sA}, {XCH}", f"v_lshl_add_u32 v{vt}, v1, 4, s{sA}")
        a("s_nop 3")
        L1, L2 = self.lab("Lx"), self.lab("Lx")
        a(f"s_cmp_eq_u32 s{sPT}, 0", f"s_cbranch_scc0 {L1}")
        for pt in range(2):
            if pt: a(f"{L1}:")
            for t in range(4): a(f"ds_write_b128 v{vt}, v[{ACC+16*(1-pt)+4*t}:{ACC+16*(1-pt)+4*t+3}] offset:{1024*t}")
            for i in range(0, 16, 2): a(f"v_mov_b64 v[{KP+i}:{KP+i+1}], v[{ACC+16*pt+i}:{ACC+16*pt+i+1}]")
            if not pt: a(f"s_branch {L2}")
        a(f"{L2}:")
        a(f"v_bfe_u32 v{vt+3}, v1, 2, 2", f"v_mul_u32_u24 v{vt+3}, {448*256}, v{vt+3}", f"v_and_b32 v{vt+4}, 3, v1", f"v_lshl_add_u32 v{vt+3}, v{vt+4}, 4, v{vt+3}")
        a(f"v_and_b32 v{vt+4}, 48, v1", f"v_lshl_add_u32 v{vt+3}, v{vt+4}, 2, v{vt+3}")
        a(f"s_mul_i32 s{sC}, s{sPT}, {16*448*256}", f"s_lshl_b32 s{sB}, s{sE}, 8", f"s_add_u32 s{sC}, s{sC}, s{sB}", f"s_add_u32 s{sC}, s{sC}, {WS_YT}")
        a(f"v_xor_b32 v{vt}, 0x1000, v{vt}")
        self.auxbar(3, vt + 1, pair=True, extra=[f"ds_read_b128 v[{RX+4*t}:{RX+4*t+3}], v{vt} offset:{1024*t}" for t in range(4)])
        for t in range(4):
            k = KP + 4 * t
            for i in range(4): a(f"v_add_f32 v{k+i}, v{k+i}, v{RX+4*t+i}")
            a(f"v_cvt_pk_bf16_f32 v{k}, v{k}, v{k+1}", f"v_cvt_pk_bf16_f32 v{k+2}, v{k+2}, v{k+3}", f"v_mov_b32 v{k+1}, s{sTAG}", f"v_mov_b32 v{k+3}, s{sTAG}")
            self.vmem(f"buffer_store_dwordx4 v[{k}:{k+3}], v{vt+3}, {srd(S_WS)}, s{sC} offen sc1", "yst")
            if t < 3: a(f"s_add_u32 s{sC}, s{sC}, {4*448*256}")
        a("s_setprio 0")
        self.stamp(7)
        if self.stage < 4:
            self.write_stamps(1)
            a("s_endpgm"); return
        YR = 12
        self.final_addr(76)
        a(f"s_lshl_b32 s{sB}, s{sJ2}, 6", f"s_lshl_b32 s{sC}, s{sAW}, 4", f"s_add_u32 s{sB}, s{sB}, s{sC}")
        a(f"s_mul_i32 s{sA}, s{sI2}, 448", f"s_add_u32 s{sA}, s{sA}, s{sB}", f"s_lshl_b32 s{sA}, s{sA}, 8", f"s_add_u32 s{sA}, s{sA}, {WS_YT}")
        a(f"v_lshlrev_b32 v{vt}, 4, v1")
        a(f"v_lshrrev_b32 v{vt+1}, 4, v1", f"v_mul_u32_u24 v{vt+1}, 144, v{vt+1}", f"v_and_b32 v{vt+2}, 3, v1", f"v_lshl_add_u32 v{vt+1}, v{vt+2}, 5, v{vt+1}")
        a(f"v_bfe_u32 v{vt+3}, v1, 2, 2", f"v_lshl_add_u32 v{vt+1}, v{vt+3}, 3, v{vt+1}")
        a(f"s_mul_i32 s{sC}, s{sCH_}, {QB[1]}", f"s_lshl_b32 s{sB}, s{sPT}, 12", f"s_add_u32 s{sC}, s{sC}, s{sB}", f"v_add_u32 v{vt+1}, s{sC}, v{vt+1}")
        a(f"v_mul_u32_u24 v{vt+3}, 144, v{vt+3}", f"v_lshl_add_u32 v{vt+3}, v{vt+2}, 3, v{vt+3}", f"v_and_b32 v{vt+2}, 48, v1", f"v_lshl_add_u32 v{vt+3}, v{vt+2}, 1, v{vt+3}")
        a(f"v_add_u32 v{vt+3}, s{sC}, v{vt+3}", f"v_mul_u32_u24 v{vt+4}, 48, v1", f"v_add_u32 v{vt+4}, s{sC}, v{vt+4}")
        a(f"v_add_u32 v{vt+2}, 1152, v{vt+1}")
        a(f"s_mov_b32 s{sD}, s{sA}")
        self.await_(4, YR, "same", sleep=4)
        loads = [f"buffer_load_dwordx4 v[{YR+4*k}:{YR+4*k+3}], v{vt}, {srd(S_WS)}, s{sD} offen offset:{1024*k} sc1" for k in range(4)]
        self.spin(loads, [YR + 2 * i + 1 for i in range(8)], sleep=self.opt("ysp", 4), note=2)
        self.vm = ["fx"]
        for k in range(4): a(f"ds_write2_b32 v{vt+1}, v{YR+4*k}, v{YR+4*k+2} offset0:{144*k} offset1:{144*k+1}" if 144 * k + 1 < 256 else
                             f"ds_write2_b32 v{vt+2}, v{YR+4*k}, v{YR+4*k+2} offset0:{144*(k-2)} offset1:{144*(k-2)+1}")
        for t in range(4): a(f"ds_read_b64_tr_b16 v[{YR+16+2*t}:{YR+17+2*t}], v{vt+3} offset:{4*144*t}")
        a("s_waitcnt lgkmcnt(0)")
        for h in range(2): a(f"ds_write_b128 v{vt+4}, v[{YR+16+4*h}:{YR+19+4*h}] offset:{16*h}")
        self.final(76)

    def build(self):
        a = self.a
        a(".text", f".globl {NAME}_kernel", ".p2align 8", f".type {NAME}_kernel,@function", f"{NAME}_kernel:")
        self.prologue()
        self.aux()
        self.mwave()
        self.helper()
        a("L_exit:", "s_endpgm")
        added = a.fix_hazards()
        errs = a.check_waits()
        for e in errs[:5]: print("WAITERR:", e, file=sys.stderr)
        if errs and not (self.opts & {"nokg", "nod", "nolds", "lax"}): raise SystemExit("wait errors")
        mv, ma, ms = a.max_regs()
        print(f"instrs {sum(1 for c in a.ins if c.kind not in ('dir','label'))} nops added {added} maxv {mv} maxs {ms}", file=sys.stderr)
        head = f"; fused LN + S4D conv + ReGLU FFN\n; @launch grid=(256,1,1) block=(512,1,1) lds=163840\n.amdgcn_target \"amdgcn-amd-amdhsa--gfx950\"\n"
        return head + a.text() + kernel_desc(NAME + "_kernel", 256, 256)

if __name__ == "__main__":
    import argparse
    ap = argparse.ArgumentParser()
    ap.add_argument("--stage", type=int, default=9); ap.add_argument("--stamps", action="store_true"); ap.add_argument("-o", default="k.s"); ap.add_argument("--opts", default="")
    x = ap.parse_args()
    open(x.o, "w").write(Gen(x.stage, x.stamps, [o for o in x.opts.split(',') if o]).build())
```

```python
import sys, struct
import numpy as np
from asmlib import Asm, kernel_desc
NAME = "parallel_sum__ssm_conv_s4d__glu_gated_reglu__prompt"

HS     = 225 * 1024
WS_H   = 0x0000000
WS_XNT = 0x0800000
WS_YT  = 0x0A00400
WS_CS  = 0x0E00000
WS_NM  = 0x0E10000
WS_R2  = 0x0E20000
WS_FH  = 0x0E30000
WS_FX  = 0x0E58000
WS_ST  = 0xF000000
RING = 32768
def slot_addr(s): return RING + 16384 * s
DBASE = RING
QB = [0, 8320]
UB = [16640, 21248]
AUXCNT = 32256
XCH = slot_addr(7)
SPIN_MAX = 20000

def f32(x): return "0x%08x" % struct.unpack("<I", struct.pack("<f", x))[0]
LOG2E = 1.4426950408889634

S_X, S_WG, S_WU, S_WD, S_WS, S_OUT, S_DBG = 4, 8, 12, 16, 20, 24, 28
def srd(b): return f"s[{b}:{b+3}]"
S_P = 32
sCH = 48
sXB, sWB, sDB, sM0, sAW, sSB = 55, 56, 57, 58, 59, 46
sW, sI, sJ, sI2, sJ2, sT, sST, sTAG, sSPIN = 60, 61, 62, 63, 64, 65, 44, 67, 68
sF, sA, sB, sC, sD, sE, sG = 69, 70, 71, 72, 73, 74, 75
sEX = 76
sLD, sDS = 78, 79
sKS = 32
sQI = 53
S_STAMP = 80
voX, voW, voD = 240, 244, 248

class Gen:
    def __init__(self, stage=9, stamps=False, opts=()):
        self.a = Asm(); self.stage = stage; self.stamps = stamps; self.opts = set(opts)
        self.nlab = 0; self.role = ''
        self.NDA = self.opt('nda', 3)
        self.vm = []
    def opt(self, name, default):
        for o in self.opts:
            if o.startswith(name + "="): return int(o[len(name) + 1:])
        return default
    def lab(self, p="L"):
        self.nlab += 1; return f"{p}_{self.nlab}"
    def cstamp(self, k):
        if self.stamps and "cyc" in self.opts: self.a(f"s_memtime s[{S_STAMP+2*k}:{S_STAMP+2*k+1}]")
    def stamp2(self, k):
        if self.stamps and "g2" in self.opts: self.a(f"s_memrealtime s[{S_STAMP+2*k}:{S_STAMP+2*k+1}]")
    def stamp3(self, k):
        if self.stamps and "g3" in self.opts: self.a(f"s_memrealtime s[{S_STAMP+2*k}:{S_STAMP+2*k+1}]")
    def stampk(self, k):
        if self.stamps: self.a(f"s_memrealtime s[{S_STAMP+2*k}:{S_STAMP+2*k+1}]")
    def stamp(self, k):
        if "k1" in self.opts and self.role in "MA" and self.role and 3 <= k <= 7: return
        if "spins" in self.opts: return
        if "g3" in self.opts and self.role == "A" and 1 <= k <= 7: return
        if "g2" in self.opts and self.role == "M" and 1 <= k <= 7: return
        if self.stamps and "cyc" not in self.opts: self.a(f"s_memrealtime s[{S_STAMP+2*k}:{S_STAMP+2*k+1}]")
    def vmem(self, text, tag=None):
        self.a(text); self.vm.append(tag)
    def wait_vm(self, tag):
        idx = [i for i, t in enumerate(self.vm) if t == tag]
        if not idx: return
        n = len(self.vm) - 1 - idx[-1]
        assert n <= 63
        self.a(f"s_waitcnt vmcnt({n})")
        self.vm = self.vm[idx[-1] + 1:]
    def wait_vm_all(self):
        self.a("s_waitcnt vmcnt(0)"); self.vm = []

    def spin(self, loads, checks, first_issued_tag=None, sleep=2, note=None):
        a = self.a
        L0, L1 = self.lab("Lspin"), self.lab("Lok")
        if "spins" in self.opts: a(f"s_mov_b32 s{sSPIN}, {SPIN_MAX+1}")
        if first_issued_tag is not None:
            self.wait_vm(first_issued_tag)
            self._check(checks)
            a(f"s_cbranch_vccz {L1}")
        a(f"s_mov_b32 s{sSPIN}, {SPIN_MAX}")
        a(f"{L0}:")
        for l in loads: a(l)
        a("s_waitcnt vmcnt(0)")
        self._check(checks)
        a(f"s_cbranch_vccz {L1}")
        if sleep: a(f"s_sleep {sleep}")
        a(f"s_sub_u32 s{sSPIN}, s{sSPIN}, 1", f"s_cmp_lg_u32 s{sSPIN}, 0", f"s_cbranch_scc1 {L0}")
        a(f"{L1}:")
        if "spins" in self.opts and note is not None: a(f"s_sub_u32 s{S_STAMP+2*note}, {SPIN_MAX+2}, s{sSPIN}")
        if first_issued_tag is None: self.vm = []
    def _check(self, checks):
        a = self.a
        a(f"v_cmp_ne_u32 vcc, s{sTAG}, v{checks[0]}")
        for c in checks[1:]:
            a(f"v_cmp_ne_u32 s[{sEX}:{sEX+1}], s{sTAG}, v{c}")
            a(f"s_or_b64 vcc, vcc, s[{sEX}:{sEX+1}]")
        a("s_nop 4" if len(checks) == 1 else "s_nop 0")
    def nonce_load(self, vt): return f"buffer_load_dword v{vt}, off, {srd(S_DBG)}, 0 sc1"
    def get_nonce(self, vt, issued=None):
        a = self.a
        L0, L1, L2 = self.lab("Lnon"), self.lab("Lnok"), self.lab("Lnx")
        def test():
            a(f"v_readfirstlane_b32 s{sTAG}, v{vt}", "s_nop 0")
            a(f"s_sub_u32 s{sEX}, s{sST}, s{sTAG}", f"s_cmp_lt_i32 s{sEX}, s{sEX+1}", f"s_cselect_b32 s{sEX}, s{sTAG}, 0")
            a(f"s_cmp_lg_u32 s{sEX}, 0", f"s_cbranch_scc1 {L1}")
        a(f"s_movk_i32 s{sEX+1}, 600")
        if issued is not None:
            self.wait_vm(issued); test()
        a(f"s_mov_b32 s{sSPIN}, {SPIN_MAX}")
        a(f"{L0}:")
        a(self.nonce_load(vt), "s_waitcnt vmcnt(0)")
        test()
        a(f"s_sub_u32 s{sSPIN}, s{sSPIN}, 1", f"s_cmp_lt_u32 s{sSPIN}, {SPIN_MAX-100}", f"s_cselect_b32 s{sEX+1}, 0x7fffffff, s{sEX+1}")
        a(f"s_cmp_lg_u32 s{sSPIN}, 0", f"s_cbranch_scc1 {L0}")
        a(f"{L1}:")
        if issued is None: self.vm = []
    def write_stamps(self, which):
        if not self.stamps: return
        a = self.a
        L = self.lab("Lst")
        a("s_waitcnt lgkmcnt(0)")
        a(f"s_cmp_lg_u32 s{sW}, {4*which}", f"s_cbranch_scc1 {L}")
        a(f"s_lshl_b32 s{sA}, s2, 8", f"s_add_u32 s{sA}, s{sA}, {WS_ST + 128*which}")
        a(f"s_mov_b64 s[{sEX}:{sEX+1}], exec", "s_mov_b64 exec, 1")
        for k in range(10):
            a(f"v_mov_b32 v2, s{S_STAMP+2*k}", f"v_mov_b32 v3, s{S_STAMP+2*k+1}")
            a(f"buffer_store_dwordx2 v[2:3], off, {srd(S_WS)}, s{sA} offset:{8*k}")
        a(f"s_mov_b64 exec, s[{sEX}:{sEX+1}]")
        a(f"{L}:")

    def prologue(self):
        a = self.a
        for (r, off) in ((S_X, 0), (S_WG, 64), (S_WU, 72)):
            a(f"s_load_dwordx2 s[{r}:{r+1}], s[0:1], {off}")
        a(f"s_load_dwordx8 s[{S_P}:{S_P+7}], s[0:1], 8", f"s_load_dwordx4 s[{S_P+8}:{S_P+11}], s[0:1], 40")
        a("s_cmp_ge_u32 s2, 256", "s_cbranch_scc1 L_exit")
        if "nopf" not in self.opts:
            L = self.lab("Lpc"); L2 = self.lab("Lpc")
            a(f"s_getpc_b64 s[{sA}:{sB}]", f"{L}:")
            a("v_lshlrev_b32 v254, 7, v0", f"v_cmp_gt_u32 vcc, L_exit-{L}, v254")
            a(f"s_and_saveexec_b64 s[{sEX}:{sEX+1}], vcc", f"s_cbranch_execz {L2}")
            a(f"global_load_dword v255, v254, s[{sA}:{sB}]")
            a(f"{L2}:", f"s_mov_b64 exec, s[{sEX}:{sEX+1}]")
        for (r, off) in ((S_WD, 80), (S_OUT, 88), (S_DBG, 96), (S_WS, 104)):
            a(f"s_load_dwordx2 s[{r}:{r+1}], s[0:1], {off}")
        a(f"s_memrealtime s[{sST}:{sST+1}]")
        if self.stamps:
            for k in range(1, 10): a(f"s_mov_b64 s[{S_STAMP+2*k}:{S_STAMP+2*k+1}], 0")
        self.stamp(0)
        vt = 5
        a(f"v_lshrrev_b32 v{vt}, 6, v0", "v_and_b32 v1, 63, v0")
        a(f"v_readfirstlane_b32 s{sW}, v{vt}")
        a(f"s_mov_b32 s{S_X+2}, 1835008", f"s_mov_b32 s{S_X+3}, 0x20000", f"s_mov_b32 s{S_WG+2}, 1605632", f"s_mov_b32 s{S_WG+3}, 0x20000")
        a(f"s_mov_b64 s[{S_WU+2}:{S_WU+3}], s[{S_WG+2}:{S_WG+3}]", f"s_mov_b64 s[{S_WD+2}:{S_WD+3}], s[{S_WG+2}:{S_WG+3}]", f"s_mov_b64 s[{S_OUT+2}:{S_OUT+3}], s[{S_X+2}:{S_X+3}]")
        a(f"s_mov_b32 s{S_WS+2}, 0x10000000", f"s_mov_b32 s{S_WS+3}, s{S_X+3}", f"s_movk_i32 s{S_DBG+2}, 256", f"s_mov_b32 s{S_DBG+3}, s{S_X+3}")
        a(f"s_and_b32 s{sA}, s2, 7", f"s_lshr_b32 s{sB}, s2, 3")
        a("s_cmp_lt_u32 s2, 32", "s_cbranch_scc1 L_helper")
        a(f"s_sub_u32 s{sB}, s{sB}, 4")
        a(f"s_mul_i32 s{sC}, s{sB}, 37", f"s_lshr_b32 s{sC}, s{sC}, 8")
        a(f"s_mul_i32 s{sD}, s{sC}, 7", f"s_sub_u32 s{sJ2}, s{sB}, s{sD}")
        a(f"s_lshr_b32 s{sD}, s{sA}, 1", f"s_lshl2_add_u32 s{sI}, s{sD}, s{sC}")
        a(f"s_and_b32 s{sD}, s{sA}, 1", f"s_mul_i32 s{sD}, s{sD}, 7", f"s_add_u32 s{sJ}, s{sD}, s{sJ2}")
        a(f"s_lshl2_add_u32 s{sI2}, s{sA}, s{sC}")
        a(f"s_sub_u32 s{sT}, s2, 32")
        a(f"s_mov_b32 s{sQI}, s{sC}", f"s_and_b32 s{sAW}, s{sW}, 3")
        a(f"s_lshl_b32 s{sD}, s{sT}, 10", f"s_lshl_b32 s{sE}, s{sAW}, 8", f"s_add_u32 s{sD}, s{sD}, s{sE}")
        a(f"v_lshl_add_u32 v19, v1, 1, s{sD}", f"s_lshl_b32 s{sF}, s{sT}, 2")
        a(f"v_lshrrev_b32 v{vt}, 3, v1", f"v_and_b32 v{vt+1}, 7, v1", f"v_lshrrev_b32 v{vt+2}, 4, v1")
        a(f"v_mul_u32_u24 v15, 896, v{vt}")
        a(f"v_lshlrev_b32 v14, 1, v{vt+2}", f"v_xor_b32 v14, v14, v{vt+1}", f"v_lshl_add_u32 v{voD}, v14, 4, v15")
        a(f"s_lshl_b32 s{sM0}, s{sAW}, 12")
        a(f"s_cmp_lt_u32 s{sW}, 4", "s_cbranch_scc1 L_m")
        a(f"v_xor_b32 v14, v{vt+2}, v{vt+1}", f"v_lshl_add_u32 v{voX}, v14, 4, v15")
        a(f"v_xor_b32 v14, 64, v{voX}", f"v_add_u32 v{voX+1}, {7168-1024}, v14", f"v_add_u32 v{voX+2}, {2*(7168-1024)}, v{voX}", f"v_add_u32 v{voX+3}, {3*(7168-1024)}, v14")
        a(f"v_lshlrev_b32 v14, 1, v{vt+2}", f"v_and_b32 v15, 15, v1", f"v_xor_b32 v14, v14, v15")
        a(f"v_mul_u32_u24 v15, 3584, v{vt+2}", f"v_lshl_add_u32 v{voW}, v14, 4, v15")
        a(f"v_xor_b32 v14, 0x80, v{voW}", f"v_add_u32 v{voW+1}, {14336-1024}, v{voW}", f"v_add_u32 v{voW+2}, {2*(14336-1024)}, v14", f"v_add_u32 v{voW+3}, {3*(14336-1024)}, v14")
        a(f"s_lshl2_add_u32 s{sA}, s{sI}, s{sAW}", f"s_mul_i32 s{sXB}, s{sA}, {32*896}")
        a(f"s_and_b32 s{sA}, s{sAW}, 1", f"s_mul_i32 s{sA}, s{sA}, {16*3584}", f"s_lshl_b32 s{sB}, s{sJ}, 8", f"s_add_u32 s{sWB}, s{sA}, s{sB}")
        a(f"s_cmp_ge_u32 s{sAW}, 2")
        a("s_waitcnt lgkmcnt(0)")
        self.vm = ["pf"]
        a(f"s_cselect_b32 s{S_WG}, s{S_WU}, s{S_WG}", f"s_cselect_b32 s{S_WG+1}, s{S_WU+1}, s{S_WG+1}")

    def ks_table(self):
        L = []
        for p in range(7):
            lo, mod = (0, 4) if p < 4 else (4, 3)
            d = sKS + p
            if self.opt("rot2", 1):
                L += [f"s_add_u32 s{d}, s{sQI}, {p - lo}", f"s_cmp_ge_u32 s{d}, {mod}", f"s_cselect_b32 s{sB}, {mod}, 0", f"s_sub_u32 s{d}, s{d}, s{sB}"]
                L += [f"s_add_u32 s{d}, s{d}, s{sJ2}"]
                if lo: L += [f"s_add_u32 s{d}, s{d}, {lo}"]
                L += [f"s_cmp_ge_u32 s{d}, 7", f"s_cselect_b32 s{sB}, 7, 0", f"s_sub_u32 s{d}, s{d}, s{sB}"]
            else: L += [f"s_mov_b32 s{d}, {p}"]
        return L

    def colsum_partial(self, R, C, vt, area):
        a = self.a
        for i in range(4):
            a(f"v_lshlrev_b32 v{C+2*i}, 16, v{R+i}", f"v_and_b32 v{C+2*i+1}, 0xffff0000, v{R+i}")
        for t in range(1, 7):
            for i in range(4):
                a(f"v_dot2c_f32_bf16 v{C+2*i}, s{self.sLO}, v{R+4*t+i}", f"v_dot2c_f32_bf16 v{C+2*i+1}, s{self.sHI}, v{R+4*t+i}")
        for i in range(4): a(f"v_permlane32_swap_b32 v{C+i}, v{C+i+4}")
        for i in range(4): a(f"v_add_f32 v{C+i}, v{C+i}, v{C+i+4}")
        for i in range(2): a(f"v_permlane16_swap_b32 v{C+i}, v{C+i+2}")
        for i in range(2): a(f"v_add_f32 v{C+i}, v{C+i}, v{C+i+2}")
        a(f"v_and_b32 v{vt}, 8, v1", f"v_cmp_ne_u32 vcc, 0, v{vt}")
        for i in range(2): a(f"v_add_f32_dpp v{C+2+i}, v{C+i}, v{C+i} row_ror:8 row_mask:0xf bank_mask:0xf")
        a(f"v_cndmask_b32 v{C}, v{C+2}, v{C+3}, vcc")
        a(f"ds_write_b32 v{self.hCSW}, v{C} offset:{area}")
    def colsum_final(self, wave, area, blk, C, vt):
        a = self.a
        L = self.lab("Lcs")
        a(f"s_cmp_lg_u32 s{sW}, {wave}", f"s_cbranch_scc1 {L}")
        a(f"v_lshlrev_b32 v{vt}, 2, v1")
        for w in range(8): a(f"ds_read_b32 v{C+w}, v{vt} offset:{area + 256*w}")
        a(f"v_lshlrev_b32 v{vt}, 4, v1")
        a(f"s_add_u32 s{sA}, s{sJ}, {WS_CS + 1024*blk}")
        a("s_waitcnt lgkmcnt(0)")
        for (x, y) in ((0,1),(2,3),(4,5),(6,7),(0,2),(4,6),(0,4)): a(f"v_add_f32 v{C+x}, v{C+x}, v{C+y}")
        a(f"v_mov_b32 v{C+1}, s{sTAG}")
        a(f"buffer_store_dwordx2 v[{C}:{C+1}], v{vt}, {srd(S_WS)}, s{sA} offen sc1")
        a(f"{L}:")

    def helper(self):
        a = self.a
        self.vm = []; self.role = 'H'
        a("L_helper:")
        WA, XR, WB, C, XF = 4, 32, 60, 88, 100
        vt = 96; vR, vP = 160, 161; vW, vX = 162, 163; self.hCSW = 164
        vS, vM, vMB, vQ, vRr = 165, 166, 172, 168, 170
        self.sLO, self.sHI, sONE = 48, 49, 50
        TS = 912; CSA = 61440
        a(f"v_lshrrev_b32 v{vR}, 3, v0", f"v_and_b32 v{vP}, 7, v0")
        a(f"v_lshlrev_b32 v{vt}, 4, v{vP}")
        a(f"v_mul_u32_u24 v{vW}, 3584, v{vR}", f"v_add_u32 v{vW}, v{vW}, v{vt}")
        a(f"v_mul_u32_u24 v{vX}, 896, v{vR}", f"v_add_u32 v{vX}, v{vX}, v{vt}")
        a(f"s_lshl2_add_u32 s{sI}, s{sA}, s{sB}")
        a(f"s_lshr_b32 s{sC}, s{sA}, 1", f"s_lshl2_add_u32 s{sT}, s{sC}, s{sB}")
        a(f"s_and_b32 s{sA}, s{sA}, 1", f"s_mul_i32 s{sA}, s{sA}, 7", f"s_add_u32 s{sA}, s{sA}, s{sT}")
        a(f"s_cmp_ge_u32 s{sT}, 7", f"s_cselect_b32 s{sB}, 7, 0", f"s_cselect_b32 s{sJ}, 8, 0", f"s_sub_u32 s{sB}, s{sA}, s{sB}", f"s_lshl_b32 s{sB}, s{sB}, 8")
        a(f"s_lshl3_add_u32 s{sJ}, s{sB}, s{sJ}")
        a(f"s_cmp_ge_u32 s{sT}, 14", f"s_cselect_b32 s{S_WG+2}, 0, s{S_WG+2}", f"s_cselect_b32 s{sJ}, 0x8000, s{sJ}")
        a(f"s_mul_i32 s{sC}, s{sI}, {64*896}")
        a("s_waitcnt lgkmcnt(0)")
        Ln = self.lab("Lnn")
        a(f"s_or_b32 s{sD}, s2, s{sW}", f"s_cmp_lg_u32 s{sD}, 0", f"s_cbranch_scc1 {Ln}")
        a(f"s_or_b32 s{sA}, s{sST}, 1", f"v_mov_b32 v2, s{sA}")
        a("s_mov_b64 exec, 1", f"buffer_store_dword v2, off, {srd(S_DBG)}, 0 sc1", "s_mov_b64 exec, -1")
        a(f"{Ln}:")
        a(f"s_cmp_ge_u32 s{sT}, 7", f"s_cselect_b32 s{S_WG}, s{S_WU}, s{S_WG}", f"s_cselect_b32 s{S_WG+1}, s{S_WU+1}, s{S_WG+1}")
        for t in range(7):
            self.vmem(f"buffer_load_dwordx4 v[{XR+4*t}:{XR+4*t+3}], v{vX}, {srd(S_X)}, s{sC} offen offset:{128*t}", "XR")
        a(f"s_mov_b32 s{self.sLO}, 0x3f80", f"s_mov_b32 s{self.sHI}, 0x3f800000", f"s_mov_b32 s{sONE}, 0x3f803f80")
        a(f"v_lshrrev_b32 v{vt}, 3, v1", f"v_lshl_add_u32 v{vt}, v{vP}, 3, v{vt}", f"v_lshlrev_b32 v{vt}, 2, v{vt}")
        a(f"s_lshl_b32 s{sD}, s{sW}, 8", f"v_add_u32 v{self.hCSW}, s{sD}, v{vt}")
        for k in range(4): a(f"v_mov_b32 v{C+k}, 0")
        a(f"v_lshlrev_b32 v{vt+2}, 3, v{vR}")
        a(f"s_lshl_b32 s{sE}, s{sI}, 9")
        self.wait_vm("XR")
        self.stamp(1)
        for i in range(28): a(f"v_dot2c_f32_bf16 v{C+i%4}, s{sONE}, v{XR+i}")
        a(f"v_add_f32 v{C}, v{C}, v{C+1}", f"v_add_f32 v{C+2}, v{C+2}, v{C+3}", f"v_add_f32 v{vS}, v{C}, v{C+2}")
        for ctl in ("quad_perm:[1,0,3,2]", "quad_perm:[2,3,0,1]", "row_half_mirror"):
            a(f"v_add_f32_dpp v{vS}, v{vS}, v{vS} {ctl} row_mask:0xf bank_mask:0xf")
        a(f"v_mul_f32 v{vM}, {f32(-1.0/448)}, v{vS}")
        a(f"v_cvt_pk_bf16_f32 v{vMB}, 0, v{vM}")
        self.vmem(self.nonce_load(vQ), "non")
        wl = [(blk, R, t) for blk, R in ((0, WA), (1, WB)) for t in range(7)]
        def wload():
            if not wl: return
            blk, R, t = wl.pop(0)
            a(f"s_add_u32 s{sD}, s{sB}, {t*64*3584}")
            self.vmem(f"buffer_load_dwordx4 v[{R+4*t}:{R+4*t+3}], v{vW}, {srd(S_WG)}, s{sD} offen offset:{128*blk}", "W")
        for i in range(28):
            a(f"v_dot2_f32_bf16 v{XF+2*i}, v{XR+i}, s{self.sLO}, v{vMB}", f"v_dot2_f32_bf16 v{XF+2*i+1}, v{XR+i}, s{self.sHI}, v{vMB}")
            if i % 7 == 6: wload()
        for k in range(2): a(f"v_pk_mul_f32 v[{C+2*k}:{C+2*k+1}], v[{XF+2*k}:{XF+2*k+1}], v[{XF+2*k}:{XF+2*k+1}]")
        for i in range(2, 28):
            k = i % 2
            a(f"v_pk_fma_f32 v[{C+2*k}:{C+2*k+1}], v[{XF+2*i}:{XF+2*i+1}], v[{XF+2*i}:{XF+2*i+1}], v[{C+2*k}:{C+2*k+1}]")
            if i % 13 == 12: wload()
        a(f"v_add_f32 v{C}, v{C}, v{C+1}", f"v_add_f32 v{C+2}, v{C+2}, v{C+3}", f"v_add_f32 v{vS}, v{C}, v{C+2}")
        a(f"v_sub_f32 v{vM}, v{vM}, v{vMB}")
        rnd = [f"v_cvt_pk_bf16_f32 v{XF+i}, 0, v{XF+i}" for i in range(56)]
        def fill(n):
            for _ in range(n):
                if rnd: a(rnd.pop(0))
        chain = []
        for ctl in ("quad_perm:[1,0,3,2]", "quad_perm:[2,3,0,1]", "row_half_mirror"):
            chain.append(f"v_add_f32_dpp v{vS}, v{vS}, v{vS} {ctl} row_mask:0xf bank_mask:0xf")
        chain += [f"v_mul_f32 v{vM}, v{vM}, v{vM}", f"v_mul_f32 v{vS}, {f32(1.0/448)}, v{vS}", f"v_sub_f32 v{vS}, v{vS}, v{vM}", f"v_max_f32 v{vS}, 0, v{vS}",
                  f"v_cvt_pk_bf16_f32 v{vS}, 0, v{vS}", f"v_add_f32 v{vS}, {f32(1e-5)}, v{vS}", f"v_cvt_pk_bf16_f32 v{vS}, 0, v{vS}",
                  f"v_sqrt_f32 v{vS}, v{vS}", f"v_cvt_pk_bf16_f32 v{vS}, 0, v{vS}", f"v_rcp_f32 v{vRr}, v{vS}",
                  f"v_mul_f32 v{C+6}, v{vRr}, v{vRr}", f"v_mov_b32 v{vRr+1}, v{vRr}"]
        for i, c in enumerate(chain):
            fill(2); a(c)
            if i % 5 == 4: wload()
        self.get_nonce(vQ, issued="non")
        a(f"v_mov_b32 v{C+7}, s{sTAG}", f"v_mov_b32 v{vMB+1}, s{sTAG}", f"s_add_u32 s{sA}, s{sE}, {WS_R2}", f"s_add_u32 s{sD}, s{sE}, {WS_NM}")
        a("s_mov_b32 exec_lo, 0x01010101", "s_mov_b32 exec_hi, 0x01010101")
        self.vmem(f"buffer_store_dwordx2 v[{vMB}:{vMB+1}], v{vt+2}, {srd(S_WS)}, s{sD} offen sc1", "st")
        self.vmem(f"buffer_store_dwordx2 v[{C+6}:{C+7}], v{vt+2}, {srd(S_WS)}, s{sA} offen sc1", "st")
        a("s_mov_b64 exec, -1")
        self.stamp(2)
        fill(13); wload(); fill(99)
        a(f"v_mul_u32_u24 v{vt}, {TS}, v{vR}", f"v_lshl_add_u32 v{vt}, v{vP}, 4, v{vt}")
        for t in range(7):
            for i in range(4 * t, 4 * t + 4): a(f"v_pk_mul_f32 v[{XF+2*i}:{XF+2*i+1}], v[{XF+2*i}:{XF+2*i+1}], v[{vRr}:{vRr+1}]")
            for i in range(4 * t, 4 * t + 4): a(f"v_cvt_pk_bf16_f32 v{XR+i}, v{XF+2*i}, v{XF+2*i+1}")
            a(f"ds_write_b128 v{vt}, v[{XR+4*t}:{XR+4*t+3}] offset:{128*t}")
            wload()
        assert not wl
        a(f"v_bfe_u32 v{vt+1}, v1, 4, 1", f"v_and_b32 v{vt+3}, 3, v1", f"v_lshl_add_u32 v{vt+1}, v{vt+1}, 2, v{vt+3}")
        a(f"v_bfe_u32 v{vt+3}, v1, 2, 2", f"v_lshl_add_u32 v{vt+1}, v{vt+1}, 3, v{vt+3}", f"v_mul_u32_u24 v{vt+1}, {TS}, v{vt+1}")
        a(f"v_lshrrev_b32 v{vt+3}, 5, v1", f"v_lshl_add_u32 v{vt+1}, v{vt+3}, 3, v{vt+1}")
        a(f"s_lshl_b32 s{sD}, s{sW}, 4", f"v_add_u32 v{vt+1}, s{sD}, v{vt+1}")
        a(f"v_lshlrev_b32 v{vt+2}, 4, v1")
        a(f"s_mul_i32 s{sC}, s{sI}, {448*128}", f"s_lshl_b32 s{sA}, s{sW}, 10", f"s_add_u32 s{sC}, s{sC}, s{sA}", f"s_add_u32 s{sC}, s{sC}, {WS_XNT}")
        a("s_waitcnt lgkmcnt(0)", "s_barrier")
        self.stamp(3)
        for n in range(7):
            for t in range(2):
                a(f"ds_read_b64_tr_b16 v[{XR+4*n+2*t}:{XR+4*n+2*t+1}], v{vt+1} offset:{128*n + 4*TS*t}")
        for n in range(7):
            a(f"s_waitcnt lgkmcnt({12-2*n})")
            self.vmem(f"buffer_store_dwordx4 v[{XR+4*n}:{XR+4*n+3}], v{vt+2}, {srd(S_WS)}, s{sC} offen sc1", "st")
            if n < 6: a(f"s_add_u32 s{sC}, s{sC}, 8192")
        self.wait_vm("W")
        self.colsum_partial(WA, C, vt, CSA)
        a("s_waitcnt vmcnt(0)", "s_barrier")
        L = self.lab("Lfx")
        a(f"s_cmp_lg_u32 s{sW}, 0", f"s_cbranch_scc1 {L}")
        a(f"v_mov_b32 v2, s{sTAG}", f"s_lshl_b32 s{sA}, s{sI}, 7", f"s_add_u32 s{sA}, s{sA}, {WS_FX}")
        a("v_lshlrev_b32 v3, 2, v1", "s_mov_b32 exec_hi, 0", f"buffer_store_dword v2, v3, {srd(S_WS)}, s{sA} offen sc1", "s_mov_b32 exec_hi, -1")
        a(f"{L}:")
        self.stamp(5)
        self.colsum_partial(WB, C, vt, CSA + 2048)
        a("s_waitcnt lgkmcnt(0)", "s_barrier")
        self.colsum_final(0, CSA, 0, WA, vt)
        self.colsum_final(1, CSA + 2048, 1, WA, vt)
        self.stamp(4)
        self.write_stamps(0)
        a("s_endpgm")

    @staticmethod
    def uslot(u): return (u + 3) % 8

    def kgen_setup(self):
        base = 8
        PRM, vDT, vt, vRA, vRB, KD, BF, AF, T = base + 12, base + 4, base + 5, base + 8, base + 9, 28, 44, 76, 200
        self.KD, self.kBF, self.kAF, self.kvt = KD, BF, AF, vt
        self.kregs = (PRM, vDT, vt, vRA, vRB, KD, BF, AF, T)
        L = []
        e = lambda *x: L.extend(x)
        e(f"s_lshl_b32 s{sSB}, s{sAW}, 8")
        def rowaddr(dst, sig):
            e(f"v_and_b32 v{dst}, 15, v{sig}", f"v_mul_u32_u24 v{dst}, 2064, v{dst}", f"v_lshrrev_b32 v{sig}, 4, v{sig}", f"v_lshl_add_u32 v{dst}, v{sig}, 10, v{dst}")
            e(f"v_add_u32 v{dst}, v{dst}, v{vt+2}")
        e(f"v_lshrrev_b32 v{vt+2}, 5, v1", f"v_lshlrev_b32 v{vt+2}, 4, v{vt+2}", f"v_and_b32 v{vt}, 31, v1")
        e(f"v_cmp_eq_u32 vcc, 5, v{vt}", f"v_cndmask_b32_e64 v{vt+1}, v{vt}, 4, vcc", f"v_cmp_eq_u32 vcc, 31, v{vt}", f"v_cndmask_b32_e64 v{vt+1}, v{vt+1}, 5, vcc")
        rowaddr(vRA, vt + 1)
        e(f"v_add_u32 v{vRA}, s{sSB}, v{vRA}")
        e(f"v_add_u32 v{vt+1}, -1, v{vt}", f"v_and_b32 v{vt+1}, 31, v{vt+1}")
        rowaddr(vRB, vt + 1)
        e(f"v_cmp_eq_u32 vcc, 0, v{vt}", f"v_mov_b32 v{vt}, s{sSB}", f"v_cndmask_b32_e64 v{vt}, v{vt}, 0, vcc", f"v_add_u32 v{vRB}, v{vRB}, v{vt}")
        e("s_waitcnt lgkmcnt(0)")
        e(f"s_lshr_b32 s{sC}, s{sAW}, 1", f"s_lshl_b32 s{sC}, s{sC}, 4")
        for r in (sLD, sDS): e(f"s_lshr_b32 s{r}, s{r}, s{sC}", f"s_lshl_b32 s{r}, s{r}, 16")
        chi = float(np.frombuffer(np.uint32(np.float32(LOG2E).view(np.uint32) & 0xFFFFFF00).tobytes(), np.float32)[0]); clo = LOG2E - chi
        e(f"v_mov_b32 v{vt+2}, s{sLD}", f"v_mul_f32 v{vDT}, {f32(chi)}, v{vt+2}", f"v_mul_f32 v{vt+2}, {f32(clo)}, v{vt+2}")
        e(f"v_exp_f32 v{vDT}, v{vDT}", f"v_exp_f32 v{vt+2}, v{vt+2}", f"v_mul_f32 v{vDT}, v{vDT}, v{vt+2}")
        e(f"v_cvt_pk_bf16_f32 v{vDT}, 0, v{vDT}")
        return L

    @staticmethod
    def soff(sig): return (sig & 15) * 2064 + (sig >> 4) * 1024

    def kgen_scale(self):
        PRM, vDT, vt, vRA, vRB, KD, BF, AF, T = self.kregs
        L = []
        e = lambda *x: L.extend(x)
        e(f"v_and_b32 v{T}, 0x7fff, v{PRM+2}", f"v_and_b32 v{T+1}, 0x7fff, v{PRM+3}", f"v_and_b32 v{T+2}, 0x7fff, v{PRM+6}", f"v_and_b32 v{T+3}, 0x7fff, v{PRM+7}")
        e(f"v_max_u32 v{T}, v{T}, v{T+1}", f"v_max3_u32 v{T}, v{T}, v{T+2}, v{T+3}")
        sh = [f"v_lshlrev_b32 v{PRM+k}, 16, v{PRM+k}" for k in range(8)]
        for ctl in ("row_shr:1", "row_shr:2", "row_shr:4", "row_shr:8", "row_bcast:15 row_mask:0xa", "row_bcast:31 row_mask:0xc"):
            for _ in range(2):
                if sh: e(sh.pop(0))
            e(f"v_max_u32_dpp v{T}, v{T}, v{T} {ctl}" + (" row_mask:0xf" if "row_mask" not in ctl else "") + " bank_mask:0xf")
        e(f"v_readlane_b32 s50, v{T}, 63")
        e("s_lshr_b32 s50, s50, 7", "s_sub_u32 s50, 267, s50", "s_min_u32 s50, s50, 253", f"s_sub_u32 s51, 255, s50")
        e("s_lshl_b32 s50, s50, 23", "s_lshl_b32 s51, s51, 23", f"v_mul_f32 v18, s51, v{vDT}")
        return L

    def kgen_body(self, czero, batch):
        PRM, vDT, vt, vRA, vRB, KD, BF, AF, T = self.kregs
        L = []
        e = lambda *x: L.extend(x)
        tt = 172; ti = [0]
        pendf = []
        def cmul(d, x, y):
            t = tt + ti[0] % 8; ti[0] += 1
            if any(x == p[0] or y == p[0] for p in pendf): flush()
            e(f"v_pk_mul_f16 v{t}, v{x}, v{y} op_sel:[1,1] op_sel_hi:[0,1]")
            flush()
            pendf.append((d, f"v_pk_fma_f16 v{d}, v{x}, v{y}, v{t} op_sel_hi:[1,0,1] neg_lo:[0,0,1]"))
        def flush():
            for p in pendf: e(p[1])
            pendf.clear()
        BF += 64 * batch; AF += 64 * batch
        def arow(hh, reg): return 8 * (reg >> 2) + 4 * hh + (reg & 3)
        P1 = {}
        for reg, p in enumerate(list(range(9)) + [512, 516, 520, 1024, 1032, 1536, 1544]): P1.setdefault(p, []).append(arow(0, reg))
        for reg, p in enumerate([256, 256, 258, 260, 260, 260, 262, 264, 264, 768, 772, 776, 1280, 1288, 1792, 1800]): P1.setdefault(p, []).append(arow(1, reg))
        assert P1[256] == [4, 5] and P1[1800] == [31]
        P1[256] = [4]; P1[1800] = [5]
        E = {j: BF + j for j in range(1, 32)}
        V = {p: AF + i for i, p in enumerate(sorted(P1))}
        va, vb = T, T + 1
        S = T + 2
        A = T + 10
        W1, W8, W256 = T + 18, T + 19, T + 20
        p_ = PRM + 4 * batch
        e(f"v_mul_f32 v{va}, {f32(LOG2E)}, v{p_}", f"v_mul_f32 v{vb}, v{p_+1}, v{vDT}", f"v_exp_f32 v{va}, v{va}")
        e(f"v_mul_f32 v{vb}, 0.15915494, v{vb}", f"v_mul_f32 v{p_+2}, s50, v{p_+2}")
        e(f"v_cvt_pk_bf16_f32 v{va}, 0, v{va}", f"v_mul_f32 v{p_+3}, s50, v{p_+3}")
        e(f"v_mul_f32 v{va}, v{va}, v{vDT}", f"v_cvt_pk_f16_f32 v{V[0]}, v{p_+2}, v{p_+3}")
        e(f"v_mul_f32 v{va}, {f32(-LOG2E)}, v{va}")
        seeds = (8, 32, 1, 256)
        for i, p in enumerate(seeds):
            if p != 1: e(f"v_mul_f32 v{A+2*i+1}, {f32(p)}, v{vb}", f"v_mul_f32 v{A+2*i}, {f32(p)}, v{va}")
        for i, p in enumerate(seeds):
            e(f"v_fract_f32 v{A+2*i+1}, v{A+2*i+1 if p != 1 else vb}", f"v_exp_f32 v{A+2*i}, v{A+2*i if p != 1 else va}")
        for i, p in enumerate(seeds):
            e(f"v_cos_f32 v{S+2*i}, v{A+2*i+1}", f"v_sin_f32 v{S+2*i+1}, v{A+2*i+1}")
        for i, p in enumerate(seeds):
            e(f"v_mul_f32 v{S+2*i}, v{S+2*i}, v{A+2*i}", f"v_mul_f32 v{S+2*i+1}, v{S+2*i+1}, v{A+2*i}")
        e(f"v_cvt_pk_f16_f32 v{E[1]}, v{S}, -v{S+1}", f"v_cvt_pk_f16_f32 v{W8}, v{S}, v{S+1}", f"v_cvt_pk_f16_f32 v{E[4]}, v{S+2}, -v{S+3}")
        e(f"v_cvt_pk_f16_f32 v{W1}, v{S+4}, v{S+5}", f"v_cvt_pk_f16_f32 v{W256}, v{S+6}, v{S+7}")
        jobs = [(E[2], E[1], E[1]), (V[8], V[0], W8), (V[1], V[0], W1), (E[3], E[2], E[1])]
        vj = [(V[k], V[k - 1], W1) for k in range(2, 8)]
        far = [(V[p], V[p - 256], W256) for p in sorted(P1) if p >= 256]
        far.sort(key=lambda x: 0)
        f08 = [(V[p], V[p - 256], W256) for p in sorted(P1) if p >= 256 and p % 256 in (0, 8)]
        fo = [(V[p], V[p - 256], W256) for p in sorted(P1) if p >= 256 and p % 256 not in (0, 8)]
        ej = [(E[j], E[j - 4], E[4]) for j in range(5, 32)]
        while ej or vj or f08 or fo:
            for q_ in (ej, vj, ej, f08) if vj else (ej, fo, ej, f08):
                if q_: jobs.append(q_.pop(0))
        for j in jobs: cmul(*j)
        flush()
        B = [f"ds_write_addtid_b32 v{E[j]} offset:{self.soff(j-1)}" for j in range(1, 32)]
        B += [f"ds_read_b128 v[{BF+4*k}:{BF+4*k+3}], v{vRB} offset:{32*k}" for k in range(8)]
        B += [f"ds_write_addtid_b32 v{V[p]} offset:{self.soff(sig)}" for p in sorted(P1) for sig in P1[p]]
        B += [f"ds_read_b128 v[{AF+4*k}:{AF+4*k+3}], v{vRA} offset:{32*k}" for k in range(8)]
        M = []
        for k in range(8):
            c = "0" if (czero and k == 0) else f"v[{KD}:{KD+15}]"
            M.append(f"v_mfma_f32_32x32x16_f16 v[{KD}:{KD+15}], v[{AF+4*k}:{AF+4*k+3}], v[{BF+4*k}:{BF+4*k+3}], {c}")
        return L, B, M

    def mwave(self):
        a = self.a
        self.role = 'M'
        a("L_m:")
        ACC, AB, XB, CSX, NMX = 4, 132, 164, 228, 232
        vAX, vAW = 234, 248
        vt = 239; vHO = 2; vCSO = 3; vN = 238
        sLH, sFH = 48, 49
        def acc(mat, b, ft): return ACC + 4 * (b + 4 * (ft + 4 * mat))
        a(f"v_mov_b32 v0, v{voD}")
        a(f"s_lshr_b32 s{sLH}, s{sW}, 1", f"s_and_b32 s{sFH}, s{sW}, 1")
        a(f"v_and_b32 v{vt}, 15, v1")
        a(f"v_lshrrev_b32 v{vt+2}, 4, v1", f"v_bfe_u32 v{vt+3}, v1, 1, 3")
        a(f"v_xor_b32 v{vt+3}, v{vt+3}, v{vt+2}", f"v_lshlrev_b32 v{vt+3}, 4, v{vt+3}")
        a(f"s_lshl_b32 s{sA}, s{sLH}, 13", f"s_add_u32 s{sA}, s{sA}, {RING}")
        a(f"v_lshl_add_u32 v{vt}, v{vt}, 7, s{sA}")
        for s_ in range(2):
            a(f"v_xad_u32 v{vAX+s_}, v{vt+3}, {64*s_}, v{vt}", f"v_add_u32 v{vAX+2+s_}, 0x10000, v{vAX+s_}")
        a(f"v_bfe_u32 v{vt}, v1, 2, 2", f"v_lshl_add_u32 v{vt}, v{vt+2}, 3, v{vt}", f"v_lshlrev_b32 v{vt}, 8, v{vt}")
        a(f"v_and_b32 v{vt+3}, 3, v1", f"v_lshl_add_u32 v{vt}, v{vt+3}, 3, v{vt}")
        a(f"v_bfe_u32 v{vt+3}, v1, 2, 3", f"v_lshl_add_u32 v{vt}, v{vt+3}, 5, v{vt}")
        a(f"s_lshl_b32 s{sA}, s{sFH}, 7", f"v_xor_b32 v{vt}, s{sA}, v{vt}", f"v_add_u32 v{vt}, {RING}, v{vt}")
        a("s_waitcnt vmcnt(0)")
        for ft in range(4):
            a(f"v_xor_b32 v{vAW+ft}, {32*ft}, v{vt}", f"v_add_u32 v{vAW+4+ft}, 0x10000, v{vAW+ft}")
        a(f"v_lshlrev_b32 v{vCSO}, 3, v1", f"v_lshlrev_b32 v{vHO}, 4, v1")
        self.vm = []
        self.gemm2_setup(vt)
        a(f"s_setprio {self.opt('mp', 2)}")
        a("s_waitcnt lgkmcnt(0)")
        for x in self.ks_table(): a(x)
        a(f"s_lshl1_add_u32 s{sF}, s{sJ}, s{sFH}")
        a(f"s_lshl_b32 s{sB}, s{sF}, 10", f"s_add_u32 s{sB}, s{sB}, {WS_CS}")
        a(f"s_lshl1_add_u32 s{sA}, s{sI}, s{sLH}")
        a(f"s_lshl_b32 s{sD}, s{sA}, 9", f"s_add_u32 s{sD}, s{sD}, {WS_NM}")
        a(f"s_mul_i32 s{sE}, s{sA}, {HS}", f"s_lshl_b32 s{sC}, s{sF}, 13", f"s_add_u32 s{sE}, s{sE}, s{sC}")
        a(f"s_lshl4_add_u32 s{sG}, s{sI}, s{sJ}", f"s_lshl_b32 s{sG}, s{sG}, 7", f"s_add_u32 s{sG}, s{sG}, {WS_FH}")
        FR = [(ft, mat) for ft in range(4) for mat in range(2)]
        def reads(g):
            c, s_ = divmod(g, 2)
            sl = self.uslot(3 * c + 1); win = sl // 4
            xb = XB + 16 * (g & 1)
            xr = [f"ds_read_b128 v[{xb+4*b}:{xb+4*b+3}], v{vAX+2*win+s_} offset:{16384*(sl%4) + 2048*b}" for b in range(4)]
            sl = self.uslot(3 * c + 2 * s_); win = sl // 4
            wr = []
            for k, (ft, mat) in enumerate(FR):
                wr.append([f"ds_read_b64_tr_b16 v[{AB+4*k+2*t}:{AB+4*k+2*t+1}], v{vAW+4*win+ft} offset:{16384*(sl%4) + 1024*t + 8192*mat}" for t in range(2)])
            return xr, wr
        def mfma(g, k, b):
            ft, mat = FR[k]
            d = acc(mat, b, ft); xb = XB + 16 * (g & 1)
            c = "0" if g == 0 else f"v[{d}:{d+3}]"
            return f"v_mfma_f32_16x16x32_bf16 v[{d}:{d+3}], v[{AB+4*k}:{AB+4*k+3}], v[{xb+4*b}:{xb+4*b+3}], {c}"
        corr_loads = [f"buffer_load_dwordx4 v[{CSX}:{CSX+3}], v{vHO}, {srd(S_WS)}, s{sB} offen sc1",
                      f"buffer_load_dwordx2 v[{NMX}:{NMX+1}], v{vCSO}, {srd(S_WS)}, s{sD} offen sc1"]
        a("s_waitcnt lgkmcnt(0)")
        if "k1" in self.opts: self.stampk(7)
        a("s_barrier")
        self.stamp(2)
        q = []; pend = []
        def need(key):
            idx = [i for i, t in enumerate(q) if t[0] == key[0] and t[1] <= key[1]]
            if not idx: return
            n = len(q) - 1 - idx[-1]
            a(f"s_waitcnt lgkmcnt({min(n, 15)})")
            del q[:len(q) - min(n, 15)]
        def drain(maxn):
            n = 0
            while pend and n < maxn:
                r, key = pend.pop(0); a(r); q.append(key); n += 1
        xr, wr = reads(0)
        for r in xr: a(r); q.append((0, 0))
        for k in range(8):
            for r in wr[k]: a(r); q.append((0, k))
        self.vmem(self.nonce_load(vN), "non")
        if self.opt("tlb", 0) == 1: self.tlbtouch(vt)
        DELAY = self.opt("dl", 8); WG_ = self.opt("wg", 2)
        cl = list(corr_loads); extra = []
        for g in range(14):
            xr, wr = reads(g + 1) if g < 13 else ([], [[]] * 8)
            if g == 0: self.cstamp(0)
            if g == 8: self.get_nonce(vN, issued="non")
            blocked = True; held = []
            i = 0
            for k in range(8):
                for b in range(4):
                    if k % WG_ == 0 and b == 0:
                        key = (g, k + WG_ - 1)
                        while any(x[1][0] == g and x[1][1] <= key[1] for x in pend): drain(1)
                        need(key)
                    a(mfma(g, k, b)); i += 1
                    if b == 3:
                        new_r = [(r, (g + 1, k)) for r in wr[k]]
                        if blocked: held += new_r
                        else: pend += new_r
                    if blocked and i == DELAY:
                        pend += [(x, (-1, 0)) for x in extra]; extra = []
                        drain(99)
                        LB = self.opt("lb", 11)
                        if g + 1 <= LB:
                            a("s_waitcnt lgkmcnt(0)"); q.clear()
                            a("s_barrier")
                        elif g == 11 and self.NDA > 3:
                            self.signal(8, vt); q.append((-1, 0))
                        if g % 2 == 1: self.cstamp(1 + g // 2)
                        pend += held + [(r, (g + 1, 0)) for r in xr]
                        if g in (LB - 3, LB - 2): extra += [r[0] for r in self.G.wdread(g - LB + 3)]
                        blocked = False
                    if not pend and extra: pend.append((extra.pop(0), (-1, 0)))
                    drain(1)
                    if g == self.opt("corr", 10) and cl and i % 4 == 2: self.vmem(cl.pop(0), "corr")
        self.stamp(3)
        self.cstamp(8)
        self.spin(corr_loads, [CSX + 1, CSX + 3, NMX + 1], first_issued_tag="corr", note=1)
        for ft in range(4):
            for mat in range(2):
                d = acc(mat, 0, ft)
                a(f"v_mfma_f32_16x16x1_4b_f32 v[{d}:{d+15}], v{CSX+2*mat}, v{NMX}, v[{d}:{d+15}] cbsz:2 abid:{ft}")
        self.signal(9, vt)
        a(f"s_add_u32 s{sC}, s{sE}, 4096")
        for e in range(2):
            for b in range(4):
                o = acc(0, b, 2 * e)
                T_ = [(acc(0, b, ft), acc(1, b, ft)) for ft in (2 * e, 2 * e + 1)]
                for g_, u_ in T_:
                    for i in range(4): a(f"v_max_f32 v{g_+i}, 0, v{g_+i}")
                for g_, u_ in T_:
                    if "epk" in self.opts:
                        for i in (0, 2): a(f"v_pk_mul_f32 v[{u_+i}:{u_+i+1}], v[{g_+i}:{g_+i+1}], v[{u_+i}:{u_+i+1}]")
                    else:
                        for i in range(4): a(f"v_mul_f32 v{u_+i}, v{g_+i}, v{u_+i}")
                for t, (g_, u_) in enumerate(T_):
                    for i in range(2): a(f"v_cvt_pk_bf16_f32 v{o+2*t+i}, v{u_+2*i}, v{u_+2*i+1}")
                SG = self.opt("sg", 99)
                if len(self.vm) > SG: a(f"s_waitcnt vmcnt({SG})"); self.vm = self.vm[-SG:]
                self.vmem(f"buffer_store_dwordx4 v[{o}:{o+3}], v{vHO}, {srd(S_WS)}, s{sC if e else sE} offen offset:{1024*b} sc1", "hst")
        self.stamp(4)
        self.cstamp(9)
        self.gemm2()

    def mtouch(self, vt):
        mask = self.opt("tm", 0)
        if not mask: return
        a = self.a
        for w, (sr, n) in enumerate(((S_WD, 56), (S_WG, 56), (S_WU, 56), (S_X, 64))):
            if not (mask >> w) & 1: continue
            L = self.lab("Lt")
            a(f"s_cmp_lg_u32 s{sW}, {w}", f"s_cbranch_scc1 {L}")
            a(f"s_mul_i32 s{sA}, s{sT}, {n*128}", f"v_min_u32 v{vt}, {n-1}, v1", f"v_lshlrev_b32 v{vt}, 7, v{vt}")
            a(f"buffer_load_dword v{vt+1+w}, v{vt}, {srd(sr)}, s{sA} offen")
            a(f"{L}:")

    def tlbtouch(self, vt):
        a = self.a
        L = self.lab("Lt")
        a(f"s_cmp_lg_u32 s{sW}, 0", f"s_cbranch_scc1 {L}")
        holes = [229376, 10*HS + 229376, 19*HS + 229376, 28*HS + 229376, 0x9F0000, 0xA00000, 0xDF0000, 0xFF0000]
        a(f"v_mov_b32 v{vt}, {holes[0]}")
        for i, h in enumerate(holes[1:]):
            a(f"s_mov_b32 s{sA}, {h}", f"v_writelane_b32 v{vt}, s{sA}, {i+1}")
        a(f"buffer_load_dword v{vt+6}, v{vt}, {srd(S_WS)}, 0 offen")
        a(f"buffer_load_dword v{vt+7}, off, {srd(S_OUT)}, 0")
        a(f"{L}:")

    FX_, FR_, FO_ = 222, 230, 234
    def final_pre(self):
        a = self.a
        vX, vR2, vt = self.FX_, self.FR_, self.FO_
        a(f"s_lshl_b32 s{sA}, s{sAW}, 4", f"s_lshl_b32 s{sB}, s{sI2}, 6", f"s_add_u32 s{sA}, s{sA}, s{sB}")
        a(f"v_lshrrev_b32 v{vt+1}, 3, v1", f"v_add_u32 v{vt+1}, s{sA}, v{vt+1}")
        a(f"v_mul_u32_u24 v{vt}, 896, v{vt+1}")
        a(f"s_lshl_b32 s{sA}, s{sJ2}, 7", f"s_movk_i32 s{sB}, {8*896}")
        a(f"v_and_b32 v{vR2}, 7, v1", f"v_lshlrev_b32 v{vR2}, 4, v{vR2}", f"v_add3_u32 v{vt}, v{vt}, v{vR2}, s{sA}")
        a(f"v_lshlrev_b32 v{vt+1}, 3, v{vt+1}", f"v_add_u32 v{vt+1}, {WS_R2}, v{vt+1}")
        self.vmem(f"buffer_load_dwordx4 v[{vX}:{vX+3}], v{vt}, {srd(S_X)}, 0 offen", "fx")
        self.vmem(f"buffer_load_dwordx4 v[{vX+4}:{vX+7}], v{vt}, {srd(S_X)}, s{sB} offen", "fx")
        self.r2load = [f"buffer_load_dwordx2 v[{vR2+2*h}:{vR2+2*h+1}], v{vt+1}, {srd(S_WS)}, 0 offen offset:{64*h} sc1" for h in range(2)]

    def final_addr(self, T):
        a = self.a
        vA, vB = T, T + 4
        a(f"v_lshrrev_b32 v{vA+2}, 3, v1", f"s_lshl_b32 s{sC}, s{sAW}, 4", f"v_add_u32 v{vA+3}, s{sC}, v{vA+2}")
        a(f"v_mul_u32_u24 v{vB}, 48, v{vA+3}")
        a(f"v_and_b32 v{vA+3}, 7, v1", f"v_lshlrev_b32 v{vA+3}, 1, v{vA+3}", f"v_xor_b32 v{vA+3}, v{vA+3}, v{vA+2}")
        a(f"v_lshlrev_b32 v{vA+3}, 4, v{vA+3}", f"v_lshl_add_u32 v{vA}, v{vA+2}, 8, v{vA+3}")
        a(f"s_lshl_b32 s{sC}, s{sAW}, 14", f"s_add_u32 s{sC}, s{sC}, {DBASE}")
        a(f"v_bfe_u32 v{vA+3}, v1, 2, 1", f"v_mul_u32_u24 v{vA+3}, {QB[1]}, v{vA+3}", f"v_add_u32 v{vB}, v{vB}, v{vA+3}")
        a(f"v_bfe_u32 v{vA+3}, v1, 1, 1", f"v_lshl_add_u32 v{vB}, v{vA+3}, 12, v{vB}")
        a(f"v_and_b32 v{vA+3}, 1, v1", f"v_lshl_add_u32 v{vB}, v{vA+3}, 4, v{vB}")
        a(f"v_add_u32 v{vA}, s{sC}, v{vA}", f"v_xor_b32 v{vA+1}, 16, v{vA}", f"v_xor_b32 v{vA+2}, {2048+128}, v{vA}", f"v_xor_b32 v{vA+3}, {2048+128+16}, v{vA}")

    def final(self, T):
        a = self.a
        vX, vR2, vO = self.FX_, self.FR_, self.FO_
        vA, vB = T, T + 4
        E = T + 8; Y = T + 24; P = T + 32
        self.spin(self.r2load, [vR2 + 1, vR2 + 3], first_issued_tag="fx", note=3)
        for i in range(8): a(f"v_lshlrev_b32 v{E+2*i}, 16, v{vX+i}", f"v_and_b32 v{E+2*i+1}, 0xffff0000, v{vX+i}")
        self.auxbar(7, T + 6, extra=[f"ds_read_b128 v[{Y+4*h}:{Y+4*h+3}], v{vB} offset:{8*48*h}" for h in range(2)])
        for i in range(8):
            a(f"v_lshlrev_b32 v{vX}, 16, v{Y+i}", f"v_and_b32 v{vX+1}, 0xffff0000, v{Y+i}")
            a(f"v_add_f32 v{E+2*i}, v{E+2*i}, v{vX}", f"v_add_f32 v{E+2*i+1}, v{E+2*i+1}, v{vX+1}")
        a(f"s_movk_i32 s{sB}, {8*896}")
        a("s_barrier")
        self.stamp(8)
        for h in range(2):
            for m in range(4):
                for q in range(2):
                    r = P + 32 * h + 8 * m + 4 * q
                    a(f"ds_read_b128 v[{r}:{r+3}], v{vA + 2*h + q} offset:{4096*m}")
        for h in range(2):
            p = P + 32 * h; e = E + 8 * h
            a(f"s_waitcnt lgkmcnt({12 - 8*h})")
            for i in range(0, 8, 2): a(f"v_pk_add_f32 v[{p+i}:{p+i+1}], v[{p+i}:{p+i+1}], v[{p+8+i}:{p+8+i+1}]")
            a(f"s_waitcnt lgkmcnt({8 - 8*h})")
            for i in range(0, 8, 2): a(f"v_pk_add_f32 v[{p+16+i}:{p+16+i+1}], v[{p+16+i}:{p+16+i+1}], v[{p+24+i}:{p+24+i+1}]")
            for i in range(0, 8, 2): a(f"v_pk_add_f32 v[{p+i}:{p+i+1}], v[{p+i}:{p+i+1}], v[{p+16+i}:{p+16+i+1}]")
            for i in range(0, 8, 2): a(f"v_pk_fma_f32 v[{e+i}:{e+i+1}], v[{p+i}:{p+i+1}], v[{vR2+2*h}:{vR2+2*h+1}], v[{e+i}:{e+i+1}] op_sel_hi:[1,0,1]")
            for i in range(4): a(f"v_cvt_pk_bf16_f32 v{p+16+i}, v{e+2*i}, v{e+2*i+1}")
            a(f"buffer_store_dwordx4 v[{p+16}:{p+19}], v{vO}, {srd(S_OUT)}, {'s%d' % sB if h else 0} offen" + (" sc1" if "osc1" in self.opts else "") + (" nt" if "ont" in self.opts else ""))
        self.stamp(9)
        self.write_stamps(1)
        a("s_endpgm")

    def gemm2_setup(self, vt):
        a = self.a
        vAD = 244; vD = [0, 252, 253, 254]
        sH, sDo, sM = 50, 51, 52
        a(f"v_lshrrev_b32 v{vt}, 2, v1", f"v_lshlrev_b32 v{vt}, 7, v{vt}", f"v_and_b32 v{vt+1}, 3, v1", f"v_lshl_add_u32 v{vt}, v{vt+1}, 3, v{vt}")
        a(f"v_bfe_u32 v{vt+1}, v1, 3, 2", f"v_lshl_add_u32 v{vt}, v{vt+1}, 5, v{vt}")
        a(f"v_add_u32 v{vt}, s{sM0}, v{vt}", f"s_add_u32 s{sM}, s{sM0}, {DBASE}")
        for dt in range(4): a(f"v_xor_b32 v{vAD+dt}, {32*dt}, v{vt}")
        a(f"s_mul_i32 s{sDo}, s{sW}, {448*896}", f"s_lshl_b32 s{sA}, s{sJ2}, 7", f"s_add_u32 s{sDo}, s{sDo}, s{sA}")
        a(f"s_mul_i32 s{sH}, s{sI2}, {HS}", f"s_mul_i32 s{sA}, s{sW}, {14*4096}", f"s_add_u32 s{sH}, s{sH}, s{sA}")
        G = self.G = type("G", (), {})()
        G.free = [196, 212]; G.wbuf = {}; G.hbuf = {}; G.lq = []
        def wdread(ks):
            G.wbuf[ks] = buf = G.free.pop(0); n = ks if ks < 2 else (ks - 2) % 7; win = n // 4
            return [(f"ds_read_b64_tr_b16 v[{buf+4*dt+2*t}:{buf+4*dt+2*t+1}], v{vAD+4*win+dt} offset:{16384*(n%4) + 2048*t}", ks) for dt in range(4) for t in range(2)]
        def lds(r): a(r[0]); G.lq.append(r[1])
        def need_w(ks):
            lq = G.lq
            if ks not in lq: return
            k = len(lq) - 1 - max(i for i, x in enumerate(lq) if x == ks)
            a(f"s_waitcnt lgkmcnt({min(k, 15)})")
            del lq[:len(lq) - min(k, 15)]
        def dd(ks):
            out = []
            for k in range(4):
                pre = [f"s_add_u32 m0, s{sM}, {16384*((ks-2)%7)}"] + self.ksoff(ks, 32 * 896, sDo) if k == 0 else []
                out.append((pre, f"buffer_load_dwordx4 v{vD[k]}, {srd(S_WD)}, s{sA} offen offset:{1024*k} lds", f"d{ks}"))
            return out
        def hl(ks):
            G.hbuf[ks] = buf = G.free.pop(0)
            return [(self.ksoff(ks, 4096, sH, sD) if b == 0 else [],
                     f"buffer_load_dwordx4 v[{buf+4*b}:{buf+4*b+3}], v2, {srd(S_WS)}, s{sD} offen offset:{1024*b} sc1", f"h{ks}") for b in range(4)]
        def vm(x):
            for y in x[0]: a(y)
            self.vmem(x[1], x[2])
        G.wdread, G.lds, G.need_w, G.dd, G.hl, G.vm = wdread, lds, need_w, dd, hl, vm

    def gemm2(self):
        a = self.a
        G = self.G
        wdread, lds, need_w, dd, hl, vm = G.wdread, G.lds, G.need_w, G.dd, G.hl, G.vm
        free, wbuf, hbuf, lq = G.free, G.wbuf, G.hbuf, G.lq
        ACC = 68
        vFO = 3; vFL = 255; vt = 252; sM = 52
        self.stamp2(1)
        a(f"s_lshr_b32 s{sB}, s{sI2}, 1", f"s_lshl_b32 s{sB}, s{sB}, 11", f"s_add_u32 s{sA}, s{sB}, {WS_FH}")
        a(f"v_lshrrev_b32 v{vFO}, 2, v1", f"v_min_u32 v{vFO}, 13, v{vFO}", f"v_lshl_add_u32 v{vFO}, v{vFO}, 7, s{sA}")
        for dt in range(4): a(f"v_add_u32 v{244+dt}, {DBASE}, v{244+dt}", f"v_add_u32 v{248+dt}, 0x10000, v{244+dt}")
        for k in range(1, 4): a(f"v_add_u32 v{251+k}, {k*(7168-1024)}, v0")
        free += [132, 148, 164, 180, 228, 4, 20, 36, 52]
        fl = f"buffer_load_dword v{vFL}, v{vFO}, {srd(S_WS)}, 0 offen sc1"
        self.await_(0, ACC, "same")
        NDA = self.NDA + 2
        for ks in range(2, NDA):
            for r in wdread(ks): lds(r)
        self.wait_vm("hst")
        self.signal(5, ACC)
        self.stamp2(2)
        self.await_(5, ACC, "all"); lq.clear()
        Lw = self.lab("Lg")
        a(f"s_cmp_lg_u32 s{sW}, 0", f"s_cbranch_scc1 {Lw}")
        a(f"v_mov_b32 v{vFL}, s{sTAG}", f"v_lshlrev_b32 v{ACC}, 2, v1", "s_mov_b32 exec_hi, 0")
        a(f"buffer_store_dword v{vFL}, v{ACC}, {srd(S_WS)}, s{sG} offen sc1")
        a("s_mov_b32 exec_hi, -1", f"{Lw}:")
        a("s_setprio 0")
        ND = min(self.opt("nd", 14), 7 + NDA)
        for ks in range(NDA, ND):
            for x in dd(ks): vm(x)
        self.stamp2(3)
        Lw, Lj = self.lab("Lg"), self.lab("Lg")
        vm0 = list(self.vm)
        a(f"s_cmp_lg_u32 s{sW}, 0", f"s_cbranch_scc1 {Lw}")
        self.spin([fl], [vFL], sleep=self.opt("fsl", 1), note=2)
        self.signal(6, ACC)
        a(f"s_branch {Lj}", f"{Lw}:")
        self.vm = vm0
        self.await_(6, ACC, "zero", sleep=1)
        a(f"{Lj}:")
        self.stamp2(4)
        nh = 0
        while free and nh < self.opt("h0", 4):
            for x in hl(nh): vm(x)
            nh += 1
        nw = NDA; nd = ND
        for s_ in range(14):
            self.wait_vm(f"h{s_}")
            need_w(s_)
            if s_ in (0, 7): self.stamp2({0: 5, 7: 6}[s_])
            rd = []; vq = []
            if nd < 14 and nd - 7 < nw:
                need_w(nd - 7); vq += dd(nd); nd += 1
            while nw < 14 and (nw <= s_ + 2 or (nw < 7 and not rd)) and free:
                self.wait_vm(f"d{nw}")
                rd += wdread(nw); nw += 1
            while nh < 14 and nh < s_ + self.opt("hd", 5) and len(free) > (1 if nw < 14 else 0):
                vq += hl(nh); nh += 1
            if s_ == self.opt("ys", 6):
                self.signal(4, vt); lq.append(-1)
            if s_ == 12:
                a(f"v_and_b32 v{vt}, 15, v1", f"v_lshrrev_b32 v{vt+1}, 4, v1", f"v_xor_b32 v{vt+1}, v{vt+1}, v{vt}", f"v_lshlrev_b32 v{vt+1}, 4, v{vt+1}")
                a(f"v_lshl_add_u32 v{vt}, v{vt}, 8, s{sM}", f"v_add_u32 v{vt}, v{vt}, v{vt+1}")
                for dt in range(1, 4): a(f"v_xor_b32 v{vt+dt}, {64*dt}, v{vt}")
            wb, hb = wbuf[s_], hbuf[s_]
            i = 0; nvq = len(vq)
            for lb in range(4):
                for dt in range(4):
                    d = ACC + 4 * (4 * lb + dt)
                    c = "0" if s_ == 0 else f"v[{d}:{d+3}]"
                    a(f"v_mfma_f32_16x16x32_bf16 v[{d}:{d+3}], v[{wb+4*dt}:{wb+4*dt+3}], v[{hb+4*lb}:{hb+4*lb+3}], {c}")
                    if rd: lds(rd.pop(0))
                    if s_ == 13 and i >= 8:
                        l2, d2 = divmod(i - 8, 4); r = ACC + 4 * (4 * l2 + d2)
                        a(f"ds_write_b128 v{vt+d2}, v[{r}:{r+3}] offset:{16384*l2}")
                    if vq and i % (4 if nvq <= 4 else 2) == 1: vm(vq.pop(0))
                    i += 1
            for x in vq: vm(x)
            free += [wb, hb]
        self.stamp2(7)
        for lb in range(2, 4):
            for dt in range(4):
                d = ACC + 4 * (4 * lb + dt)
                a(f"ds_write_b128 v{vt+dt}, v[{d}:{d+3}] offset:{16384*lb}")
        a("s_waitcnt lgkmcnt(0)", "s_barrier")
        self.stamp(8)
        self.write_stamps(0)
        a("s_endpgm")

    def dma_ops(self, u):
        base = slot_addr(self.uslot(u)) if u < 26 else 16384 * (u - 26)
        tag = f"u{u}"
        if u < 21 and u % 3 == 1: vo, sr, pre = voX, S_X, [f"s_add_u32 s{sA}, s{sXB}, {128 * (u // 3)}"]
        elif u < 21:              vo, sr, pre = voW, S_WG, [f"s_add_u32 s{sA}, s{sWB}, {(64 * (u // 3) + 16 * (u % 3)) * 3584}"]
        else:                     vo, sr, pre = voD, S_WD, self.ksoff(u - 19 if u < 26 else u - 26, 32 * 896, sDB)
        m0cmd = f"s_add_u32 m0, s{sM0}, {base}"
        return [(pre if k == 0 else [], f"buffer_load_dwordx4 v{vo+k}, {srd(sr)}, s{sA} offen offset:{1024*k} lds", tag, m0cmd) for k in range(4)]
    @staticmethod
    def ksoff(step, mul, sbase, dst=sA):
        return [f"s_mul_i32 s{dst}, s{sKS + step // 2}, {2*mul}", f"s_add_u32 s{dst}, s{dst}, s{sbase}"] + ([f"s_add_u32 s{dst}, s{dst}, {mul}"] if step & 1 else [])
    def emit_aux(self, x):
        a = self.a
        if isinstance(x, tuple):
            if self.m0 != x[3]: a(x[3]); self.m0 = x[3]
            for y in x[0]: a(y)
            self.vmem(x[1], x[2])
        elif x == "@prm": self.wait_vm("prm")
        else:
            if x.startswith("ds_write_addtid") and self.m0 != "sb":
                a(f"s_mov_b32 m0, s{sSB}"); self.m0 = "sb"
            a(x)

    def signal(self, k, vt):
        a = self.a
        a(f"s_lshl_b32 s{sA}, s{sAW}, 2", f"v_mov_b32 v{vt}, s{sA}", f"v_mov_b32 v{vt+1}, s{sTAG}")
        a(f"ds_write_b32 v{vt}, v{vt+1} offset:{AUXCNT + 16*k}")
    def await_(self, k, vt, who, extra=(), sleep=0):
        a = self.a
        L0, L1 = self.lab("Lab"), self.lab("Lae")
        if who == "all": a(f"v_and_b32 v{vt}, 3, v1", f"v_lshlrev_b32 v{vt}, 2, v{vt}")
        elif who == "zero": a(f"v_mov_b32 v{vt}, 0")
        else:
            a(f"s_lshl_b32 s{sA}, s{sAW}, 2")
            if who == "pair": a(f"s_xor_b32 s{sA}, s{sA}, 4")
            a(f"v_mov_b32 v{vt}, s{sA}")
        a(f"s_mov_b32 s{sSPIN}, {SPIN_MAX*10}")
        a(f"{L0}:", f"ds_read_b32 v{vt+1}, v{vt} offset:{AUXCNT + 16*k}")
        for x in extra: a(x)
        a("s_waitcnt lgkmcnt(0)", f"v_cmp_ne_u32 vcc, s{sTAG}, v{vt+1}", f"s_sub_u32 s{sSPIN}, s{sSPIN}, 1", "s_nop 3", f"s_cbranch_vccz {L1}")
        if sleep: a(f"s_sleep {sleep}")
        a(f"s_cmp_lg_u32 s{sSPIN}, 0", f"s_cbranch_scc1 {L0}")
        a(f"{L1}:")
    def auxbar(self, k, vt, pair=False, extra=()):
        self.signal(k, vt)
        self.await_(k, vt, "pair" if pair else "all", extra)

    def aux(self):
        a = self.a
        self.role = 'A'; self.m0 = None
        self.sCH_, self.sPT = sCH_, sPT = 48, 47
        self.cACC, self.cAF, self.cBF, self.vQA, self.vUA = 12, 44, 108, 172, 180
        vN, vt, UR = 181, 182, 192
        GATE = self.opt("gate", 8)
        def gate():
            if len(self.vm) > GATE:
                a(f"s_waitcnt vmcnt({GATE})"); self.vm = self.vm[-GATE:]
        def units(us, g=True):
            for u in us:
                if g: gate()
                for x in self.dma_ops(u): self.emit_aux(x)
        N0 = self.opt("n0", 3)
        TA = self.opt("ta", 99)
        def touch():
            mask = self.opt("tk", 3)
            a(f"s_and_b32 s{sB}, s{sAW}, 1", f"s_lshl1_add_u32 s{sB}, s{sT}, s{sB}")
            if mask & 1:
                a(f"s_mul_i32 s{sA}, s{sB}, {28*128}", f"v_min_u32 v236, 27, v1", f"v_lshlrev_b32 v236, 7, v236")
                self.vmem(f"buffer_load_dword v237, v236, {srd(S_WG)}, s{sA} offen", "tch")
            if mask & 2:
                a(f"s_lshl2_add_u32 s{sB}, s{sT}, s{sAW}", f"s_mul_i32 s{sA}, s{sB}, {14*128}", f"v_min_u32 v236, 13, v1", f"v_lshlrev_b32 v236, 7, v236")
                self.vmem(f"buffer_load_dword v238, v236, {srd(S_WD)}, s{sA} offen", "tch")
        for u in range(N0):
            if u == TA: touch()
            units([u], False)
        if TA == N0: touch()
        setup = self.kgen_setup()
        PRM = self.kregs[0]; kv = self.kvt
        a(f"s_load_dword s{sLD}, s[{S_P+8}:{S_P+9}], s{sF}", f"s_load_dword s{sDS}, s[{S_P+10}:{S_P+11}], s{sF}")
        for k in range(1, 4): a(f"v_add_u32 v{voD+k}, {k*(7168-1024)}, v{voD}")
        a(f"s_mul_i32 s{sA}, s{sAW}, {448*896}", f"s_lshl_b32 s{sB}, s{sJ2}, 7", f"s_add_u32 s{sDB}, s{sA}, s{sB}")
        a(f"s_lshr_b32 s{sCH_}, s{sAW}, 1", f"s_and_b32 s{sPT}, s{sAW}, 1")
        for x in setup: a(x)
        V0, B0, M0 = self.kgen_body(True, 0); V1, B1, M1 = self.kgen_body(False, 1)
        work = ["@prm"] + self.kgen_scale() + V0 + V1; nV1 = len(V1)
        SL = self.opt("sl", 28); KS = self.opt("ks", 2); PI = self.opt("pi", 0)
        fx = f"buffer_load_dword v{vt+1}, v{vt}, {srd(S_WS)}, 0 offen sc1"
        LB = self.opt("lb", 11)
        SCHED = {0: [[3,4],[5,6,7],[8],[9,10],[26],[11,12],[13,14],[27],[15,16],[17,18],[19,20],[21]],
                 1: [[3,4],[5,6,7],[8,26],[9,10],[11],[12,13],[14,27],[15,16],[17],[18,19],[20],[21]],
                 2: [[3,4],[5,6],[7,8],[9,10],[11,26],[12,13],[14,27],[15,16],[17],[18,19],[20],[21,22]],
                 3: [[3,4],[5,6],[7,8],[9,10],[26],[11,12],[13,14],[27],[15,16],[17,18],[19,20],[21]],
                }[self.opt("sch", 3)]
        IG = self.opt("ig", 0)
        done = set(range(N0))
        for n in range(LB + 1):
            if n == LB: self.vmem(fx, "fxf")
            us = [u for u in SCHED[n] if u not in done]; done.update(us)
            nsl = 0 if n < KS else SL
            sl = work[:nsl]; del work[:nsl]
            ops = []
            for u in us: ops += self.dma_ops(u)
            gap = max(1, len(sl) // (len(ops) + 1)) if ops else 0
            if "noil" in self.opts: gap = 0
            for i, x in enumerate(sl):
                while ops and (gap == 0 or i % gap == 0):
                    self.emit_aux(ops.pop(0))
                    if gap: break
                self.emit_aux(x)
            for o in ops: self.emit_aux(o)
            if n == 0 and TA == 5: touch()
            if n == PI:
                for b in range(2):
                    for k in range(4):
                        self.vmem(f"global_load_ushort v{PRM+4*b+k}, v19, s[{S_P+2*k}:{S_P+2*k+1}] offset:{128*b}", "prm")
                for x in self.ks_table(): a(x)
            if n == 0: self.stamp(1)
            if n == self.opt("xi", 4): self.final_pre()
            if n == self.opt("fw", 8):
                L = self.lab("Lfw")
                a(f"s_cmp_lg_u32 s{sAW}, 0", f"s_cbranch_scc1 {L}")
                a(f"s_lshl4_add_u32 s{sB}, s{sI}, s{sJ}", f"s_lshl_b32 s{sB}, s{sB}, 7", f"s_add_u32 s{sB}, s{sB}, {WS_FH}")
                a(f"v_mov_b32 v253, 0", f"v_lshlrev_b32 v252, 2, v1", "s_mov_b32 exec_hi, 0", f"buffer_store_dword v253, v252, {srd(S_WS)}, s{sB} offen sc1", "s_mov_b32 exec_hi, -1")
                a(f"{L}:")
            if n == 5: self.vmem(self.nonce_load(vN), "non")
            if n == 1:
                a(f"s_lshl_b32 s{sB}, s{sAW}, 10", f"s_add_u32 s{sB}, s{sB}, {WS_FX}", f"v_lshrrev_b32 v{vt}, 3, v1", f"v_lshl_add_u32 v{vt}, v{vt}, 7, s{sB}")
                a(f"v_lshrrev_b32 v{vt+2}, 4, v1", f"v_mul_u32_u24 v{vt+2}, {448*128}, v{vt+2}", f"v_bfe_u32 v{vt+3}, v1, 1, 3", f"v_lshl_add_u32 v{vt+2}, v{vt+3}, 6, v{vt+2}")
                a(f"v_and_b32 v{vt+3}, 1, v1", f"v_lshl_add_u32 v{vt+2}, v{vt+3}, 4, v{vt+2}")
                a(f"v_mul_u32_u24 v{vt+3}, {UB[1]-UB[0]}, v{vt+3}", f"v_lshrrev_b32 v{vt+4}, 1, v1", f"v_lshl_add_u32 v{vt+3}, v{vt+4}, 4, v{vt+3}")
                a(f"s_lshl_b32 s{sB}, s{sAW}, 10", f"s_add_u32 s{sB}, s{sB}, {UB[0] + 512}", f"v_add_u32 v{vt+3}, s{sB}, v{vt+3}")
                a(f"s_lshl1_add_u32 s{sE}, s{sT}, s{sCH_}")
                a(f"s_lshr_b32 s{sC}, s{sT}, 1", f"s_lshl_b32 s{sC}, s{sC}, 9", f"s_and_b32 s{sB}, s{sT}, 1", f"s_lshl_b32 s{sB}, s{sB}, 5", f"s_add_u32 s{sC}, s{sC}, s{sB}")
                a(f"s_mul_i32 s{sB}, s{sAW}, {8*448*128}", f"s_add_u32 s{sC}, s{sC}, s{sB}", f"s_add_u32 s{sC}, s{sC}, {WS_XNT}", f"s_add_u32 s{sD}, s{sC}, {4*448*128}")
            if n == 10: self.get_nonce(vN, issued="non")
            if n == LB - 2: self.wait_vm("u26")
            if n == LB - 1: self.wait_vm("u27")
            self.wait_vm(f"u{3 * (n // 2) + 1 + (n % 2)}" if n < LB else "u20")
            a("s_barrier")
            if n == 0: self.stamp(2)
        self.stamp(3)
        print("K-gen instrs left after the last barrier:", len(work), file=sys.stderr)
        self.spin([fx], [vt + 1], first_issued_tag="fxf", note=1)
        self.stamp(4)
        for k in range(2):
            self.vmem(f"buffer_load_dwordx4 v[{UR+4*k}:{UR+4*k+3}], v{vt+2}, {srd(S_WS)}, s{sD if k else sC} offen sc1", "uu")
        for x in self.r2load: self.vmem(x, "fx")
        NDA = self.NDA
        for x in work: self.emit_aux(x)
        self.conv_addr(236)
        units([u for u in (22, 23) if u not in done])
        if NDA > 3:
            self.await_(8, kv, "all", sleep=1)
            units(range(24, 21 + NDA))
        if "auxidle" in self.opts:
            self.wait_vm_all(); self.signal(0, kv); a("s_barrier"); self.write_stamps(1); a("s_endpgm"); return
        self.stamp3(1)
        a(f"s_setprio {self.opt('ap2', 1)}")
        a(f"v_lshlrev_b32 v{kv}, 2, v1", f"v_mov_b32 v{kv+1}, 0x3c00", f"ds_write_b32 v{kv}, v{kv+1} offset:31984")
        for x in B0: self.emit_aux(x)
        self.wait_vm(f"u{20 + NDA}")
        self.signal(0, kv)
        self.stamp3(2)
        for i, x in enumerate(B1):
            self.emit_aux(x)
            if i == 14: a("s_waitcnt lgkmcnt(15)")
            if i >= 14 and i % 4 == 2 and M0: a(M0.pop(0))
        assert not M0
        for k, x in enumerate(M1):
            a(f"s_waitcnt lgkmcnt({7-k})"); a(x)
        self.stamp3(3)
        self.await_(9, kv + 1, "all")
        self.image(UR, vt)
        self.conv()

    def image(self, UR, vt):
        a = self.a
        KD, BF, AF, vA = self.KD, self.kBF, self.kAF, self.kvt
        sCH_, sPT = self.sCH_, self.sPT
        def by_part(f):
            L1, L2 = self.lab("Lp"), self.lab("Lp")
            a(f"s_cmp_eq_u32 s{sPT}, 0", f"s_cbranch_scc0 {L1}")
            f(0); a(f"s_branch {L2}", f"{L1}:"); f(1); a(f"{L2}:")
        keep = {0: range(0, 12), 1: range(12, 16)}
        a(f"s_add_u32 s{sC}, s{sM0}, {XCH}", f"v_lshl_add_u32 v{vA}, v1, 4, s{sC}")
        for r in range(16): a(f"v_mul_f32 v{KD+r}, v{KD+r}, v18")
        def f(pt):
            for r in list(keep[1 - pt])[::4]: a(f"ds_write_b128 v{vA}, v[{KD+r}:{KD+r+3}] offset:{256*r}")
        by_part(f)
        self.auxbar(1, vA + 1)
        self.stamp3(4)
        a(f"v_xor_b32 v{vA}, 0x1000, v{vA}")
        O = AF
        blocks = [[KD + i for i in range(9)], [KD + 9] * 3 + [KD + 10] * 3 + [KD + 11] * 3]
        for k, r0 in enumerate((KD + 12, KD + 14)):
            blocks.append([r0] * 4 + [BF + k] + [r0 + 1] * 4)
        a(f"s_mul_i32 s{sD}, s{sCH_}, {QB[1]}")
        def f(pt):
            K = list(keep[pt])
            for r in K[::4]: a(f"ds_read_b128 v[{BF+16+r}:{BF+16+r+3}], v{vA} offset:{256*r}")
            a(f"v_lshl_add_u32 v{vA}, v1, 5, s{sD}")
            if pt == 0:
                a(f"v_cmp_eq_u32 vcc, 0, v1", f"v_mov_b32 v{vA+2}, s{sDS}", f"v_cndmask_b32 v{vA+2}, 0, v{vA+2}, vcc", f"v_add_f32 v{KD}, v{KD}, v{vA+2}")
            else:
                a(f"v_and_b32 v{vA+1}, 1, v1", f"v_cmp_eq_u32 vcc, 1, v{vA+1}")
            a("s_waitcnt lgkmcnt(0)")
            for r in K: a(f"v_add_f32 v{KD+r}, v{KD+r}, v{BF+16+r}")
            if pt:
                for k, r0 in enumerate((KD + 12, KD + 14)): a(f"v_cndmask_b32 v{BF+k}, v{r0}, v{r0+1}, vcc")
            for bi in (2 * pt, 2 * pt + 1):
                v = blocks[bi]
                for e_ in range(8): a(f"v_cvt_pk_bf16_f32 v{O+8*bi+e_}, v{v[e_+1]}, v{v[e_]}")
                for h in range(2): a(f"ds_write_b128 v{vA}, v[{O+8*bi+4*h}:{O+8*bi+4*h+3}] offset:{64 + 2048*bi + 16*h}")
            if pt == 0:
                a(f"v_readfirstlane_b32 s{sA}, v{O}")
                a(f"s_lshr_b32 s{sA}, s{sA}, 16", f"v_mov_b32 v{vA+1}, s{sA}", f"v_and_b32 v{vA+2}, 15, v1", f"v_cmp_eq_u32 vcc, 15, v{vA+2}")
                a(f"v_cndmask_b32 v{vA+1}, 0, v{vA+1}, vcc", f"v_lshl_add_u32 v{vA+2}, v{vA+2}, 2, s{sD}")
                a(f"ds_write_b32 v{vA+2}, v{vA+1}")
            else:
                a(f"s_mul_i32 s{sD}, s{sCH_}, {UB[1]-UB[0]}", f"v_lshl_add_u32 v{vA+2}, v1, 3, s{sD}")
                a(f"v_mov_b32 v{O}, 0", f"v_mov_b32 v{O+1}, 0")
                a(f"ds_write_b64 v{vA+2}, v[{O}:{O+1}] offset:{UB[0]}")
        by_part(f)
        self.stamp3(5)
        self.wait_vm("uu")
        self.stamp3(6)
        for k in range(2): a(f"ds_write_b128 v{vt+3}, v[{UR+4*k}:{UR+4*k+3}] offset:{512*k}")
        self.auxbar(2, vA + 1)
        self.stamp3(7)
        for r in self.areads(0)[:2] + self.breads(0) + self.areads(0)[2:]: a(r)

    def conv_addr(self, vt):
        a = self.a
        sCH_, sPT, vQA, vUA = self.sCH_, self.sPT, self.vQA, self.vUA
        a(f"v_and_b32 v{vt+1}, 15, v1", f"v_lshrrev_b32 v{vt+2}, 4, v1")
        a(f"v_lshlrev_b32 v{vt+3}, 3, v{vt+2}", f"v_sub_u32 v{vt+3}, v{vt+1}, v{vt+3}")
        a(f"s_mul_i32 s{sC}, s{sCH_}, {QB[1]}", f"s_lshl_b32 s{sD}, s{sPT}, 9", f"s_add_u32 s{sC}, s{sC}, s{sD}", f"s_add_u32 s{sC}, s{sC}, 100")
        a(f"v_lshl_add_u32 v{vQA}, v{vt+3}, 2, s{sC}")
        for q in range(1, 8): a(f"v_add_u32 v{vQA+q}, {1024*q}, v{vQA}")
        a(f"s_mul_i32 s{sC}, s{sCH_}, {UB[1]-UB[0]}")
        a(f"s_lshl_b32 s{sD}, s{sPT}, 8", f"s_sub_u32 s{sC}, s{sC}, s{sD}", f"s_add_u32 s{sC}, s{sC}, {UB[0] + 480 - 192}")
        a(f"v_lshlrev_b32 v{vt+3}, 5, v{vt+1}", f"v_lshl_add_u32 v{vt+3}, v{vt+2}, 4, v{vt+3}", f"v_add_u32 v{vUA}, s{sC}, v{vt+3}")
    def areads(self, rr):
        buf = self.cAF + 32 * (rr & 1); R = []
        for q in range(8):
            R.append(f"ds_read2_b32 v[{buf+4*q}:{buf+4*q+1}], v{self.vQA+q} offset0:{32*rr+6} offset1:{32*rr+4}")
            R.append(f"ds_read2_b32 v[{buf+4*q+2}:{buf+4*q+3}], v{self.vQA+q} offset0:{32*rr+2} offset1:{32*rr}")
        return R
    def breads(self, rr):
        buf = self.cBF + 32 * (rr & 1)
        return [f"ds_read_b128 v[{buf+4*c}:{buf+4*c+3}], v{self.vUA} offset:{512*c + 192 - 64*rr}" for c in range(8)]

    def conv(self):
        a = self.a
        vt = 5
        ACC, AF, BF = self.cACC, self.cAF, self.cBF
        sCH_, sPT = self.sCH_, self.sPT
        self.stamp(5)
        for rr in range(4):
            a("s_waitcnt lgkmcnt(0)")
            pend = (self.breads(rr + 1) + self.areads(rr + 1)) if rr < 3 else []
            ab, bb = AF + 32 * (rr & 1), BF + 32 * (rr & 1)
            for q in range(8):
                for c in range(q, 8):
                    d = ACC + 4 * c
                    cc = "0" if (rr == 0 and q == 0) else f"v[{d}:{d+3}]"
                    a(f"v_mfma_f32_16x16x32_bf16 v[{d}:{d+3}], v[{ab+4*q}:{ab+4*q+3}], v[{bb+4*(c-q)}:{bb+4*(c-q)+3}], {cc}")
                    if pend: a(pend.pop(0))
        self.stamp(6)
        KP = AF; RX = AF + 16
        a(f"s_lshl_b32 s{sA}, s{sAW}, 12", f"s_add_u32 s{sA}, s{sA}, {XCH}", f"v_lshl_add_u32 v{vt}, v1, 4, s{sA}")
        a("s_nop 3")
        L1, L2 = self.lab("Lx"), self.lab("Lx")
        a(f"s_cmp_eq_u32 s{sPT}, 0", f"s_cbranch_scc0 {L1}")
        for pt in range(2):
            if pt: a(f"{L1}:")
            for t in range(4): a(f"ds_write_b128 v{vt}, v[{ACC+16*(1-pt)+4*t}:{ACC+16*(1-pt)+4*t+3}] offset:{1024*t}")
            for i in range(0, 16, 2): a(f"v_mov_b64 v[{KP+i}:{KP+i+1}], v[{ACC+16*pt+i}:{ACC+16*pt+i+1}]")
            if not pt: a(f"s_branch {L2}")
        a(f"{L2}:")
        a(f"v_bfe_u32 v{vt+3}, v1, 2, 2", f"v_mul_u32_u24 v{vt+3}, {448*256}, v{vt+3}", f"v_and_b32 v{vt+4}, 3, v1", f"v_lshl_add_u32 v{vt+3}, v{vt+4}, 4, v{vt+3}")
        a(f"v_and_b32 v{vt+4}, 48, v1", f"v_lshl_add_u32 v{vt+3}, v{vt+4}, 2, v{vt+3}")
        a(f"s_mul_i32 s{sC}, s{sPT}, {16*448*256}", f"s_lshl_b32 s{sB}, s{sE}, 8", f"s_add_u32 s{sC}, s{sC}, s{sB}", f"s_add_u32 s{sC}, s{sC}, {WS_YT}")
        a(f"v_xor_b32 v{vt}, 0x1000, v{vt}")
        self.auxbar(3, vt + 1, pair=True, extra=[f"ds_read_b128 v[{RX+4*t}:{RX+4*t+3}], v{vt} offset:{1024*t}" for t in range(4)])
        for t in range(4):
            k = KP + 4 * t
            for i in range(4): a(f"v_add_f32 v{k+i}, v{k+i}, v{RX+4*t+i}")
            a(f"v_cvt_pk_bf16_f32 v{k}, v{k}, v{k+1}", f"v_cvt_pk_bf16_f32 v{k+2}, v{k+2}, v{k+3}", f"v_mov_b32 v{k+1}, s{sTAG}", f"v_mov_b32 v{k+3}, s{sTAG}")
            self.vmem(f"buffer_store_dwordx4 v[{k}:{k+3}], v{vt+3}, {srd(S_WS)}, s{sC} offen sc1", "yst")
            if t < 3: a(f"s_add_u32 s{sC}, s{sC}, {4*448*256}")
        a("s_setprio 0")
        self.stamp(7)
        if self.stage < 4:
            self.write_stamps(1)
            a("s_endpgm"); return
        YR = 12
        self.final_addr(76)
        a(f"s_lshl_b32 s{sB}, s{sJ2}, 6", f"s_lshl_b32 s{sC}, s{sAW}, 4", f"s_add_u32 s{sB}, s{sB}, s{sC}")
        a(f"s_mul_i32 s{sA}, s{sI2}, 448", f"s_add_u32 s{sA}, s{sA}, s{sB}", f"s_lshl_b32 s{sA}, s{sA}, 8", f"s_add_u32 s{sA}, s{sA}, {WS_YT}")
        a(f"v_lshlrev_b32 v{vt}, 4, v1")
        a(f"v_lshrrev_b32 v{vt+1}, 4, v1", f"v_mul_u32_u24 v{vt+1}, 144, v{vt+1}", f"v_and_b32 v{vt+2}, 3, v1", f"v_lshl_add_u32 v{vt+1}, v{vt+2}, 5, v{vt+1}")
        a(f"v_bfe_u32 v{vt+3}, v1, 2, 2", f"v_lshl_add_u32 v{vt+1}, v{vt+3}, 3, v{vt+1}")
        a(f"s_mul_i32 s{sC}, s{sCH_}, {QB[1]}", f"s_lshl_b32 s{sB}, s{sPT}, 12", f"s_add_u32 s{sC}, s{sC}, s{sB}", f"v_add_u32 v{vt+1}, s{sC}, v{vt+1}")
        a(f"v_mul_u32_u24 v{vt+3}, 144, v{vt+3}", f"v_lshl_add_u32 v{vt+3}, v{vt+2}, 3, v{vt+3}", f"v_and_b32 v{vt+2}, 48, v1", f"v_lshl_add_u32 v{vt+3}, v{vt+2}, 1, v{vt+3}")
        a(f"v_add_u32 v{vt+3}, s{sC}, v{vt+3}", f"v_mul_u32_u24 v{vt+4}, 48, v1", f"v_add_u32 v{vt+4}, s{sC}, v{vt+4}")
        a(f"v_add_u32 v{vt+2}, 1152, v{vt+1}")
        a(f"s_mov_b32 s{sD}, s{sA}")
        self.await_(4, YR, "same", sleep=4)
        loads = [f"buffer_load_dwordx4 v[{YR+4*k}:{YR+4*k+3}], v{vt}, {srd(S_WS)}, s{sD} offen offset:{1024*k} sc1" for k in range(4)]
        self.spin(loads, [YR + 2 * i + 1 for i in range(8)], sleep=self.opt("ysp", 4), note=2)
        self.vm = ["fx"]
        for k in range(4): a(f"ds_write2_b32 v{vt+1}, v{YR+4*k}, v{YR+4*k+2} offset0:{144*k} offset1:{144*k+1}" if 144 * k + 1 < 256 else
                             f"ds_write2_b32 v{vt+2}, v{YR+4*k}, v{YR+4*k+2} offset0:{144*(k-2)} offset1:{144*(k-2)+1}")
        for t in range(4): a(f"ds_read_b64_tr_b16 v[{YR+16+2*t}:{YR+17+2*t}], v{vt+3} offset:{4*144*t}")
        a("s_waitcnt lgkmcnt(0)")
        for h in range(2): a(f"ds_write_b128 v{vt+4}, v[{YR+16+4*h}:{YR+19+4*h}] offset:{16*h}")
        self.final(76)

    def build(self):
        a = self.a
        a(".text", f".globl {NAME}_kernel", ".p2align 8", f".type {NAME}_kernel,@function", f"{NAME}_kernel:")
        self.prologue()
        self.aux()
        self.mwave()
        self.helper()
        a("L_exit:", "s_endpgm")
        added = a.fix_hazards()
        errs = a.check_waits()
        for e in errs[:5]: print("WAITERR:", e, file=sys.stderr)
        if errs and not (self.opts & {"nokg", "nod", "nolds", "lax"}): raise SystemExit("wait errors")
        mv, ma, ms = a.max_regs()
        print(f"instrs {sum(1 for c in a.ins if c.kind not in ('dir','label'))} nops added {added} maxv {mv} maxs {ms}", file=sys.stderr)
        head = f"; fused LN + S4D conv + ReGLU FFN\n; @launch grid=(256,1,1) block=(512,1,1) lds=163840\n.amdgcn_target \"amdgcn-amd-amdhsa--gfx950\"\n"
        return head + a.text() + kernel_desc(NAME + "_kernel", 256, 256)

if __name__ == "__main__":
    import argparse
    ap = argparse.ArgumentParser()
    ap.add_argument("--stage", type=int, default=9); ap.add_argument("--stamps", action="store_true"); ap.add_argument("-o", default="k.s"); ap.add_argument("--opts", default="")
    x = ap.parse_args()
    open(x.o, "w").write(Gen(x.stage, x.stamps, [o for o in x.opts.split(',') if o]).build())
```

```python
import sys, struct
import numpy as np
from asmlib import Asm, kernel_desc
NAME = "parallel_sum__ssm_conv_s4d__glu_gated_reglu__prompt"

HS     = 225 * 1024
WS_H   = 0x0000000
WS_XNT = 0x0800000
WS_YT  = 0x0A00400
WS_CS  = 0x0E00000
WS_NM  = 0x0E10000
WS_R2  = 0x0E20000
WS_FH  = 0x0E30000
WS_FX  = 0x0E58000
WS_ST  = 0xF000000
RING = 32768
def slot_addr(s): return RING + 16384 * s
DBASE = RING
QB = [0, 8320]
UB = [16640, 21248]
AUXCNT = 32256
XCH = slot_addr(7)
SPIN_MAX = 20000

def f32(x): return "0x%08x" % struct.unpack("<I", struct.pack("<f", x))[0]
LOG2E = 1.4426950408889634

S_X, S_WG, S_WU, S_WD, S_WS, S_OUT, S_DBG = 4, 8, 12, 16, 20, 24, 28
def srd(b): return f"s[{b}:{b+3}]"
S_P = 32
sCH = 48
sXB, sWB, sDB, sM0, sAW, sSB = 55, 56, 57, 58, 59, 46
sW, sI, sJ, sI2, sJ2, sT, sST, sTAG, sSPIN = 60, 61, 62, 63, 64, 65, 44, 67, 68
sF, sA, sB, sC, sD, sE, sG = 69, 70, 71, 72, 73, 74, 75
sEX = 76
sLD, sDS = 78, 79
sKS = 32
sQI = 53
S_STAMP = 80
voX, voW, voD = 240, 244, 248

class Gen:
    def __init__(self, stage=9, stamps=False, opts=()):
        self.a = Asm(); self.stage = stage; self.stamps = stamps; self.opts = set(opts)
        self.nlab = 0; self.role = ''
        self.NDA = self.opt('nda', 3)
        self.vm = []
    def opt(self, name, default):
        for o in self.opts:
            if o.startswith(name + "="): return int(o[len(name) + 1:])
        return default
    def lab(self, p="L"):
        self.nlab += 1; return f"{p}_{self.nlab}"
    def cstamp(self, k):
        if self.stamps and "cyc" in self.opts: self.a(f"s_memtime s[{S_STAMP+2*k}:{S_STAMP+2*k+1}]")
    def stamp2(self, k):
        if self.stamps and "g2" in self.opts: self.a(f"s_memrealtime s[{S_STAMP+2*k}:{S_STAMP+2*k+1}]")
    def stamp3(self, k):
        if self.stamps and "g3" in self.opts: self.a(f"s_memrealtime s[{S_STAMP+2*k}:{S_STAMP+2*k+1}]")
    def stampk(self, k):
        if self.stamps: self.a(f"s_memrealtime s[{S_STAMP+2*k}:{S_STAMP+2*k+1}]")
    def stamp(self, k):
        if "k1" in self.opts and self.role in "MA" and self.role and 3 <= k <= 7: return
        if "spins" in self.opts: return
        if "g3" in self.opts and self.role == "A" and 1 <= k <= 7: return
        if "g2" in self.opts and self.role == "M" and 1 <= k <= 7: return
        if self.stamps and "cyc" not in self.opts: self.a(f"s_memrealtime s[{S_STAMP+2*k}:{S_STAMP+2*k+1}]")
    def vmem(self, text, tag=None):
        self.a(text); self.vm.append(tag)
    def wait_vm(self, tag):
        idx = [i for i, t in enumerate(self.vm) if t == tag]
        if not idx: return
        n = len(self.vm) - 1 - idx[-1]
        assert n <= 63
        self.a(f"s_waitcnt vmcnt({n})")
        self.vm = self.vm[idx[-1] + 1:]
    def wait_vm_all(self):
        self.a("s_waitcnt vmcnt(0)"); self.vm = []

    def spin(self, loads, checks, first_issued_tag=None, sleep=2, note=None):
        a = self.a
        L0, L1 = self.lab("Lspin"), self.lab("Lok")
        if "spins" in self.opts: a(f"s_mov_b32 s{sSPIN}, {SPIN_MAX+1}")
        if first_issued_tag is not None:
            self.wait_vm(first_issued_tag)
            self._check(checks)
            a(f"s_cbranch_vccz {L1}")
        a(f"s_mov_b32 s{sSPIN}, {SPIN_MAX}")
        a(f"{L0}:")
        for l in loads: a(l)
        a("s_waitcnt vmcnt(0)")
        self._check(checks)
        a(f"s_cbranch_vccz {L1}")
        if sleep: a(f"s_sleep {sleep}")
        a(f"s_sub_u32 s{sSPIN}, s{sSPIN}, 1", f"s_cmp_lg_u32 s{sSPIN}, 0", f"s_cbranch_scc1 {L0}")
        a(f"{L1}:")
        if "spins" in self.opts and note is not None: a(f"s_sub_u32 s{S_STAMP+2*note}, {SPIN_MAX+2}, s{sSPIN}")
        if first_issued_tag is None: self.vm = []
    def _check(self, checks):
        a = self.a
        a(f"v_cmp_ne_u32 vcc, s{sTAG}, v{checks[0]}")
        for c in checks[1:]:
            a(f"v_cmp_ne_u32 s[{sEX}:{sEX+1}], s{sTAG}, v{c}")
            a(f"s_or_b64 vcc, vcc, s[{sEX}:{sEX+1}]")
        a("s_nop 4" if len(checks) == 1 else "s_nop 0")
    def nonce_load(self, vt): return f"buffer_load_dword v{vt}, off, {srd(S_DBG)}, 0 sc1"
    def get_nonce(self, vt, issued=None):
        a = self.a
        L0, L1, L2 = self.lab("Lnon"), self.lab("Lnok"), self.lab("Lnx")
        def test():
            a(f"v_readfirstlane_b32 s{sTAG}, v{vt}", "s_nop 0")
            a(f"s_sub_u32 s{sEX}, s{sST}, s{sTAG}", f"s_cmp_lt_i32 s{sEX}, s{sEX+1}", f"s_cselect_b32 s{sEX}, s{sTAG}, 0")
            a(f"s_cmp_lg_u32 s{sEX}, 0", f"s_cbranch_scc1 {L1}")
        a(f"s_movk_i32 s{sEX+1}, 600")
        if issued is not None:
            self.wait_vm(issued); test()
        a(f"s_mov_b32 s{sSPIN}, {SPIN_MAX}")
        a(f"{L0}:")
        a(self.nonce_load(vt), "s_waitcnt vmcnt(0)")
        test()
        a(f"s_sub_u32 s{sSPIN}, s{sSPIN}, 1", f"s_cmp_lt_u32 s{sSPIN}, {SPIN_MAX-100}", f"s_cselect_b32 s{sEX+1}, 0x7fffffff, s{sEX+1}")
        a(f"s_cmp_lg_u32 s{sSPIN}, 0", f"s_cbranch_scc1 {L0}")
        a(f"{L1}:")
        if issued is None: self.vm = []
    def write_stamps(self, which):
        if not self.stamps: return
        a = self.a
        L = self.lab("Lst")
        a("s_waitcnt lgkmcnt(0)")
        a(f"s_cmp_lg_u32 s{sW}, {4*which}", f"s_cbranch_scc1 {L}")
        a(f"s_lshl_b32 s{sA}, s2, 8", f"s_add_u32 s{sA}, s{sA}, {WS_ST + 128*which}")
        a(f"s_mov_b64 s[{sEX}:{sEX+1}], exec", "s_mov_b64 exec, 1")
        for k in range(10):
            a(f"v_mov_b32 v2, s{S_STAMP+2*k}", f"v_mov_b32 v3, s{S_STAMP+2*k+1}")
            a(f"buffer_store_dwordx2 v[2:3], off, {srd(S_WS)}, s{sA} offset:{8*k}")
        a(f"s_mov_b64 exec, s[{sEX}:{sEX+1}]")
        a(f"{L}:")

    def prologue(self):
        a = self.a
        for (r, off) in ((S_X, 0), (S_WG, 64), (S_WU, 72)):
            a(f"s_load_dwordx2 s[{r}:{r+1}], s[0:1], {off}")
        a(f"s_load_dwordx8 s[{S_P}:{S_P+7}], s[0:1], 8", f"s_load_dwordx4 s[{S_P+8}:{S_P+11}], s[0:1], 40")
        a("s_cmp_ge_u32 s2, 256", "s_cbranch_scc1 L_exit")
        if "nopf" not in self.opts:
            L = self.lab("Lpc"); L2 = self.lab("Lpc")
            a(f"s_getpc_b64 s[{sA}:{sB}]", f"{L}:")
            a("v_lshlrev_b32 v254, 7, v0", f"v_cmp_gt_u32 vcc, L_exit-{L}, v254")
            a(f"s_and_saveexec_b64 s[{sEX}:{sEX+1}], vcc", f"s_cbranch_execz {L2}")
            a(f"global_load_dword v255, v254, s[{sA}:{sB}]")
            a(f"{L2}:", f"s_mov_b64 exec, s[{sEX}:{sEX+1}]")
        for (r, off) in ((S_WD, 80), (S_OUT, 88), (S_DBG, 96), (S_WS, 104)):
            a(f"s_load_dwordx2 s[{r}:{r+1}], s[0:1], {off}")
        a(f"s_memrealtime s[{sST}:{sST+1}]")
        if self.stamps:
            for k in range(1, 10): a(f"s_mov_b64 s[{S_STAMP+2*k}:{S_STAMP+2*k+1}], 0")
        self.stamp(0)
        vt = 5
        a(f"v_lshrrev_b32 v{vt}, 6, v0", "v_and_b32 v1, 63, v0")
        a(f"v_readfirstlane_b32 s{sW}, v{vt}")
        a(f"s_mov_b32 s{S_X+2}, 1835008", f"s_mov_b32 s{S_X+3}, 0x20000", f"s_mov_b32 s{S_WG+2}, 1605632", f"s_mov_b32 s{S_WG+3}, 0x20000")
        a(f"s_mov_b64 s[{S_WU+2}:{S_WU+3}], s[{S_WG+2}:{S_WG+3}]", f"s_mov_b64 s[{S_WD+2}:{S_WD+3}], s[{S_WG+2}:{S_WG+3}]", f"s_mov_b64 s[{S_OUT+2}:{S_OUT+3}], s[{S_X+2}:{S_X+3}]")
        a(f"s_mov_b32 s{S_WS+2}, 0x10000000", f"s_mov_b32 s{S_WS+3}, s{S_X+3}", f"s_movk_i32 s{S_DBG+2}, 256", f"s_mov_b32 s{S_DBG+3}, s{S_X+3}")
        a(f"s_and_b32 s{sA}, s2, 7", f"s_lshr_b32 s{sB}, s2, 3")
        a("s_cmp_lt_u32 s2, 32", "s_cbranch_scc1 L_helper")
        a(f"s_sub_u32 s{sB}, s{sB}, 4")
        a(f"s_mul_i32 s{sC}, s{sB}, 37", f"s_lshr_b32 s{sC}, s{sC}, 8")
        a(f"s_mul_i32 s{sD}, s{sC}, 7", f"s_sub_u32 s{sJ2}, s{sB}, s{sD}")
        a(f"s_lshr_b32 s{sD}, s{sA}, 1", f"s_lshl2_add_u32 s{sI}, s{sD}, s{sC}")
        a(f"s_and_b32 s{sD}, s{sA}, 1", f"s_mul_i32 s{sD}, s{sD}, 7", f"s_add_u32 s{sJ}, s{sD}, s{sJ2}")
        a(f"s_lshl2_add_u32 s{sI2}, s{sA}, s{sC}")
        a(f"s_sub_u32 s{sT}, s2, 32")
        a(f"s_mov_b32 s{sQI}, s{sC}", f"s_and_b32 s{sAW}, s{sW}, 3")
        a(f"s_lshl_b32 s{sD}, s{sT}, 10", f"s_lshl_b32 s{sE}, s{sAW}, 8", f"s_add_u32 s{sD}, s{sD}, s{sE}")
        a(f"v_lshl_add_u32 v19, v1, 1, s{sD}", f"s_lshl_b32 s{sF}, s{sT}, 2")
        a(f"v_lshrrev_b32 v{vt}, 3, v1", f"v_and_b32 v{vt+1}, 7, v1", f"v_lshrrev_b32 v{vt+2}, 4, v1")
        a(f"v_mul_u32_u24 v15, 896, v{vt}")
        a(f"v_lshlrev_b32 v14, 1, v{vt+2}", f"v_xor_b32 v14, v14, v{vt+1}", f"v_lshl_add_u32 v{voD}, v14, 4, v15")
        a(f"s_lshl_b32 s{sM0}, s{sAW}, 12")
        a(f"s_cmp_lt_u32 s{sW}, 4", "s_cbranch_scc1 L_m")
        a(f"v_xor_b32 v14, v{vt+2}, v{vt+1}", f"v_lshl_add_u32 v{voX}, v14, 4, v15")
        a(f"v_xor_b32 v14, 64, v{voX}", f"v_add_u32 v{voX+1}, {7168-1024}, v14", f"v_add_u32 v{voX+2}, {2*(7168-1024)}, v{voX}", f"v_add_u32 v{voX+3}, {3*(7168-1024)}, v14")
        a(f"v_lshlrev_b32 v14, 1, v{vt+2}", f"v_and_b32 v15, 15, v1", f"v_xor_b32 v14, v14, v15")
        a(f"v_mul_u32_u24 v15, 3584, v{vt+2}", f"v_lshl_add_u32 v{voW}, v14, 4, v15")
        a(f"v_xor_b32 v14, 0x80, v{voW}", f"v_add_u32 v{voW+1}, {14336-1024}, v{voW}", f"v_add_u32 v{voW+2}, {2*(14336-1024)}, v14", f"v_add_u32 v{voW+3}, {3*(14336-1024)}, v14")
        a(f"s_lshl2_add_u32 s{sA}, s{sI}, s{sAW}", f"s_mul_i32 s{sXB}, s{sA}, {32*896}")
        a(f"s_and_b32 s{sA}, s{sAW}, 1", f"s_mul_i32 s{sA}, s{sA}, {16*3584}", f"s_lshl_b32 s{sB}, s{sJ}, 8", f"s_add_u32 s{sWB}, s{sA}, s{sB}")
        a(f"s_cmp_ge_u32 s{sAW}, 2")
        a("s_waitcnt lgkmcnt(0)")
        self.vm = ["pf"]
        a(f"s_cselect_b32 s{S_WG}, s{S_WU}, s{S_WG}", f"s_cselect_b32 s{S_WG+1}, s{S_WU+1}, s{S_WG+1}")

    def ks_table(self):
        L = []
        for p in range(7):
            lo, mod = (0, 4) if p < 4 else (4, 3)
            d = sKS + p
            if self.opt("rot2", 1):
                L += [f"s_add_u32 s{d}, s{sQI}, {p - lo}", f"s_cmp_ge_u32 s{d}, {mod}", f"s_cselect_b32 s{sB}, {mod}, 0", f"s_sub_u32 s{d}, s{d}, s{sB}"]
                L += [f"s_add_u32 s{d}, s{d}, s{sJ2}"]
                if lo: L += [f"s_add_u32 s{d}, s{d}, {lo}"]
                L += [f"s_cmp_ge_u32 s{d}, 7", f"s_cselect_b32 s{sB}, 7, 0", f"s_sub_u32 s{d}, s{d}, s{sB}"]
            else: L += [f"s_mov_b32 s{d}, {p}"]
        return L

    def colsum_partial(self, regs, C, vt, area):
        a = self.a
        for n, R in enumerate(regs):
            for i in range(4):
                if n == 0: a(f"v_lshlrev_b32 v{C+2*i}, 16, v{R+i}", f"v_and_b32 v{C+2*i+1}, 0xffff0000, v{R+i}")
                else: a(f"v_dot2c_f32_bf16 v{C+2*i}, s{self.sLO}, v{R+i}", f"v_dot2c_f32_bf16 v{C+2*i+1}, s{self.sHI}, v{R+i}")
        for i in range(4): a(f"v_permlane32_swap_b32 v{C+i}, v{C+i+4}")
        for i in range(4): a(f"v_add_f32 v{C+i}, v{C+i}, v{C+i+4}")
        for i in range(2): a(f"v_permlane16_swap_b32 v{C+i}, v{C+i+2}")
        for i in range(2): a(f"v_add_f32 v{C+i}, v{C+i}, v{C+i+2}")
        a(f"ds_write_b64 v{self.hCSW}, v[{C}:{C+1}] offset:{area}")
    def colsum_final(self, area, C, vt):
        a = self.a
        L = self.lab("Lcs")
        a(f"s_cmp_ge_u32 s{sW}, 2", f"s_cbranch_scc1 {L}")
        a(f"v_lshlrev_b32 v{vt}, 2, v0")
        for w in range(8): a(f"ds_read_b32 v{C+w}, v{vt} offset:{area + 512*w}")
        a(f"v_lshlrev_b32 v{vt}, 4, v0")
        a(f"s_add_u32 s{sA}, s{sJ}, {WS_CS}")
        a("s_waitcnt lgkmcnt(0)")
        for (x, y) in ((0,1),(2,3),(4,5),(6,7),(0,2),(4,6),(0,4)): a(f"v_add_f32 v{C+x}, v{C+x}, v{C+y}")
        a(f"v_mov_b32 v{C+1}, s{sTAG}")
        a(f"buffer_store_dwordx2 v[{C}:{C+1}], v{vt}, {srd(S_WS)}, s{sA} offen sc1")
        a(f"{L}:")

    def helper(self):
        a = self.a
        self.vm = []; self.role = 'H'
        a("L_helper:")
        WA, XR, WB, C, XF = 4, 32, 60, 88, 100
        vt = 96; vR, vP = 160, 161; vW, vX = 162, 163; self.hCSW = 164
        vS, vM, vMB, vQ, vRr = 165, 166, 172, 168, 170
        self.sLO, self.sHI, sONE = 48, 49, 50
        TS = 912; CSA = 61440
        a(f"v_lshrrev_b32 v{vR}, 3, v0", f"v_and_b32 v{vP}, 7, v0")
        a(f"v_lshlrev_b32 v{vt}, 4, v{vP}")
        a(f"v_lshrrev_b32 v{vW}, 4, v0", f"v_mul_u32_u24 v{vW}, 3584, v{vW}", f"v_and_b32 v{vt+1}, 15, v1", f"v_lshl_add_u32 v{vW}, v{vt+1}, 4, v{vW}")
        a(f"v_mul_u32_u24 v{vX}, 896, v{vR}", f"v_add_u32 v{vX}, v{vX}, v{vt}")
        a(f"s_lshl2_add_u32 s{sI}, s{sA}, s{sB}")
        a(f"s_lshr_b32 s{sC}, s{sA}, 1", f"s_lshl2_add_u32 s{sT}, s{sC}, s{sB}")
        a(f"s_and_b32 s{sA}, s{sA}, 1", f"s_mul_i32 s{sA}, s{sA}, 7", f"s_add_u32 s{sA}, s{sA}, s{sT}")
        a(f"s_cmp_ge_u32 s{sT}, 7", f"s_cselect_b32 s{sB}, 7, 0", f"s_cselect_b32 s{sJ}, 8, 0", f"s_sub_u32 s{sB}, s{sA}, s{sB}", f"s_lshl_b32 s{sB}, s{sB}, 8")
        a(f"s_lshl3_add_u32 s{sJ}, s{sB}, s{sJ}")
        a(f"s_cmp_ge_u32 s{sT}, 14", f"s_cselect_b32 s{S_WG+2}, 0, s{S_WG+2}", f"s_cselect_b32 s{sJ}, 0x8000, s{sJ}")
        a(f"s_mul_i32 s{sC}, s{sI}, {64*896}")
        a("s_waitcnt lgkmcnt(0)")
        Ln = self.lab("Lnn")
        a(f"s_or_b32 s{sD}, s2, s{sW}", f"s_cmp_lg_u32 s{sD}, 0", f"s_cbranch_scc1 {Ln}")
        a(f"s_or_b32 s{sA}, s{sST}, 1", f"v_mov_b32 v2, s{sA}")
        a("s_mov_b64 exec, 1", f"buffer_store_dword v2, off, {srd(S_DBG)}, 0 sc1", "s_mov_b64 exec, -1")
        a(f"{Ln}:")
        a(f"s_cmp_ge_u32 s{sT}, 7", f"s_cselect_b32 s{S_WG}, s{S_WU}, s{S_WG}", f"s_cselect_b32 s{S_WG+1}, s{S_WU+1}, s{S_WG+1}")
        for t in range(7):
            self.vmem(f"buffer_load_dwordx4 v[{XR+4*t}:{XR+4*t+3}], v{vX}, {srd(S_X)}, s{sC} offen offset:{128*t}", "XR")
        a(f"s_mov_b32 s{self.sLO}, 0x3f80", f"s_mov_b32 s{self.sHI}, 0x3f800000", f"s_mov_b32 s{sONE}, 0x3f803f80")
        wregs = [WA + 4 * t for t in range(7)] + [WB + 4 * t for t in range(7)]
        wl = [(n + self.opt("hwo", 4)) % 14 for n in range(14)]
        def wload():
            if not wl: return
            n = wl.pop(0); R = wregs[n]
            a(f"s_add_u32 s{sD}, s{sB}, {n*32*3584}")
            self.vmem(f"buffer_load_dwordx4 v[{R}:{R+3}], v{vW}, {srd(S_WG)}, s{sD} offen", "W")
        for _ in range(self.opt("hw0", 4)): wload()
        a(f"v_lshrrev_b32 v{vt}, 4, v1", f"v_lshlrev_b32 v{vt}, 3, v{vt}", f"v_lshl_add_u32 v{vt}, v{vt+1}, 5, v{vt}")
        a(f"s_lshl_b32 s{sD}, s{sW}, 9", f"v_add_u32 v{self.hCSW}, s{sD}, v{vt}")
        for k in range(4): a(f"v_mov_b32 v{C+k}, 0")
        a(f"v_lshlrev_b32 v{vt+2}, 3, v{vR}")
        a(f"s_lshl_b32 s{sE}, s{sI}, 9")
        self.wait_vm("XR")
        self.stamp(1)
        for i in range(28): a(f"v_dot2c_f32_bf16 v{C+i%4}, s{sONE}, v{XR+i}")
        a(f"v_add_f32 v{C}, v{C}, v{C+1}", f"v_add_f32 v{C+2}, v{C+2}, v{C+3}", f"v_add_f32 v{vS}, v{C}, v{C+2}")
        for ctl in ("quad_perm:[1,0,3,2]", "quad_perm:[2,3,0,1]", "row_half_mirror"):
            a(f"v_add_f32_dpp v{vS}, v{vS}, v{vS} {ctl} row_mask:0xf bank_mask:0xf")
        a(f"v_mul_f32 v{vM}, {f32(-1.0/448)}, v{vS}")
        a(f"v_cvt_pk_bf16_f32 v{vMB}, 0, v{vM}")
        self.vmem(self.nonce_load(vQ), "non")
        for i in range(28):
            a(f"v_dot2_f32_bf16 v{XF+2*i}, v{XR+i}, s{self.sLO}, v{vMB}", f"v_dot2_f32_bf16 v{XF+2*i+1}, v{XR+i}, s{self.sHI}, v{vMB}")
            if i % 7 == 6: wload()
        for k in range(2): a(f"v_pk_mul_f32 v[{C+2*k}:{C+2*k+1}], v[{XF+2*k}:{XF+2*k+1}], v[{XF+2*k}:{XF+2*k+1}]")
        for i in range(2, 28):
            k = i % 2
            a(f"v_pk_fma_f32 v[{C+2*k}:{C+2*k+1}], v[{XF+2*i}:{XF+2*i+1}], v[{XF+2*i}:{XF+2*i+1}], v[{C+2*k}:{C+2*k+1}]")
            if i % 13 == 12: wload()
        a(f"v_add_f32 v{C}, v{C}, v{C+1}", f"v_add_f32 v{C+2}, v{C+2}, v{C+3}", f"v_add_f32 v{vS}, v{C}, v{C+2}")
        a(f"v_sub_f32 v{vM}, v{vM}, v{vMB}")
        rnd = [f"v_cvt_pk_bf16_f32 v{XF+i}, 0, v{XF+i}" for i in range(56)]
        def fill(n):
            for _ in range(n):
                if rnd: a(rnd.pop(0))
        chain = []
        for ctl in ("quad_perm:[1,0,3,2]", "quad_perm:[2,3,0,1]", "row_half_mirror"):
            chain.append(f"v_add_f32_dpp v{vS}, v{vS}, v{vS} {ctl} row_mask:0xf bank_mask:0xf")
        chain += [f"v_mul_f32 v{vM}, v{vM}, v{vM}", f"v_mul_f32 v{vS}, {f32(1.0/448)}, v{vS}", f"v_sub_f32 v{vS}, v{vS}, v{vM}", f"v_max_f32 v{vS}, 0, v{vS}",
                  f"v_cvt_pk_bf16_f32 v{vS}, 0, v{vS}", f"v_add_f32 v{vS}, {f32(1e-5)}, v{vS}", f"v_cvt_pk_bf16_f32 v{vS}, 0, v{vS}",
                  f"v_sqrt_f32 v{vS}, v{vS}", f"v_cvt_pk_bf16_f32 v{vS}, 0, v{vS}", f"v_rcp_f32 v{vRr}, v{vS}",
                  f"v_mul_f32 v{C+6}, v{vRr}, v{vRr}", f"v_mov_b32 v{vRr+1}, v{vRr}"]
        for i, c in enumerate(chain):
            fill(2); a(c)
            if i % 5 == 4: wload()
        self.get_nonce(vQ, issued="non")
        a(f"v_mov_b32 v{C+7}, s{sTAG}", f"v_mov_b32 v{vMB+1}, s{sTAG}", f"s_add_u32 s{sA}, s{sE}, {WS_R2}", f"s_add_u32 s{sD}, s{sE}, {WS_NM}")
        a("s_mov_b32 exec_lo, 0x01010101", "s_mov_b32 exec_hi, 0x01010101")
        self.vmem(f"buffer_store_dwordx2 v[{vMB}:{vMB+1}], v{vt+2}, {srd(S_WS)}, s{sD} offen sc1", "st")
        self.vmem(f"buffer_store_dwordx2 v[{C+6}:{C+7}], v{vt+2}, {srd(S_WS)}, s{sA} offen sc1", "st")
        a("s_mov_b64 exec, -1")
        self.stamp(2)
        fill(13); wload(); fill(99)
        a(f"v_mul_u32_u24 v{vt}, {TS}, v{vR}", f"v_lshl_add_u32 v{vt}, v{vP}, 4, v{vt}")
        for t in range(7):
            for i in range(4 * t, 4 * t + 4): a(f"v_pk_mul_f32 v[{XF+2*i}:{XF+2*i+1}], v[{XF+2*i}:{XF+2*i+1}], v[{vRr}:{vRr+1}]")
            for i in range(4 * t, 4 * t + 4): a(f"v_cvt_pk_bf16_f32 v{XR+i}, v{XF+2*i}, v{XF+2*i+1}")
            a(f"ds_write_b128 v{vt}, v[{XR+4*t}:{XR+4*t+3}] offset:{128*t}")
            wload()
        assert not wl
        a(f"v_bfe_u32 v{vt+1}, v1, 4, 1", f"v_and_b32 v{vt+3}, 3, v1", f"v_lshl_add_u32 v{vt+1}, v{vt+1}, 2, v{vt+3}")
        a(f"v_bfe_u32 v{vt+3}, v1, 2, 2", f"v_lshl_add_u32 v{vt+1}, v{vt+1}, 3, v{vt+3}", f"v_mul_u32_u24 v{vt+1}, {TS}, v{vt+1}")
        a(f"v_lshrrev_b32 v{vt+3}, 5, v1", f"v_lshl_add_u32 v{vt+1}, v{vt+3}, 3, v{vt+1}")
        a(f"s_lshl_b32 s{sD}, s{sW}, 4", f"v_add_u32 v{vt+1}, s{sD}, v{vt+1}")
        a(f"v_lshlrev_b32 v{vt+2}, 4, v1")
        a(f"s_mul_i32 s{sC}, s{sI}, {448*128}", f"s_lshl_b32 s{sA}, s{sW}, 10", f"s_add_u32 s{sC}, s{sC}, s{sA}", f"s_add_u32 s{sC}, s{sC}, {WS_XNT}")
        a("s_waitcnt lgkmcnt(0)", "s_barrier")
        self.stamp(3)
        for n in range(7):
            for t in range(2):
                a(f"ds_read_b64_tr_b16 v[{XR+4*n+2*t}:{XR+4*n+2*t+1}], v{vt+1} offset:{128*n + 4*TS*t}")
        for n in range(7):
            a(f"s_waitcnt lgkmcnt({12-2*n})")
            self.vmem(f"buffer_store_dwordx4 v[{XR+4*n}:{XR+4*n+3}], v{vt+2}, {srd(S_WS)}, s{sC} offen sc1", "st")
            if n < 6: a(f"s_add_u32 s{sC}, s{sC}, 8192")
        self.wait_vm("W")
        self.colsum_partial(wregs, C, vt, CSA)
        a("s_waitcnt vmcnt(0) lgkmcnt(0)", "s_barrier")
        L = self.lab("Lfx")
        a(f"s_cmp_lg_u32 s{sW}, 2", f"s_cbranch_scc1 {L}")
        a(f"v_mov_b32 v2, s{sTAG}", f"s_lshl_b32 s{sA}, s{sI}, 7", f"s_add_u32 s{sA}, s{sA}, {WS_FX}")
        a("v_lshlrev_b32 v3, 2, v1", "s_mov_b32 exec_hi, 0", f"buffer_store_dword v2, v3, {srd(S_WS)}, s{sA} offen sc1", "s_mov_b32 exec_hi, -1")
        a(f"{L}:")
        self.stamp(5)
        self.colsum_final(CSA, WA, vt)
        self.stamp(4)
        if self.opt("hp", 0):
            L = self.lab("Lhp")
            a(f"s_cmp_eq_u32 s{sW}, 7", f"s_cbranch_scc1 {L}")
            a(f"s_lshr_b32 s{sA}, s2, 3", f"s_mul_i32 s{sA}, s{sA}, {448*896}", f"s_lshl_b32 s{sB}, s{sW}, 7", f"s_add_u32 s{sA}, s{sA}, s{sB}")
            a(f"v_mul_u32_u24 v{vt}, 896, v1")
            for k in range(3):
                a(f"s_add_u32 s{sB}, s{sW}, {4+k}", f"s_cmp_ge_u32 s{sB}, 7", f"s_cselect_b32 s{sC}, 7, 0", f"s_sub_u32 s{sB}, s{sB}, s{sC}")
                a(f"s_mul_i32 s{sB}, s{sB}, {64*896}", f"s_add_u32 s{sB}, s{sB}, s{sA}")
                a(f"buffer_load_dword v{WB+k}, v{vt}, {srd(S_WD)}, s{sB} offen")
            a("s_waitcnt vmcnt(0)", f"{L}:")
            self.stamp(6)
        self.write_stamps(0)
        a("s_endpgm")

    @staticmethod
    def uslot(u): return (u + 3) % 8

    def kgen_setup(self):
        base = 8
        PRM, vDT, vt, vRA, vRB, KD, BF, AF, T = base + 12, base + 4, base + 5, base + 8, base + 9, 28, 44, 76, 200
        self.KD, self.kBF, self.kAF, self.kvt = KD, BF, AF, vt
        self.kregs = (PRM, vDT, vt, vRA, vRB, KD, BF, AF, T)
        L = []
        e = lambda *x: L.extend(x)
        e(f"s_lshl_b32 s{sSB}, s{sAW}, 8")
        def rowaddr(dst, sig):
            e(f"v_and_b32 v{dst}, 15, v{sig}", f"v_mul_u32_u24 v{dst}, 2064, v{dst}", f"v_lshrrev_b32 v{sig}, 4, v{sig}", f"v_lshl_add_u32 v{dst}, v{sig}, 10, v{dst}")
            e(f"v_add_u32 v{dst}, v{dst}, v{vt+2}")
        e(f"v_lshrrev_b32 v{vt+2}, 5, v1", f"v_lshlrev_b32 v{vt+2}, 4, v{vt+2}", f"v_and_b32 v{vt}, 31, v1")
        e(f"v_cmp_eq_u32 vcc, 5, v{vt}", f"v_cndmask_b32_e64 v{vt+1}, v{vt}, 4, vcc", f"v_cmp_eq_u32 vcc, 31, v{vt}", f"v_cndmask_b32_e64 v{vt+1}, v{vt+1}, 5, vcc")
        rowaddr(vRA, vt + 1)
        e(f"v_add_u32 v{vRA}, s{sSB}, v{vRA}")
        e(f"v_add_u32 v{vt+1}, -1, v{vt}", f"v_and_b32 v{vt+1}, 31, v{vt+1}")
        rowaddr(vRB, vt + 1)
        e(f"v_cmp_eq_u32 vcc, 0, v{vt}", f"v_mov_b32 v{vt}, s{sSB}", f"v_cndmask_b32_e64 v{vt}, v{vt}, 0, vcc", f"v_add_u32 v{vRB}, v{vRB}, v{vt}")
        e("s_waitcnt lgkmcnt(0)")
        e(f"s_lshr_b32 s{sC}, s{sAW}, 1", f"s_lshl_b32 s{sC}, s{sC}, 4")
        for r in (sLD, sDS): e(f"s_lshr_b32 s{r}, s{r}, s{sC}", f"s_lshl_b32 s{r}, s{r}, 16")
        chi = float(np.frombuffer(np.uint32(np.float32(LOG2E).view(np.uint32) & 0xFFFFFF00).tobytes(), np.float32)[0]); clo = LOG2E - chi
        e(f"v_mov_b32 v{vt+2}, s{sLD}", f"v_mul_f32 v{vDT}, {f32(chi)}, v{vt+2}", f"v_mul_f32 v{vt+2}, {f32(clo)}, v{vt+2}")
        e(f"v_exp_f32 v{vDT}, v{vDT}", f"v_exp_f32 v{vt+2}, v{vt+2}", f"v_mul_f32 v{vDT}, v{vDT}, v{vt+2}")
        e(f"v_cvt_pk_bf16_f32 v{vDT}, 0, v{vDT}")
        return L

    @staticmethod
    def soff(sig): return (sig & 15) * 2064 + (sig >> 4) * 1024

    def kgen_scale(self):
        PRM, vDT, vt, vRA, vRB, KD, BF, AF, T = self.kregs
        L = []
        e = lambda *x: L.extend(x)
        e(f"v_and_b32 v{T}, 0x7fff, v{PRM+2}", f"v_and_b32 v{T+1}, 0x7fff, v{PRM+3}", f"v_and_b32 v{T+2}, 0x7fff, v{PRM+6}", f"v_and_b32 v{T+3}, 0x7fff, v{PRM+7}")
        e(f"v_max_u32 v{T}, v{T}, v{T+1}", f"v_max3_u32 v{T}, v{T}, v{T+2}, v{T+3}")
        sh = [f"v_lshlrev_b32 v{PRM+k}, 16, v{PRM+k}" for k in range(8)]
        for ctl in ("row_shr:1", "row_shr:2", "row_shr:4", "row_shr:8", "row_bcast:15 row_mask:0xa", "row_bcast:31 row_mask:0xc"):
            for _ in range(2):
                if sh: e(sh.pop(0))
            e(f"v_max_u32_dpp v{T}, v{T}, v{T} {ctl}" + (" row_mask:0xf" if "row_mask" not in ctl else "") + " bank_mask:0xf")
        e(f"v_readlane_b32 s50, v{T}, 63")
        e("s_lshr_b32 s50, s50, 7", "s_sub_u32 s50, 267, s50", "s_min_u32 s50, s50, 253", f"s_sub_u32 s51, 255, s50")
        e("s_lshl_b32 s50, s50, 23", "s_lshl_b32 s51, s51, 23", f"v_mul_f32 v18, s51, v{vDT}")
        return L

    def kgen_body(self, czero, batch):
        PRM, vDT, vt, vRA, vRB, KD, BF, AF, T = self.kregs
        L = []
        e = lambda *x: L.extend(x)
        tt = 172; ti = [0]
        pendf = []
        def cmul(d, x, y):
            t = tt + ti[0] % 8; ti[0] += 1
            if any(x == p[0] or y == p[0] for p in pendf): flush()
            e(f"v_pk_mul_f16 v{t}, v{x}, v{y} op_sel:[1,1] op_sel_hi:[0,1]")
            flush()
            pendf.append((d, f"v_pk_fma_f16 v{d}, v{x}, v{y}, v{t} op_sel_hi:[1,0,1] neg_lo:[0,0,1]"))
        def flush():
            for p in pendf: e(p[1])
            pendf.clear()
        BF += 64 * batch; AF += 64 * batch
        def arow(hh, reg): return 8 * (reg >> 2) + 4 * hh + (reg & 3)
        P1 = {}
        for reg, p in enumerate(list(range(9)) + [512, 516, 520, 1024, 1032, 1536, 1544]): P1.setdefault(p, []).append(arow(0, reg))
        for reg, p in enumerate([256, 256, 258, 260, 260, 260, 262, 264, 264, 768, 772, 776, 1280, 1288, 1792, 1800]): P1.setdefault(p, []).append(arow(1, reg))
        assert P1[256] == [4, 5] and P1[1800] == [31]
        P1[256] = [4]; P1[1800] = [5]
        E = {j: BF + j for j in range(1, 32)}
        V = {p: AF + i for i, p in enumerate(sorted(P1))}
        va, vb = T, T + 1
        S = T + 2
        A = T + 10
        W1, W8, W256 = T + 18, T + 19, T + 20
        p_ = PRM + 4 * batch
        e(f"v_mul_f32 v{va}, {f32(LOG2E)}, v{p_}", f"v_mul_f32 v{vb}, v{p_+1}, v{vDT}", f"v_exp_f32 v{va}, v{va}")
        e(f"v_mul_f32 v{vb}, 0.15915494, v{vb}", f"v_mul_f32 v{p_+2}, s50, v{p_+2}")
        e(f"v_cvt_pk_bf16_f32 v{va}, 0, v{va}", f"v_mul_f32 v{p_+3}, s50, v{p_+3}")
        e(f"v_mul_f32 v{va}, v{va}, v{vDT}", f"v_cvt_pk_f16_f32 v{V[0]}, v{p_+2}, v{p_+3}")
        e(f"v_mul_f32 v{va}, {f32(-LOG2E)}, v{va}")
        seeds = (8, 32, 1, 256)
        for i, p in enumerate(seeds):
            if p != 1: e(f"v_mul_f32 v{A+2*i+1}, {f32(p)}, v{vb}", f"v_mul_f32 v{A+2*i}, {f32(p)}, v{va}")
        for i, p in enumerate(seeds):
            e(f"v_fract_f32 v{A+2*i+1}, v{A+2*i+1 if p != 1 else vb}", f"v_exp_f32 v{A+2*i}, v{A+2*i if p != 1 else va}")
        for i, p in enumerate(seeds):
            e(f"v_cos_f32 v{S+2*i}, v{A+2*i+1}", f"v_sin_f32 v{S+2*i+1}, v{A+2*i+1}")
        for i, p in enumerate(seeds):
            e(f"v_mul_f32 v{S+2*i}, v{S+2*i}, v{A+2*i}", f"v_mul_f32 v{S+2*i+1}, v{S+2*i+1}, v{A+2*i}")
        e(f"v_cvt_pk_f16_f32 v{E[1]}, v{S}, -v{S+1}", f"v_cvt_pk_f16_f32 v{W8}, v{S}, v{S+1}", f"v_cvt_pk_f16_f32 v{E[4]}, v{S+2}, -v{S+3}")
        e(f"v_cvt_pk_f16_f32 v{W1}, v{S+4}, v{S+5}", f"v_cvt_pk_f16_f32 v{W256}, v{S+6}, v{S+7}")
        jobs = [(E[2], E[1], E[1]), (V[8], V[0], W8), (V[1], V[0], W1), (E[3], E[2], E[1])]
        vj = [(V[k], V[k - 1], W1) for k in range(2, 8)]
        far = [(V[p], V[p - 256], W256) for p in sorted(P1) if p >= 256]
        far.sort(key=lambda x: 0)
        f08 = [(V[p], V[p - 256], W256) for p in sorted(P1) if p >= 256 and p % 256 in (0, 8)]
        fo = [(V[p], V[p - 256], W256) for p in sorted(P1) if p >= 256 and p % 256 not in (0, 8)]
        ej = [(E[j], E[j - 4], E[4]) for j in range(5, 32)]
        while ej or vj or f08 or fo:
            for q_ in (ej, vj, ej, f08) if vj else (ej, fo, ej, f08):
                if q_: jobs.append(q_.pop(0))
        for j in jobs: cmul(*j)
        flush()
        B = [f"ds_write_addtid_b32 v{E[j]} offset:{self.soff(j-1)}" for j in range(1, 32)]
        B += [f"ds_read_b128 v[{BF+4*k}:{BF+4*k+3}], v{vRB} offset:{32*k}" for k in range(8)]
        B += [f"ds_write_addtid_b32 v{V[p]} offset:{self.soff(sig)}" for p in sorted(P1) for sig in P1[p]]
        B += [f"ds_read_b128 v[{AF+4*k}:{AF+4*k+3}], v{vRA} offset:{32*k}" for k in range(8)]
        M = []
        for k in range(8):
            c = "0" if (czero and k == 0) else f"v[{KD}:{KD+15}]"
            M.append(f"v_mfma_f32_32x32x16_f16 v[{KD}:{KD+15}], v[{AF+4*k}:{AF+4*k+3}], v[{BF+4*k}:{BF+4*k+3}], {c}")
        return L, B, M

    def mwave(self):
        a = self.a
        self.role = 'M'
        a("L_m:")
        ACC, AB, XB, CSX, NMX = 4, 132, 164, 228, 232
        vAX, vAW = 234, 248
        vt = 239; vHO = 2; vCSO = 3; vN = 238
        sLH, sFH = 48, 49
        def acc(mat, b, ft): return ACC + 4 * (b + 4 * (ft + 4 * mat))
        a(f"v_mov_b32 v0, v{voD}")
        a(f"s_lshr_b32 s{sLH}, s{sW}, 1", f"s_and_b32 s{sFH}, s{sW}, 1")
        a(f"v_and_b32 v{vt}, 15, v1")
        a(f"v_lshrrev_b32 v{vt+2}, 4, v1", f"v_bfe_u32 v{vt+3}, v1, 1, 3")
        a(f"v_xor_b32 v{vt+3}, v{vt+3}, v{vt+2}", f"v_lshlrev_b32 v{vt+3}, 4, v{vt+3}")
        a(f"s_lshl_b32 s{sA}, s{sLH}, 13", f"s_add_u32 s{sA}, s{sA}, {RING}")
        a(f"v_lshl_add_u32 v{vt}, v{vt}, 7, s{sA}")
        for s_ in range(2):
            a(f"v_xad_u32 v{vAX+s_}, v{vt+3}, {64*s_}, v{vt}", f"v_add_u32 v{vAX+2+s_}, 0x10000, v{vAX+s_}")
        a(f"v_bfe_u32 v{vt}, v1, 2, 2", f"v_lshl_add_u32 v{vt}, v{vt+2}, 3, v{vt}", f"v_lshlrev_b32 v{vt}, 8, v{vt}")
        a(f"v_and_b32 v{vt+3}, 3, v1", f"v_lshl_add_u32 v{vt}, v{vt+3}, 3, v{vt}")
        a(f"v_bfe_u32 v{vt+3}, v1, 2, 3", f"v_lshl_add_u32 v{vt}, v{vt+3}, 5, v{vt}")
        a(f"s_lshl_b32 s{sA}, s{sFH}, 7", f"v_xor_b32 v{vt}, s{sA}, v{vt}", f"v_add_u32 v{vt}, {RING}, v{vt}")
        a("s_waitcnt vmcnt(0)")
        for ft in range(4):
            a(f"v_xor_b32 v{vAW+ft}, {32*ft}, v{vt}", f"v_add_u32 v{vAW+4+ft}, 0x10000, v{vAW+ft}")
        a(f"v_lshlrev_b32 v{vCSO}, 3, v1", f"v_lshlrev_b32 v{vHO}, 4, v1")
        self.vm = []
        self.gemm2_setup(vt)
        a(f"s_setprio {self.opt('mp', 2)}")
        a("s_waitcnt lgkmcnt(0)")
        for x in self.ks_table(): a(x)
        a(f"s_lshl1_add_u32 s{sF}, s{sJ}, s{sFH}")
        a(f"s_lshl_b32 s{sB}, s{sF}, 10", f"s_add_u32 s{sB}, s{sB}, {WS_CS}")
        a(f"s_lshl1_add_u32 s{sA}, s{sI}, s{sLH}")
        a(f"s_lshl_b32 s{sD}, s{sA}, 9", f"s_add_u32 s{sD}, s{sD}, {WS_NM}")
        a(f"s_mul_i32 s{sE}, s{sA}, {HS}", f"s_lshl_b32 s{sC}, s{sF}, 13", f"s_add_u32 s{sE}, s{sE}, s{sC}")
        a(f"s_lshl4_add_u32 s{sG}, s{sI}, s{sJ}", f"s_lshl_b32 s{sG}, s{sG}, 7", f"s_add_u32 s{sG}, s{sG}, {WS_FH}")
        FR = [(ft, mat) for ft in range(4) for mat in range(2)]
        def reads(g):
            c, s_ = divmod(g, 2)
            sl = self.uslot(3 * c + 1); win = sl // 4
            xb = XB + 16 * (g & 1)
            xr = [f"ds_read_b128 v[{xb+4*b}:{xb+4*b+3}], v{vAX+2*win+s_} offset:{16384*(sl%4) + 2048*b}" for b in range(4)]
            sl = self.uslot(3 * c + 2 * s_); win = sl // 4
            wr = []
            for k, (ft, mat) in enumerate(FR):
                wr.append([f"ds_read_b64_tr_b16 v[{AB+4*k+2*t}:{AB+4*k+2*t+1}], v{vAW+4*win+ft} offset:{16384*(sl%4) + 1024*t + 8192*mat}" for t in range(2)])
            return xr, wr
        def mfma(g, k, b):
            ft, mat = FR[k]
            d = acc(mat, b, ft); xb = XB + 16 * (g & 1)
            c = "0" if g == 0 else f"v[{d}:{d+3}]"
            return f"v_mfma_f32_16x16x32_bf16 v[{d}:{d+3}], v[{AB+4*k}:{AB+4*k+3}], v[{xb+4*b}:{xb+4*b+3}], {c}"
        corr_loads = [f"buffer_load_dwordx4 v[{CSX}:{CSX+3}], v{vHO}, {srd(S_WS)}, s{sB} offen sc1",
                      f"buffer_load_dwordx2 v[{NMX}:{NMX+1}], v{vCSO}, {srd(S_WS)}, s{sD} offen sc1"]
        a("s_waitcnt lgkmcnt(0)")
        if "k1" in self.opts: self.stampk(7)
        a("s_barrier")
        self.stamp(2)
        q = []; pend = []
        def need(key):
            idx = [i for i, t in enumerate(q) if t[0] == key[0] and t[1] <= key[1]]
            if not idx: return
            n = len(q) - 1 - idx[-1]
            a(f"s_waitcnt lgkmcnt({min(n, 15)})")
            del q[:len(q) - min(n, 15)]
        def drain(maxn):
            n = 0
            while pend and n < maxn:
                r, key = pend.pop(0); a(r); q.append(key); n += 1
        xr, wr = reads(0)
        for r in xr: a(r); q.append((0, 0))
        for k in range(8):
            for r in wr[k]: a(r); q.append((0, k))
        self.vmem(self.nonce_load(vN), "non")
        if self.opt("tlb", 0) == 1: self.tlbtouch(vt)
        DELAY = self.opt("dl", 8); WG_ = self.opt("wg", 2)
        cl = list(corr_loads); extra = []
        for g in range(14):
            xr, wr = reads(g + 1) if g < 13 else ([], [[]] * 8)
            if g == 0: self.cstamp(0)
            if g == 8: self.get_nonce(vN, issued="non")
            blocked = True; held = []
            i = 0
            for k in range(8):
                for b in range(4):
                    if k % WG_ == 0 and b == 0:
                        key = (g, k + WG_ - 1)
                        while any(x[1][0] == g and x[1][1] <= key[1] for x in pend): drain(1)
                        need(key)
                    a(mfma(g, k, b)); i += 1
                    if b == 3:
                        new_r = [(r, (g + 1, k)) for r in wr[k]]
                        if blocked: held += new_r
                        else: pend += new_r
                    if blocked and i == DELAY:
                        pend += [(x, (-1, 0)) for x in extra]; extra = []
                        drain(99)
                        LB = self.opt("lb", 11)
                        if g + 1 <= LB:
                            a("s_waitcnt lgkmcnt(0)"); q.clear()
                            a("s_barrier")
                        elif g == 11 and self.NDA > 3:
                            self.signal(8, vt); q.append((-1, 0))
                        if g % 2 == 1: self.cstamp(1 + g // 2)
                        pend += held + [(r, (g + 1, 0)) for r in xr]
                        if g in (LB - 3, LB - 2): extra += [r[0] for r in self.G.wdread(g - LB + 3)]
                        blocked = False
                    if not pend and extra: pend.append((extra.pop(0), (-1, 0)))
                    drain(1)
                    if g == self.opt("corr", 10) and cl and i % 4 == 2: self.vmem(cl.pop(0), "corr")
        self.stamp(3)
        self.cstamp(8)
        self.spin(corr_loads, [CSX + 1, CSX + 3, NMX + 1], first_issued_tag="corr", note=1)
        for ft in range(4):
            for mat in range(2):
                d = acc(mat, 0, ft)
                a(f"v_mfma_f32_16x16x1_4b_f32 v[{d}:{d+15}], v{CSX+2*mat}, v{NMX}, v[{d}:{d+15}] cbsz:2 abid:{ft}")
        self.signal(9, vt)
        a(f"s_add_u32 s{sC}, s{sE}, 4096")
        for e in range(2):
            for b in range(4):
                o = acc(0, b, 2 * e)
                T_ = [(acc(0, b, ft), acc(1, b, ft)) for ft in (2 * e, 2 * e + 1)]
                for g_, u_ in T_:
                    for i in range(4): a(f"v_max_f32 v{g_+i}, 0, v{g_+i}")
                for g_, u_ in T_:
                    if "epk" in self.opts:
                        for i in (0, 2): a(f"v_pk_mul_f32 v[{u_+i}:{u_+i+1}], v[{g_+i}:{g_+i+1}], v[{u_+i}:{u_+i+1}]")
                    else:
                        for i in range(4): a(f"v_mul_f32 v{u_+i}, v{g_+i}, v{u_+i}")
                for t, (g_, u_) in enumerate(T_):
                    for i in range(2): a(f"v_cvt_pk_bf16_f32 v{o+2*t+i}, v{u_+2*i}, v{u_+2*i+1}")
                SG = self.opt("sg", 99)
                if len(self.vm) > SG: a(f"s_waitcnt vmcnt({SG})"); self.vm = self.vm[-SG:]
                self.vmem(f"buffer_store_dwordx4 v[{o}:{o+3}], v{vHO}, {srd(S_WS)}, s{sC if e else sE} offen offset:{1024*b} sc1", "hst")
        self.stamp(4)
        self.cstamp(9)
        self.gemm2()

    def mtouch(self, vt):
        mask = self.opt("tm", 0)
        if not mask: return
        a = self.a
        for w, (sr, n) in enumerate(((S_WD, 56), (S_WG, 56), (S_WU, 56), (S_X, 64))):
            if not (mask >> w) & 1: continue
            L = self.lab("Lt")
            a(f"s_cmp_lg_u32 s{sW}, {w}", f"s_cbranch_scc1 {L}")
            a(f"s_mul_i32 s{sA}, s{sT}, {n*128}", f"v_min_u32 v{vt}, {n-1}, v1", f"v_lshlrev_b32 v{vt}, 7, v{vt}")
            a(f"buffer_load_dword v{vt+1+w}, v{vt}, {srd(sr)}, s{sA} offen")
            a(f"{L}:")

    def tlbtouch(self, vt):
        a = self.a
        L = self.lab("Lt")
        a(f"s_cmp_lg_u32 s{sW}, 0", f"s_cbranch_scc1 {L}")
        holes = [229376, 10*HS + 229376, 19*HS + 229376, 28*HS + 229376, 0x9F0000, 0xA00000, 0xDF0000, 0xFF0000]
        a(f"v_mov_b32 v{vt}, {holes[0]}")
        for i, h in enumerate(holes[1:]):
            a(f"s_mov_b32 s{sA}, {h}", f"v_writelane_b32 v{vt}, s{sA}, {i+1}")
        a(f"buffer_load_dword v{vt+6}, v{vt}, {srd(S_WS)}, 0 offen")
        a(f"buffer_load_dword v{vt+7}, off, {srd(S_OUT)}, 0")
        a(f"{L}:")

    FX_, FR_, FO_ = 222, 230, 234
    def final_pre(self):
        a = self.a
        vX, vR2, vt = self.FX_, self.FR_, self.FO_
        a(f"s_lshl_b32 s{sA}, s{sAW}, 4", f"s_lshl_b32 s{sB}, s{sI2}, 6", f"s_add_u32 s{sA}, s{sA}, s{sB}")
        a(f"v_lshrrev_b32 v{vt+1}, 3, v1", f"v_add_u32 v{vt+1}, s{sA}, v{vt+1}")
        a(f"v_mul_u32_u24 v{vt}, 896, v{vt+1}")
        a(f"s_lshl_b32 s{sA}, s{sJ2}, 7", f"s_movk_i32 s{sB}, {8*896}")
        a(f"v_and_b32 v{vR2}, 7, v1", f"v_lshlrev_b32 v{vR2}, 4, v{vR2}", f"v_add3_u32 v{vt}, v{vt}, v{vR2}, s{sA}")
        a(f"v_lshlrev_b32 v{vt+1}, 3, v{vt+1}", f"v_add_u32 v{vt+1}, {WS_R2}, v{vt+1}")
        self.vmem(f"buffer_load_dwordx4 v[{vX}:{vX+3}], v{vt}, {srd(S_X)}, 0 offen", "fx")
        self.vmem(f"buffer_load_dwordx4 v[{vX+4}:{vX+7}], v{vt}, {srd(S_X)}, s{sB} offen", "fx")
        self.r2load = [f"buffer_load_dwordx2 v[{vR2+2*h}:{vR2+2*h+1}], v{vt+1}, {srd(S_WS)}, 0 offen offset:{64*h} sc1" for h in range(2)]

    def final_addr(self, T):
        a = self.a
        vA, vB = T, T + 4
        a(f"v_lshrrev_b32 v{vA+2}, 3, v1", f"s_lshl_b32 s{sC}, s{sAW}, 4", f"v_add_u32 v{vA+3}, s{sC}, v{vA+2}")
        a(f"v_mul_u32_u24 v{vB}, 48, v{vA+3}")
        a(f"v_and_b32 v{vA+3}, 7, v1", f"v_lshlrev_b32 v{vA+3}, 1, v{vA+3}", f"v_xor_b32 v{vA+3}, v{vA+3}, v{vA+2}")
        a(f"v_lshlrev_b32 v{vA+3}, 4, v{vA+3}", f"v_lshl_add_u32 v{vA}, v{vA+2}, 8, v{vA+3}")
        a(f"s_lshl_b32 s{sC}, s{sAW}, 14", f"s_add_u32 s{sC}, s{sC}, {DBASE}")
        a(f"v_bfe_u32 v{vA+3}, v1, 2, 1", f"v_mul_u32_u24 v{vA+3}, {QB[1]}, v{vA+3}", f"v_add_u32 v{vB}, v{vB}, v{vA+3}")
        a(f"v_bfe_u32 v{vA+3}, v1, 1, 1", f"v_lshl_add_u32 v{vB}, v{vA+3}, 12, v{vB}")
        a(f"v_and_b32 v{vA+3}, 1, v1", f"v_lshl_add_u32 v{vB}, v{vA+3}, 4, v{vB}")
        a(f"v_add_u32 v{vA}, s{sC}, v{vA}", f"v_xor_b32 v{vA+1}, 16, v{vA}", f"v_xor_b32 v{vA+2}, {2048+128}, v{vA}", f"v_xor_b32 v{vA+3}, {2048+128+16}, v{vA}")

    def final(self, T):
        a = self.a
        vX, vR2, vO = self.FX_, self.FR_, self.FO_
        vA, vB = T, T + 4
        E = T + 8; Y = T + 24; P = T + 32
        self.spin(self.r2load, [vR2 + 1, vR2 + 3], first_issued_tag="fx", note=3)
        for i in range(8): a(f"v_lshlrev_b32 v{E+2*i}, 16, v{vX+i}", f"v_and_b32 v{E+2*i+1}, 0xffff0000, v{vX+i}")
        self.auxbar(7, T + 6, extra=[f"ds_read_b128 v[{Y+4*h}:{Y+4*h+3}], v{vB} offset:{8*48*h}" for h in range(2)])
        for i in range(8):
            a(f"v_lshlrev_b32 v{vX}, 16, v{Y+i}", f"v_and_b32 v{vX+1}, 0xffff0000, v{Y+i}")
            a(f"v_add_f32 v{E+2*i}, v{E+2*i}, v{vX}", f"v_add_f32 v{E+2*i+1}, v{E+2*i+1}, v{vX+1}")
        a(f"s_movk_i32 s{sB}, {8*896}")
        a("s_barrier")
        self.stamp(8)
        for h in range(2):
            for m in range(4):
                for q in range(2):
                    r = P + 32 * h + 8 * m + 4 * q
                    a(f"ds_read_b128 v[{r}:{r+3}], v{vA + 2*h + q} offset:{4096*m}")
        for h in range(2):
            p = P + 32 * h; e = E + 8 * h
            a(f"s_waitcnt lgkmcnt({12 - 8*h})")
            for i in range(0, 8, 2): a(f"v_pk_add_f32 v[{p+i}:{p+i+1}], v[{p+i}:{p+i+1}], v[{p+8+i}:{p+8+i+1}]")
            a(f"s_waitcnt lgkmcnt({8 - 8*h})")
            for i in range(0, 8, 2): a(f"v_pk_add_f32 v[{p+16+i}:{p+16+i+1}], v[{p+16+i}:{p+16+i+1}], v[{p+24+i}:{p+24+i+1}]")
            for i in range(0, 8, 2): a(f"v_pk_add_f32 v[{p+i}:{p+i+1}], v[{p+i}:{p+i+1}], v[{p+16+i}:{p+16+i+1}]")
            for i in range(0, 8, 2): a(f"v_pk_fma_f32 v[{e+i}:{e+i+1}], v[{p+i}:{p+i+1}], v[{vR2+2*h}:{vR2+2*h+1}], v[{e+i}:{e+i+1}] op_sel_hi:[1,0,1]")
            for i in range(4): a(f"v_cvt_pk_bf16_f32 v{p+16+i}, v{e+2*i}, v{e+2*i+1}")
            a(f"buffer_store_dwordx4 v[{p+16}:{p+19}], v{vO}, {srd(S_OUT)}, {'s%d' % sB if h else 0} offen" + (" sc1" if "osc1" in self.opts else "") + (" nt" if "ont" in self.opts else ""))
        self.stamp(9)
        self.write_stamps(1)
        a("s_endpgm")

    def gemm2_setup(self, vt):
        a = self.a
        vAD = 244; vD = [0, 252, 253, 254]
        sH, sDo, sM = 50, 51, 52
        a(f"v_lshrrev_b32 v{vt}, 2, v1", f"v_lshlrev_b32 v{vt}, 7, v{vt}", f"v_and_b32 v{vt+1}, 3, v1", f"v_lshl_add_u32 v{vt}, v{vt+1}, 3, v{vt}")
        a(f"v_bfe_u32 v{vt+1}, v1, 3, 2", f"v_lshl_add_u32 v{vt}, v{vt+1}, 5, v{vt}")
        a(f"v_add_u32 v{vt}, s{sM0}, v{vt}", f"s_add_u32 s{sM}, s{sM0}, {DBASE}")
        for dt in range(4): a(f"v_xor_b32 v{vAD+dt}, {32*dt}, v{vt}")
        a(f"s_mul_i32 s{sDo}, s{sW}, {448*896}", f"s_lshl_b32 s{sA}, s{sJ2}, 7", f"s_add_u32 s{sDo}, s{sDo}, s{sA}")
        a(f"s_mul_i32 s{sH}, s{sI2}, {HS}", f"s_mul_i32 s{sA}, s{sW}, {14*4096}", f"s_add_u32 s{sH}, s{sH}, s{sA}")
        G = self.G = type("G", (), {})()
        G.free = [196, 212]; G.wbuf = {}; G.hbuf = {}; G.lq = []
        def wdread(ks):
            G.wbuf[ks] = buf = G.free.pop(0); n = ks if ks < 2 else (ks - 2) % 7; win = n // 4
            return [(f"ds_read_b64_tr_b16 v[{buf+4*dt+2*t}:{buf+4*dt+2*t+1}], v{vAD+4*win+dt} offset:{16384*(n%4) + 2048*t}", ks) for dt in range(4) for t in range(2)]
        def lds(r): a(r[0]); G.lq.append(r[1])
        def need_w(ks):
            lq = G.lq
            if ks not in lq: return
            k = len(lq) - 1 - max(i for i, x in enumerate(lq) if x == ks)
            a(f"s_waitcnt lgkmcnt({min(k, 15)})")
            del lq[:len(lq) - min(k, 15)]
        def dd(ks):
            out = []
            for k in range(4):
                pre = [f"s_add_u32 m0, s{sM}, {16384*((ks-2)%7)}"] + self.ksoff(ks, 32 * 896, sDo) if k == 0 else []
                out.append((pre, f"buffer_load_dwordx4 v{vD[k]}, {srd(S_WD)}, s{sA} offen offset:{1024*k} lds", f"d{ks}"))
            return out
        def hl(ks):
            G.hbuf[ks] = buf = G.free.pop(0)
            return [(self.ksoff(ks, 4096, sH, sD) if b == 0 else [],
                     f"buffer_load_dwordx4 v[{buf+4*b}:{buf+4*b+3}], v2, {srd(S_WS)}, s{sD} offen offset:{1024*b} sc1", f"h{ks}") for b in range(4)]
        def vm(x):
            for y in x[0]: a(y)
            self.vmem(x[1], x[2])
        G.wdread, G.lds, G.need_w, G.dd, G.hl, G.vm = wdread, lds, need_w, dd, hl, vm

    def gemm2(self):
        a = self.a
        G = self.G
        wdread, lds, need_w, dd, hl, vm = G.wdread, G.lds, G.need_w, G.dd, G.hl, G.vm
        free, wbuf, hbuf, lq = G.free, G.wbuf, G.hbuf, G.lq
        ACC = 68
        vFO = 3; vFL = 255; vt = 252; sM = 52
        self.stamp2(1)
        a(f"s_lshr_b32 s{sB}, s{sI2}, 1", f"s_lshl_b32 s{sB}, s{sB}, 11", f"s_add_u32 s{sA}, s{sB}, {WS_FH}")
        a(f"v_lshrrev_b32 v{vFO}, 2, v1", f"v_min_u32 v{vFO}, 13, v{vFO}", f"v_lshl_add_u32 v{vFO}, v{vFO}, 7, s{sA}")
        for dt in range(4): a(f"v_add_u32 v{244+dt}, {DBASE}, v{244+dt}", f"v_add_u32 v{248+dt}, 0x10000, v{244+dt}")
        for k in range(1, 4): a(f"v_add_u32 v{251+k}, {k*(7168-1024)}, v0")
        free += [132, 148, 164, 180, 228, 4, 20, 36, 52]
        fl = f"buffer_load_dword v{vFL}, v{vFO}, {srd(S_WS)}, 0 offen sc1"
        self.await_(0, ACC, "same")
        NDA = self.NDA + 2
        for ks in range(2, NDA):
            for r in wdread(ks): lds(r)
        self.wait_vm("hst")
        self.signal(5, ACC)
        self.stamp2(2)
        self.await_(5, ACC, "all"); lq.clear()
        Lw = self.lab("Lg")
        a(f"s_cmp_lg_u32 s{sW}, 0", f"s_cbranch_scc1 {Lw}")
        a(f"v_mov_b32 v{vFL}, s{sTAG}", f"v_lshlrev_b32 v{ACC}, 2, v1", "s_mov_b32 exec_hi, 0")
        a(f"buffer_store_dword v{vFL}, v{ACC}, {srd(S_WS)}, s{sG} offen sc1")
        a("s_mov_b32 exec_hi, -1", f"{Lw}:")
        a("s_setprio 0")
        ND = min(self.opt("nd", 14), 7 + NDA)
        Lw, Lj = self.lab("Lg"), self.lab("Lg")
        vm0 = list(self.vm)
        FP = ND - self.opt("fp", 0)
        a(f"s_cmp_lg_u32 s{sW}, 0", f"s_cbranch_scc1 {Lw}")
        for ks in range(NDA, ND):
            if ks == FP: self.vmem(fl, "fl")
            for x in dd(ks): vm(x)
        self.stamp2(3)
        self.spin([fl], [vFL], first_issued_tag=("fl" if FP < ND else None), sleep=self.opt("fsl", 1), note=2)
        self.signal(6, ACC)
        a(f"s_branch {Lj}", f"{Lw}:")
        self.vm = vm0
        for ks in range(NDA, ND):
            for x in dd(ks): vm(x)
        self.await_(6, ACC, "zero", sleep=1)
        a(f"{Lj}:")
        self.stamp2(4)
        nh = 0
        while free and nh < self.opt("h0", 4):
            for x in hl(nh): vm(x)
            nh += 1
        nw = NDA; nd = ND
        for s_ in range(14):
            self.wait_vm(f"h{s_}")
            need_w(s_)
            if s_ in (0, 7): self.stamp2({0: 5, 7: 6}[s_])
            rd = []; vq = []
            if nd < 14 and nd - 7 < nw:
                need_w(nd - 7); vq += dd(nd); nd += 1
            while nw < 14 and (nw <= s_ + 2 or (nw < 7 and not rd)) and free:
                self.wait_vm(f"d{nw}")
                rd += wdread(nw); nw += 1
            while nh < 14 and nh < s_ + self.opt("hd", 5) and len(free) > (1 if nw < 14 else 0):
                vq += hl(nh); nh += 1
            if s_ == self.opt("ys", 6):
                self.signal(4, vt); lq.append(-1)
            if s_ == 12:
                a(f"v_and_b32 v{vt}, 15, v1", f"v_lshrrev_b32 v{vt+1}, 4, v1", f"v_xor_b32 v{vt+1}, v{vt+1}, v{vt}", f"v_lshlrev_b32 v{vt+1}, 4, v{vt+1}")
                a(f"v_lshl_add_u32 v{vt}, v{vt}, 8, s{sM}", f"v_add_u32 v{vt}, v{vt}, v{vt+1}")
                for dt in range(1, 4): a(f"v_xor_b32 v{vt+dt}, {64*dt}, v{vt}")
            wb, hb = wbuf[s_], hbuf[s_]
            i = 0; nvq = len(vq)
            for lb in range(4):
                for dt in range(4):
                    d = ACC + 4 * (4 * lb + dt)
                    c = "0" if s_ == 0 else f"v[{d}:{d+3}]"
                    a(f"v_mfma_f32_16x16x32_bf16 v[{d}:{d+3}], v[{wb+4*dt}:{wb+4*dt+3}], v[{hb+4*lb}:{hb+4*lb+3}], {c}")
                    if rd: lds(rd.pop(0))
                    if s_ == 13 and i >= 8:
                        l2, d2 = divmod(i - 8, 4); r = ACC + 4 * (4 * l2 + d2)
                        a(f"ds_write_b128 v{vt+d2}, v[{r}:{r+3}] offset:{16384*l2}")
                    if vq and i % (4 if nvq <= 4 else 2) == 1: vm(vq.pop(0))
                    i += 1
            for x in vq: vm(x)
            free += [wb, hb]
        self.stamp2(7)
        for lb in range(2, 4):
            for dt in range(4):
                d = ACC + 4 * (4 * lb + dt)
                a(f"ds_write_b128 v{vt+dt}, v[{d}:{d+3}] offset:{16384*lb}")
        a("s_waitcnt lgkmcnt(0)", "s_barrier")
        self.stamp(8)
        self.write_stamps(0)
        a("s_endpgm")

    def dma_ops(self, u):
        base = slot_addr(self.uslot(u)) if u < 26 else 16384 * (u - 26)
        tag = f"u{u}"
        if u < 21 and u % 3 == 1: vo, sr, pre = voX, S_X, [f"s_add_u32 s{sA}, s{sXB}, {128 * (u // 3)}"]
        elif u < 21:              vo, sr, pre = voW, S_WG, [f"s_add_u32 s{sA}, s{sWB}, {(64 * (u // 3) + 16 * (u % 3)) * 3584}"]
        else:                     vo, sr, pre = voD, S_WD, self.ksoff(u - 19 if u < 26 else u - 26, 32 * 896, sDB)
        m0cmd = f"s_add_u32 m0, s{sM0}, {base}"
        return [(pre if k == 0 else [], f"buffer_load_dwordx4 v{vo+k}, {srd(sr)}, s{sA} offen offset:{1024*k} lds", tag, m0cmd) for k in range(4)]
    @staticmethod
    def ksoff(step, mul, sbase, dst=sA):
        return [f"s_mul_i32 s{dst}, s{sKS + step // 2}, {2*mul}", f"s_add_u32 s{dst}, s{dst}, s{sbase}"] + ([f"s_add_u32 s{dst}, s{dst}, {mul}"] if step & 1 else [])
    def emit_aux(self, x):
        a = self.a
        if isinstance(x, tuple):
            if self.m0 != x[3]: a(x[3]); self.m0 = x[3]
            for y in x[0]: a(y)
            self.vmem(x[1], x[2])
        elif x == "@prm": self.wait_vm("prm")
        else:
            if x.startswith("ds_write_addtid") and self.m0 != "sb":
                a(f"s_mov_b32 m0, s{sSB}"); self.m0 = "sb"
            a(x)

    def signal(self, k, vt):
        a = self.a
        a(f"s_lshl_b32 s{sA}, s{sAW}, 2", f"v_mov_b32 v{vt}, s{sA}", f"v_mov_b32 v{vt+1}, s{sTAG}")
        a(f"ds_write_b32 v{vt}, v{vt+1} offset:{AUXCNT + 16*k}")
    def await_(self, k, vt, who, extra=(), sleep=0):
        a = self.a
        L0, L1 = self.lab("Lab"), self.lab("Lae")
        if who == "all": a(f"v_and_b32 v{vt}, 3, v1", f"v_lshlrev_b32 v{vt}, 2, v{vt}")
        elif who == "zero": a(f"v_mov_b32 v{vt}, 0")
        else:
            a(f"s_lshl_b32 s{sA}, s{sAW}, 2")
            if who == "pair": a(f"s_xor_b32 s{sA}, s{sA}, 4")
            a(f"v_mov_b32 v{vt}, s{sA}")
        a(f"s_mov_b32 s{sSPIN}, {SPIN_MAX*10}")
        a(f"{L0}:", f"ds_read_b32 v{vt+1}, v{vt} offset:{AUXCNT + 16*k}")
        for x in extra: a(x)
        a("s_waitcnt lgkmcnt(0)", f"v_cmp_ne_u32 vcc, s{sTAG}, v{vt+1}", f"s_sub_u32 s{sSPIN}, s{sSPIN}, 1", "s_nop 3", f"s_cbranch_vccz {L1}")
        if sleep: a(f"s_sleep {sleep}")
        a(f"s_cmp_lg_u32 s{sSPIN}, 0", f"s_cbranch_scc1 {L0}")
        a(f"{L1}:")
    def auxbar(self, k, vt, pair=False, extra=()):
        self.signal(k, vt)
        self.await_(k, vt, "pair" if pair else "all", extra)

    def aux(self):
        a = self.a
        self.role = 'A'; self.m0 = None
        self.sCH_, self.sPT = sCH_, sPT = 48, 47
        self.cACC, self.cAF, self.cBF, self.vQA, self.vUA = 12, 44, 108, 172, 180
        vN, vt, UR = 181, 182, 192
        GATE = self.opt("gate", 8)
        def gate():
            if len(self.vm) > GATE:
                a(f"s_waitcnt vmcnt({GATE})"); self.vm = self.vm[-GATE:]
        def units(us, g=True):
            for u in us:
                if g: gate()
                for x in self.dma_ops(u): self.emit_aux(x)
        N0 = self.opt("n0", 3)
        TA = self.opt("ta", 99)
        def touch():
            mask = self.opt("tk", 3)
            a(f"s_and_b32 s{sB}, s{sAW}, 1", f"s_lshl1_add_u32 s{sB}, s{sT}, s{sB}")
            if mask & 1:
                a(f"s_mul_i32 s{sA}, s{sB}, {28*128}", f"v_min_u32 v236, 27, v1", f"v_lshlrev_b32 v236, 7, v236")
                self.vmem(f"buffer_load_dword v237, v236, {srd(S_WG)}, s{sA} offen", "tch")
            if mask & 2:
                a(f"s_lshl2_add_u32 s{sB}, s{sT}, s{sAW}", f"s_mul_i32 s{sA}, s{sB}, {14*128}", f"v_min_u32 v236, 13, v1", f"v_lshlrev_b32 v236, 7, v236")
                self.vmem(f"buffer_load_dword v238, v236, {srd(S_WD)}, s{sA} offen", "tch")
        for u in range(N0):
            if u == TA: touch()
            units([u], False)
        if TA == N0: touch()
        setup = self.kgen_setup()
        PRM = self.kregs[0]; kv = self.kvt
        a(f"s_load_dword s{sLD}, s[{S_P+8}:{S_P+9}], s{sF}", f"s_load_dword s{sDS}, s[{S_P+10}:{S_P+11}], s{sF}")
        for k in range(1, 4): a(f"v_add_u32 v{voD+k}, {k*(7168-1024)}, v{voD}")
        a(f"s_mul_i32 s{sA}, s{sAW}, {448*896}", f"s_lshl_b32 s{sB}, s{sJ2}, 7", f"s_add_u32 s{sDB}, s{sA}, s{sB}")
        a(f"s_lshr_b32 s{sCH_}, s{sAW}, 1", f"s_and_b32 s{sPT}, s{sAW}, 1")
        for x in setup: a(x)
        V0, B0, M0 = self.kgen_body(True, 0); V1, B1, M1 = self.kgen_body(False, 1)
        work = ["@prm"] + self.kgen_scale() + V0 + V1; nV1 = len(V1)
        SL = self.opt("sl", 28); KS = self.opt("ks", 2); PI = self.opt("pi", 0)
        fx = f"buffer_load_dword v{vt+1}, v{vt}, {srd(S_WS)}, 0 offen sc1"
        LB = self.opt("lb", 11)
        SCHED = {0: [[3,4],[5,6,7],[8],[9,10],[26],[11,12],[13,14],[27],[15,16],[17,18],[19,20],[21]],
                 1: [[3,4],[5,6,7],[8,26],[9,10],[11],[12,13],[14,27],[15,16],[17],[18,19],[20],[21]],
                 2: [[3,4],[5,6],[7,8],[9,10],[11,26],[12,13],[14,27],[15,16],[17],[18,19],[20],[21,22]],
                 3: [[3,4],[5,6],[7,8],[9,10],[26],[11,12],[13,14],[27],[15,16],[17,18],[19,20],[21]],
                }[self.opt("sch", 3)]
        IG = self.opt("ig", 0)
        done = set(range(N0))
        for n in range(LB + 1):
            if n == LB: self.vmem(fx, "fxf")
            us = [u for u in SCHED[n] if u not in done]; done.update(us)
            nsl = 0 if n < KS else SL
            sl = work[:nsl]; del work[:nsl]
            ops = []
            for u in us: ops += self.dma_ops(u)
            gap = max(1, len(sl) // (len(ops) + 1)) if ops else 0
            if "noil" in self.opts: gap = 0
            for i, x in enumerate(sl):
                while ops and (gap == 0 or i % gap == 0):
                    self.emit_aux(ops.pop(0))
                    if gap: break
                self.emit_aux(x)
            for o in ops: self.emit_aux(o)
            if n == 0 and TA == 5: touch()
            if n == PI:
                for b in range(2):
                    for k in range(4):
                        self.vmem(f"global_load_ushort v{PRM+4*b+k}, v19, s[{S_P+2*k}:{S_P+2*k+1}] offset:{128*b}", "prm")
                for x in self.ks_table(): a(x)
            if n == 0: self.stamp(1)
            if n == self.opt("xi", 4): self.final_pre()
            if n == self.opt("fw", 8):
                L = self.lab("Lfw")
                a(f"s_cmp_lg_u32 s{sAW}, 0", f"s_cbranch_scc1 {L}")
                a(f"s_lshl4_add_u32 s{sB}, s{sI}, s{sJ}", f"s_lshl_b32 s{sB}, s{sB}, 7", f"s_add_u32 s{sB}, s{sB}, {WS_FH}")
                a(f"v_mov_b32 v253, 0", f"v_lshlrev_b32 v252, 2, v1", "s_mov_b32 exec_hi, 0", f"buffer_store_dword v253, v252, {srd(S_WS)}, s{sB} offen sc1", "s_mov_b32 exec_hi, -1")
                a(f"{L}:")
            if n == 5: self.vmem(self.nonce_load(vN), "non")
            if n == 1:
                a(f"s_lshl_b32 s{sB}, s{sAW}, 10", f"s_add_u32 s{sB}, s{sB}, {WS_FX}", f"v_lshrrev_b32 v{vt}, 3, v1", f"v_lshl_add_u32 v{vt}, v{vt}, 7, s{sB}")
                a(f"v_lshrrev_b32 v{vt+2}, 4, v1", f"v_mul_u32_u24 v{vt+2}, {448*128}, v{vt+2}", f"v_bfe_u32 v{vt+3}, v1, 1, 3", f"v_lshl_add_u32 v{vt+2}, v{vt+3}, 6, v{vt+2}")
                a(f"v_and_b32 v{vt+3}, 1, v1", f"v_lshl_add_u32 v{vt+2}, v{vt+3}, 4, v{vt+2}")
                a(f"v_mul_u32_u24 v{vt+3}, {UB[1]-UB[0]}, v{vt+3}", f"v_lshrrev_b32 v{vt+4}, 1, v1", f"v_lshl_add_u32 v{vt+3}, v{vt+4}, 4, v{vt+3}")
                a(f"s_lshl_b32 s{sB}, s{sAW}, 10", f"s_add_u32 s{sB}, s{sB}, {UB[0] + 512}", f"v_add_u32 v{vt+3}, s{sB}, v{vt+3}")
                a(f"s_lshl1_add_u32 s{sE}, s{sT}, s{sCH_}")
                a(f"s_lshr_b32 s{sC}, s{sT}, 1", f"s_lshl_b32 s{sC}, s{sC}, 9", f"s_and_b32 s{sB}, s{sT}, 1", f"s_lshl_b32 s{sB}, s{sB}, 5", f"s_add_u32 s{sC}, s{sC}, s{sB}")
                a(f"s_mul_i32 s{sB}, s{sAW}, {8*448*128}", f"s_add_u32 s{sC}, s{sC}, s{sB}", f"s_add_u32 s{sC}, s{sC}, {WS_XNT}", f"s_add_u32 s{sD}, s{sC}, {4*448*128}")
            if n == 10: self.get_nonce(vN, issued="non")
            if n == LB - 2: self.wait_vm("u26")
            if n == LB - 1: self.wait_vm("u27")
            self.wait_vm(f"u{3 * (n // 2) + 1 + (n % 2)}" if n < LB else "u20")
            a("s_barrier")
            if n == 0: self.stamp(2)
        self.stamp(3)
        print("K-gen instrs left after the last barrier:", len(work), file=sys.stderr)
        self.spin([fx], [vt + 1], first_issued_tag="fxf", note=1)
        self.stamp(4)
        for k in range(2):
            self.vmem(f"buffer_load_dwordx4 v[{UR+4*k}:{UR+4*k+3}], v{vt+2}, {srd(S_WS)}, s{sD if k else sC} offen sc1", "uu")
        for x in self.r2load: self.vmem(x, "fx")
        NDA = self.NDA
        for x in work: self.emit_aux(x)
        self.conv_addr(236)
        units([u for u in (22, 23) if u not in done])
        if NDA > 3:
            self.await_(8, kv, "all", sleep=1)
            units(range(24, 21 + NDA))
        if "auxidle" in self.opts:
            self.wait_vm_all(); self.signal(0, kv); a("s_barrier"); self.write_stamps(1); a("s_endpgm"); return
        self.stamp3(1)
        a(f"s_setprio {self.opt('ap2', 1)}")
        a(f"v_lshlrev_b32 v{kv}, 2, v1", f"v_mov_b32 v{kv+1}, 0x3c00", f"ds_write_b32 v{kv}, v{kv+1} offset:31984")
        for x in B0: self.emit_aux(x)
        self.wait_vm(f"u{20 + NDA}")
        self.signal(0, kv)
        self.stamp3(2)
        for i, x in enumerate(B1):
            self.emit_aux(x)
            if i == 14: a("s_waitcnt lgkmcnt(15)")
            if i >= 14 and i % 4 == 2 and M0: a(M0.pop(0))
        assert not M0
        for k, x in enumerate(M1):
            a(f"s_waitcnt lgkmcnt({7-k})"); a(x)
        self.stamp3(3)
        self.await_(9, kv + 1, "all")
        self.image(UR, vt)
        self.conv()

    def image(self, UR, vt):
        a = self.a
        KD, BF, AF, vA = self.KD, self.kBF, self.kAF, self.kvt
        sCH_, sPT = self.sCH_, self.sPT
        def by_part(f):
            L1, L2 = self.lab("Lp"), self.lab("Lp")
            a(f"s_cmp_eq_u32 s{sPT}, 0", f"s_cbranch_scc0 {L1}")
            f(0); a(f"s_branch {L2}", f"{L1}:"); f(1); a(f"{L2}:")
        keep = {0: range(0, 12), 1: range(12, 16)}
        a(f"s_add_u32 s{sC}, s{sM0}, {XCH}", f"v_lshl_add_u32 v{vA}, v1, 4, s{sC}")
        for r in range(16): a(f"v_mul_f32 v{KD+r}, v{KD+r}, v18")
        def f(pt):
            for r in list(keep[1 - pt])[::4]: a(f"ds_write_b128 v{vA}, v[{KD+r}:{KD+r+3}] offset:{256*r}")
        by_part(f)
        self.auxbar(1, vA + 1)
        self.stamp3(4)
        a(f"v_xor_b32 v{vA}, 0x1000, v{vA}")
        O = AF
        blocks = [[KD + i for i in range(9)], [KD + 9] * 3 + [KD + 10] * 3 + [KD + 11] * 3]
        for k, r0 in enumerate((KD + 12, KD + 14)):
            blocks.append([r0] * 4 + [BF + k] + [r0 + 1] * 4)
        a(f"s_mul_i32 s{sD}, s{sCH_}, {QB[1]}")
        def f(pt):
            K = list(keep[pt])
            for r in K[::4]: a(f"ds_read_b128 v[{BF+16+r}:{BF+16+r+3}], v{vA} offset:{256*r}")
            a(f"v_lshl_add_u32 v{vA}, v1, 5, s{sD}")
            if pt == 0:
                a(f"v_cmp_eq_u32 vcc, 0, v1", f"v_mov_b32 v{vA+2}, s{sDS}", f"v_cndmask_b32 v{vA+2}, 0, v{vA+2}, vcc", f"v_add_f32 v{KD}, v{KD}, v{vA+2}")
            else:
                a(f"v_and_b32 v{vA+1}, 1, v1", f"v_cmp_eq_u32 vcc, 1, v{vA+1}")
            a("s_waitcnt lgkmcnt(0)")
            for r in K: a(f"v_add_f32 v{KD+r}, v{KD+r}, v{BF+16+r}")
            if pt:
                for k, r0 in enumerate((KD + 12, KD + 14)): a(f"v_cndmask_b32 v{BF+k}, v{r0}, v{r0+1}, vcc")
            for bi in (2 * pt, 2 * pt + 1):
                v = blocks[bi]
                for e_ in range(8): a(f"v_cvt_pk_bf16_f32 v{O+8*bi+e_}, v{v[e_+1]}, v{v[e_]}")
                for h in range(2): a(f"ds_write_b128 v{vA}, v[{O+8*bi+4*h}:{O+8*bi+4*h+3}] offset:{64 + 2048*bi + 16*h}")
            if pt == 0:
                a(f"v_readfirstlane_b32 s{sA}, v{O}")
                a(f"s_lshr_b32 s{sA}, s{sA}, 16", f"v_mov_b32 v{vA+1}, s{sA}", f"v_and_b32 v{vA+2}, 15, v1", f"v_cmp_eq_u32 vcc, 15, v{vA+2}")
                a(f"v_cndmask_b32 v{vA+1}, 0, v{vA+1}, vcc", f"v_lshl_add_u32 v{vA+2}, v{vA+2}, 2, s{sD}")
                a(f"ds_write_b32 v{vA+2}, v{vA+1}")
            else:
                a(f"s_mul_i32 s{sD}, s{sCH_}, {UB[1]-UB[0]}", f"v_lshl_add_u32 v{vA+2}, v1, 3, s{sD}")
                a(f"v_mov_b32 v{O}, 0", f"v_mov_b32 v{O+1}, 0")
                a(f"ds_write_b64 v{vA+2}, v[{O}:{O+1}] offset:{UB[0]}")
        by_part(f)
        self.stamp3(5)
        self.wait_vm("uu")
        self.stamp3(6)
        for k in range(2): a(f"ds_write_b128 v{vt+3}, v[{UR+4*k}:{UR+4*k+3}] offset:{512*k}")
        self.auxbar(2, vA + 1)
        self.stamp3(7)
        for r in self.areads(0)[:2] + self.breads(0) + self.areads(0)[2:]: a(r)

    def conv_addr(self, vt):
        a = self.a
        sCH_, sPT, vQA, vUA = self.sCH_, self.sPT, self.vQA, self.vUA
        a(f"v_and_b32 v{vt+1}, 15, v1", f"v_lshrrev_b32 v{vt+2}, 4, v1")
        a(f"v_lshlrev_b32 v{vt+3}, 3, v{vt+2}", f"v_sub_u32 v{vt+3}, v{vt+1}, v{vt+3}")
        a(f"s_mul_i32 s{sC}, s{sCH_}, {QB[1]}", f"s_lshl_b32 s{sD}, s{sPT}, 9", f"s_add_u32 s{sC}, s{sC}, s{sD}", f"s_add_u32 s{sC}, s{sC}, 100")
        a(f"v_lshl_add_u32 v{vQA}, v{vt+3}, 2, s{sC}")
        for q in range(1, 8): a(f"v_add_u32 v{vQA+q}, {1024*q}, v{vQA}")
        a(f"s_mul_i32 s{sC}, s{sCH_}, {UB[1]-UB[0]}")
        a(f"s_lshl_b32 s{sD}, s{sPT}, 8", f"s_sub_u32 s{sC}, s{sC}, s{sD}", f"s_add_u32 s{sC}, s{sC}, {UB[0] + 480 - 192}")
        a(f"v_lshlrev_b32 v{vt+3}, 5, v{vt+1}", f"v_lshl_add_u32 v{vt+3}, v{vt+2}, 4, v{vt+3}", f"v_add_u32 v{vUA}, s{sC}, v{vt+3}")
    def areads(self, rr):
        buf = self.cAF + 32 * (rr & 1); R = []
        for q in range(8):
            R.append(f"ds_read2_b32 v[{buf+4*q}:{buf+4*q+1}], v{self.vQA+q} offset0:{32*rr+6} offset1:{32*rr+4}")
            R.append(f"ds_read2_b32 v[{buf+4*q+2}:{buf+4*q+3}], v{self.vQA+q} offset0:{32*rr+2} offset1:{32*rr}")
        return R
    def breads(self, rr):
        buf = self.cBF + 32 * (rr & 1)
        return [f"ds_read_b128 v[{buf+4*c}:{buf+4*c+3}], v{self.vUA} offset:{512*c + 192 - 64*rr}" for c in range(8)]

    def conv(self):
        a = self.a
        vt = 5
        ACC, AF, BF = self.cACC, self.cAF, self.cBF
        sCH_, sPT = self.sCH_, self.sPT
        self.stamp(5)
        for rr in range(4):
            a("s_waitcnt lgkmcnt(0)")
            pend = (self.breads(rr + 1) + self.areads(rr + 1)) if rr < 3 else []
            ab, bb = AF + 32 * (rr & 1), BF + 32 * (rr & 1)
            for q in range(8):
                for c in range(q, 8):
                    d = ACC + 4 * c
                    cc = "0" if (rr == 0 and q == 0) else f"v[{d}:{d+3}]"
                    a(f"v_mfma_f32_16x16x32_bf16 v[{d}:{d+3}], v[{ab+4*q}:{ab+4*q+3}], v[{bb+4*(c-q)}:{bb+4*(c-q)+3}], {cc}")
                    if pend: a(pend.pop(0))
        self.stamp(6)
        KP = AF; RX = AF + 16
        a(f"s_lshl_b32 s{sA}, s{sAW}, 12", f"s_add_u32 s{sA}, s{sA}, {XCH}", f"v_lshl_add_u32 v{vt}, v1, 4, s{sA}")
        a("s_nop 3")
        L1, L2 = self.lab("Lx"), self.lab("Lx")
        a(f"s_cmp_eq_u32 s{sPT}, 0", f"s_cbranch_scc0 {L1}")
        for pt in range(2):
            if pt: a(f"{L1}:")
            for t in range(4): a(f"ds_write_b128 v{vt}, v[{ACC+16*(1-pt)+4*t}:{ACC+16*(1-pt)+4*t+3}] offset:{1024*t}")
            for i in range(0, 16, 2): a(f"v_mov_b64 v[{KP+i}:{KP+i+1}], v[{ACC+16*pt+i}:{ACC+16*pt+i+1}]")
            if not pt: a(f"s_branch {L2}")
        a(f"{L2}:")
        a(f"v_bfe_u32 v{vt+3}, v1, 2, 2", f"v_mul_u32_u24 v{vt+3}, {448*256}, v{vt+3}", f"v_and_b32 v{vt+4}, 3, v1", f"v_lshl_add_u32 v{vt+3}, v{vt+4}, 4, v{vt+3}")
        a(f"v_and_b32 v{vt+4}, 48, v1", f"v_lshl_add_u32 v{vt+3}, v{vt+4}, 2, v{vt+3}")
        a(f"s_mul_i32 s{sC}, s{sPT}, {16*448*256}", f"s_lshl_b32 s{sB}, s{sE}, 8", f"s_add_u32 s{sC}, s{sC}, s{sB}", f"s_add_u32 s{sC}, s{sC}, {WS_YT}")
        a(f"v_xor_b32 v{vt}, 0x1000, v{vt}")
        self.auxbar(3, vt + 1, pair=True, extra=[f"ds_read_b128 v[{RX+4*t}:{RX+4*t+3}], v{vt} offset:{1024*t}" for t in range(4)])
        for t in range(4):
            k = KP + 4 * t
            for i in range(4): a(f"v_add_f32 v{k+i}, v{k+i}, v{RX+4*t+i}")
            a(f"v_cvt_pk_bf16_f32 v{k}, v{k}, v{k+1}", f"v_cvt_pk_bf16_f32 v{k+2}, v{k+2}, v{k+3}", f"v_mov_b32 v{k+1}, s{sTAG}", f"v_mov_b32 v{k+3}, s{sTAG}")
            self.vmem(f"buffer_store_dwordx4 v[{k}:{k+3}], v{vt+3}, {srd(S_WS)}, s{sC} offen sc1", "yst")
            if t < 3: a(f"s_add_u32 s{sC}, s{sC}, {4*448*256}")
        a("s_setprio 0")
        self.stamp(7)
        if self.stage < 4:
            self.write_stamps(1)
            a("s_endpgm"); return
        YR = 12
        self.final_addr(76)
        a(f"s_lshl_b32 s{sB}, s{sJ2}, 6", f"s_lshl_b32 s{sC}, s{sAW}, 4", f"s_add_u32 s{sB}, s{sB}, s{sC}")
        a(f"s_mul_i32 s{sA}, s{sI2}, 448", f"s_add_u32 s{sA}, s{sA}, s{sB}", f"s_lshl_b32 s{sA}, s{sA}, 8", f"s_add_u32 s{sA}, s{sA}, {WS_YT}")
        a(f"v_lshlrev_b32 v{vt}, 4, v1")
        a(f"v_lshrrev_b32 v{vt+1}, 4, v1", f"v_mul_u32_u24 v{vt+1}, 144, v{vt+1}", f"v_and_b32 v{vt+2}, 3, v1", f"v_lshl_add_u32 v{vt+1}, v{vt+2}, 5, v{vt+1}")
        a(f"v_bfe_u32 v{vt+3}, v1, 2, 2", f"v_lshl_add_u32 v{vt+1}, v{vt+3}, 3, v{vt+1}")
        a(f"s_mul_i32 s{sC}, s{sCH_}, {QB[1]}", f"s_lshl_b32 s{sB}, s{sPT}, 12", f"s_add_u32 s{sC}, s{sC}, s{sB}", f"v_add_u32 v{vt+1}, s{sC}, v{vt+1}")
        a(f"v_mul_u32_u24 v{vt+3}, 144, v{vt+3}", f"v_lshl_add_u32 v{vt+3}, v{vt+2}, 3, v{vt+3}", f"v_and_b32 v{vt+2}, 48, v1", f"v_lshl_add_u32 v{vt+3}, v{vt+2}, 1, v{vt+3}")
        a(f"v_add_u32 v{vt+3}, s{sC}, v{vt+3}", f"v_mul_u32_u24 v{vt+4}, 48, v1", f"v_add_u32 v{vt+4}, s{sC}, v{vt+4}")
        a(f"v_add_u32 v{vt+2}, 1152, v{vt+1}")
        a(f"s_mov_b32 s{sD}, s{sA}")
        self.await_(4, YR, "same", sleep=4)
        loads = [f"buffer_load_dwordx4 v[{YR+4*k}:{YR+4*k+3}], v{vt}, {srd(S_WS)}, s{sD} offen offset:{1024*k} sc1" for k in range(4)]
        self.spin(loads, [YR + 2 * i + 1 for i in range(8)], sleep=self.opt("ysp", 4), note=2)
        self.vm = ["fx"]
        for k in range(4): a(f"ds_write2_b32 v{vt+1}, v{YR+4*k}, v{YR+4*k+2} offset0:{144*k} offset1:{144*k+1}" if 144 * k + 1 < 256 else
                             f"ds_write2_b32 v{vt+2}, v{YR+4*k}, v{YR+4*k+2} offset0:{144*(k-2)} offset1:{144*(k-2)+1}")
        for t in range(4): a(f"ds_read_b64_tr_b16 v[{YR+16+2*t}:{YR+17+2*t}], v{vt+3} offset:{4*144*t}")
        a("s_waitcnt lgkmcnt(0)")
        for h in range(2): a(f"ds_write_b128 v{vt+4}, v[{YR+16+4*h}:{YR+19+4*h}] offset:{16*h}")
        self.final(76)

    def build(self):
        a = self.a
        a(".text", f".globl {NAME}_kernel", ".p2align 8", f".type {NAME}_kernel,@function", f"{NAME}_kernel:")
        self.prologue()
        self.aux()
        self.mwave()
        self.helper()
        a("L_exit:", "s_endpgm")
        added = a.fix_hazards()
        errs = a.check_waits()
        for e in errs[:5]: print("WAITERR:", e, file=sys.stderr)
        if errs and not (self.opts & {"nokg", "nod", "nolds", "lax"}): raise SystemExit("wait errors")
        mv, ma, ms = a.max_regs()
        print(f"instrs {sum(1 for c in a.ins if c.kind not in ('dir','label'))} nops added {added} maxv {mv} maxs {ms}", file=sys.stderr)
        head = f"; fused LN + S4D conv + ReGLU FFN\n; @launch grid=(256,1,1) block=(512,1,1) lds=163840\n.amdgcn_target \"amdgcn-amd-amdhsa--gfx950\"\n"
        return head + a.text() + kernel_desc(NAME + "_kernel", 256, 256)

if __name__ == "__main__":
    import argparse
    ap = argparse.ArgumentParser()
    ap.add_argument("--stage", type=int, default=9); ap.add_argument("--stamps", action="store_true"); ap.add_argument("-o", default="k.s"); ap.add_argument("--opts", default="")
    x = ap.parse_args()
    open(x.o, "w").write(Gen(x.stage, x.stamps, [o for o in x.opts.split(',') if o]).build())
```

```python
import sys, struct
import numpy as np
from asmlib import Asm, kernel_desc
NAME = "parallel_sum__ssm_conv_s4d__glu_gated_reglu__prompt"

HS     = 225 * 1024
WS_H   = 0x0000000
WS_XNT = 0x0800000
WS_YT  = 0x0A00400
WS_CS  = 0x0E00000
WS_NM  = 0x0E10000
WS_R2  = 0x0E20000
WS_FH  = 0x0E30000
WS_FX  = 0x0E58000
WS_ST  = 0xF000000
RING = 32768
def slot_addr(s): return RING + 16384 * s
DBASE = RING
QB = [0, 8320]
UB = [16640, 21248]
AUXCNT = 32256
XCH = slot_addr(7)
SPIN_MAX = 20000

def f32(x): return "0x%08x" % struct.unpack("<I", struct.pack("<f", x))[0]
LOG2E = 1.4426950408889634

S_X, S_WG, S_WU, S_WD, S_WS, S_OUT, S_DBG = 4, 8, 12, 16, 20, 24, 28
def srd(b): return f"s[{b}:{b+3}]"
S_P = 32
sCH = 48
sXB, sWB, sDB, sM0, sAW, sSB = 55, 56, 57, 58, 59, 46
sW, sI, sJ, sI2, sJ2, sT, sST, sTAG, sSPIN = 60, 61, 62, 63, 64, 65, 44, 67, 68
sF, sA, sB, sC, sD, sE, sG = 69, 70, 71, 72, 73, 74, 75
sEX = 76
sLD, sDS = 78, 79
sKS = 32
sQI = 53
S_STAMP = 80
voX, voW, voD = 240, 244, 248

class Gen:
    def __init__(self, stage=9, stamps=False, opts=()):
        self.a = Asm(); self.stage = stage; self.stamps = stamps; self.opts = set(opts)
        self.nlab = 0; self.role = ''
        self.NDA = self.opt('nda', 3)
        self.vm = []
    def opt(self, name, default):
        for o in self.opts:
            if o.startswith(name + "="): return int(o[len(name) + 1:])
        return default
    def lab(self, p="L"):
        self.nlab += 1; return f"{p}_{self.nlab}"
    def cstamp(self, k):
        if self.stamps and "cyc" in self.opts: self.a(f"s_memtime s[{S_STAMP+2*k}:{S_STAMP+2*k+1}]")
    def stamp2(self, k):
        if self.stamps and "g2" in self.opts: self.a(f"s_memrealtime s[{S_STAMP+2*k}:{S_STAMP+2*k+1}]")
    def stamp3(self, k):
        if self.stamps and "g3" in self.opts: self.a(f"s_memrealtime s[{S_STAMP+2*k}:{S_STAMP+2*k+1}]")
    def stampk(self, k):
        if self.stamps: self.a(f"s_memrealtime s[{S_STAMP+2*k}:{S_STAMP+2*k+1}]")
    def stamp(self, k):
        if "k1" in self.opts and self.role in "MA" and self.role and 3 <= k <= 7: return
        if "spins" in self.opts: return
        if "g3" in self.opts and self.role == "A" and 1 <= k <= 7: return
        if "g2" in self.opts and self.role == "M" and 1 <= k <= 7: return
        if self.stamps and "cyc" not in self.opts: self.a(f"s_memrealtime s[{S_STAMP+2*k}:{S_STAMP+2*k+1}]")
    def vmem(self, text, tag=None):
        self.a(text); self.vm.append(tag)
    def wait_vm(self, tag):
        idx = [i for i, t in enumerate(self.vm) if t == tag]
        if not idx: return
        n = len(self.vm) - 1 - idx[-1]
        assert n <= 63
        self.a(f"s_waitcnt vmcnt({n})")
        self.vm = self.vm[idx[-1] + 1:]
    def wait_vm_all(self):
        self.a("s_waitcnt vmcnt(0)"); self.vm = []

    def spin(self, loads, checks, first_issued_tag=None, sleep=2, note=None):
        a = self.a
        L0, L1 = self.lab("Lspin"), self.lab("Lok")
        if "spins" in self.opts: a(f"s_mov_b32 s{sSPIN}, {SPIN_MAX+1}")
        if first_issued_tag is not None:
            self.wait_vm(first_issued_tag)
            self._check(checks)
            a(f"s_cbranch_vccz {L1}")
        a(f"s_mov_b32 s{sSPIN}, {SPIN_MAX}")
        a(f"{L0}:")
        for l in loads: a(l)
        a("s_waitcnt vmcnt(0)")
        self._check(checks)
        a(f"s_cbranch_vccz {L1}")
        if sleep: a(f"s_sleep {sleep}")
        a(f"s_sub_u32 s{sSPIN}, s{sSPIN}, 1", f"s_cmp_lg_u32 s{sSPIN}, 0", f"s_cbranch_scc1 {L0}")
        a(f"{L1}:")
        if "spins" in self.opts and note is not None: a(f"s_sub_u32 s{S_STAMP+2*note}, {SPIN_MAX+2}, s{sSPIN}")
        if first_issued_tag is None: self.vm = []
    def _check(self, checks):
        a = self.a
        a(f"v_cmp_ne_u32 vcc, s{sTAG}, v{checks[0]}")
        for c in checks[1:]:
            a(f"v_cmp_ne_u32 s[{sEX}:{sEX+1}], s{sTAG}, v{c}")
            a(f"s_or_b64 vcc, vcc, s[{sEX}:{sEX+1}]")
        a("s_nop 4" if len(checks) == 1 else "s_nop 0")
    def nonce_load(self, vt): return f"buffer_load_dword v{vt}, off, {srd(S_DBG)}, 0 sc1"
    def get_nonce(self, vt, issued=None):
        a = self.a
        L0, L1, L2 = self.lab("Lnon"), self.lab("Lnok"), self.lab("Lnx")
        def test():
            a(f"v_readfirstlane_b32 s{sTAG}, v{vt}", "s_nop 0")
            a(f"s_sub_u32 s{sEX}, s{sST}, s{sTAG}", f"s_cmp_lt_i32 s{sEX}, s{sEX+1}", f"s_cselect_b32 s{sEX}, s{sTAG}, 0")
            a(f"s_cmp_lg_u32 s{sEX}, 0", f"s_cbranch_scc1 {L1}")
        a(f"s_movk_i32 s{sEX+1}, 600")
        if issued is not None:
            self.wait_vm(issued); test()
        a(f"s_mov_b32 s{sSPIN}, {SPIN_MAX}")
        a(f"{L0}:")
        a(self.nonce_load(vt), "s_waitcnt vmcnt(0)")
        test()
        a(f"s_sub_u32 s{sSPIN}, s{sSPIN}, 1", f"s_cmp_lt_u32 s{sSPIN}, {SPIN_MAX-100}", f"s_cselect_b32 s{sEX+1}, 0x7fffffff, s{sEX+1}")
        a(f"s_cmp_lg_u32 s{sSPIN}, 0", f"s_cbranch_scc1 {L0}")
        a(f"{L1}:")
        if issued is None: self.vm = []
    def write_stamps(self, which):
        if not self.stamps: return
        a = self.a
        L = self.lab("Lst")
        a("s_waitcnt lgkmcnt(0)")
        a(f"s_cmp_lg_u32 s{sW}, {4*which}", f"s_cbranch_scc1 {L}")
        a(f"s_lshl_b32 s{sA}, s2, 8", f"s_add_u32 s{sA}, s{sA}, {WS_ST + 128*which}")
        a(f"s_mov_b64 s[{sEX}:{sEX+1}], exec", "s_mov_b64 exec, 1")
        for k in range(10):
            a(f"v_mov_b32 v2, s{S_STAMP+2*k}", f"v_mov_b32 v3, s{S_STAMP+2*k+1}")
            a(f"buffer_store_dwordx2 v[2:3], off, {srd(S_WS)}, s{sA} offset:{8*k}")
        a(f"s_mov_b64 exec, s[{sEX}:{sEX+1}]")
        a(f"{L}:")

    def prologue(self):
        a = self.a
        for (r, off) in ((S_X, 0), (S_WG, 64), (S_WU, 72)):
            a(f"s_load_dwordx2 s[{r}:{r+1}], s[0:1], {off}")
        a(f"s_load_dwordx8 s[{S_P}:{S_P+7}], s[0:1], 8", f"s_load_dwordx4 s[{S_P+8}:{S_P+11}], s[0:1], 40")
        a("s_cmp_ge_u32 s2, 256", "s_cbranch_scc1 L_exit")
        if "nopf" not in self.opts:
            L = self.lab("Lpc"); L2 = self.lab("Lpc")
            a(f"s_getpc_b64 s[{sA}:{sB}]", f"{L}:")
            a("v_lshlrev_b32 v254, 7, v0", f"v_cmp_gt_u32 vcc, L_exit-{L}, v254")
            a(f"s_and_saveexec_b64 s[{sEX}:{sEX+1}], vcc", f"s_cbranch_execz {L2}")
            a(f"global_load_dword v255, v254, s[{sA}:{sB}]")
            a(f"{L2}:", f"s_mov_b64 exec, s[{sEX}:{sEX+1}]")
        for (r, off) in ((S_WD, 80), (S_OUT, 88), (S_DBG, 96), (S_WS, 104)):
            a(f"s_load_dwordx2 s[{r}:{r+1}], s[0:1], {off}")
        a(f"s_memrealtime s[{sST}:{sST+1}]")
        if self.stamps:
            for k in range(1, 10): a(f"s_mov_b64 s[{S_STAMP+2*k}:{S_STAMP+2*k+1}], 0")
        self.stamp(0)
        vt = 5
        a(f"v_lshrrev_b32 v{vt}, 6, v0", "v_and_b32 v1, 63, v0")
        a(f"v_readfirstlane_b32 s{sW}, v{vt}")
        a(f"s_mov_b32 s{S_X+2}, 1835008", f"s_mov_b32 s{S_X+3}, 0x20000", f"s_mov_b32 s{S_WG+2}, 1605632", f"s_mov_b32 s{S_WG+3}, 0x20000")
        a(f"s_mov_b64 s[{S_WU+2}:{S_WU+3}], s[{S_WG+2}:{S_WG+3}]", f"s_mov_b64 s[{S_WD+2}:{S_WD+3}], s[{S_WG+2}:{S_WG+3}]", f"s_mov_b64 s[{S_OUT+2}:{S_OUT+3}], s[{S_X+2}:{S_X+3}]")
        a(f"s_mov_b32 s{S_WS+2}, 0x10000000", f"s_mov_b32 s{S_WS+3}, s{S_X+3}", f"s_movk_i32 s{S_DBG+2}, 256", f"s_mov_b32 s{S_DBG+3}, s{S_X+3}")
        a(f"s_and_b32 s{sA}, s2, 7", f"s_lshr_b32 s{sB}, s2, 3")
        a("s_cmp_lt_u32 s2, 32", "s_cbranch_scc1 L_helper")
        a(f"s_sub_u32 s{sB}, s{sB}, 4")
        a(f"s_mul_i32 s{sC}, s{sB}, 37", f"s_lshr_b32 s{sC}, s{sC}, 8")
        a(f"s_mul_i32 s{sD}, s{sC}, 7", f"s_sub_u32 s{sJ2}, s{sB}, s{sD}")
        a(f"s_lshr_b32 s{sD}, s{sA}, 1", f"s_lshl2_add_u32 s{sI}, s{sD}, s{sC}")
        a(f"s_and_b32 s{sD}, s{sA}, 1", f"s_mul_i32 s{sD}, s{sD}, 7", f"s_add_u32 s{sJ}, s{sD}, s{sJ2}")
        a(f"s_lshl2_add_u32 s{sI2}, s{sA}, s{sC}")
        a(f"s_sub_u32 s{sT}, s2, 32")
        a(f"s_mov_b32 s{sQI}, s{sC}", f"s_and_b32 s{sAW}, s{sW}, 3")
        a(f"s_lshl_b32 s{sD}, s{sT}, 10", f"s_lshl_b32 s{sE}, s{sAW}, 8", f"s_add_u32 s{sD}, s{sD}, s{sE}")
        a(f"v_lshl_add_u32 v19, v1, 1, s{sD}", f"s_lshl_b32 s{sF}, s{sT}, 2")
        a(f"v_lshrrev_b32 v{vt}, 3, v1", f"v_and_b32 v{vt+1}, 7, v1", f"v_lshrrev_b32 v{vt+2}, 4, v1")
        a(f"v_mul_u32_u24 v15, 896, v{vt}")
        a(f"v_lshlrev_b32 v14, 1, v{vt+2}", f"v_xor_b32 v14, v14, v{vt+1}", f"v_lshl_add_u32 v{voD}, v14, 4, v15")
        a(f"s_lshl_b32 s{sM0}, s{sAW}, 12")
        a(f"s_cmp_lt_u32 s{sW}, 4", "s_cbranch_scc1 L_m")
        a(f"v_xor_b32 v14, v{vt+2}, v{vt+1}", f"v_lshl_add_u32 v{voX}, v14, 4, v15")
        a(f"v_xor_b32 v14, 64, v{voX}", f"v_add_u32 v{voX+1}, {7168-1024}, v14", f"v_add_u32 v{voX+2}, {2*(7168-1024)}, v{voX}", f"v_add_u32 v{voX+3}, {3*(7168-1024)}, v14")
        a(f"v_lshlrev_b32 v14, 1, v{vt+2}", f"v_and_b32 v15, 15, v1", f"v_xor_b32 v14, v14, v15")
        a(f"v_mul_u32_u24 v15, 3584, v{vt+2}", f"v_lshl_add_u32 v{voW}, v14, 4, v15")
        a(f"v_xor_b32 v14, 0x80, v{voW}", f"v_add_u32 v{voW+1}, {14336-1024}, v{voW}", f"v_add_u32 v{voW+2}, {2*(14336-1024)}, v14", f"v_add_u32 v{voW+3}, {3*(14336-1024)}, v14")
        a(f"s_lshl2_add_u32 s{sA}, s{sI}, s{sAW}", f"s_mul_i32 s{sXB}, s{sA}, {32*896}")
        a(f"s_and_b32 s{sA}, s{sAW}, 1", f"s_mul_i32 s{sA}, s{sA}, {16*3584}", f"s_lshl_b32 s{sB}, s{sJ}, 8", f"s_add_u32 s{sWB}, s{sA}, s{sB}")
        a(f"s_cmp_ge_u32 s{sAW}, 2")
        a("s_waitcnt lgkmcnt(0)")
        self.vm = ["pf"]
        a(f"s_cselect_b32 s{S_WG}, s{S_WU}, s{S_WG}", f"s_cselect_b32 s{S_WG+1}, s{S_WU+1}, s{S_WG+1}")

    def ks_table(self):
        L = []
        for p in range(7):
            lo, mod = (0, 4) if p < 4 else (4, 3)
            d = sKS + p
            if self.opt("rot2", 1):
                L += [f"s_add_u32 s{d}, s{sQI}, {p - lo}", f"s_cmp_ge_u32 s{d}, {mod}", f"s_cselect_b32 s{sB}, {mod}, 0", f"s_sub_u32 s{d}, s{d}, s{sB}"]
                L += [f"s_add_u32 s{d}, s{d}, s{sJ2}"]
                if lo: L += [f"s_add_u32 s{d}, s{d}, {lo}"]
                L += [f"s_cmp_ge_u32 s{d}, 7", f"s_cselect_b32 s{sB}, 7, 0", f"s_sub_u32 s{d}, s{d}, s{sB}"]
            else: L += [f"s_mov_b32 s{d}, {p}"]
        return L

    def colsum_partial(self, regs, C, vt, area):
        a = self.a
        for n, R in enumerate(regs):
            for i in range(4):
                if n == 0: a(f"v_lshlrev_b32 v{C+2*i}, 16, v{R+i}", f"v_and_b32 v{C+2*i+1}, 0xffff0000, v{R+i}")
                else: a(f"v_dot2c_f32_bf16 v{C+2*i}, s{self.sLO}, v{R+i}", f"v_dot2c_f32_bf16 v{C+2*i+1}, s{self.sHI}, v{R+i}")
        for i in range(4): a(f"v_permlane32_swap_b32 v{C+i}, v{C+i+4}")
        for i in range(4): a(f"v_add_f32 v{C+i}, v{C+i}, v{C+i+4}")
        for i in range(2): a(f"v_permlane16_swap_b32 v{C+i}, v{C+i+2}")
        for i in range(2): a(f"v_add_f32 v{C+i}, v{C+i}, v{C+i+2}")
        a(f"ds_write_b64 v{self.hCSW}, v[{C}:{C+1}] offset:{area}")
    def colsum_final(self, area, C, vt):
        a = self.a
        L = self.lab("Lcs")
        a(f"s_cmp_ge_u32 s{sW}, 2", f"s_cbranch_scc1 {L}")
        a(f"v_lshlrev_b32 v{vt}, 2, v0")
        for w in range(8): a(f"ds_read_b32 v{C+w}, v{vt} offset:{area + 512*w}")
        a(f"v_lshlrev_b32 v{vt}, 4, v0")
        a(f"s_add_u32 s{sA}, s{sJ}, {WS_CS}")
        a("s_waitcnt lgkmcnt(0)")
        for (x, y) in ((0,1),(2,3),(4,5),(6,7),(0,2),(4,6),(0,4)): a(f"v_add_f32 v{C+x}, v{C+x}, v{C+y}")
        a(f"v_mov_b32 v{C+1}, s{sTAG}")
        a(f"buffer_store_dwordx2 v[{C}:{C+1}], v{vt}, {srd(S_WS)}, s{sA} offen sc1")
        a(f"{L}:")

    def helper(self):
        a = self.a
        self.vm = []; self.role = 'H'
        a("L_helper:")
        WA, XR, WB, C, XF = 4, 32, 60, 88, 100
        vt = 96; vR, vP = 160, 161; vW, vX = 162, 163; self.hCSW = 164
        vS, vM, vMB, vQ, vRr = 165, 166, 172, 168, 170
        self.sLO, self.sHI, sONE = 48, 49, 50
        TS = 912; CSA = 61440
        a(f"v_lshrrev_b32 v{vR}, 3, v0", f"v_and_b32 v{vP}, 7, v0")
        a(f"v_lshlrev_b32 v{vt}, 4, v{vP}")
        a(f"v_lshrrev_b32 v{vW}, 4, v0", f"v_mul_u32_u24 v{vW}, 3584, v{vW}", f"v_and_b32 v{vt+1}, 15, v1", f"v_lshl_add_u32 v{vW}, v{vt+1}, 4, v{vW}")
        a(f"v_mul_u32_u24 v{vX}, 896, v{vR}", f"v_add_u32 v{vX}, v{vX}, v{vt}")
        a(f"s_lshl2_add_u32 s{sI}, s{sA}, s{sB}")
        a(f"s_lshr_b32 s{sC}, s{sA}, 1", f"s_lshl2_add_u32 s{sT}, s{sC}, s{sB}")
        a(f"s_and_b32 s{sA}, s{sA}, 1", f"s_mul_i32 s{sA}, s{sA}, 7", f"s_add_u32 s{sA}, s{sA}, s{sT}")
        a(f"s_cmp_ge_u32 s{sT}, 7", f"s_cselect_b32 s{sB}, 7, 0", f"s_cselect_b32 s{sJ}, 8, 0", f"s_sub_u32 s{sB}, s{sA}, s{sB}", f"s_lshl_b32 s{sB}, s{sB}, 8")
        a(f"s_lshl3_add_u32 s{sJ}, s{sB}, s{sJ}")
        a(f"s_cmp_ge_u32 s{sT}, 14", f"s_cselect_b32 s{S_WG+2}, 0, s{S_WG+2}", f"s_cselect_b32 s{sJ}, 0x8000, s{sJ}")
        a(f"s_mul_i32 s{sC}, s{sI}, {64*896}")
        a("s_waitcnt lgkmcnt(0)")
        Ln = self.lab("Lnn")
        a(f"s_or_b32 s{sD}, s2, s{sW}", f"s_cmp_lg_u32 s{sD}, 0", f"s_cbranch_scc1 {Ln}")
        a(f"s_or_b32 s{sA}, s{sST}, 1", f"v_mov_b32 v2, s{sA}")
        a("s_mov_b64 exec, 1", f"buffer_store_dword v2, off, {srd(S_DBG)}, 0 sc1", "s_mov_b64 exec, -1")
        a(f"{Ln}:")
        a(f"s_cmp_ge_u32 s{sT}, 7", f"s_cselect_b32 s{S_WG}, s{S_WU}, s{S_WG}", f"s_cselect_b32 s{S_WG+1}, s{S_WU+1}, s{S_WG+1}")
        for t in range(7):
            self.vmem(f"buffer_load_dwordx4 v[{XR+4*t}:{XR+4*t+3}], v{vX}, {srd(S_X)}, s{sC} offen offset:{128*t}", "XR")
        a(f"s_mov_b32 s{self.sLO}, 0x3f80", f"s_mov_b32 s{self.sHI}, 0x3f800000", f"s_mov_b32 s{sONE}, 0x3f803f80")
        wregs = [WA + 4 * t for t in range(7)] + [WB + 4 * t for t in range(7)]
        wl = [(n + self.opt("hwo", 0)) % 14 for n in range(14)]
        HWM = self.opt("hwm", 14)
        def wload(force=False):
            if not wl or (14 - len(wl) >= HWM and not force): return
            n = wl.pop(0); R = wregs[n]
            a(f"s_add_u32 s{sD}, s{sB}, {n*32*3584}")
            self.vmem(f"buffer_load_dwordx4 v[{R}:{R+3}], v{vW}, {srd(S_WG)}, s{sD} offen", "W")
        for _ in range(self.opt("hw0", 0)): wload()
        a(f"v_lshrrev_b32 v{vt}, 4, v1", f"v_lshlrev_b32 v{vt}, 3, v{vt}", f"v_lshl_add_u32 v{vt}, v{vt+1}, 5, v{vt}")
        a(f"s_lshl_b32 s{sD}, s{sW}, 9", f"v_add_u32 v{self.hCSW}, s{sD}, v{vt}")
        for k in range(4): a(f"v_mov_b32 v{C+k}, 0")
        a(f"v_lshlrev_b32 v{vt+2}, 3, v{vR}")
        a(f"s_lshl_b32 s{sE}, s{sI}, 9")
        self.wait_vm("XR")
        self.stamp(1)
        for i in range(28): a(f"v_dot2c_f32_bf16 v{C+i%4}, s{sONE}, v{XR+i}")
        a(f"v_add_f32 v{C}, v{C}, v{C+1}", f"v_add_f32 v{C+2}, v{C+2}, v{C+3}", f"v_add_f32 v{vS}, v{C}, v{C+2}")
        for ctl in ("quad_perm:[1,0,3,2]", "quad_perm:[2,3,0,1]", "row_half_mirror"):
            a(f"v_add_f32_dpp v{vS}, v{vS}, v{vS} {ctl} row_mask:0xf bank_mask:0xf")
        a(f"v_mul_f32 v{vM}, {f32(-1.0/448)}, v{vS}")
        a(f"v_cvt_pk_bf16_f32 v{vMB}, 0, v{vM}")
        self.vmem(self.nonce_load(vQ), "non")
        for i in range(28):
            a(f"v_dot2_f32_bf16 v{XF+2*i}, v{XR+i}, s{self.sLO}, v{vMB}", f"v_dot2_f32_bf16 v{XF+2*i+1}, v{XR+i}, s{self.sHI}, v{vMB}")
            if i % 7 == 6: wload()
        for k in range(2): a(f"v_pk_mul_f32 v[{C+2*k}:{C+2*k+1}], v[{XF+2*k}:{XF+2*k+1}], v[{XF+2*k}:{XF+2*k+1}]")
        for i in range(2, 28):
            k = i % 2
            a(f"v_pk_fma_f32 v[{C+2*k}:{C+2*k+1}], v[{XF+2*i}:{XF+2*i+1}], v[{XF+2*i}:{XF+2*i+1}], v[{C+2*k}:{C+2*k+1}]")
            if i % 13 == 12: wload()
        a(f"v_add_f32 v{C}, v{C}, v{C+1}", f"v_add_f32 v{C+2}, v{C+2}, v{C+3}", f"v_add_f32 v{vS}, v{C}, v{C+2}")
        a(f"v_sub_f32 v{vM}, v{vM}, v{vMB}")
        rnd = [f"v_cvt_pk_bf16_f32 v{XF+i}, 0, v{XF+i}" for i in range(56)]
        def fill(n):
            for _ in range(n):
                if rnd: a(rnd.pop(0))
        chain = []
        for ctl in ("quad_perm:[1,0,3,2]", "quad_perm:[2,3,0,1]", "row_half_mirror"):
            chain.append(f"v_add_f32_dpp v{vS}, v{vS}, v{vS} {ctl} row_mask:0xf bank_mask:0xf")
        chain += [f"v_mul_f32 v{vM}, v{vM}, v{vM}", f"v_mul_f32 v{vS}, {f32(1.0/448)}, v{vS}", f"v_sub_f32 v{vS}, v{vS}, v{vM}", f"v_max_f32 v{vS}, 0, v{vS}",
                  f"v_cvt_pk_bf16_f32 v{vS}, 0, v{vS}", f"v_add_f32 v{vS}, {f32(1e-5)}, v{vS}", f"v_cvt_pk_bf16_f32 v{vS}, 0, v{vS}",
                  f"v_sqrt_f32 v{vS}, v{vS}", f"v_cvt_pk_bf16_f32 v{vS}, 0, v{vS}", f"v_rcp_f32 v{vRr}, v{vS}",
                  f"v_mul_f32 v{C+6}, v{vRr}, v{vRr}", f"v_mov_b32 v{vRr+1}, v{vRr}"]
        for i, c in enumerate(chain):
            fill(2); a(c)
            if i % 5 == 4: wload()
        self.get_nonce(vQ, issued="non")
        a(f"v_mov_b32 v{C+7}, s{sTAG}", f"v_mov_b32 v{vMB+1}, s{sTAG}", f"s_add_u32 s{sA}, s{sE}, {WS_R2}", f"s_add_u32 s{sD}, s{sE}, {WS_NM}")
        a("s_mov_b32 exec_lo, 0x01010101", "s_mov_b32 exec_hi, 0x01010101")
        self.vmem(f"buffer_store_dwordx2 v[{vMB}:{vMB+1}], v{vt+2}, {srd(S_WS)}, s{sD} offen sc1", "st")
        self.vmem(f"buffer_store_dwordx2 v[{C+6}:{C+7}], v{vt+2}, {srd(S_WS)}, s{sA} offen sc1", "st")
        a("s_mov_b64 exec, -1")
        self.stamp(2)
        fill(13); wload(); fill(99)
        a(f"v_mul_u32_u24 v{vt}, {TS}, v{vR}", f"v_lshl_add_u32 v{vt}, v{vP}, 4, v{vt}")
        for t in range(7):
            for i in range(4 * t, 4 * t + 4): a(f"v_pk_mul_f32 v[{XF+2*i}:{XF+2*i+1}], v[{XF+2*i}:{XF+2*i+1}], v[{vRr}:{vRr+1}]")
            for i in range(4 * t, 4 * t + 4): a(f"v_cvt_pk_bf16_f32 v{XR+i}, v{XF+2*i}, v{XF+2*i+1}")
            a(f"ds_write_b128 v{vt}, v[{XR+4*t}:{XR+4*t+3}] offset:{128*t}")
            wload()
        a(f"v_bfe_u32 v{vt+1}, v1, 4, 1", f"v_and_b32 v{vt+3}, 3, v1", f"v_lshl_add_u32 v{vt+1}, v{vt+1}, 2, v{vt+3}")
        a(f"v_bfe_u32 v{vt+3}, v1, 2, 2", f"v_lshl_add_u32 v{vt+1}, v{vt+1}, 3, v{vt+3}", f"v_mul_u32_u24 v{vt+1}, {TS}, v{vt+1}")
        a(f"v_lshrrev_b32 v{vt+3}, 5, v1", f"v_lshl_add_u32 v{vt+1}, v{vt+3}, 3, v{vt+1}")
        a(f"s_lshl_b32 s{sD}, s{sW}, 4", f"v_add_u32 v{vt+1}, s{sD}, v{vt+1}")
        a(f"v_lshlrev_b32 v{vt+2}, 4, v1")
        a(f"s_mul_i32 s{sC}, s{sI}, {448*128}", f"s_lshl_b32 s{sA}, s{sW}, 10", f"s_add_u32 s{sC}, s{sC}, s{sA}", f"s_add_u32 s{sC}, s{sC}, {WS_XNT}")
        a("s_waitcnt lgkmcnt(0)", "s_barrier")
        self.stamp(3)
        for n in range(7):
            for t in range(2):
                a(f"ds_read_b64_tr_b16 v[{XR+4*n+2*t}:{XR+4*n+2*t+1}], v{vt+1} offset:{128*n + 4*TS*t}")
        for n in range(7):
            a(f"s_waitcnt lgkmcnt({12-2*n})")
            self.vmem(f"buffer_store_dwordx4 v[{XR+4*n}:{XR+4*n+3}], v{vt+2}, {srd(S_WS)}, s{sC} offen sc1", "st")
            if n < 6: a(f"s_add_u32 s{sC}, s{sC}, 8192")
        late = len(wl) > 0
        while wl: wload(True)
        def fxflag():
            L = self.lab("Lfx")
            a(f"s_cmp_lg_u32 s{sW}, 2", f"s_cbranch_scc1 {L}")
            a(f"v_mov_b32 v2, s{sTAG}", f"s_lshl_b32 s{sA}, s{sI}, 7", f"s_add_u32 s{sA}, s{sA}, {WS_FX}")
            a("v_lshlrev_b32 v3, 2, v1", "s_mov_b32 exec_hi, 0", f"buffer_store_dword v2, v3, {srd(S_WS)}, s{sA} offen sc1", "s_mov_b32 exec_hi, -1")
            a(f"{L}:")
        if late:
            self.wait_vm("st")
            a("s_barrier")
            fxflag()
            self.stamp(7)
        self.wait_vm("W")
        self.colsum_partial(wregs, C, vt, CSA)
        a("s_waitcnt vmcnt(0) lgkmcnt(0)", "s_barrier")
        if not late: fxflag()
        self.stamp(5)
        self.colsum_final(CSA, WA, vt)
        self.stamp(4)
        if self.opt("hp", 0):
            L = self.lab("Lhp")
            a(f"s_cmp_eq_u32 s{sW}, 7", f"s_cbranch_scc1 {L}")
            a(f"s_lshr_b32 s{sA}, s2, 3", f"s_mul_i32 s{sA}, s{sA}, {448*896}", f"s_lshl_b32 s{sB}, s{sW}, 7", f"s_add_u32 s{sA}, s{sA}, s{sB}")
            a(f"v_mul_u32_u24 v{vt}, 896, v1")
            for k in range(3):
                a(f"s_add_u32 s{sB}, s{sW}, {4+k}", f"s_cmp_ge_u32 s{sB}, 7", f"s_cselect_b32 s{sC}, 7, 0", f"s_sub_u32 s{sB}, s{sB}, s{sC}")
                a(f"s_mul_i32 s{sB}, s{sB}, {64*896}", f"s_add_u32 s{sB}, s{sB}, s{sA}")
                a(f"buffer_load_dword v{WB+k}, v{vt}, {srd(S_WD)}, s{sB} offen")
            a("s_waitcnt vmcnt(0)", f"{L}:")
            self.stamp(6)
        self.write_stamps(0)
        a("s_endpgm")

    @staticmethod
    def uslot(u): return (u + 3) % 8

    def kgen_setup(self):
        base = 8
        PRM, vDT, vt, vRA, vRB, KD, BF, AF, T = base + 12, base + 4, base + 5, base + 8, base + 9, 28, 44, 76, 200
        self.KD, self.kBF, self.kAF, self.kvt = KD, BF, AF, vt
        self.kregs = (PRM, vDT, vt, vRA, vRB, KD, BF, AF, T)
        L = []
        e = lambda *x: L.extend(x)
        e(f"s_lshl_b32 s{sSB}, s{sAW}, 8")
        def rowaddr(dst, sig):
            e(f"v_and_b32 v{dst}, 15, v{sig}", f"v_mul_u32_u24 v{dst}, 2064, v{dst}", f"v_lshrrev_b32 v{sig}, 4, v{sig}", f"v_lshl_add_u32 v{dst}, v{sig}, 10, v{dst}")
            e(f"v_add_u32 v{dst}, v{dst}, v{vt+2}")
        e(f"v_lshrrev_b32 v{vt+2}, 5, v1", f"v_lshlrev_b32 v{vt+2}, 4, v{vt+2}", f"v_and_b32 v{vt}, 31, v1")
        e(f"v_cmp_eq_u32 vcc, 5, v{vt}", f"v_cndmask_b32_e64 v{vt+1}, v{vt}, 4, vcc", f"v_cmp_eq_u32 vcc, 31, v{vt}", f"v_cndmask_b32_e64 v{vt+1}, v{vt+1}, 5, vcc")
        rowaddr(vRA, vt + 1)
        e(f"v_add_u32 v{vRA}, s{sSB}, v{vRA}")
        e(f"v_add_u32 v{vt+1}, -1, v{vt}", f"v_and_b32 v{vt+1}, 31, v{vt+1}")
        rowaddr(vRB, vt + 1)
        e(f"v_cmp_eq_u32 vcc, 0, v{vt}", f"v_mov_b32 v{vt}, s{sSB}", f"v_cndmask_b32_e64 v{vt}, v{vt}, 0, vcc", f"v_add_u32 v{vRB}, v{vRB}, v{vt}")
        e("s_waitcnt lgkmcnt(0)")
        e(f"s_lshr_b32 s{sC}, s{sAW}, 1", f"s_lshl_b32 s{sC}, s{sC}, 4")
        for r in (sLD, sDS): e(f"s_lshr_b32 s{r}, s{r}, s{sC}", f"s_lshl_b32 s{r}, s{r}, 16")
        chi = float(np.frombuffer(np.uint32(np.float32(LOG2E).view(np.uint32) & 0xFFFFFF00).tobytes(), np.float32)[0]); clo = LOG2E - chi
        e(f"v_mov_b32 v{vt+2}, s{sLD}", f"v_mul_f32 v{vDT}, {f32(chi)}, v{vt+2}", f"v_mul_f32 v{vt+2}, {f32(clo)}, v{vt+2}")
        e(f"v_exp_f32 v{vDT}, v{vDT}", f"v_exp_f32 v{vt+2}, v{vt+2}", f"v_mul_f32 v{vDT}, v{vDT}, v{vt+2}")
        e(f"v_cvt_pk_bf16_f32 v{vDT}, 0, v{vDT}")
        return L

    @staticmethod
    def soff(sig): return (sig & 15) * 2064 + (sig >> 4) * 1024

    def kgen_scale(self):
        PRM, vDT, vt, vRA, vRB, KD, BF, AF, T = self.kregs
        L = []
        e = lambda *x: L.extend(x)
        e(f"v_and_b32 v{T}, 0x7fff, v{PRM+2}", f"v_and_b32 v{T+1}, 0x7fff, v{PRM+3}", f"v_and_b32 v{T+2}, 0x7fff, v{PRM+6}", f"v_and_b32 v{T+3}, 0x7fff, v{PRM+7}")
        e(f"v_max_u32 v{T}, v{T}, v{T+1}", f"v_max3_u32 v{T}, v{T}, v{T+2}, v{T+3}")
        sh = [f"v_lshlrev_b32 v{PRM+k}, 16, v{PRM+k}" for k in range(8)]
        for ctl in ("row_shr:1", "row_shr:2", "row_shr:4", "row_shr:8", "row_bcast:15 row_mask:0xa", "row_bcast:31 row_mask:0xc"):
            for _ in range(2):
                if sh: e(sh.pop(0))
            e(f"v_max_u32_dpp v{T}, v{T}, v{T} {ctl}" + (" row_mask:0xf" if "row_mask" not in ctl else "") + " bank_mask:0xf")
        e(f"v_readlane_b32 s50, v{T}, 63")
        e("s_lshr_b32 s50, s50, 7", "s_sub_u32 s50, 267, s50", "s_min_u32 s50, s50, 253", f"s_sub_u32 s51, 255, s50")
        e("s_lshl_b32 s50, s50, 23", "s_lshl_b32 s51, s51, 23", f"v_mul_f32 v18, s51, v{vDT}")
        return L

    def kgen_body(self, czero, batch):
        PRM, vDT, vt, vRA, vRB, KD, BF, AF, T = self.kregs
        L = []
        e = lambda *x: L.extend(x)
        tt = 172; ti = [0]
        pendf = []
        def cmul(d, x, y):
            t = tt + ti[0] % 8; ti[0] += 1
            if any(x == p[0] or y == p[0] for p in pendf): flush()
            e(f"v_pk_mul_f16 v{t}, v{x}, v{y} op_sel:[1,1] op_sel_hi:[0,1]")
            flush()
            pendf.append((d, f"v_pk_fma_f16 v{d}, v{x}, v{y}, v{t} op_sel_hi:[1,0,1] neg_lo:[0,0,1]"))
        def flush():
            for p in pendf: e(p[1])
            pendf.clear()
        BF += 64 * batch; AF += 64 * batch
        def arow(hh, reg): return 8 * (reg >> 2) + 4 * hh + (reg & 3)
        P1 = {}
        for reg, p in enumerate(list(range(9)) + [512, 516, 520, 1024, 1032, 1536, 1544]): P1.setdefault(p, []).append(arow(0, reg))
        for reg, p in enumerate([256, 256, 258, 260, 260, 260, 262, 264, 264, 768, 772, 776, 1280, 1288, 1792, 1800]): P1.setdefault(p, []).append(arow(1, reg))
        assert P1[256] == [4, 5] and P1[1800] == [31]
        P1[256] = [4]; P1[1800] = [5]
        E = {j: BF + j for j in range(1, 32)}
        V = {p: AF + i for i, p in enumerate(sorted(P1))}
        va, vb = T, T + 1
        S = T + 2
        A = T + 10
        W1, W8, W256 = T + 18, T + 19, T + 20
        p_ = PRM + 4 * batch
        e(f"v_mul_f32 v{va}, {f32(LOG2E)}, v{p_}", f"v_mul_f32 v{vb}, v{p_+1}, v{vDT}", f"v_exp_f32 v{va}, v{va}")
        e(f"v_mul_f32 v{vb}, 0.15915494, v{vb}", f"v_mul_f32 v{p_+2}, s50, v{p_+2}")
        e(f"v_cvt_pk_bf16_f32 v{va}, 0, v{va}", f"v_mul_f32 v{p_+3}, s50, v{p_+3}")
        e(f"v_mul_f32 v{va}, v{va}, v{vDT}", f"v_cvt_pk_f16_f32 v{V[0]}, v{p_+2}, v{p_+3}")
        e(f"v_mul_f32 v{va}, {f32(-LOG2E)}, v{va}")
        seeds = (8, 32, 1, 256)
        for i, p in enumerate(seeds):
            if p != 1: e(f"v_mul_f32 v{A+2*i+1}, {f32(p)}, v{vb}", f"v_mul_f32 v{A+2*i}, {f32(p)}, v{va}")
        for i, p in enumerate(seeds):
            e(f"v_fract_f32 v{A+2*i+1}, v{A+2*i+1 if p != 1 else vb}", f"v_exp_f32 v{A+2*i}, v{A+2*i if p != 1 else va}")
        for i, p in enumerate(seeds):
            e(f"v_cos_f32 v{S+2*i}, v{A+2*i+1}", f"v_sin_f32 v{S+2*i+1}, v{A+2*i+1}")
        for i, p in enumerate(seeds):
            e(f"v_mul_f32 v{S+2*i}, v{S+2*i}, v{A+2*i}", f"v_mul_f32 v{S+2*i+1}, v{S+2*i+1}, v{A+2*i}")
        e(f"v_cvt_pk_f16_f32 v{E[1]}, v{S}, -v{S+1}", f"v_cvt_pk_f16_f32 v{W8}, v{S}, v{S+1}", f"v_cvt_pk_f16_f32 v{E[4]}, v{S+2}, -v{S+3}")
        e(f"v_cvt_pk_f16_f32 v{W1}, v{S+4}, v{S+5}", f"v_cvt_pk_f16_f32 v{W256}, v{S+6}, v{S+7}")
        jobs = [(E[2], E[1], E[1]), (V[8], V[0], W8), (V[1], V[0], W1), (E[3], E[2], E[1])]
        vj = [(V[k], V[k - 1], W1) for k in range(2, 8)]
        far = [(V[p], V[p - 256], W256) for p in sorted(P1) if p >= 256]
        far.sort(key=lambda x: 0)
        f08 = [(V[p], V[p - 256], W256) for p in sorted(P1) if p >= 256 and p % 256 in (0, 8)]
        fo = [(V[p], V[p - 256], W256) for p in sorted(P1) if p >= 256 and p % 256 not in (0, 8)]
        ej = [(E[j], E[j - 4], E[4]) for j in range(5, 32)]
        while ej or vj or f08 or fo:
            for q_ in (ej, vj, ej, f08) if vj else (ej, fo, ej, f08):
                if q_: jobs.append(q_.pop(0))
        for j in jobs: cmul(*j)
        flush()
        B = [f"ds_write_addtid_b32 v{E[j]} offset:{self.soff(j-1)}" for j in range(1, 32)]
        B += [f"ds_read_b128 v[{BF+4*k}:{BF+4*k+3}], v{vRB} offset:{32*k}" for k in range(8)]
        B += [f"ds_write_addtid_b32 v{V[p]} offset:{self.soff(sig)}" for p in sorted(P1) for sig in P1[p]]
        B += [f"ds_read_b128 v[{AF+4*k}:{AF+4*k+3}], v{vRA} offset:{32*k}" for k in range(8)]
        M = []
        for k in range(8):
            c = "0" if (czero and k == 0) else f"v[{KD}:{KD+15}]"
            M.append(f"v_mfma_f32_32x32x16_f16 v[{KD}:{KD+15}], v[{AF+4*k}:{AF+4*k+3}], v[{BF+4*k}:{BF+4*k+3}], {c}")
        return L, B, M

    def mwave(self):
        a = self.a
        self.role = 'M'
        a("L_m:")
        ACC, AB, XB, CSX, NMX = 4, 132, 164, 228, 232
        vAX, vAW = 234, 248
        vt = 239; vHO = 2; vCSO = 3; vN = 238
        sLH, sFH = 48, 49
        def acc(mat, b, ft): return ACC + 4 * (b + 4 * (ft + 4 * mat))
        a(f"v_mov_b32 v0, v{voD}")
        a(f"s_lshr_b32 s{sLH}, s{sW}, 1", f"s_and_b32 s{sFH}, s{sW}, 1")
        a(f"v_and_b32 v{vt}, 15, v1")
        a(f"v_lshrrev_b32 v{vt+2}, 4, v1", f"v_bfe_u32 v{vt+3}, v1, 1, 3")
        a(f"v_xor_b32 v{vt+3}, v{vt+3}, v{vt+2}", f"v_lshlrev_b32 v{vt+3}, 4, v{vt+3}")
        a(f"s_lshl_b32 s{sA}, s{sLH}, 13", f"s_add_u32 s{sA}, s{sA}, {RING}")
        a(f"v_lshl_add_u32 v{vt}, v{vt}, 7, s{sA}")
        for s_ in range(2):
            a(f"v_xad_u32 v{vAX+s_}, v{vt+3}, {64*s_}, v{vt}", f"v_add_u32 v{vAX+2+s_}, 0x10000, v{vAX+s_}")
        a(f"v_bfe_u32 v{vt}, v1, 2, 2", f"v_lshl_add_u32 v{vt}, v{vt+2}, 3, v{vt}", f"v_lshlrev_b32 v{vt}, 8, v{vt}")
        a(f"v_and_b32 v{vt+3}, 3, v1", f"v_lshl_add_u32 v{vt}, v{vt+3}, 3, v{vt}")
        a(f"v_bfe_u32 v{vt+3}, v1, 2, 3", f"v_lshl_add_u32 v{vt}, v{vt+3}, 5, v{vt}")
        a(f"s_lshl_b32 s{sA}, s{sFH}, 7", f"v_xor_b32 v{vt}, s{sA}, v{vt}", f"v_add_u32 v{vt}, {RING}, v{vt}")
        a("s_waitcnt vmcnt(0)")
        for ft in range(4):
            a(f"v_xor_b32 v{vAW+ft}, {32*ft}, v{vt}", f"v_add_u32 v{vAW+4+ft}, 0x10000, v{vAW+ft}")
        a(f"v_lshlrev_b32 v{vCSO}, 3, v1", f"v_lshlrev_b32 v{vHO}, 4, v1")
        self.vm = []
        self.gemm2_setup(vt)
        a(f"s_setprio {self.opt('mp', 2)}")
        a("s_waitcnt lgkmcnt(0)")
        for x in self.ks_table(): a(x)
        a(f"s_lshl1_add_u32 s{sF}, s{sJ}, s{sFH}")
        a(f"s_lshl_b32 s{sB}, s{sF}, 10", f"s_add_u32 s{sB}, s{sB}, {WS_CS}")
        a(f"s_lshl1_add_u32 s{sA}, s{sI}, s{sLH}")
        a(f"s_lshl_b32 s{sD}, s{sA}, 9", f"s_add_u32 s{sD}, s{sD}, {WS_NM}")
        a(f"s_mul_i32 s{sE}, s{sA}, {HS}", f"s_lshl_b32 s{sC}, s{sF}, 13", f"s_add_u32 s{sE}, s{sE}, s{sC}")
        a(f"s_lshl4_add_u32 s{sG}, s{sI}, s{sJ}", f"s_lshl_b32 s{sG}, s{sG}, 7", f"s_add_u32 s{sG}, s{sG}, {WS_FH}")
        FR = [(ft, mat) for ft in range(4) for mat in range(2)]
        def reads(g):
            c, s_ = divmod(g, 2)
            sl = self.uslot(3 * c + 1); win = sl // 4
            xb = XB + 16 * (g & 1)
            xr = [f"ds_read_b128 v[{xb+4*b}:{xb+4*b+3}], v{vAX+2*win+s_} offset:{16384*(sl%4) + 2048*b}" for b in range(4)]
            sl = self.uslot(3 * c + 2 * s_); win = sl // 4
            wr = []
            for k, (ft, mat) in enumerate(FR):
                wr.append([f"ds_read_b64_tr_b16 v[{AB+4*k+2*t}:{AB+4*k+2*t+1}], v{vAW+4*win+ft} offset:{16384*(sl%4) + 1024*t + 8192*mat}" for t in range(2)])
            return xr, wr
        def mfma(g, k, b):
            ft, mat = FR[k]
            d = acc(mat, b, ft); xb = XB + 16 * (g & 1)
            c = "0" if g == 0 else f"v[{d}:{d+3}]"
            return f"v_mfma_f32_16x16x32_bf16 v[{d}:{d+3}], v[{AB+4*k}:{AB+4*k+3}], v[{xb+4*b}:{xb+4*b+3}], {c}"
        corr_loads = [f"buffer_load_dwordx4 v[{CSX}:{CSX+3}], v{vHO}, {srd(S_WS)}, s{sB} offen sc1",
                      f"buffer_load_dwordx2 v[{NMX}:{NMX+1}], v{vCSO}, {srd(S_WS)}, s{sD} offen sc1"]
        a("s_waitcnt lgkmcnt(0)")
        if "k1" in self.opts: self.stampk(7)
        a("s_barrier")
        self.stamp(2)
        q = []; pend = []
        def need(key):
            idx = [i for i, t in enumerate(q) if t[0] == key[0] and t[1] <= key[1]]
            if not idx: return
            n = len(q) - 1 - idx[-1]
            a(f"s_waitcnt lgkmcnt({min(n, 15)})")
            del q[:len(q) - min(n, 15)]
        def drain(maxn):
            n = 0
            while pend and n < maxn:
                r, key = pend.pop(0); a(r); q.append(key); n += 1
        xr, wr = reads(0)
        for r in xr: a(r); q.append((0, 0))
        for k in range(8):
            for r in wr[k]: a(r); q.append((0, k))
        self.vmem(self.nonce_load(vN), "non")
        if self.opt("tlb", 0) == 1: self.tlbtouch(vt)
        DELAY = self.opt("dl", 8); WG_ = self.opt("wg", 2)
        cl = list(corr_loads); extra = []
        for g in range(14):
            xr, wr = reads(g + 1) if g < 13 else ([], [[]] * 8)
            if g == 0: self.cstamp(0)
            if g == 8: self.get_nonce(vN, issued="non")
            blocked = True; held = []
            i = 0
            for k in range(8):
                for b in range(4):
                    if k % WG_ == 0 and b == 0:
                        key = (g, k + WG_ - 1)
                        while any(x[1][0] == g and x[1][1] <= key[1] for x in pend): drain(1)
                        need(key)
                    a(mfma(g, k, b)); i += 1
                    if b == 3:
                        new_r = [(r, (g + 1, k)) for r in wr[k]]
                        if blocked: held += new_r
                        else: pend += new_r
                    if blocked and i == DELAY:
                        pend += [(x, (-1, 0)) for x in extra]; extra = []
                        drain(99)
                        LB = self.opt("lb", 11)
                        if g + 1 <= LB:
                            a("s_waitcnt lgkmcnt(0)"); q.clear()
                            a("s_barrier")
                        elif g == 11 and self.NDA > 3:
                            self.signal(8, vt); q.append((-1, 0))
                        if g % 2 == 1: self.cstamp(1 + g // 2)
                        pend += held + [(r, (g + 1, 0)) for r in xr]
                        if g in (LB - 3, LB - 2): extra += [r[0] for r in self.G.wdread(g - LB + 3)]
                        blocked = False
                    if not pend and extra: pend.append((extra.pop(0), (-1, 0)))
                    drain(1)
                    if g == self.opt("corr", 11) and cl and i % 4 == 2: self.vmem(cl.pop(0), "corr")
        self.stamp(3)
        self.cstamp(8)
        self.spin(corr_loads, [CSX + 1, CSX + 3, NMX + 1], first_issued_tag="corr", note=1)
        for ft in range(4):
            for mat in range(2):
                d = acc(mat, 0, ft)
                a(f"v_mfma_f32_16x16x1_4b_f32 v[{d}:{d+15}], v{CSX+2*mat}, v{NMX}, v[{d}:{d+15}] cbsz:2 abid:{ft}")
        self.signal(9, vt)
        a(f"s_add_u32 s{sC}, s{sE}, 4096")
        for e in range(2):
            for b in range(4):
                o = acc(0, b, 2 * e)
                T_ = [(acc(0, b, ft), acc(1, b, ft)) for ft in (2 * e, 2 * e + 1)]
                for g_, u_ in T_:
                    for i in range(4): a(f"v_max_f32 v{g_+i}, 0, v{g_+i}")
                for g_, u_ in T_:
                    if "epk" in self.opts:
                        for i in (0, 2): a(f"v_pk_mul_f32 v[{u_+i}:{u_+i+1}], v[{g_+i}:{g_+i+1}], v[{u_+i}:{u_+i+1}]")
                    else:
                        for i in range(4): a(f"v_mul_f32 v{u_+i}, v{g_+i}, v{u_+i}")
                for t, (g_, u_) in enumerate(T_):
                    for i in range(2): a(f"v_cvt_pk_bf16_f32 v{o+2*t+i}, v{u_+2*i}, v{u_+2*i+1}")
                SG = self.opt("sg", 99)
                if len(self.vm) > SG: a(f"s_waitcnt vmcnt({SG})"); self.vm = self.vm[-SG:]
                self.vmem(f"buffer_store_dwordx4 v[{o}:{o+3}], v{vHO}, {srd(S_WS)}, s{sC if e else sE} offen offset:{1024*b} sc1", "hst")
        self.stamp(4)
        self.cstamp(9)
        self.gemm2()

    def mtouch(self, vt):
        mask = self.opt("tm", 0)
        if not mask: return
        a = self.a
        for w, (sr, n) in enumerate(((S_WD, 56), (S_WG, 56), (S_WU, 56), (S_X, 64))):
            if not (mask >> w) & 1: continue
            L = self.lab("Lt")
            a(f"s_cmp_lg_u32 s{sW}, {w}", f"s_cbranch_scc1 {L}")
            a(f"s_mul_i32 s{sA}, s{sT}, {n*128}", f"v_min_u32 v{vt}, {n-1}, v1", f"v_lshlrev_b32 v{vt}, 7, v{vt}")
            a(f"buffer_load_dword v{vt+1+w}, v{vt}, {srd(sr)}, s{sA} offen")
            a(f"{L}:")

    def tlbtouch(self, vt):
        a = self.a
        L = self.lab("Lt")
        a(f"s_cmp_lg_u32 s{sW}, 0", f"s_cbranch_scc1 {L}")
        holes = [229376, 10*HS + 229376, 19*HS + 229376, 28*HS + 229376, 0x9F0000, 0xA00000, 0xDF0000, 0xFF0000]
        a(f"v_mov_b32 v{vt}, {holes[0]}")
        for i, h in enumerate(holes[1:]):
            a(f"s_mov_b32 s{sA}, {h}", f"v_writelane_b32 v{vt}, s{sA}, {i+1}")
        a(f"buffer_load_dword v{vt+6}, v{vt}, {srd(S_WS)}, 0 offen")
        a(f"buffer_load_dword v{vt+7}, off, {srd(S_OUT)}, 0")
        a(f"{L}:")

    FX_, FR_, FO_ = 222, 230, 234
    def final_pre(self):
        a = self.a
        vX, vR2, vt = self.FX_, self.FR_, self.FO_
        a(f"s_lshl_b32 s{sA}, s{sAW}, 4", f"s_lshl_b32 s{sB}, s{sI2}, 6", f"s_add_u32 s{sA}, s{sA}, s{sB}")
        a(f"v_lshrrev_b32 v{vt+1}, 3, v1", f"v_add_u32 v{vt+1}, s{sA}, v{vt+1}")
        a(f"v_mul_u32_u24 v{vt}, 896, v{vt+1}")
        a(f"s_lshl_b32 s{sA}, s{sJ2}, 7", f"s_movk_i32 s{sB}, {8*896}")
        a(f"v_and_b32 v{vR2}, 7, v1", f"v_lshlrev_b32 v{vR2}, 4, v{vR2}", f"v_add3_u32 v{vt}, v{vt}, v{vR2}, s{sA}")
        a(f"v_lshlrev_b32 v{vt+1}, 3, v{vt+1}", f"v_add_u32 v{vt+1}, {WS_R2}, v{vt+1}")
        self.vmem(f"buffer_load_dwordx4 v[{vX}:{vX+3}], v{vt}, {srd(S_X)}, 0 offen", "fx")
        self.vmem(f"buffer_load_dwordx4 v[{vX+4}:{vX+7}], v{vt}, {srd(S_X)}, s{sB} offen", "fx")
        self.r2load = [f"buffer_load_dwordx2 v[{vR2+2*h}:{vR2+2*h+1}], v{vt+1}, {srd(S_WS)}, 0 offen offset:{64*h} sc1" for h in range(2)]

    def final_addr(self, T):
        a = self.a
        vA, vB = T, T + 4
        a(f"v_lshrrev_b32 v{vA+2}, 3, v1", f"s_lshl_b32 s{sC}, s{sAW}, 4", f"v_add_u32 v{vA+3}, s{sC}, v{vA+2}")
        a(f"v_mul_u32_u24 v{vB}, 48, v{vA+3}")
        a(f"v_and_b32 v{vA+3}, 7, v1", f"v_lshlrev_b32 v{vA+3}, 1, v{vA+3}", f"v_xor_b32 v{vA+3}, v{vA+3}, v{vA+2}")
        a(f"v_lshlrev_b32 v{vA+3}, 4, v{vA+3}", f"v_lshl_add_u32 v{vA}, v{vA+2}, 8, v{vA+3}")
        a(f"s_lshl_b32 s{sC}, s{sAW}, 14", f"s_add_u32 s{sC}, s{sC}, {DBASE}")
        a(f"v_bfe_u32 v{vA+3}, v1, 2, 1", f"v_mul_u32_u24 v{vA+3}, {QB[1]}, v{vA+3}", f"v_add_u32 v{vB}, v{vB}, v{vA+3}")
        a(f"v_bfe_u32 v{vA+3}, v1, 1, 1", f"v_lshl_add_u32 v{vB}, v{vA+3}, 12, v{vB}")
        a(f"v_and_b32 v{vA+3}, 1, v1", f"v_lshl_add_u32 v{vB}, v{vA+3}, 4, v{vB}")
        a(f"v_add_u32 v{vA}, s{sC}, v{vA}", f"v_xor_b32 v{vA+1}, 16, v{vA}", f"v_xor_b32 v{vA+2}, {2048+128}, v{vA}", f"v_xor_b32 v{vA+3}, {2048+128+16}, v{vA}")

    def final(self, T):
        a = self.a
        vX, vR2, vO = self.FX_, self.FR_, self.FO_
        vA, vB = T, T + 4
        E = T + 8; Y = T + 24; P = T + 32
        self.spin(self.r2load, [vR2 + 1, vR2 + 3], first_issued_tag="fx", note=3)
        for i in range(8): a(f"v_lshlrev_b32 v{E+2*i}, 16, v{vX+i}", f"v_and_b32 v{E+2*i+1}, 0xffff0000, v{vX+i}")
        self.auxbar(7, T + 6, extra=[f"ds_read_b128 v[{Y+4*h}:{Y+4*h+3}], v{vB} offset:{8*48*h}" for h in range(2)])
        for i in range(8):
            a(f"v_lshlrev_b32 v{vX}, 16, v{Y+i}", f"v_and_b32 v{vX+1}, 0xffff0000, v{Y+i}")
            a(f"v_add_f32 v{E+2*i}, v{E+2*i}, v{vX}", f"v_add_f32 v{E+2*i+1}, v{E+2*i+1}, v{vX+1}")
        a(f"s_movk_i32 s{sB}, {8*896}")
        a("s_barrier")
        self.stamp(8)
        for h in range(2):
            for m in range(4):
                for q in range(2):
                    r = P + 32 * h + 8 * m + 4 * q
                    a(f"ds_read_b128 v[{r}:{r+3}], v{vA + 2*h + q} offset:{4096*m}")
        for h in range(2):
            p = P + 32 * h; e = E + 8 * h
            a(f"s_waitcnt lgkmcnt({12 - 8*h})")
            for i in range(0, 8, 2): a(f"v_pk_add_f32 v[{p+i}:{p+i+1}], v[{p+i}:{p+i+1}], v[{p+8+i}:{p+8+i+1}]")
            a(f"s_waitcnt lgkmcnt({8 - 8*h})")
            for i in range(0, 8, 2): a(f"v_pk_add_f32 v[{p+16+i}:{p+16+i+1}], v[{p+16+i}:{p+16+i+1}], v[{p+24+i}:{p+24+i+1}]")
            for i in range(0, 8, 2): a(f"v_pk_add_f32 v[{p+i}:{p+i+1}], v[{p+i}:{p+i+1}], v[{p+16+i}:{p+16+i+1}]")
            for i in range(0, 8, 2): a(f"v_pk_fma_f32 v[{e+i}:{e+i+1}], v[{p+i}:{p+i+1}], v[{vR2+2*h}:{vR2+2*h+1}], v[{e+i}:{e+i+1}] op_sel_hi:[1,0,1]")
            for i in range(4): a(f"v_cvt_pk_bf16_f32 v{p+16+i}, v{e+2*i}, v{e+2*i+1}")
            a(f"buffer_store_dwordx4 v[{p+16}:{p+19}], v{vO}, {srd(S_OUT)}, {'s%d' % sB if h else 0} offen" + (" sc1" if "osc1" in self.opts else "") + (" nt" if "ont" in self.opts else ""))
        self.stamp(9)
        self.write_stamps(1)
        a("s_endpgm")

    def gemm2_setup(self, vt):
        a = self.a
        vAD = 244; vD = [0, 252, 253, 254]
        sH, sDo, sM = 50, 51, 52
        a(f"v_lshrrev_b32 v{vt}, 2, v1", f"v_lshlrev_b32 v{vt}, 7, v{vt}", f"v_and_b32 v{vt+1}, 3, v1", f"v_lshl_add_u32 v{vt}, v{vt+1}, 3, v{vt}")
        a(f"v_bfe_u32 v{vt+1}, v1, 3, 2", f"v_lshl_add_u32 v{vt}, v{vt+1}, 5, v{vt}")
        a(f"v_add_u32 v{vt}, s{sM0}, v{vt}", f"s_add_u32 s{sM}, s{sM0}, {DBASE}")
        for dt in range(4): a(f"v_xor_b32 v{vAD+dt}, {32*dt}, v{vt}")
        a(f"s_mul_i32 s{sDo}, s{sW}, {448*896}", f"s_lshl_b32 s{sA}, s{sJ2}, 7", f"s_add_u32 s{sDo}, s{sDo}, s{sA}")
        a(f"s_mul_i32 s{sH}, s{sI2}, {HS}", f"s_mul_i32 s{sA}, s{sW}, {14*4096}", f"s_add_u32 s{sH}, s{sH}, s{sA}")
        G = self.G = type("G", (), {})()
        G.free = [196, 212]; G.wbuf = {}; G.hbuf = {}; G.lq = []
        def wdread(ks):
            G.wbuf[ks] = buf = G.free.pop(0); n = ks if ks < 2 else (ks - 2) % 7; win = n // 4
            return [(f"ds_read_b64_tr_b16 v[{buf+4*dt+2*t}:{buf+4*dt+2*t+1}], v{vAD+4*win+dt} offset:{16384*(n%4) + 2048*t}", ks) for dt in range(4) for t in range(2)]
        def lds(r): a(r[0]); G.lq.append(r[1])
        def need_w(ks):
            lq = G.lq
            if ks not in lq: return
            k = len(lq) - 1 - max(i for i, x in enumerate(lq) if x == ks)
            a(f"s_waitcnt lgkmcnt({min(k, 15)})")
            del lq[:len(lq) - min(k, 15)]
        def dd(ks):
            out = []
            for k in range(4):
                pre = [f"s_add_u32 m0, s{sM}, {16384*((ks-2)%7)}"] + self.ksoff(ks, 32 * 896, sDo) if k == 0 else []
                out.append((pre, f"buffer_load_dwordx4 v{vD[k]}, {srd(S_WD)}, s{sA} offen offset:{1024*k} lds", f"d{ks}"))
            return out
        def hl(ks):
            G.hbuf[ks] = buf = G.free.pop(0)
            return [(self.ksoff(ks, 4096, sH, sD) if b == 0 else [],
                     f"buffer_load_dwordx4 v[{buf+4*b}:{buf+4*b+3}], v2, {srd(S_WS)}, s{sD} offen offset:{1024*b} sc1", f"h{ks}") for b in range(4)]
        def vm(x):
            for y in x[0]: a(y)
            self.vmem(x[1], x[2])
        G.wdread, G.lds, G.need_w, G.dd, G.hl, G.vm = wdread, lds, need_w, dd, hl, vm

    def gemm2(self):
        a = self.a
        G = self.G
        wdread, lds, need_w, dd, hl, vm = G.wdread, G.lds, G.need_w, G.dd, G.hl, G.vm
        free, wbuf, hbuf, lq = G.free, G.wbuf, G.hbuf, G.lq
        ACC = 68
        vFO = 3; vFL = 255; vt = 252; sM = 52
        self.stamp2(1)
        a(f"s_lshr_b32 s{sB}, s{sI2}, 1", f"s_lshl_b32 s{sB}, s{sB}, 11", f"s_add_u32 s{sA}, s{sB}, {WS_FH}")
        a(f"v_lshrrev_b32 v{vFO}, 2, v1", f"v_min_u32 v{vFO}, 13, v{vFO}", f"v_lshl_add_u32 v{vFO}, v{vFO}, 7, s{sA}")
        for dt in range(4): a(f"v_add_u32 v{244+dt}, {DBASE}, v{244+dt}", f"v_add_u32 v{248+dt}, 0x10000, v{244+dt}")
        for k in range(1, 4): a(f"v_add_u32 v{251+k}, {k*(7168-1024)}, v0")
        free += [132, 148, 164, 180, 228, 4, 20, 36, 52]
        fl = f"buffer_load_dword v{vFL}, v{vFO}, {srd(S_WS)}, 0 offen sc1"
        self.await_(0, ACC, "same")
        NDA = self.NDA + 2
        for ks in range(2, NDA):
            for r in wdread(ks): lds(r)
        self.wait_vm("hst")
        self.signal(5, ACC)
        self.stamp2(2)
        self.await_(5, ACC, "all"); lq.clear()
        Lw = self.lab("Lg")
        a(f"s_cmp_lg_u32 s{sW}, 0", f"s_cbranch_scc1 {Lw}")
        a(f"v_mov_b32 v{vFL}, s{sTAG}", f"v_lshlrev_b32 v{ACC}, 2, v1", "s_mov_b32 exec_hi, 0")
        a(f"buffer_store_dword v{vFL}, v{ACC}, {srd(S_WS)}, s{sG} offen sc1")
        a("s_mov_b32 exec_hi, -1", f"{Lw}:")
        if "eb" in self.opts or "wi" in self.opts: self.await_(2, ACC, "all", sleep=1)
        a("s_setprio 0")
        ND = min(self.opt("nd", 14), 7 + NDA)
        Lw, Lj = self.lab("Lg"), self.lab("Lg")
        vm0 = list(self.vm)
        FP = ND - self.opt("fp", 0)
        a(f"s_cmp_lg_u32 s{sW}, 0", f"s_cbranch_scc1 {Lw}")
        for ks in range(NDA, ND):
            if ks == FP: self.vmem(fl, "fl")
            for x in dd(ks): vm(x)
        self.stamp2(3)
        self.spin([fl], [vFL], first_issued_tag=("fl" if FP < ND else None), sleep=self.opt("fsl", 1), note=2)
        self.signal(6, ACC)
        a(f"s_branch {Lj}", f"{Lw}:")
        self.vm = vm0
        for ks in range(NDA, ND):
            for x in dd(ks): vm(x)
        self.await_(6, ACC, "zero", sleep=1)
        a(f"{Lj}:")
        self.stamp2(4)
        nh = 0
        while free and nh < self.opt("h0", 4):
            for x in hl(nh): vm(x)
            nh += 1
        nw = NDA; nd = ND
        for s_ in range(14):
            self.wait_vm(f"h{s_}")
            need_w(s_)
            if s_ in (0, 7): self.stamp2({0: 5, 7: 6}[s_])
            rd = []; vq = []
            if nd < 14 and nd - 7 < nw:
                need_w(nd - 7); vq += dd(nd); nd += 1
            while nw < 14 and (nw <= s_ + 2 or (nw < 7 and not rd)) and free:
                self.wait_vm(f"d{nw}")
                rd += wdread(nw); nw += 1
            while nh < 14 and nh < s_ + self.opt("hd", 5) and len(free) > (1 if nw < 14 else 0):
                vq += hl(nh); nh += 1
            if s_ == self.opt("ys", 6):
                self.signal(4, vt); lq.append(-1)
            if s_ == 12:
                a(f"v_and_b32 v{vt}, 15, v1", f"v_lshrrev_b32 v{vt+1}, 4, v1", f"v_xor_b32 v{vt+1}, v{vt+1}, v{vt}", f"v_lshlrev_b32 v{vt+1}, 4, v{vt+1}")
                a(f"v_lshl_add_u32 v{vt}, v{vt}, 8, s{sM}", f"v_add_u32 v{vt}, v{vt}, v{vt+1}")
                for dt in range(1, 4): a(f"v_xor_b32 v{vt+dt}, {64*dt}, v{vt}")
            wb, hb = wbuf[s_], hbuf[s_]
            i = 0; nvq = len(vq)
            for lb in range(4):
                for dt in range(4):
                    d = ACC + 4 * (4 * lb + dt)
                    c = "0" if s_ == 0 else f"v[{d}:{d+3}]"
                    a(f"v_mfma_f32_16x16x32_bf16 v[{d}:{d+3}], v[{wb+4*dt}:{wb+4*dt+3}], v[{hb+4*lb}:{hb+4*lb+3}], {c}")
                    if rd: lds(rd.pop(0))
                    if s_ == 13 and i >= 8:
                        l2, d2 = divmod(i - 8, 4); r = ACC + 4 * (4 * l2 + d2)
                        a(f"ds_write_b128 v{vt+d2}, v[{r}:{r+3}] offset:{16384*l2}")
                    if vq and i % (4 if nvq <= 4 else 2) == 1: vm(vq.pop(0))
                    i += 1
            for x in vq: vm(x)
            free += [wb, hb]
        self.stamp2(7)
        for lb in range(2, 4):
            for dt in range(4):
                d = ACC + 4 * (4 * lb + dt)
                a(f"ds_write_b128 v{vt+dt}, v[{d}:{d+3}] offset:{16384*lb}")
        a("s_waitcnt lgkmcnt(0)", "s_barrier")
        self.stamp(8)
        self.write_stamps(0)
        a("s_endpgm")

    def dma_ops(self, u):
        base = slot_addr(self.uslot(u)) if u < 26 else 16384 * (u - 26)
        tag = f"u{u}"
        if u < 21 and u % 3 == 1: vo, sr, pre = voX, S_X, [f"s_add_u32 s{sA}, s{sXB}, {128 * (u // 3)}"]
        elif u < 21:              vo, sr, pre = voW, S_WG, [f"s_add_u32 s{sA}, s{sWB}, {(64 * (u // 3) + 16 * (u % 3)) * 3584}"]
        else:                     vo, sr, pre = voD, S_WD, self.ksoff(u - 19 if u < 26 else u - 26, 32 * 896, sDB)
        m0cmd = f"s_add_u32 m0, s{sM0}, {base}"
        return [(pre if k == 0 else [], f"buffer_load_dwordx4 v{vo+k}, {srd(sr)}, s{sA} offen offset:{1024*k} lds", tag, m0cmd) for k in range(4)]
    @staticmethod
    def ksoff(step, mul, sbase, dst=sA):
        return [f"s_mul_i32 s{dst}, s{sKS + step // 2}, {2*mul}", f"s_add_u32 s{dst}, s{dst}, s{sbase}"] + ([f"s_add_u32 s{dst}, s{dst}, {mul}"] if step & 1 else [])
    def emit_aux(self, x):
        a = self.a
        if isinstance(x, tuple):
            if self.m0 != x[3]: a(x[3]); self.m0 = x[3]
            for y in x[0]: a(y)
            self.vmem(x[1], x[2])
        elif x == "@prm": self.wait_vm("prm")
        else:
            if x.startswith("ds_write_addtid") and self.m0 != "sb":
                a(f"s_mov_b32 m0, s{sSB}"); self.m0 = "sb"
            a(x)

    def signal(self, k, vt):
        a = self.a
        a(f"s_lshl_b32 s{sA}, s{sAW}, 2", f"v_mov_b32 v{vt}, s{sA}", f"v_mov_b32 v{vt+1}, s{sTAG}")
        a(f"ds_write_b32 v{vt}, v{vt+1} offset:{AUXCNT + 16*k}")
    def await_(self, k, vt, who, extra=(), sleep=0):
        a = self.a
        L0, L1 = self.lab("Lab"), self.lab("Lae")
        if who == "all": a(f"v_and_b32 v{vt}, 3, v1", f"v_lshlrev_b32 v{vt}, 2, v{vt}")
        elif who == "zero": a(f"v_mov_b32 v{vt}, 0")
        else:
            a(f"s_lshl_b32 s{sA}, s{sAW}, 2")
            if who == "pair": a(f"s_xor_b32 s{sA}, s{sA}, 4")
            a(f"v_mov_b32 v{vt}, s{sA}")
        a(f"s_mov_b32 s{sSPIN}, {SPIN_MAX*10}")
        a(f"{L0}:", f"ds_read_b32 v{vt+1}, v{vt} offset:{AUXCNT + 16*k}")
        for x in extra: a(x)
        a("s_waitcnt lgkmcnt(0)", f"v_cmp_ne_u32 vcc, s{sTAG}, v{vt+1}", f"s_sub_u32 s{sSPIN}, s{sSPIN}, 1", "s_nop 3", f"s_cbranch_vccz {L1}")
        if sleep: a(f"s_sleep {sleep}")
        a(f"s_cmp_lg_u32 s{sSPIN}, 0", f"s_cbranch_scc1 {L0}")
        a(f"{L1}:")
    def auxbar(self, k, vt, pair=False, extra=()):
        self.signal(k, vt)
        self.await_(k, vt, "pair" if pair else "all", extra)

    def aux(self):
        a = self.a
        self.role = 'A'; self.m0 = None
        self.sCH_, self.sPT = sCH_, sPT = 48, 47
        self.cACC, self.cAF, self.cBF, self.vQA, self.vUA = 12, 44, 108, 172, 180
        vN, vt, UR = 181, 182, 192
        GATE = self.opt("gate", 8)
        def gate():
            if len(self.vm) > GATE:
                a(f"s_waitcnt vmcnt({GATE})"); self.vm = self.vm[-GATE:]
        def units(us, g=True):
            for u in us:
                if g: gate()
                for x in self.dma_ops(u): self.emit_aux(x)
        N0 = self.opt("n0", 3)
        TA = self.opt("ta", 99)
        def touch():
            mask = self.opt("tk", 3)
            a(f"s_and_b32 s{sB}, s{sAW}, 1", f"s_lshl1_add_u32 s{sB}, s{sT}, s{sB}")
            if mask & 1:
                a(f"s_mul_i32 s{sA}, s{sB}, {28*128}", f"v_min_u32 v236, 27, v1", f"v_lshlrev_b32 v236, 7, v236")
                self.vmem(f"buffer_load_dword v237, v236, {srd(S_WG)}, s{sA} offen", "tch")
            if mask & 2:
                a(f"s_lshl2_add_u32 s{sB}, s{sT}, s{sAW}", f"s_mul_i32 s{sA}, s{sB}, {14*128}", f"v_min_u32 v236, 13, v1", f"v_lshlrev_b32 v236, 7, v236")
                self.vmem(f"buffer_load_dword v238, v236, {srd(S_WD)}, s{sA} offen", "tch")
        for u in range(N0):
            if u == TA: touch()
            units([u], False)
        if TA == N0: touch()
        setup = self.kgen_setup()
        PRM = self.kregs[0]; kv = self.kvt
        a(f"s_load_dword s{sLD}, s[{S_P+8}:{S_P+9}], s{sF}", f"s_load_dword s{sDS}, s[{S_P+10}:{S_P+11}], s{sF}")
        for k in range(1, 4): a(f"v_add_u32 v{voD+k}, {k*(7168-1024)}, v{voD}")
        a(f"s_mul_i32 s{sA}, s{sAW}, {448*896}", f"s_lshl_b32 s{sB}, s{sJ2}, 7", f"s_add_u32 s{sDB}, s{sA}, s{sB}")
        a(f"s_lshr_b32 s{sCH_}, s{sAW}, 1", f"s_and_b32 s{sPT}, s{sAW}, 1")
        for x in setup: a(x)
        V0, B0, M0 = self.kgen_body(True, 0); V1, B1, M1 = self.kgen_body(False, 1)
        work = ["@prm"] + self.kgen_scale() + V0 + V1; nV1 = len(V1)
        if "eb" in self.opts:
            sv = self.a; self.a = Asm(); self.conv_addr(236, 39, 40); work += [c.text for c in self.a.ins]; self.a = sv
        SL = self.opt("sl", 32); KS = self.opt("ks", 2); PI = self.opt("pi", 0)
        fx = f"buffer_load_dword v{vt+1}, v{vt}, {srd(S_WS)}, 0 offen sc1"
        LB = self.opt("lb", 11)
        SCHED = {0: [[3,4],[5,6,7],[8],[9,10],[26],[11,12],[13,14],[27],[15,16],[17,18],[19,20],[21]],
                 1: [[3,4],[5,6,7],[8,26],[9,10],[11],[12,13],[14,27],[15,16],[17],[18,19],[20],[21]],
                 2: [[3,4],[5,6],[7,8],[9,10],[11,26],[12,13],[14,27],[15,16],[17],[18,19],[20],[21,22]],
                 3: [[3,4],[5,6],[7,8],[9,10],[26],[11,12],[13,14],[27],[15,16],[17,18],[19,20],[21]],
                 6: [[3,4],[5,6],[7,8],[9,10],[26],[11,12],[13,14],[27],[15,16],[17,18],[19,20],[21,22]],
                }[self.opt("sch", 3)]
        IG = self.opt("ig", 0)
        done = set(range(N0))
        for n in range(LB + 1):
            if n == LB and not self.opt("fl", 2): self.vmem(fx, "fxf")
            us = [u for u in SCHED[n] if u not in done]; done.update(us)
            nsl = 0 if n < KS else SL
            sl = work[:nsl]; del work[:nsl]
            ops = []
            for u in us: ops += self.dma_ops(u)
            gap = max(1, len(sl) // (len(ops) + 1)) if ops else 0
            if "noil" in self.opts: gap = 0
            for i, x in enumerate(sl):
                while ops and (gap == 0 or i % gap == 0):
                    self.emit_aux(ops.pop(0))
                    if gap: break
                self.emit_aux(x)
            for o in ops: self.emit_aux(o)
            if n == 0 and TA == 5: touch()
            if n == PI:
                for b in range(2):
                    for k in range(4):
                        self.vmem(f"global_load_ushort v{PRM+4*b+k}, v19, s[{S_P+2*k}:{S_P+2*k+1}] offset:{128*b}", "prm")
                for x in self.ks_table(): a(x)
            if n == 0: self.stamp(1)
            if n == self.opt("xi", 4): self.final_pre()
            if n == self.opt("fw", 8):
                L = self.lab("Lfw")
                a(f"s_cmp_lg_u32 s{sAW}, 0", f"s_cbranch_scc1 {L}")
                a(f"s_lshl4_add_u32 s{sB}, s{sI}, s{sJ}", f"s_lshl_b32 s{sB}, s{sB}, 7", f"s_add_u32 s{sB}, s{sB}, {WS_FH}")
                a(f"v_mov_b32 v253, 0", f"v_lshlrev_b32 v252, 2, v1", "s_mov_b32 exec_hi, 0", f"buffer_store_dword v253, v252, {srd(S_WS)}, s{sB} offen sc1", "s_mov_b32 exec_hi, -1")
                a(f"{L}:")
            if n == 5: self.vmem(self.nonce_load(vN), "non")
            if n == 1:
                a(f"s_lshl_b32 s{sB}, s{sAW}, 10", f"s_add_u32 s{sB}, s{sB}, {WS_FX}", f"v_lshrrev_b32 v{vt}, 3, v1", f"v_lshl_add_u32 v{vt}, v{vt}, 7, s{sB}")
                a(f"v_lshrrev_b32 v{vt+2}, 4, v1", f"v_mul_u32_u24 v{vt+2}, {448*128}, v{vt+2}", f"v_bfe_u32 v{vt+3}, v1, 1, 3", f"v_lshl_add_u32 v{vt+2}, v{vt+3}, 6, v{vt+2}")
                a(f"v_and_b32 v{vt+3}, 1, v1", f"v_lshl_add_u32 v{vt+2}, v{vt+3}, 4, v{vt+2}")
                a(f"v_mul_u32_u24 v{vt+3}, {UB[1]-UB[0]}, v{vt+3}", f"v_lshrrev_b32 v{vt+4}, 1, v1", f"v_lshl_add_u32 v{vt+3}, v{vt+4}, 4, v{vt+3}")
                a(f"s_lshl_b32 s{sB}, s{sAW}, 10", f"s_add_u32 s{sB}, s{sB}, {UB[0] + 512}", f"v_add_u32 v{vt+3}, s{sB}, v{vt+3}")
                a(f"s_lshl1_add_u32 s{sE}, s{sT}, s{sCH_}")
                a(f"s_lshr_b32 s{sC}, s{sT}, 1", f"s_lshl_b32 s{sC}, s{sC}, 9", f"s_and_b32 s{sB}, s{sT}, 1", f"s_lshl_b32 s{sB}, s{sB}, 5", f"s_add_u32 s{sC}, s{sC}, s{sB}")
                a(f"s_mul_i32 s{sB}, s{sAW}, {8*448*128}", f"s_add_u32 s{sC}, s{sC}, s{sB}", f"s_add_u32 s{sC}, s{sC}, {WS_XNT}", f"s_add_u32 s{sD}, s{sC}, {4*448*128}")
            if n == 10: self.get_nonce(vN, issued="non")
            if n == LB - 2: self.wait_vm("u26")
            if n == LB - 1: self.wait_vm("u27")
            self.wait_vm(f"u{3 * (n // 2) + 1 + (n % 2)}" if n < LB else "u20")
            a("s_barrier")
            if n == 0: self.stamp(2)
        self.stamp(3)
        print("K-gen instrs left after the last barrier:", len(work), file=sys.stderr)
        NDA = self.NDA
        def ublock():
            self.spin([fx], [vt + 1], first_issued_tag="fxf", note=1)
            self.stamp(4)
            for k in range(2):
                self.vmem(f"buffer_load_dwordx4 v[{UR+4*k}:{UR+4*k+3}], v{vt+2}, {srd(S_WS)}, s{sD if k else sC} offen sc1", "uu")
            for x in self.r2load: self.vmem(x, "fx")
        FL = self.opt("fl", 2)
        if not FL: ublock()
        if FL == 1: self.vmem(fx, "fxf")
        if FL: units([u for u in range(22, 21 + min(NDA, 3)) if u not in done]); done.update((22, 23))
        if FL == 2: self.vmem(fx, "fxf")
        for x in work: self.emit_aux(x)
        if "eb" not in self.opts: self.conv_addr(236, 39, 40)
        if FL == 3:
            self.vmem(fx, "fxf")
            a(f"v_lshlrev_b32 v{kv}, 2, v1", f"v_mov_b32 v{kv+1}, 0x3c00", f"ds_write_b32 v{kv}, v{kv+1} offset:31984")
            for _ in range(8): self.emit_aux(B0.pop(0))
        if FL: ublock()
        units([u for u in range(22, 21 + min(NDA, 3)) if u not in done])
        if NDA > 3:
            self.await_(8, kv, "all", sleep=1)
            units(range(24, 21 + NDA))
        if "auxidle" in self.opts:
            self.wait_vm_all(); self.signal(0, kv); a("s_barrier"); self.write_stamps(1); a("s_endpgm"); return
        self.stamp3(1)
        a(f"s_setprio {self.opt('ap2', 1)}")
        a(f"v_lshlrev_b32 v{kv}, 2, v1", f"v_mov_b32 v{kv+1}, 0x3c00", f"ds_write_b32 v{kv}, v{kv+1} offset:31984")
        for x in B0: self.emit_aux(x)
        self.wait_vm(f"u{20 + NDA}")
        self.signal(0, kv)
        self.stamp3(2)
        for i, x in enumerate(B1):
            self.emit_aux(x)
            if i == 14: a("s_waitcnt lgkmcnt(15)")
            if i >= 14 and i % 4 == 2 and M0: a(M0.pop(0))
        assert not M0
        for k, x in enumerate(M1):
            a(f"s_waitcnt lgkmcnt({7-k})"); a(x)
        self.stamp3(3)
        if "eb" not in self.opts: self.await_(9, kv + 1, "all")
        self.image(UR, vt)
        a(f"s_setprio {self.opt('ap3', 1)}")
        self.conv()

    def image(self, UR, vt):
        a = self.a
        KD, BF, AF, vA = self.KD, self.kBF, self.kAF, self.kvt
        sCH_, sPT = self.sCH_, self.sPT
        def by_part(f):
            L1, L2 = self.lab("Lp"), self.lab("Lp")
            a(f"s_cmp_eq_u32 s{sPT}, 0", f"s_cbranch_scc0 {L1}")
            f(0); a(f"s_branch {L2}", f"{L1}:"); f(1); a(f"{L2}:")
        keep = {0: range(0, 12), 1: range(12, 16)}
        a(f"s_add_u32 s{sC}, s{sM0}, {slot_addr(2) if 'eb' in self.opts else XCH}", f"v_lshl_add_u32 v{vA}, v1, 4, s{sC}")
        for r in range(16): a(f"v_mul_f32 v{KD+r}, v{KD+r}, v18")
        def f(pt):
            for r in list(keep[1 - pt])[::4]: a(f"ds_write_b128 v{vA}, v[{KD+r}:{KD+r+3}] offset:{256*r}")
        by_part(f)
        self.auxbar(1, vA + 1)
        self.stamp3(4)
        a(f"v_xor_b32 v{vA}, 0x1000, v{vA}")
        O = AF
        blocks = [[KD + i for i in range(9)], [KD + 9] * 3 + [KD + 10] * 3 + [KD + 11] * 3]
        for k, r0 in enumerate((KD + 12, KD + 14)):
            blocks.append([r0] * 4 + [BF + k] + [r0 + 1] * 4)
        a(f"s_mul_i32 s{sD}, s{sCH_}, {QB[1]}")
        def f(pt):
            K = list(keep[pt])
            for r in K[::4]: a(f"ds_read_b128 v[{BF+16+r}:{BF+16+r+3}], v{vA} offset:{256*r}")
            a(f"v_lshl_add_u32 v{vA}, v1, 5, s{sD}")
            if pt == 0:
                a(f"v_cmp_eq_u32 vcc, 0, v1", f"v_mov_b32 v{vA+2}, s{sDS}", f"v_cndmask_b32 v{vA+2}, 0, v{vA+2}, vcc", f"v_add_f32 v{KD}, v{KD}, v{vA+2}")
            else:
                a(f"v_and_b32 v{vA+1}, 1, v1", f"v_cmp_eq_u32 vcc, 1, v{vA+1}")
            a("s_waitcnt lgkmcnt(0)")
            for r in K: a(f"v_add_f32 v{KD+r}, v{KD+r}, v{BF+16+r}")
            if pt:
                for k, r0 in enumerate((KD + 12, KD + 14)): a(f"v_cndmask_b32 v{BF+k}, v{r0}, v{r0+1}, vcc")
            for bi in (2 * pt, 2 * pt + 1):
                v = blocks[bi]
                for e_ in range(8): a(f"v_cvt_pk_bf16_f32 v{O+8*bi+e_}, v{v[e_+1]}, v{v[e_]}")
                for h in range(2): a(f"ds_write_b128 v{vA}, v[{O+8*bi+4*h}:{O+8*bi+4*h+3}] offset:{64 + 2048*bi + 16*h}")
            if pt == 0:
                a(f"v_readfirstlane_b32 s{sA}, v{O}")
                a(f"s_lshr_b32 s{sA}, s{sA}, 16", f"v_mov_b32 v{vA+1}, s{sA}", f"v_and_b32 v{vA+2}, 15, v1", f"v_cmp_eq_u32 vcc, 15, v{vA+2}")
                a(f"v_cndmask_b32 v{vA+1}, 0, v{vA+1}, vcc", f"v_lshl_add_u32 v{vA+2}, v{vA+2}, 2, s{sD}")
                a(f"ds_write_b32 v{vA+2}, v{vA+1}")
            else:
                a(f"s_mul_i32 s{sD}, s{sCH_}, {UB[1]-UB[0]}", f"v_lshl_add_u32 v{vA+2}, v1, 3, s{sD}")
                a(f"v_mov_b32 v{O}, 0", f"v_mov_b32 v{O+1}, 0")
                a(f"ds_write_b64 v{vA+2}, v[{O}:{O+1}] offset:{UB[0]}")
        by_part(f)
        self.stamp3(5)
        self.wait_vm("uu")
        self.stamp3(6)
        for k in range(2): a(f"ds_write_b128 v{vt+3}, v[{UR+4*k}:{UR+4*k+3}] offset:{512*k}")
        self.auxbar(2, vA + 1)
        self.stamp3(7)
        for r in self.areads(0)[:2] + self.breads(0) + self.areads(0)[2:]: a(r)

    def conv_addr(self, vt, sC=sC, sD=sD):
        a = self.a
        sCH_, sPT, vQA, vUA = self.sCH_, self.sPT, self.vQA, self.vUA
        a(f"v_and_b32 v{vt+1}, 15, v1", f"v_lshrrev_b32 v{vt+2}, 4, v1")
        a(f"v_lshlrev_b32 v{vt+3}, 3, v{vt+2}", f"v_sub_u32 v{vt+3}, v{vt+1}, v{vt+3}")
        a(f"s_mul_i32 s{sC}, s{sCH_}, {QB[1]}", f"s_lshl_b32 s{sD}, s{sPT}, 9", f"s_add_u32 s{sC}, s{sC}, s{sD}", f"s_add_u32 s{sC}, s{sC}, 100")
        a(f"v_lshl_add_u32 v{vQA}, v{vt+3}, 2, s{sC}")
        for q in range(1, 8): a(f"v_add_u32 v{vQA+q}, {1024*q}, v{vQA}")
        a(f"s_mul_i32 s{sC}, s{sCH_}, {UB[1]-UB[0]}")
        a(f"s_lshl_b32 s{sD}, s{sPT}, 8", f"s_sub_u32 s{sC}, s{sC}, s{sD}", f"s_add_u32 s{sC}, s{sC}, {UB[0] + 480 - 192}")
        a(f"v_lshlrev_b32 v{vt+3}, 5, v{vt+1}", f"v_lshl_add_u32 v{vt+3}, v{vt+2}, 4, v{vt+3}", f"v_add_u32 v{vUA}, s{sC}, v{vt+3}")
    def areads(self, rr):
        buf = self.cAF + 32 * (rr & 1); R = []
        for q in range(8):
            R.append(f"ds_read2_b32 v[{buf+4*q}:{buf+4*q+1}], v{self.vQA+q} offset0:{32*rr+6} offset1:{32*rr+4}")
            R.append(f"ds_read2_b32 v[{buf+4*q+2}:{buf+4*q+3}], v{self.vQA+q} offset0:{32*rr+2} offset1:{32*rr}")
        return R
    def breads(self, rr):
        buf = self.cBF + 32 * (rr & 1)
        return [f"ds_read_b128 v[{buf+4*c}:{buf+4*c+3}], v{self.vUA} offset:{512*c + 192 - 64*rr}" for c in range(8)]

    def conv(self):
        a = self.a
        vt = 5
        ACC, AF, BF = self.cACC, self.cAF, self.cBF
        sCH_, sPT = self.sCH_, self.sPT
        self.stamp(5)
        for rr in range(4):
            a("s_waitcnt lgkmcnt(0)")
            pend = (self.breads(rr + 1) + self.areads(rr + 1)) if rr < 3 else []
            ab, bb = AF + 32 * (rr & 1), BF + 32 * (rr & 1)
            for q in range(8):
                for c in range(q, 8):
                    d = ACC + 4 * c
                    cc = "0" if (rr == 0 and q == 0) else f"v[{d}:{d+3}]"
                    a(f"v_mfma_f32_16x16x32_bf16 v[{d}:{d+3}], v[{ab+4*q}:{ab+4*q+3}], v[{bb+4*(c-q)}:{bb+4*(c-q)+3}], {cc}")
                    if pend: a(pend.pop(0))
        self.stamp(6)
        KP = AF; RX = AF + 16
        if "eb" in self.opts: self.await_(9, vt, "all")
        a(f"s_lshl_b32 s{sA}, s{sAW}, 12", f"s_add_u32 s{sA}, s{sA}, {XCH}", f"v_lshl_add_u32 v{vt}, v1, 4, s{sA}")
        a("s_nop 3")
        L1, L2 = self.lab("Lx"), self.lab("Lx")
        a(f"s_cmp_eq_u32 s{sPT}, 0", f"s_cbranch_scc0 {L1}")
        for pt in range(2):
            if pt: a(f"{L1}:")
            for t in range(4): a(f"ds_write_b128 v{vt}, v[{ACC+16*(1-pt)+4*t}:{ACC+16*(1-pt)+4*t+3}] offset:{1024*t}")
            for i in range(0, 16, 2): a(f"v_mov_b64 v[{KP+i}:{KP+i+1}], v[{ACC+16*pt+i}:{ACC+16*pt+i+1}]")
            if not pt: a(f"s_branch {L2}")
        a(f"{L2}:")
        a(f"v_bfe_u32 v{vt+3}, v1, 2, 2", f"v_mul_u32_u24 v{vt+3}, {448*256}, v{vt+3}", f"v_and_b32 v{vt+4}, 3, v1", f"v_lshl_add_u32 v{vt+3}, v{vt+4}, 4, v{vt+3}")
        a(f"v_and_b32 v{vt+4}, 48, v1", f"v_lshl_add_u32 v{vt+3}, v{vt+4}, 2, v{vt+3}")
        if "ylin" in self.opts: a(f"v_lshlrev_b32 v{vt+3}, 4, v1")
        a(f"s_mul_i32 s{sC}, s{sPT}, {16*448*256}", f"s_lshl_b32 s{sB}, s{sE}, 8", f"s_add_u32 s{sC}, s{sC}, s{sB}", f"s_add_u32 s{sC}, s{sC}, {WS_YT}")
        a(f"v_xor_b32 v{vt}, 0x1000, v{vt}")
        self.auxbar(3, vt + 1, pair=True, extra=[f"ds_read_b128 v[{RX+4*t}:{RX+4*t+3}], v{vt} offset:{1024*t}" for t in range(4)])
        for t in range(4):
            k = KP + 4 * t
            for i in range(4): a(f"v_add_f32 v{k+i}, v{k+i}, v{RX+4*t+i}")
            a(f"v_cvt_pk_bf16_f32 v{k}, v{k}, v{k+1}", f"v_cvt_pk_bf16_f32 v{k+2}, v{k+2}, v{k+3}", f"v_mov_b32 v{k+1}, s{sTAG}", f"v_mov_b32 v{k+3}, s{sTAG}")
            if "noyst" not in self.opts: self.vmem(f"buffer_store_dwordx4 v[{k}:{k+3}], v{vt+3}, {srd(S_WS)}, s{sC} offen" + ("" if "yplain" in self.opts else " sc1"), "yst")
            if t < 3: a(f"s_add_u32 s{sC}, s{sC}, {4*448*256}")
        a("s_setprio 0")
        self.stamp(7)
        if self.stage < 4:
            self.write_stamps(1)
            a("s_endpgm"); return
        YR = 12
        self.final_addr(76)
        a(f"s_lshl_b32 s{sB}, s{sJ2}, 6", f"s_lshl_b32 s{sC}, s{sAW}, 4", f"s_add_u32 s{sB}, s{sB}, s{sC}")
        a(f"s_mul_i32 s{sA}, s{sI2}, 448", f"s_add_u32 s{sA}, s{sA}, s{sB}", f"s_lshl_b32 s{sA}, s{sA}, 8", f"s_add_u32 s{sA}, s{sA}, {WS_YT}")
        a(f"v_lshlrev_b32 v{vt}, 4, v1")
        a(f"v_lshrrev_b32 v{vt+1}, 4, v1", f"v_mul_u32_u24 v{vt+1}, 144, v{vt+1}", f"v_and_b32 v{vt+2}, 3, v1", f"v_lshl_add_u32 v{vt+1}, v{vt+2}, 5, v{vt+1}")
        a(f"v_bfe_u32 v{vt+3}, v1, 2, 2", f"v_lshl_add_u32 v{vt+1}, v{vt+3}, 3, v{vt+1}")
        a(f"s_mul_i32 s{sC}, s{sCH_}, {QB[1]}", f"s_lshl_b32 s{sB}, s{sPT}, 12", f"s_add_u32 s{sC}, s{sC}, s{sB}", f"v_add_u32 v{vt+1}, s{sC}, v{vt+1}")
        a(f"v_mul_u32_u24 v{vt+3}, 144, v{vt+3}", f"v_lshl_add_u32 v{vt+3}, v{vt+2}, 3, v{vt+3}", f"v_and_b32 v{vt+2}, 48, v1", f"v_lshl_add_u32 v{vt+3}, v{vt+2}, 1, v{vt+3}")
        a(f"v_add_u32 v{vt+3}, s{sC}, v{vt+3}", f"v_mul_u32_u24 v{vt+4}, 48, v1", f"v_add_u32 v{vt+4}, s{sC}, v{vt+4}")
        a(f"v_add_u32 v{vt+2}, 1152, v{vt+1}")
        a(f"s_mov_b32 s{sD}, s{sA}")
        self.await_(4, YR, "same", sleep=4)
        loads = [f"buffer_load_dwordx4 v[{YR+4*k}:{YR+4*k+3}], v{vt}, {srd(S_WS)}, s{sD} offen offset:{1024*k} sc1" for k in range(4)]
        if "noyld" not in self.opts: self.spin(loads, [YR + 2 * i + 1 for i in range(8)], sleep=self.opt("ysp", 4), note=2)
        else: self.wait_vm_all()
        self.vm = ["fx"]
        for k in range(4): a(f"ds_write2_b32 v{vt+1}, v{YR+4*k}, v{YR+4*k+2} offset0:{144*k} offset1:{144*k+1}" if 144 * k + 1 < 256 else
                             f"ds_write2_b32 v{vt+2}, v{YR+4*k}, v{YR+4*k+2} offset0:{144*(k-2)} offset1:{144*(k-2)+1}")
        for t in range(4): a(f"ds_read_b64_tr_b16 v[{YR+16+2*t}:{YR+17+2*t}], v{vt+3} offset:{4*144*t}")
        a("s_waitcnt lgkmcnt(0)")
        for h in range(2): a(f"ds_write_b128 v{vt+4}, v[{YR+16+4*h}:{YR+19+4*h}] offset:{16*h}")
        self.final(76)

    def build(self):
        a = self.a
        a(".text", f".globl {NAME}_kernel", ".p2align 8", f".type {NAME}_kernel,@function", f"{NAME}_kernel:")
        self.prologue()
        self.aux()
        self.mwave()
        self.helper()
        a("L_exit:", "s_endpgm")
        added = a.fix_hazards()
        errs = a.check_waits()
        for e in errs[:5]: print("WAITERR:", e, file=sys.stderr)
        if errs and not (self.opts & {"nokg", "nod", "nolds", "lax"}): raise SystemExit("wait errors")
        mv, ma, ms = a.max_regs()
        print(f"instrs {sum(1 for c in a.ins if c.kind not in ('dir','label'))} nops added {added} maxv {mv} maxs {ms}", file=sys.stderr)
        head = f"; fused LN + S4D conv + ReGLU FFN\n; @launch grid=(256,1,1) block=(512,1,1) lds=163840\n.amdgcn_target \"amdgcn-amd-amdhsa--gfx950\"\n"
        return head + a.text() + kernel_desc(NAME + "_kernel", 256, 256)

if __name__ == "__main__":
    import argparse
    ap = argparse.ArgumentParser()
    ap.add_argument("--stage", type=int, default=9); ap.add_argument("--stamps", action="store_true"); ap.add_argument("-o", default="k.s"); ap.add_argument("--opts", default="")
    x = ap.parse_args()
    open(x.o, "w").write(Gen(x.stage, x.stamps, [o for o in x.opts.split(',') if o]).build())
```

```python
import gen, mkcal
NAME = gen.NAME
A = f""".text
.globl sta_kernel
.p2align 8
.type sta_kernel,@function
sta_kernel:
    s_cmp_ge_u32 s2, 1
    s_cbranch_scc1 L_aend
    s_load_dwordx2 s[8:9], s[0:1], 104
    s_mov_b32 s10, 0x10000000
    s_mov_b32 s11, 0x20000
    s_mov_b32 s16, SLOT
    s_waitcnt lgkmcnt(0)
    s_memrealtime s[22:23]
    s_waitcnt lgkmcnt(0)
    v_mov_b32 v2, s22
    v_mov_b32 v3, s23
    buffer_store_dwordx2 v[2:3], off, s[8:11], s16
L_aend:
    s_endpgm
.section .rodata,"a"
.p2align 6
.amdhsa_kernel sta_kernel
  .amdhsa_next_free_vgpr 8
  .amdhsa_next_free_sgpr 32
  .amdhsa_accum_offset 8
  .amdhsa_group_segment_fixed_size 0
  .amdhsa_kernarg_size 112
  .amdhsa_user_sgpr_count 2
  .amdhsa_user_sgpr_kernarg_segment_ptr 1
  .amdhsa_system_sgpr_workgroup_id_x 1
.end_amdhsa_kernel
.text
"""
def kA(name, wg): return A.replace("sta_kernel", name).replace("L_aend", "L_" + name).replace("SLOT", str(gen.WS_ST + wg * 256))
src = gen.Gen(9, True, ()).build()
old = "; @launch grid=(256,1,1) block=(512,1,1) lds=163840\n"
L1 = f"; @launch kernel={NAME}_kernel grid=(256,1,1) block=(512,1,1) lds=163840\n"
LR = "; @launch kernel=rep_kernel grid=(1,1,1) block=(64,1,1) lds=0\n"
LA = "; @launch kernel=sta_kernel grid=(1,1,1) block=(64,1,1) lds=0\n"
LB = "; @launch kernel=stb_kernel grid=(1,1,1) block=(64,1,1) lds=0\n"
LC = "; @launch kernel=stc_kernel grid=(1,1,1) block=(64,1,1) lds=0\n"
extra = kA("sta_kernel", 300) + kA("stb_kernel", 301) + kA("stc_kernel", 302)
lst = LA + L1 + LB + LC + LR
specs = [(300,0,0, 300,0,0), (300,0,0, 0,0,0), (300,0,0, 255,0,0), (100,1,9, 301,0,0), (301,0,0, 302,0,0), (300,0,0, 301,0,0)]
names = ["base", "A->WG0 start", "A->WG255 start", "WG100 end->B", "B->C", "A->B"]
for i, sp in enumerate(specs):
    open(f"../cdna_kernels/cal{i}.s", "w").write(src.replace(old, lst) + extra + mkcal.reporter(*sp, 10))
    print(i, names[i])
```

```python
import sys, struct
import numpy as np
from asmlib import Asm, kernel_desc
NAME = "parallel_sum__ssm_conv_s4d__glu_gated_reglu__prompt"

HS     = 225 * 1024
WS_H   = 0x0000000
WS_XNT = 0x0800000
WS_YT  = 0x0A00400
WS_CS  = 0x0E00000
WS_NM  = 0x0E10000
WS_R2  = 0x0E20000
WS_FH  = 0x0E30000
WS_FX  = 0x0E58000
WS_ST  = 0xF000000
RING = 32768
def slot_addr(s): return RING + 16384 * s
DBASE = RING
QB = [0, 8320]
UB = [16640, 21248]
AUXCNT = 32256
XCH = slot_addr(7)
SPIN_MAX = 200000

def f32(x): return "0x%08x" % struct.unpack("<I", struct.pack("<f", x))[0]
LOG2E = 1.4426950408889634

S_X, S_WG, S_WU, S_WD, S_WS, S_OUT, S_DBG = 4, 8, 12, 16, 20, 24, 28
def srd(b): return f"s[{b}:{b+3}]"
S_P = 32
sCH = 48
sXB, sWB, sDB, sM0, sAW, sSB = 55, 56, 57, 58, 59, 46
sW, sI, sJ, sI2, sJ2, sT, sST, sTAG, sSPIN = 60, 61, 62, 63, 64, 65, 44, 67, 68
sF, sA, sB, sC, sD, sE, sG = 69, 70, 71, 72, 73, 74, 75
sEX = 76
sLD, sDS = 78, 79
sKS = 32
sQI = 53
S_STAMP = 80
voX, voW, voD = 240, 244, 248

def shift_ws(off):
    g = globals()
    for n in ("WS_H", "WS_XNT", "WS_YT", "WS_CS", "WS_NM", "WS_R2", "WS_FH", "WS_FX"): g[n] += off

HEADER = """; out = x + S4D_conv(LN(x)) + D*LN(x) + ReGLU_FFN(LN(x)), one launch, 256 workgroups x 8 waves (one per CU).
; wg 32..255: waves 0-3 run GEMM1 (raw x, mean removed by a rank-1 update, 1/sigma^2 applied after GEMM2) and GEMM2;
;             waves 4-7 stream the operands into LDS, build the SSM kernel of two channels, convolve, and finish the tile.
; workgroup 0 publishes in d_debug[0]; every poll loop is bounded.
"""

class Gen:
    def __init__(self, stage=9, stamps=False, opts=()):
        self.a = Asm(); self.stage = stage; self.stamps = stamps; self.opts = set(opts)
        self.nlab = 0; self.role = ''
        shift_ws(self.opt('wo', 0) << 20)
        self.NDA = self.opt("nda", 2)
        self.NX = self.opt('nx', 2)
        self.NV = self.opt('nv', 2)
        self.vm = []
    def opt(self, name, default):
        for o in self.opts:
            if o.startswith(name + "="): return int(o[len(name) + 1:])
        return default
    def lab(self, p="L"):
        self.nlab += 1; return f"{p}_{self.nlab}"
    def cstamp2(self, k):
        if self.stamps and "cyc2" in self.opts: self.a(f"s_memtime s[{S_STAMP+2*k}:{S_STAMP+2*k+1}]")
    def cstamp(self, k):
        if self.stamps and "cyc" in self.opts and "cyc2" not in self.opts: self.a(f"s_memtime s[{S_STAMP+2*k}:{S_STAMP+2*k+1}]")
    def stamp2(self, k):
        if self.stamps and "g2" in self.opts: self.a(f"s_memrealtime s[{S_STAMP+2*k}:{S_STAMP+2*k+1}]")
    def stamp3(self, k):
        if self.stamps and "g3" in self.opts: self.a(f"s_memrealtime s[{S_STAMP+2*k}:{S_STAMP+2*k+1}]")
    def stampk(self, k):
        if self.stamps: self.a(f"s_memrealtime s[{S_STAMP+2*k}:{S_STAMP+2*k+1}]")
    def stamp(self, k):
        if "k1" in self.opts and self.role in "MA" and self.role and 3 <= k <= 7: return
        if "spins" in self.opts: return
        if "g3" in self.opts and self.role == "A" and 1 <= k <= 7: return
        if "g2" in self.opts and self.role == "M" and 1 <= k <= 7: return
        if self.stamps and "cyc" not in self.opts: self.a(f"s_memrealtime s[{S_STAMP+2*k}:{S_STAMP+2*k+1}]")
    def vmem(self, text, tag=None):
        import re
        for o in self.opts:
            if o.startswith("drop_") and tag and re.fullmatch(o[5:], tag): return
        self.a(text); self.vm.append(tag)
    def wait_vm(self, tag):
        idx = [i for i, t in enumerate(self.vm) if t == tag]
        if not idx: return
        n = len(self.vm) - 1 - idx[-1]
        assert n <= 63
        self.a(f"s_waitcnt vmcnt({n})")
        self.vm = self.vm[idx[-1] + 1:]
    def wait_vm_all(self):
        self.a("s_waitcnt vmcnt(0)"); self.vm = []

    def spin(self, loads, checks, first_issued_tag=None, sleep=2, note=None):
        a = self.a
        L0, L1 = self.lab("Lspin"), self.lab("Lok")
        if "spins" in self.opts: a(f"s_mov_b32 s{sSPIN}, {SPIN_MAX+1}")
        if first_issued_tag is not None:
            self.wait_vm(first_issued_tag)
            self._check(checks)
            a(f"s_cbranch_vccz {L1}")
        a(f"s_mov_b32 s{sSPIN}, {SPIN_MAX}")
        a(f"{L0}:")
        for l in loads: a(l)
        a("s_waitcnt vmcnt(0)")
        self._check(checks)
        a(f"s_cbranch_vccz {L1}")
        if sleep: a(f"s_sleep {sleep}")
        a(f"s_sub_u32 s{sSPIN}, s{sSPIN}, 1", f"s_cmp_lg_u32 s{sSPIN}, 0", f"s_cbranch_scc1 {L0}")
        a(f"{L1}:")
        if "spins" in self.opts and note is not None: a(f"s_sub_u32 s{S_STAMP+2*note}, {SPIN_MAX+2}, s{sSPIN}")
        if first_issued_tag is None: self.vm = []
    def _check(self, checks):
        a = self.a
        a(f"v_cmp_ne_u32 vcc, s{sTAG}, v{checks[0]}")
        for c in checks[1:]:
            a(f"v_cmp_ne_u32 s[{sEX}:{sEX+1}], s{sTAG}, v{c}")
            a(f"s_or_b64 vcc, vcc, s[{sEX}:{sEX+1}]")
        a("s_nop 4" if len(checks) == 1 else "s_nop 0")
    def nonce_load(self, vt): return f"buffer_load_dword v{vt}, off, {srd(S_DBG)}, 0 sc1"
    def get_nonce(self, vt, issued=None):
        a = self.a
        L0, L1, L2 = self.lab("Lnon"), self.lab("Lnok"), self.lab("Lnx")
        def test():
            a(f"v_readfirstlane_b32 s{sTAG}, v{vt}", "s_nop 0")
            a(f"s_sub_u32 s{sEX}, s{sST}, s{sTAG}", f"s_cmp_lt_i32 s{sEX}, s{sEX+1}", f"s_cselect_b32 s{sEX}, s{sTAG}, 0")
            a(f"s_cmp_lg_u32 s{sEX}, 0", f"s_cbranch_scc1 {L1}")
        a(f"s_movk_i32 s{sEX+1}, 600")
        if issued is not None:
            self.wait_vm(issued); test()
        a(f"s_mov_b32 s{sSPIN}, {SPIN_MAX}")
        a(f"{L0}:")
        a(self.nonce_load(vt), "s_waitcnt vmcnt(0)")
        test()
        a(f"s_sub_u32 s{sSPIN}, s{sSPIN}, 1", f"s_cmp_lt_u32 s{sSPIN}, {SPIN_MAX-100}", f"s_cselect_b32 s{sEX+1}, 0x7fffffff, s{sEX+1}")
        a(f"s_cmp_lg_u32 s{sSPIN}, 0", f"s_cbranch_scc1 {L0}")
        a(f"{L1}:")
        if issued is None: self.vm = []
    def write_stamps(self, which):
        if not self.stamps: return
        a = self.a
        L = self.lab("Lst")
        a("s_waitcnt lgkmcnt(0)")
        a(f"s_cmp_lg_u32 s{sW}, {4*which}", f"s_cbranch_scc1 {L}")
        a(f"s_lshl_b32 s{sA}, s2, 8", f"s_add_u32 s{sA}, s{sA}, {WS_ST + 128*which}")
        a(f"s_mov_b64 s[{sEX}:{sEX+1}], exec", "s_mov_b64 exec, 1")
        for k in range(10):
            a(f"v_mov_b32 v2, s{S_STAMP+2*k}", f"v_mov_b32 v3, s{S_STAMP+2*k+1}")
            a(f"buffer_store_dwordx2 v[2:3], off, {srd(S_WS)}, s{sA} offset:{8*k}")
        a(f"s_mov_b64 exec, s[{sEX}:{sEX+1}]")
        a(f"{L}:")

    def prologue(self):
        a = self.a
        for (r, off) in ((S_X, 0), (S_WG, 64), (S_WU, 72)):
            a(f"s_load_dwordx2 s[{r}:{r+1}], s[0:1], {off}")
        a(f"s_load_dwordx8 s[{S_P}:{S_P+7}], s[0:1], 8", f"s_load_dwordx4 s[{S_P+8}:{S_P+11}], s[0:1], 40")
        a("s_cmp_ge_u32 s2, 256", "s_cbranch_scc1 L_exit")
        if "nopf" not in self.opts:
            L = self.lab("Lpc"); L2 = self.lab("Lpc")
            a(f"s_getpc_b64 s[{sA}:{sB}]", f"{L}:")
            a("v_lshlrev_b32 v254, 7, v0", f"v_cmp_gt_u32 vcc, L_exit-{L}, v254")
            a(f"s_and_saveexec_b64 s[{sEX}:{sEX+1}], vcc", f"s_cbranch_execz {L2}")
            a(f"global_load_dword v255, v254, s[{sA}:{sB}]")
            a(f"{L2}:", f"s_mov_b64 exec, s[{sEX}:{sEX+1}]")
        for (r, off) in ((S_WD, 80), (S_OUT, 88), (S_DBG, 96), (S_WS, 104)):
            a(f"s_load_dwordx2 s[{r}:{r+1}], s[0:1], {off}")
        a(f"s_memrealtime s[{sST}:{sST+1}]")
        if self.stamps:
            for k in range(1, 10): a(f"s_mov_b64 s[{S_STAMP+2*k}:{S_STAMP+2*k+1}], 0")
        self.stamp(0)
        vt = 5
        a(f"v_lshrrev_b32 v{vt}, 6, v0", "v_and_b32 v1, 63, v0")
        a(f"v_readfirstlane_b32 s{sW}, v{vt}")
        a(f"s_mov_b32 s{S_X+2}, 1835008", f"s_mov_b32 s{S_X+3}, 0x20000", f"s_mov_b32 s{S_WG+2}, 1605632", f"s_mov_b32 s{S_WG+3}, 0x20000")
        a(f"s_mov_b64 s[{S_WU+2}:{S_WU+3}], s[{S_WG+2}:{S_WG+3}]", f"s_mov_b64 s[{S_WD+2}:{S_WD+3}], s[{S_WG+2}:{S_WG+3}]", f"s_mov_b64 s[{S_OUT+2}:{S_OUT+3}], s[{S_X+2}:{S_X+3}]")
        a(f"s_mov_b32 s{S_WS+2}, 0x10000000", f"s_mov_b32 s{S_WS+3}, s{S_X+3}", f"s_movk_i32 s{S_DBG+2}, 256", f"s_mov_b32 s{S_DBG+3}, s{S_X+3}")
        a(f"s_and_b32 s{sA}, s2, 7", f"s_lshr_b32 s{sB}, s2, 3")
        a("s_cmp_lt_u32 s2, 32", "s_cbranch_scc1 L_helper")
        a(f"s_sub_u32 s{sB}, s{sB}, 4")
        a(f"s_mul_i32 s{sC}, s{sB}, 37", f"s_lshr_b32 s{sC}, s{sC}, 8")
        a(f"s_mul_i32 s{sD}, s{sC}, 7", f"s_sub_u32 s{sJ2}, s{sB}, s{sD}")
        if "xl" in self.opts:
            a(f"s_lshr_b32 s{sD}, s{sC}, 1", f"s_lshl1_add_u32 s{sI}, s{sA}, s{sD}")
            a(f"s_and_b32 s{sD}, s{sC}, 1", f"s_mul_i32 s{sD}, s{sD}, 7", f"s_add_u32 s{sJ}, s{sD}, s{sJ2}")
        else:
            a(f"s_lshr_b32 s{sD}, s{sA}, 1", f"s_lshl2_add_u32 s{sI}, s{sD}, s{sC}")
            a(f"s_and_b32 s{sD}, s{sA}, 1", f"s_mul_i32 s{sD}, s{sD}, 7", f"s_add_u32 s{sJ}, s{sD}, s{sJ2}")
        a(f"s_lshl2_add_u32 s{sI2}, s{sA}, s{sC}")
        if self.opt("tx", 1): a(f"s_mul_i32 s{sT}, s{sA}, 28", f"s_add_u32 s{sT}, s{sT}, s{sB}")
        else: a(f"s_sub_u32 s{sT}, s2, 32")
        a(f"s_mov_b32 s{sQI}, s{sC}", f"s_and_b32 s{sAW}, s{sW}, 3")
        a(f"s_lshl_b32 s{sD}, s{sT}, 10", f"s_lshl_b32 s{sE}, s{sAW}, 8", f"s_add_u32 s{sD}, s{sD}, s{sE}")
        a(f"v_lshl_add_u32 v19, v1, 1, s{sD}", f"s_lshl_b32 s{sF}, s{sT}, 2")
        a(f"v_lshrrev_b32 v{vt}, 3, v1", f"v_and_b32 v{vt+1}, 7, v1", f"v_lshrrev_b32 v{vt+2}, 4, v1")
        a(f"v_mul_u32_u24 v15, 896, v{vt}")
        a(f"v_lshlrev_b32 v14, 1, v{vt+2}", f"v_xor_b32 v14, v14, v{vt+1}", f"v_lshl_add_u32 v{voD}, v14, 4, v15")
        a(f"s_lshl_b32 s{sM0}, s{sAW}, 12")
        a(f"s_cmp_lt_u32 s{sW}, 4", "s_cbranch_scc1 L_m")
        a(f"v_xor_b32 v14, v{vt+2}, v{vt+1}", f"v_lshl_add_u32 v{voX}, v14, 4, v15")
        a(f"v_xor_b32 v14, 64, v{voX}", f"v_add_u32 v{voX+1}, {7168-1024}, v14", f"v_add_u32 v{voX+2}, {2*(7168-1024)}, v{voX}", f"v_add_u32 v{voX+3}, {3*(7168-1024)}, v14")
        a(f"v_lshlrev_b32 v14, 1, v{vt+2}", f"v_and_b32 v15, 15, v1", f"v_xor_b32 v14, v14, v15")
        a(f"v_mul_u32_u24 v15, 3584, v{vt+2}", f"v_lshl_add_u32 v{voW}, v14, 4, v15")
        a(f"v_xor_b32 v14, 0x80, v{voW}", f"v_add_u32 v{voW+1}, {14336-1024}, v{voW}", f"v_add_u32 v{voW+2}, {2*(14336-1024)}, v14", f"v_add_u32 v{voW+3}, {3*(14336-1024)}, v14")
        a(f"s_lshl2_add_u32 s{sA}, s{sI}, s{sAW}", f"s_mul_i32 s{sXB}, s{sA}, {32*896}")
        a(f"s_and_b32 s{sA}, s{sAW}, 1", f"s_mul_i32 s{sA}, s{sA}, {16*3584}", f"s_lshl_b32 s{sB}, s{sJ}, 8", f"s_add_u32 s{sWB}, s{sA}, s{sB}")
        a(f"s_cmp_ge_u32 s{sAW}, 2")
        a("s_waitcnt lgkmcnt(0)")
        self.vm = ["pf"]
        a(f"s_cselect_b32 s{S_WG}, s{S_WU}, s{S_WG}", f"s_cselect_b32 s{S_WG+1}, s{S_WU+1}, s{S_WG+1}")

    def ks_table(self):
        L = []
        for p in range(7):
            lo, mod = (0, 4) if p < 4 else (4, 3)
            d = sKS + p
            if self.opt("rot2", 1):
                L += [f"s_add_u32 s{d}, s{sQI}, {p - lo}", f"s_cmp_ge_u32 s{d}, {mod}", f"s_cselect_b32 s{sB}, {mod}, 0", f"s_sub_u32 s{d}, s{d}, s{sB}"]
                if self.opt("r2j", 0): L += [f"s_add_u32 s{d}, s{d}, s{sJ2}"]
                if lo: L += [f"s_add_u32 s{d}, s{d}, {lo}"]
                if self.opt("r2j", 0): L += [f"s_cmp_ge_u32 s{d}, 7", f"s_cselect_b32 s{sB}, 7, 0", f"s_sub_u32 s{d}, s{d}, s{sB}"]
            else: L += [f"s_mov_b32 s{d}, {p}"]
        return L

    def colsum_partial(self, regs, C, vt, area):
        a = self.a
        for n, R in enumerate(regs):
            for i in range(4):
                if n == 0: a(f"v_lshlrev_b32 v{C+2*i}, 16, v{R+i}", f"v_and_b32 v{C+2*i+1}, 0xffff0000, v{R+i}")
                else: a(f"v_dot2c_f32_bf16 v{C+2*i}, s{self.sLO}, v{R+i}", f"v_dot2c_f32_bf16 v{C+2*i+1}, s{self.sHI}, v{R+i}")
        for i in range(4): a(f"v_permlane32_swap_b32 v{C+i}, v{C+i+4}")
        for i in range(4): a(f"v_add_f32 v{C+i}, v{C+i}, v{C+i+4}")
        for i in range(2): a(f"v_permlane16_swap_b32 v{C+i}, v{C+i+2}")
        for i in range(2): a(f"v_add_f32 v{C+i}, v{C+i}, v{C+i+2}")
        a(f"ds_write_b64 v{self.hCSW}, v[{C}:{C+1}] offset:{area}")
    def colsum_final(self, area, C, vt):
        a = self.a
        L = self.lab("Lcs")
        a(f"s_cmp_ge_u32 s{sW}, 2", f"s_cbranch_scc1 {L}")
        a(f"v_lshlrev_b32 v{vt}, 2, v0")
        for w in range(8): a(f"ds_read_b32 v{C+w}, v{vt} offset:{area + 512*w}")
        a(f"v_lshlrev_b32 v{vt}, 4, v0")
        a(f"s_add_u32 s{sA}, s{sJ}, {WS_CS}")
        a("s_waitcnt lgkmcnt(0)")
        for (x, y) in ((0,1),(2,3),(4,5),(6,7),(0,2),(4,6),(0,4)): a(f"v_add_f32 v{C+x}, v{C+x}, v{C+y}")
        a(f"v_mov_b32 v{C+1}, s{sTAG}")
        a(f"buffer_store_dwordx2 v[{C}:{C+1}], v{vt}, {srd(S_WS)}, s{sA} offen sc1")
        a(f"{L}:")

    def helper(self):
        a = self.a
        self.vm = []; self.role = 'H'
        a("L_helper:")
        WA, XR, WB, C, XF = 4, 32, 60, 88, 100
        vt = 96; vR, vP = 160, 161; vW, vX = 162, 163; self.hCSW = 164
        vS, vM, vMB, vQ, vRr = 165, 166, 172, 168, 170
        self.sLO, self.sHI, sONE = 48, 49, 50
        TS = 912; CSA = 61440
        a(f"v_lshrrev_b32 v{vR}, 3, v0", f"v_and_b32 v{vP}, 7, v0")
        a(f"v_lshlrev_b32 v{vt}, 4, v{vP}")
        a(f"v_lshrrev_b32 v{vW}, 4, v0", f"v_mul_u32_u24 v{vW}, 3584, v{vW}", f"v_and_b32 v{vt+1}, 15, v1", f"v_lshl_add_u32 v{vW}, v{vt+1}, 4, v{vW}")
        a(f"v_mul_u32_u24 v{vX}, 896, v{vR}", f"v_add_u32 v{vX}, v{vX}, v{vt}")
        a(f"s_lshl2_add_u32 s{sI}, s{sA}, s{sB}")
        a(f"s_lshr_b32 s{sC}, s{sA}, 1", f"s_lshl2_add_u32 s{sT}, s{sC}, s{sB}")
        a(f"s_and_b32 s{sA}, s{sA}, 1", f"s_mul_i32 s{sA}, s{sA}, 7", f"s_add_u32 s{sA}, s{sA}, s{sT}")
        a(f"s_cmp_ge_u32 s{sT}, 7", f"s_cselect_b32 s{sB}, 7, 0", f"s_cselect_b32 s{sJ}, 8, 0", f"s_sub_u32 s{sB}, s{sA}, s{sB}", f"s_lshl_b32 s{sB}, s{sB}, 8")
        a(f"s_lshl3_add_u32 s{sJ}, s{sB}, s{sJ}")
        a(f"s_cmp_ge_u32 s{sT}, 14", f"s_cselect_b32 s{S_WG+2}, 0, s{S_WG+2}", f"s_cselect_b32 s{sJ}, 0x8000, s{sJ}")
        a(f"s_mul_i32 s{sC}, s{sI}, {64*896}")
        a("s_waitcnt lgkmcnt(0)")
        Ln = self.lab("Lnn")
        a(f"s_or_b32 s{sD}, s2, s{sW}", f"s_cmp_lg_u32 s{sD}, 0", f"s_cbranch_scc1 {Ln}")
        a(f"s_or_b32 s{sA}, s{sST}, 1", f"v_mov_b32 v2, s{sA}")
        a("s_mov_b64 exec, 1", f"buffer_store_dword v2, off, {srd(S_DBG)}, 0 sc1", "s_mov_b64 exec, -1")
        a(f"{Ln}:")
        a(f"s_cmp_ge_u32 s{sT}, 7", f"s_cselect_b32 s{S_WG}, s{S_WU}, s{S_WG}", f"s_cselect_b32 s{S_WG+1}, s{S_WU+1}, s{S_WG+1}")
        for t in range(7):
            self.vmem(f"buffer_load_dwordx4 v[{XR+4*t}:{XR+4*t+3}], v{vX}, {srd(S_X)}, s{sC} offen offset:{128*t}", "XR")
        if self.opt("tl", 0):
            L = self.lab("Ltl")
            a(f"s_cmp_lg_u32 s{sW}, 7", f"s_cbranch_scc1 {L}")
            holes = [229376, 10*HS + 229376, 19*HS + 229376, 28*HS + 229376, 0x9F0000, 0xA00000, 0xDF0000, 0xFF0000]
            a(f"s_load_dword s51, s[{S_WD}:{S_WD+1}], 0", f"s_load_dword s52, s[{S_OUT}:{S_OUT+1}], 0")
            for i, h in enumerate(holes):
                a(f"s_mov_b32 s{sD}, {h}", f"s_load_dword s{53+i%4}, s[{S_WS}:{S_WS+1}], s{sD}")
            a(f"{L}:")
        a(f"s_mov_b32 s{self.sLO}, 0x3f80", f"s_mov_b32 s{self.sHI}, 0x3f800000", f"s_mov_b32 s{sONE}, 0x3f803f80")
        wregs = [WA + 4 * t for t in range(7)] + [WB + 4 * t for t in range(7)]
        wl = [(n + self.opt("hwo", 0)) % 14 for n in range(14)]
        HWM = self.opt("hwm", 14)
        def wload(force=False):
            if not wl or (14 - len(wl) >= HWM and not force): return
            n = wl.pop(0); R = wregs[n]
            a(f"s_add_u32 s{sD}, s{sB}, {n*32*3584}")
            self.vmem(f"buffer_load_dwordx4 v[{R}:{R+3}], v{vW}, {srd(S_WG)}, s{sD} offen", "W")
        for _ in range(self.opt("hw0", 0)): wload()
        a(f"v_lshrrev_b32 v{vt}, 4, v1", f"v_lshlrev_b32 v{vt}, 3, v{vt}", f"v_lshl_add_u32 v{vt}, v{vt+1}, 5, v{vt}")
        a(f"s_lshl_b32 s{sD}, s{sW}, 9", f"v_add_u32 v{self.hCSW}, s{sD}, v{vt}")
        for k in range(4): a(f"v_mov_b32 v{C+k}, 0")
        a(f"v_lshlrev_b32 v{vt+2}, 3, v{vR}")
        a(f"s_lshl_b32 s{sE}, s{sI}, 9")
        self.wait_vm("XR")
        self.stamp(1)
        for i in range(28): a(f"v_dot2c_f32_bf16 v{C+i%4}, s{sONE}, v{XR+i}")
        a(f"v_add_f32 v{C}, v{C}, v{C+1}", f"v_add_f32 v{C+2}, v{C+2}, v{C+3}", f"v_add_f32 v{vS}, v{C}, v{C+2}")
        for ctl in ("quad_perm:[1,0,3,2]", "quad_perm:[2,3,0,1]", "row_half_mirror"):
            a(f"v_add_f32_dpp v{vS}, v{vS}, v{vS} {ctl} row_mask:0xf bank_mask:0xf")
        a(f"v_mul_f32 v{vM}, {f32(-1.0/448)}, v{vS}")
        a(f"v_cvt_pk_bf16_f32 v{vMB}, 0, v{vM}")
        self.vmem(self.nonce_load(vQ), "non")
        if self.opt("ht", 0):
            a(f"s_lshl3_add_u32 s{sD}, s2, s{sW}", f"s_mul_i32 s{sD}, s{sD}, {49*128}", f"v_min_u32 v174, 48, v1", f"v_lshlrev_b32 v174, 7, v174")
            self.vmem(f"buffer_load_dword v175, v174, {srd(S_WD)}, s{sD} offen", "t")
        for i in range(28):
            a(f"v_dot2_f32_bf16 v{XF+2*i}, v{XR+i}, s{self.sLO}, v{vMB}", f"v_dot2_f32_bf16 v{XF+2*i+1}, v{XR+i}, s{self.sHI}, v{vMB}")
            if i % 7 == 6: wload()
        for k in range(2): a(f"v_pk_mul_f32 v[{C+2*k}:{C+2*k+1}], v[{XF+2*k}:{XF+2*k+1}], v[{XF+2*k}:{XF+2*k+1}]")
        for i in range(2, 28):
            k = i % 2
            a(f"v_pk_fma_f32 v[{C+2*k}:{C+2*k+1}], v[{XF+2*i}:{XF+2*i+1}], v[{XF+2*i}:{XF+2*i+1}], v[{C+2*k}:{C+2*k+1}]")
            if i % 13 == 12: wload()
        a(f"v_add_f32 v{C}, v{C}, v{C+1}", f"v_add_f32 v{C+2}, v{C+2}, v{C+3}", f"v_add_f32 v{vS}, v{C}, v{C+2}")
        a(f"v_sub_f32 v{vM}, v{vM}, v{vMB}")
        rnd = [f"v_cvt_pk_bf16_f32 v{XF+i}, 0, v{XF+i}" for i in range(56)]
        def fill(n):
            for _ in range(n):
                if rnd: a(rnd.pop(0))
        chain = []
        for ctl in ("quad_perm:[1,0,3,2]", "quad_perm:[2,3,0,1]", "row_half_mirror"):
            chain.append(f"v_add_f32_dpp v{vS}, v{vS}, v{vS} {ctl} row_mask:0xf bank_mask:0xf")
        chain += [f"v_mul_f32 v{vM}, v{vM}, v{vM}", f"v_mul_f32 v{vS}, {f32(1.0/448)}, v{vS}", f"v_sub_f32 v{vS}, v{vS}, v{vM}", f"v_max_f32 v{vS}, 0, v{vS}",
                  f"v_cvt_pk_bf16_f32 v{vS}, 0, v{vS}", f"v_add_f32 v{vS}, {f32(1e-5)}, v{vS}", f"v_cvt_pk_bf16_f32 v{vS}, 0, v{vS}",
                  f"v_sqrt_f32 v{vS}, v{vS}", f"v_cvt_pk_bf16_f32 v{vS}, 0, v{vS}", f"v_rcp_f32 v{vRr}, v{vS}",
                  f"v_mul_f32 v{C+6}, v{vRr}, v{vRr}", f"v_mov_b32 v{vRr+1}, v{vRr}"]
        for i, c in enumerate(chain):
            fill(2); a(c)
            if i % 5 == 4: wload()
        self.get_nonce(vQ, issued="non")
        a(f"v_mov_b32 v{C+7}, s{sTAG}", f"v_mov_b32 v{vMB+1}, s{sTAG}", f"s_add_u32 s{sA}, s{sE}, {WS_R2}", f"s_add_u32 s{sD}, s{sE}, {WS_NM}")
        a("s_mov_b32 exec_lo, 0x01010101", "s_mov_b32 exec_hi, 0x01010101")
        self.vmem(f"buffer_store_dwordx2 v[{vMB}:{vMB+1}], v{vt+2}, {srd(S_WS)}, s{sD} offen sc1", "st")
        self.vmem(f"buffer_store_dwordx2 v[{C+6}:{C+7}], v{vt+2}, {srd(S_WS)}, s{sA} offen sc1", "st")
        a("s_mov_b64 exec, -1")
        self.stamp(2)
        fill(13); wload(); fill(99)
        a(f"v_mul_u32_u24 v{vt}, {TS}, v{vR}", f"v_lshl_add_u32 v{vt}, v{vP}, 4, v{vt}")
        for t in range(7):
            for i in range(4 * t, 4 * t + 4): a(f"v_pk_mul_f32 v[{XF+2*i}:{XF+2*i+1}], v[{XF+2*i}:{XF+2*i+1}], v[{vRr}:{vRr+1}]")
            for i in range(4 * t, 4 * t + 4): a(f"v_cvt_pk_bf16_f32 v{XR+i}, v{XF+2*i}, v{XF+2*i+1}")
            a(f"ds_write_b128 v{vt}, v[{XR+4*t}:{XR+4*t+3}] offset:{128*t}")
            wload()
        a(f"v_bfe_u32 v{vt+1}, v1, 4, 1", f"v_and_b32 v{vt+3}, 3, v1", f"v_lshl_add_u32 v{vt+1}, v{vt+1}, 2, v{vt+3}")
        a(f"v_bfe_u32 v{vt+3}, v1, 2, 2", f"v_lshl_add_u32 v{vt+1}, v{vt+1}, 3, v{vt+3}", f"v_mul_u32_u24 v{vt+1}, {TS}, v{vt+1}")
        a(f"v_lshrrev_b32 v{vt+3}, 5, v1", f"v_lshl_add_u32 v{vt+1}, v{vt+3}, 3, v{vt+1}")
        a(f"s_lshl_b32 s{sD}, s{sW}, 4", f"v_add_u32 v{vt+1}, s{sD}, v{vt+1}")
        a(f"v_lshlrev_b32 v{vt+2}, 4, v1")
        a(f"s_mul_i32 s{sC}, s{sI}, {448*128}", f"s_lshl_b32 s{sA}, s{sW}, 10", f"s_add_u32 s{sC}, s{sC}, s{sA}", f"s_add_u32 s{sC}, s{sC}, {WS_XNT}")
        a("s_waitcnt lgkmcnt(0)", "s_barrier")
        self.stamp(3)
        for n in range(7):
            for t in range(2):
                a(f"ds_read_b64_tr_b16 v[{XR+4*n+2*t}:{XR+4*n+2*t+1}], v{vt+1} offset:{128*n + 4*TS*t}")
        for n in range(7):
            a(f"s_waitcnt lgkmcnt({12-2*n})")
            self.vmem(f"buffer_store_dwordx4 v[{XR+4*n}:{XR+4*n+3}], v{vt+2}, {srd(S_WS)}, s{sC} offen sc1", "st")
            if n < 6: a(f"s_add_u32 s{sC}, s{sC}, 8192")
        late = len(wl) > 0
        while wl: wload(True)
        def fxflag():
            L = self.lab("Lfx")
            a(f"s_cmp_lg_u32 s{sW}, 2", f"s_cbranch_scc1 {L}")
            a(f"v_mov_b32 v2, s{sTAG}", f"s_lshl_b32 s{sA}, s{sI}, 7", f"s_add_u32 s{sA}, s{sA}, {WS_FX}")
            a("v_lshlrev_b32 v3, 2, v1", "s_mov_b32 exec_hi, 0", f"buffer_store_dword v2, v3, {srd(S_WS)}, s{sA} offen sc1", "s_mov_b32 exec_hi, -1")
            a(f"{L}:")
        if late:
            self.wait_vm("st")
            a("s_barrier")
            fxflag()
            self.stamp(7)
        self.wait_vm("W")
        self.colsum_partial(wregs, C, vt, CSA)
        a("s_waitcnt vmcnt(0) lgkmcnt(0)", "s_barrier")
        if not late: fxflag()
        self.stamp(5)
        self.colsum_final(CSA, WA, vt)
        self.stamp(4)
        if self.opt("hp", 0):
            L = self.lab("Lhp")
            a(f"s_cmp_eq_u32 s{sW}, 7", f"s_cbranch_scc1 {L}")
            a(f"s_lshr_b32 s{sA}, s2, 3", f"s_mul_i32 s{sA}, s{sA}, {448*896}", f"s_lshl_b32 s{sB}, s{sW}, 7", f"s_add_u32 s{sA}, s{sA}, s{sB}")
            a(f"v_mul_u32_u24 v{vt}, 896, v1")
            for k in range(3):
                if self.opt("r2j", 0): a(f"s_add_u32 s{sB}, s{sW}, {4+k}", f"s_cmp_ge_u32 s{sB}, 7", f"s_cselect_b32 s{sC}, 7, 0", f"s_sub_u32 s{sB}, s{sB}, s{sC}")
                else: a(f"s_mov_b32 s{sB}, {4+k}")
                a(f"s_mul_i32 s{sB}, s{sB}, {64*896}", f"s_add_u32 s{sB}, s{sB}, s{sA}")
                a(f"buffer_load_dword v{WB+k}, v{vt}, {srd(S_WD)}, s{sB} offen")
            a("s_waitcnt vmcnt(0)", f"{L}:")
            self.stamp(6)
        self.write_stamps(0)
        a("s_endpgm")

    @staticmethod
    def uslot(u): return (u + 3) % 8

    def kgen_setup(self):
        base = 8
        PRM, vDT, vt, vRA, vRB, KD, BF, AF, T = base + 12, base + 4, base + 5, base + 8, base + 9, 28, 44, 76, 200
        self.KD, self.kBF, self.kAF, self.kvt = KD, BF, AF, vt
        self.kregs = (PRM, vDT, vt, vRA, vRB, KD, BF, AF, T)
        L = []
        e = lambda *x: L.extend(x)
        e(f"s_lshl_b32 s{sSB}, s{sAW}, 8")
        def rowaddr(dst, sig):
            e(f"v_and_b32 v{dst}, 15, v{sig}", f"v_mul_u32_u24 v{dst}, 2064, v{dst}", f"v_lshrrev_b32 v{sig}, 4, v{sig}", f"v_lshl_add_u32 v{dst}, v{sig}, 10, v{dst}")
            e(f"v_add_u32 v{dst}, v{dst}, v{vt+2}")
        e(f"v_lshrrev_b32 v{vt+2}, 5, v1", f"v_lshlrev_b32 v{vt+2}, 4, v{vt+2}", f"v_and_b32 v{vt}, 31, v1")
        e(f"v_cmp_eq_u32 vcc, 5, v{vt}", f"v_cndmask_b32_e64 v{vt+1}, v{vt}, 4, vcc", f"v_cmp_eq_u32 vcc, 31, v{vt}", f"v_cndmask_b32_e64 v{vt+1}, v{vt+1}, 5, vcc")
        rowaddr(vRA, vt + 1)
        e(f"v_add_u32 v{vRA}, s{sSB}, v{vRA}")
        e(f"v_add_u32 v{vt+1}, -1, v{vt}", f"v_and_b32 v{vt+1}, 31, v{vt+1}")
        rowaddr(vRB, vt + 1)
        e(f"v_cmp_eq_u32 vcc, 0, v{vt}", f"v_mov_b32 v{vt}, s{sSB}", f"v_cndmask_b32_e64 v{vt}, v{vt}, 0, vcc", f"v_add_u32 v{vRB}, v{vRB}, v{vt}")
        e("s_waitcnt lgkmcnt(0)")
        e(f"s_lshr_b32 s{sC}, s{sAW}, 1", f"s_lshl_b32 s{sC}, s{sC}, 4")
        for r in (sLD, sDS): e(f"s_lshr_b32 s{r}, s{r}, s{sC}", f"s_lshl_b32 s{r}, s{r}, 16")
        chi = float(np.frombuffer(np.uint32(np.float32(LOG2E).view(np.uint32) & 0xFFFFFF00).tobytes(), np.float32)[0]); clo = LOG2E - chi
        e(f"v_mov_b32 v{vt+2}, s{sLD}", f"v_mul_f32 v{vDT}, {f32(chi)}, v{vt+2}", f"v_mul_f32 v{vt+2}, {f32(clo)}, v{vt+2}")
        e(f"v_exp_f32 v{vDT}, v{vDT}", f"v_exp_f32 v{vt+2}, v{vt+2}", f"v_mul_f32 v{vDT}, v{vDT}, v{vt+2}")
        e(f"v_cvt_pk_bf16_f32 v{vDT}, 0, v{vDT}")
        return L

    @staticmethod
    def soff(sig): return (sig & 15) * 2064 + (sig >> 4) * 1024

    def kgen_scale(self):
        PRM, vDT, vt, vRA, vRB, KD, BF, AF, T = self.kregs
        L = []
        e = lambda *x: L.extend(x)
        e(f"v_and_b32 v{T}, 0x7fff, v{PRM+2}", f"v_and_b32 v{T+1}, 0x7fff, v{PRM+3}", f"v_and_b32 v{T+2}, 0x7fff, v{PRM+6}", f"v_and_b32 v{T+3}, 0x7fff, v{PRM+7}")
        e(f"v_max_u32 v{T}, v{T}, v{T+1}", f"v_max3_u32 v{T}, v{T}, v{T+2}, v{T+3}")
        sh = [f"v_lshlrev_b32 v{PRM+k}, 16, v{PRM+k}" for k in range(8)]
        for ctl in ("row_shr:1", "row_shr:2", "row_shr:4", "row_shr:8", "row_bcast:15 row_mask:0xa", "row_bcast:31 row_mask:0xc"):
            for _ in range(2):
                if sh: e(sh.pop(0))
            e(f"v_max_u32_dpp v{T}, v{T}, v{T} {ctl}" + (" row_mask:0xf" if "row_mask" not in ctl else "") + " bank_mask:0xf")
        e(f"v_readlane_b32 s50, v{T}, 63")
        e("s_lshr_b32 s50, s50, 7", "s_sub_u32 s50, 267, s50", "s_min_u32 s50, s50, 253", f"s_sub_u32 s51, 255, s50")
        e("s_lshl_b32 s50, s50, 23", "s_lshl_b32 s51, s51, 23", f"v_mul_f32 v18, s51, v{vDT}")
        return L

    def kgen_body(self, czero, batch):
        PRM, vDT, vt, vRA, vRB, KD, BF, AF, T = self.kregs
        L = []
        e = lambda *x: L.extend(x)
        tt = 172; ti = [0]
        pendf = []
        def cmul(d, x, y):
            t = tt + ti[0] % 8; ti[0] += 1
            if any(x == p[0] or y == p[0] for p in pendf): flush()
            e(f"v_pk_mul_f16 v{t}, v{x}, v{y} op_sel:[1,1] op_sel_hi:[0,1]")
            flush()
            pendf.append((d, f"v_pk_fma_f16 v{d}, v{x}, v{y}, v{t} op_sel_hi:[1,0,1] neg_lo:[0,0,1]"))
        def flush():
            for p in pendf: e(p[1])
            pendf.clear()
        BF += 64 * batch; AF += 64 * batch
        def arow(hh, reg): return 8 * (reg >> 2) + 4 * hh + (reg & 3)
        P1 = {}
        for reg, p in enumerate(list(range(9)) + [512, 516, 520, 1024, 1032, 1536, 1544]): P1.setdefault(p, []).append(arow(0, reg))
        for reg, p in enumerate([256, 256, 258, 260, 260, 260, 262, 264, 264, 768, 772, 776, 1280, 1288, 1792, 1800]): P1.setdefault(p, []).append(arow(1, reg))
        assert P1[256] == [4, 5] and P1[1800] == [31]
        P1[256] = [4]; P1[1800] = [5]
        E = {j: BF + j for j in range(1, 32)}
        V = {p: AF + i for i, p in enumerate(sorted(P1))}
        va, vb = T, T + 1
        S = T + 2
        A = T + 10
        W1, W8, W256 = T + 18, T + 19, T + 20
        p_ = PRM + 4 * batch
        e(f"v_mul_f32 v{va}, {f32(LOG2E)}, v{p_}", f"v_mul_f32 v{vb}, v{p_+1}, v{vDT}", f"v_exp_f32 v{va}, v{va}")
        e(f"v_mul_f32 v{vb}, 0.15915494, v{vb}", f"v_mul_f32 v{p_+2}, s50, v{p_+2}")
        e(f"v_cvt_pk_bf16_f32 v{va}, 0, v{va}", f"v_mul_f32 v{p_+3}, s50, v{p_+3}")
        e(f"v_mul_f32 v{va}, v{va}, v{vDT}", f"v_cvt_pk_f16_f32 v{V[0]}, v{p_+2}, v{p_+3}")
        e(f"v_mul_f32 v{va}, {f32(-LOG2E)}, v{va}")
        seeds = (8, 32, 1, 256)
        for i, p in enumerate(seeds):
            if p != 1: e(f"v_mul_f32 v{A+2*i+1}, {f32(p)}, v{vb}", f"v_mul_f32 v{A+2*i}, {f32(p)}, v{va}")
        for i, p in enumerate(seeds):
            e(f"v_fract_f32 v{A+2*i+1}, v{A+2*i+1 if p != 1 else vb}", f"v_exp_f32 v{A+2*i}, v{A+2*i if p != 1 else va}")
        for i, p in enumerate(seeds):
            e(f"v_cos_f32 v{S+2*i}, v{A+2*i+1}", f"v_sin_f32 v{S+2*i+1}, v{A+2*i+1}")
        for i, p in enumerate(seeds):
            e(f"v_mul_f32 v{S+2*i}, v{S+2*i}, v{A+2*i}", f"v_mul_f32 v{S+2*i+1}, v{S+2*i+1}, v{A+2*i}")
        e(f"v_cvt_pk_f16_f32 v{E[1]}, v{S}, -v{S+1}", f"v_cvt_pk_f16_f32 v{W8}, v{S}, v{S+1}", f"v_cvt_pk_f16_f32 v{E[4]}, v{S+2}, -v{S+3}")
        e(f"v_cvt_pk_f16_f32 v{W1}, v{S+4}, v{S+5}", f"v_cvt_pk_f16_f32 v{W256}, v{S+6}, v{S+7}")
        jobs = [(E[2], E[1], E[1]), (V[8], V[0], W8), (V[1], V[0], W1), (E[3], E[2], E[1])]
        vj = [(V[k], V[k - 1], W1) for k in range(2, 8)]
        far = [(V[p], V[p - 256], W256) for p in sorted(P1) if p >= 256]
        far.sort(key=lambda x: 0)
        f08 = [(V[p], V[p - 256], W256) for p in sorted(P1) if p >= 256 and p % 256 in (0, 8)]
        fo = [(V[p], V[p - 256], W256) for p in sorted(P1) if p >= 256 and p % 256 not in (0, 8)]
        ej = [(E[j], E[j - 4], E[4]) for j in range(5, 32)]
        while ej or vj or f08 or fo:
            for q_ in (ej, vj, ej, f08) if vj else (ej, fo, ej, f08):
                if q_: jobs.append(q_.pop(0))
        for j in jobs: cmul(*j)
        flush()
        B = [f"ds_write_addtid_b32 v{E[j]} offset:{self.soff(j-1)}" for j in range(1, 32)]
        B += [f"ds_read_b128 v[{BF+4*k}:{BF+4*k+3}], v{vRB} offset:{32*k}" for k in range(8)]
        B += [f"ds_write_addtid_b32 v{V[p]} offset:{self.soff(sig)}" for p in sorted(P1) for sig in P1[p]]
        B += [f"ds_read_b128 v[{AF+4*k}:{AF+4*k+3}], v{vRA} offset:{32*k}" for k in range(8)]
        M = []
        for k in range(8):
            c = "0" if (czero and k == 0) else f"v[{KD}:{KD+15}]"
            M.append(f"v_mfma_f32_32x32x16_f16 v[{KD}:{KD+15}], v[{AF+4*k}:{AF+4*k+3}], v[{BF+4*k}:{BF+4*k+3}], {c}")
        return L, B, M

    def mwave(self):
        a = self.a
        self.role = 'M'
        a("L_m:")
        ACC, AB, XB, CSX, NMX = 4, 132, 164, 228, 232
        vAX, vAW = 234, 248
        vt = 239; vHO = 2; vCSO = 3; vN = 238
        sLH, sFH = 48, 49
        def acc(mat, b, ft): return ACC + 4 * (b + 4 * (ft + 4 * mat))
        a(f"v_mov_b32 v0, v{voD}")
        a(f"s_lshr_b32 s{sLH}, s{sW}, 1", f"s_and_b32 s{sFH}, s{sW}, 1")
        a(f"v_and_b32 v{vt}, 15, v1")
        a(f"v_lshrrev_b32 v{vt+2}, 4, v1", f"v_bfe_u32 v{vt+3}, v1, 1, 3")
        a(f"v_xor_b32 v{vt+3}, v{vt+3}, v{vt+2}", f"v_lshlrev_b32 v{vt+3}, 4, v{vt+3}")
        a(f"s_lshl_b32 s{sA}, s{sLH}, 13", f"s_add_u32 s{sA}, s{sA}, {RING}")
        a(f"v_lshl_add_u32 v{vt}, v{vt}, 7, s{sA}")
        for s_ in range(2):
            a(f"v_xad_u32 v{vAX+s_}, v{vt+3}, {64*s_}, v{vt}", f"v_add_u32 v{vAX+2+s_}, 0x10000, v{vAX+s_}")
        a(f"v_bfe_u32 v{vt}, v1, 2, 2", f"v_lshl_add_u32 v{vt}, v{vt+2}, 3, v{vt}", f"v_lshlrev_b32 v{vt}, 8, v{vt}")
        a(f"v_and_b32 v{vt+3}, 3, v1", f"v_lshl_add_u32 v{vt}, v{vt+3}, 3, v{vt}")
        a(f"v_bfe_u32 v{vt+3}, v1, 2, 3", f"v_lshl_add_u32 v{vt}, v{vt+3}, 5, v{vt}")
        a(f"s_lshl_b32 s{sA}, s{sFH}, 7", f"v_xor_b32 v{vt}, s{sA}, v{vt}", f"v_add_u32 v{vt}, {RING}, v{vt}")
        a("s_waitcnt vmcnt(0)")
        for ft in range(4):
            a(f"v_xor_b32 v{vAW+ft}, {32*ft}, v{vt}", f"v_add_u32 v{vAW+4+ft}, 0x10000, v{vAW+ft}")
        a(f"v_lshlrev_b32 v{vCSO}, 3, v1", f"v_lshlrev_b32 v{vHO}, 4, v1")
        self.vm = []
        self.gemm2_setup(vt)
        a(f"s_setprio {self.opt('mp', 2)}")
        a("s_waitcnt lgkmcnt(0)")
        for x in self.ks_table(): a(x)
        a(f"s_lshl1_add_u32 s{sF}, s{sJ}, s{sFH}")
        a(f"s_lshl_b32 s{sB}, s{sF}, 10", f"s_add_u32 s{sB}, s{sB}, {WS_CS}")
        a(f"s_lshl1_add_u32 s{sA}, s{sI}, s{sLH}")
        a(f"s_lshl_b32 s{sD}, s{sA}, 9", f"s_add_u32 s{sD}, s{sD}, {WS_NM}")
        a(f"s_mul_i32 s{sE}, s{sA}, {HS}", f"s_lshl_b32 s{sC}, s{sF}, 13", f"s_add_u32 s{sE}, s{sE}, s{sC}")
        if WS_H: a(f"s_add_u32 s{sE}, s{sE}, {WS_H}")
        a(f"s_lshl4_add_u32 s{sG}, s{sI}, s{sJ}", f"s_lshl_b32 s{sG}, s{sG}, 7", f"s_add_u32 s{sG}, s{sG}, {WS_FH}")
        FR = [(ft, mat) for ft in range(4) for mat in range(2)]
        def reads(g):
            c, s_ = divmod(g, 2)
            sl = self.uslot(3 * c + 1); win = sl // 4
            xb = XB + 16 * (g & 1)
            xr = [f"ds_read_b128 v[{xb+4*b}:{xb+4*b+3}], v{vAX+2*win+s_} offset:{16384*(sl%4) + 2048*b}" for b in range(4)]
            sl = self.uslot(3 * c + 2 * s_); win = sl // 4
            wr = []
            for k, (ft, mat) in enumerate(FR):
                wr.append([f"ds_read_b64_tr_b16 v[{AB+4*k+2*t}:{AB+4*k+2*t+1}], v{vAW+4*win+ft} offset:{16384*(sl%4) + 1024*t + 8192*mat}" for t in range(2)])
            return xr, wr
        def mfma(g, k, b):
            ft, mat = FR[k]
            d = acc(mat, b, ft); xb = XB + 16 * (g & 1)
            c = "0" if g == 0 else f"v[{d}:{d+3}]"
            return f"v_mfma_f32_16x16x32_bf16 v[{d}:{d+3}], v[{AB+4*k}:{AB+4*k+3}], v[{xb+4*b}:{xb+4*b+3}], {c}"
        corr_loads = [f"buffer_load_dwordx4 v[{CSX}:{CSX+3}], v{vHO}, {srd(S_WS)}, s{sB} offen sc1",
                      f"buffer_load_dwordx2 v[{NMX}:{NMX+1}], v{vCSO}, {srd(S_WS)}, s{sD} offen sc1"]
        a("s_waitcnt lgkmcnt(0)")
        if "k1" in self.opts: self.stampk(7)
        a("s_barrier")
        self.stamp(2)
        q = []; pend = []
        def need(key):
            idx = [i for i, t in enumerate(q) if t[0] == key[0] and t[1] <= key[1]]
            if not idx: return
            n = len(q) - 1 - idx[-1]
            a(f"s_waitcnt lgkmcnt({min(n, 15)})")
            del q[:len(q) - min(n, 15)]
        def drain(maxn):
            n = 0
            while pend and n < maxn:
                r, key = pend.pop(0); a(r); q.append(key); n += 1
        xr, wr = reads(0)
        for r in xr: a(r); q.append((0, 0))
        for k in range(8):
            for r in wr[k]: a(r); q.append((0, k))
        self.vmem(self.nonce_load(vN), "non")
        if self.opt("tlb", 0) == 1: self.tlbtouch(vt)
        DELAY = self.opt("dl", 8); WG_ = self.opt("wg", 2)
        cl = list(corr_loads); extra = []
        for g in range(14):
            xr, wr = reads(g + 1) if g < 13 else ([], [[]] * 8)
            if g == 0: self.cstamp(0)
            if g == 8: self.get_nonce(vN, issued="non")
            blocked = True; held = []
            i = 0
            for k in range(8):
                for b in range(4):
                    if k % WG_ == 0 and b == 0:
                        key = (g, k + WG_ - 1)
                        while any(x[1][0] == g and x[1][1] <= key[1] for x in pend): drain(1)
                        need(key)
                    a(mfma(g, k, b)); i += 1
                    if b == 3:
                        new_r = [(r, (g + 1, k)) for r in wr[k]]
                        if blocked: held += new_r
                        else: pend += new_r
                    if blocked and i == DELAY:
                        pend += [(x, (-1, 0)) for x in extra]; extra = []
                        drain(99)
                        LB = self.opt("lb", 11)
                        if g + 1 <= LB:
                            a("s_waitcnt lgkmcnt(0)"); q.clear()
                            a("s_barrier")
                        elif g == 11 and self.NDA > 3:
                            self.signal(8, vt); q.append((-1, 0))
                        C0 = self.opt("c0", -1)
                        if C0 < 0 and g % 2 == 1: self.cstamp(1 + g // 2)
                        if C0 >= 0 and 0 <= g - C0 < 7: self.cstamp(1 + g - C0)
                        pend += held + [(r, (g + 1, 0)) for r in xr]
                        if g in (LB - 3, LB - 2)[:self.NX]: extra += [r[0] for r in self.G.wdread(g - LB + 3)]
                        blocked = False
                    if not pend and extra: pend.append((extra.pop(0), (-1, 0)))
                    drain(1)
                    if g == self.opt("corr", 11) and cl and i % 4 == 2: self.vmem(cl.pop(0), "corr")
        self.stamp(3)
        self.cstamp(8)
        self.spin(corr_loads, [CSX + 1, CSX + 3, NMX + 1], first_issued_tag="corr", note=1)
        for ft in range(4):
            for mat in range(2):
                d = acc(mat, 0, ft)
                a(f"v_mfma_f32_16x16x1_4b_f32 v[{d}:{d+15}], v{CSX+2*mat}, v{NMX}, v[{d}:{d+15}] cbsz:2 abid:{ft}")
        self.signal(9, vt)
        if self.opt("ep", 2) != 2: a(f"s_setprio {self.opt('ep', 2)}")
        a(f"s_add_u32 s{sC}, s{sE}, 4096")
        for e in range(2):
            for b in range(4):
                o = acc(0, b, 2 * e)
                T_ = [(acc(0, b, ft), acc(1, b, ft)) for ft in (2 * e, 2 * e + 1)]
                for g_, u_ in T_:
                    for i in range(4): a(f"v_max_f32 v{g_+i}, 0, v{g_+i}")
                for g_, u_ in T_:
                    if "epk" in self.opts:
                        for i in (0, 2): a(f"v_pk_mul_f32 v[{u_+i}:{u_+i+1}], v[{g_+i}:{g_+i+1}], v[{u_+i}:{u_+i+1}]")
                    else:
                        for i in range(4): a(f"v_mul_f32 v{u_+i}, v{g_+i}, v{u_+i}")
                for t, (g_, u_) in enumerate(T_):
                    for i in range(2): a(f"v_cvt_pk_bf16_f32 v{o+2*t+i}, v{u_+2*i}, v{u_+2*i+1}")
                SG = self.opt("sg", 99)
                if len(self.vm) > SG: a(f"s_waitcnt vmcnt({SG})"); self.vm = self.vm[-SG:]
                self.vmem(f"buffer_store_dwordx4 v[{o}:{o+3}], v{vHO}, {srd(S_WS)}, s{sC if e else sE} offen offset:{1024*b}" + ("" if "hpl" in self.opts else " sc1"), "hst")
        self.stamp(4)
        self.cstamp(9)
        self.gemm2()

    def mtouch(self, vt):
        mask = self.opt("tm", 0)
        if not mask: return
        a = self.a
        for w, (sr, n) in enumerate(((S_WD, 56), (S_WG, 56), (S_WU, 56), (S_X, 64))):
            if not (mask >> w) & 1: continue
            L = self.lab("Lt")
            a(f"s_cmp_lg_u32 s{sW}, {w}", f"s_cbranch_scc1 {L}")
            a(f"s_mul_i32 s{sA}, s{sT}, {n*128}", f"v_min_u32 v{vt}, {n-1}, v1", f"v_lshlrev_b32 v{vt}, 7, v{vt}")
            a(f"buffer_load_dword v{vt+1+w}, v{vt}, {srd(sr)}, s{sA} offen")
            a(f"{L}:")

    def tlbtouch(self, vt):
        a = self.a
        L = self.lab("Lt")
        a(f"s_cmp_lg_u32 s{sW}, 0", f"s_cbranch_scc1 {L}")
        holes = [229376, 10*HS + 229376, 19*HS + 229376, 28*HS + 229376, 0x9F0000, 0xA00000, 0xDF0000, 0xFF0000]
        a(f"v_mov_b32 v{vt}, {holes[0]}")
        for i, h in enumerate(holes[1:]):
            a(f"s_mov_b32 s{sA}, {h}", f"v_writelane_b32 v{vt}, s{sA}, {i+1}")
        a(f"buffer_load_dword v{vt+6}, v{vt}, {srd(S_WS)}, 0 offen")
        a(f"buffer_load_dword v{vt+7}, off, {srd(S_OUT)}, 0")
        a(f"{L}:")

    FX_, FR_, FO_ = 222, 230, 234
    def final_pre(self):
        a = self.a
        vX, vR2, vt = self.FX_, self.FR_, self.FO_
        a(f"s_lshl_b32 s{sA}, s{sAW}, 4", f"s_lshl_b32 s{sB}, s{sI2}, 6", f"s_add_u32 s{sA}, s{sA}, s{sB}")
        a(f"v_lshrrev_b32 v{vt+1}, 3, v1", f"v_add_u32 v{vt+1}, s{sA}, v{vt+1}")
        a(f"v_mul_u32_u24 v{vt}, 896, v{vt+1}")
        a(f"s_lshl_b32 s{sA}, s{sJ2}, 7", f"s_movk_i32 s{sB}, {8*896}")
        a(f"v_and_b32 v{vR2}, 7, v1", f"v_lshlrev_b32 v{vR2}, 4, v{vR2}", f"v_add3_u32 v{vt}, v{vt}, v{vR2}, s{sA}")
        a(f"v_lshlrev_b32 v{vt+1}, 3, v{vt+1}", f"v_add_u32 v{vt+1}, {WS_R2}, v{vt+1}")
        self.vmem(f"buffer_load_dwordx4 v[{vX}:{vX+3}], v{vt}, {srd(S_X)}, 0 offen", "fx")
        self.vmem(f"buffer_load_dwordx4 v[{vX+4}:{vX+7}], v{vt}, {srd(S_X)}, s{sB} offen", "fx")
        self.r2load = [f"buffer_load_dwordx2 v[{vR2+2*h}:{vR2+2*h+1}], v{vt+1}, {srd(S_WS)}, 0 offen offset:{64*h} sc1" for h in range(2)]

    def final_addr(self, T):
        a = self.a
        vA, vB = T, T + 4
        a(f"v_lshrrev_b32 v{vA+2}, 3, v1", f"s_lshl_b32 s{sC}, s{sAW}, 4", f"v_add_u32 v{vA+3}, s{sC}, v{vA+2}")
        a(f"v_mul_u32_u24 v{vB}, 48, v{vA+3}")
        a(f"v_and_b32 v{vA+3}, 7, v1", f"v_xor_b32 v{vA+3}, v{vA+3}, v{vA+2}")
        a(f"v_lshlrev_b32 v{vA+3}, 4, v{vA+3}", f"v_lshl_add_u32 v{vA}, v{vA+2}, 7, v{vA+3}")
        a(f"s_lshl_b32 s{sC}, s{sAW}, 14", f"s_add_u32 s{sC}, s{sC}, {DBASE}")
        a(f"v_bfe_u32 v{vA+3}, v1, 2, 1", f"v_mul_u32_u24 v{vA+3}, {QB[1]}, v{vA+3}", f"v_add_u32 v{vB}, v{vB}, v{vA+3}")
        a(f"v_bfe_u32 v{vA+3}, v1, 1, 1", f"v_lshl_add_u32 v{vB}, v{vA+3}, 12, v{vB}")
        a(f"v_and_b32 v{vA+3}, 1, v1", f"v_lshl_add_u32 v{vB}, v{vA+3}, 4, v{vB}")
        a(f"v_add_u32 v{vA}, s{sC}, v{vA}")

    def final_x(self, T):
        a = self.a
        vX, vR2 = self.FX_, self.FR_
        E = T + 8
        if "fx" not in self.vm: self.vm.insert(0, "fx")
        self.spin(self.r2load, [vR2 + 1, vR2 + 3], first_issued_tag="fx", note=3)
        for i in range(8): a(f"v_lshlrev_b32 v{E+2*i}, 16, v{vX+i}", f"v_and_b32 v{E+2*i+1}, 0xffff0000, v{vX+i}")

    def final(self, T):
        a = self.a
        vX, vR2, vO = self.FX_, self.FR_, self.FO_
        vA, vB = T, T + 4
        E = T + 8; Y = T + 24; P = T + 32
        self.auxbar(7, T + 6, extra=[f"ds_read_b128 v[{Y+4*h}:{Y+4*h+3}], v{vB} offset:{8*48*h}" for h in range(2)])
        for i in range(8):
            a(f"v_lshlrev_b32 v{vX}, 16, v{Y+i}", f"v_and_b32 v{vX+1}, 0xffff0000, v{Y+i}")
            a(f"v_add_f32 v{E+2*i}, v{E+2*i}, v{vX}", f"v_add_f32 v{E+2*i+1}, v{E+2*i+1}, v{vX+1}")
        a(f"s_movk_i32 s{sB}, {8*896}")
        a("s_barrier")
        self.stamp(8)
        for h in range(2):
            for m in range(4):
                r = P + 16 * h + 4 * m
                a(f"ds_read_b128 v[{r}:{r+3}], v{vA} offset:{4096*m + 1024*h}")
        S = P + 32
        a(f"s_mov_b32 s{sC}, 0x3f80", f"s_mov_b32 s{sD}, 0x3f800000")
        for h in range(2):
            p = P + 16 * h; e = E + 8 * h; t = S + 8 * h
            for m in range(4):
                a(f"s_waitcnt lgkmcnt({7 - 4*h - m})")
                for i in range(4):
                    if m == 0: a(f"v_lshlrev_b32 v{t+2*i}, 16, v{p+i}", f"v_and_b32 v{t+2*i+1}, 0xffff0000, v{p+i}")
                    else: a(f"v_dot2c_f32_bf16 v{t+2*i}, s{sC}, v{p+4*m+i}", f"v_dot2c_f32_bf16 v{t+2*i+1}, s{sD}, v{p+4*m+i}")
            for i in range(0, 8, 2): a(f"v_pk_fma_f32 v[{e+i}:{e+i+1}], v[{t+i}:{t+i+1}], v[{vR2+2*h}:{vR2+2*h+1}], v[{e+i}:{e+i+1}] op_sel_hi:[1,0,1]")
            if self.opt("tol", 0) and h == 0:
                a(f"s_cmp_lt_u32 s2, {32 + self.opt('tolw', 1)}", f"s_cselect_b32 s{sA}, {f32(self.opt('tol', 0) * 1e-4)}, 0", f"v_add_f32 v{e}, s{sA}, v{e}")
            for i in range(4): a(f"v_cvt_pk_bf16_f32 v{p+i}, v{e+2*i}, v{e+2*i+1}")
            a(f"buffer_store_dwordx4 v[{p}:{p+3}], v{vO}, {srd(S_OUT)}, {'s%d' % sB if h else 0} offen")
        self.stamp(9)
        self.write_stamps(1)
        a("s_endpgm")

    def gemm2_setup(self, vt):
        a = self.a
        vAD = 244; vD = [0, 252, 253, 254]
        sH, sDo, sM = 50, 51, 52
        a(f"v_lshrrev_b32 v{vt}, 2, v1", f"v_lshlrev_b32 v{vt}, 7, v{vt}", f"v_and_b32 v{vt+1}, 3, v1", f"v_lshl_add_u32 v{vt}, v{vt+1}, 3, v{vt}")
        a(f"v_bfe_u32 v{vt+1}, v1, 3, 2", f"v_lshl_add_u32 v{vt}, v{vt+1}, 5, v{vt}")
        a(f"v_add_u32 v{vt}, s{sM0}, v{vt}", f"s_add_u32 s{sM}, s{sM0}, {DBASE}")
        for dt in range(4): a(f"v_xor_b32 v{vAD+dt}, {32*dt}, v{vt}")
        a(f"s_mul_i32 s{sDo}, s{sW}, {448*896}", f"s_lshl_b32 s{sA}, s{sJ2}, 7", f"s_add_u32 s{sDo}, s{sDo}, s{sA}")
        a(f"s_mul_i32 s{sH}, s{sI2}, {HS}", f"s_mul_i32 s{sA}, s{sW}, {14*4096}", f"s_add_u32 s{sH}, s{sH}, s{sA}")
        if WS_H: a(f"s_add_u32 s{sH}, s{sH}, {WS_H}")
        G = self.G = type("G", (), {})()
        G.free = [196, 212]; G.wbuf = {}; G.hbuf = {}; G.lq = []
        def wdread(ks):
            G.wbuf[ks] = buf = G.free.pop(0); n = ks if ks < self.NX else (ks - self.NX) % 7; win = n // 4
            return [(f"ds_read_b64_tr_b16 v[{buf+4*dt+2*t}:{buf+4*dt+2*t+1}], v{vAD+4*win+dt} offset:{16384*(n%4) + 2048*t}", ks) for dt in range(4) for t in range(2)]
        def lds(r): a(r[0]); G.lq.append(r[1])
        def need_w(ks):
            lq = G.lq
            if ks not in lq: return
            k = len(lq) - 1 - max(i for i, x in enumerate(lq) if x == ks)
            a(f"s_waitcnt lgkmcnt({min(k, 15)})")
            del lq[:len(lq) - min(k, 15)]
        def dd(ks):
            out = []
            for k in range(4):
                pre = [f"s_add_u32 m0, s{sM}, {16384*((ks-self.NX)%7)}"] + self.ksoff(ks, 32 * 896, sDo) if k == 0 else []
                out.append((pre, f"buffer_load_dwordx4 v{vD[k]}, {srd(S_WD)}, s{sA} offen offset:{1024*k} lds", f"d{ks}"))
            return out
        def hl(ks):
            G.hbuf[ks] = buf = G.free.pop(0)
            return [(self.ksoff(ks, 4096, sH, sD) if b == 0 else [],
                     f"buffer_load_dwordx4 v[{buf+4*b}:{buf+4*b+3}], v2, {srd(S_WS)}, s{sD} offen offset:{1024*b}" + (" sc0" if "hl0" in self.opts else "" if "hlp" in self.opts else " sc1"), f"h{ks}") for b in range(4)]
        def vm(x):
            for y in x[0]: a(y)
            self.vmem(x[1], x[2])
        G.wdread, G.lds, G.need_w, G.dd, G.hl, G.vm = wdread, lds, need_w, dd, hl, vm

    def gemm2(self):
        a = self.a
        G = self.G
        wdread, lds, need_w, dd, hl, vm = G.wdread, G.lds, G.need_w, G.dd, G.hl, G.vm
        free, wbuf, hbuf, lq = G.free, G.wbuf, G.hbuf, G.lq
        ACC = 68
        vFO = 3; vFL = 255; vt = 252; sM = 52
        self.stamp2(1)
        a(f"s_lshr_b32 s{sB}, s{sI2}, 1", f"s_lshl_b32 s{sB}, s{sB}, 11", f"s_add_u32 s{sA}, s{sB}, {WS_FH}")
        a(f"v_lshrrev_b32 v{vFO}, 2, v1", f"v_min_u32 v{vFO}, 13, v{vFO}", f"v_lshl_add_u32 v{vFO}, v{vFO}, 7, s{sA}")
        for dt in range(4): a(f"v_add_u32 v{244+dt}, {DBASE}, v{244+dt}", f"v_add_u32 v{248+dt}, 0x10000, v{244+dt}")
        for k in range(1, 4): a(f"v_add_u32 v{251+k}, {k*(7168-1024)}, v0")
        free += [132, 148, 164, 180, 228, 4, 20, 36, 52]
        fl = f"buffer_load_dword v{vFL}, v{vFO}, {srd(S_WS)}, 0 offen " + ("nt" if "flnt" in self.opts else "sc1")
        if self.opt("lp", 0): a("s_setprio 0")
        self.await_(0, ACC, "same", sleep=self.opt("asl", 0))
        NDA = self.NDA + self.NX
        for ks in range(self.NX, NDA):
            for r in wdread(ks): lds(r)
        self.wait_vm("hst")
        self.signal(5, ACC)
        self.stamp2(2)
        self.await_(5, ACC, "all", sleep=self.opt("asl", 0)); lq.clear()
        Lw = self.lab("Lg")
        a(f"s_cmp_lg_u32 s{sW}, 0", f"s_cbranch_scc1 {Lw}")
        a(f"v_mov_b32 v{vFL}, s{sTAG}", f"v_lshlrev_b32 v{ACC}, 2, v1", "s_mov_b32 exec_hi, 0")
        a(f"buffer_store_dword v{vFL}, v{ACC}, {srd(S_WS)}, s{sG} offen" + ("" if "fpl" in self.opts else " sc1"))
        a("s_mov_b32 exec_hi, -1", f"{Lw}:")
        if self.opt("wi", 1): self.await_(2, ACC, "all", sleep=self.opt("asl", 0))
        a("s_setprio 0")
        ND = min(self.opt("nd", 14), 7 + NDA)
        nw = NDA
        NM = 14 - self.NV
        NE = min(self.opt("ne", 14), NM)
        ND = min(ND, NE)
        FP = NE - self.opt("fp", 3)
        def ddu(ks):
            if ks == FP:
                L = self.lab("Lg")
                a(f"s_cmp_lg_u32 s{sW}, 0", f"s_cbranch_scc1 {L}", fl, f"{L}:")
            for x in dd(ks): vm(x)
        for ks in range(NDA, ND): ddu(ks)
        while ND < NE:
            for _ in range(min(2, NE - ND)):
                self.wait_vm(f"d{nw}")
                for r in wdread(nw): lds(r)
                nw += 1
            while ND < NE and ND - 7 < nw:
                need_w(ND - 7); ddu(ND); ND += 1
        Lw, Lj = self.lab("Lg"), self.lab("Lg")
        vm0 = list(self.vm)
        a(f"s_cmp_lg_u32 s{sW}, 0", f"s_cbranch_scc1 {Lw}")
        self.stamp2(3)
        if FP < NE: self.vm.insert(self.vm.index(f"d{FP}") if f"d{FP}" in self.vm else len(self.vm), "fl")
        self.spin([fl], [vFL], first_issued_tag=("fl" if FP < NE else None), sleep=self.opt("fsl", 1), note=2)
        self.signal(6, ACC)
        a(f"s_branch {Lj}", f"{Lw}:")
        self.vm = vm0
        self.await_(6, ACC, "zero", sleep=self.opt("asl", 0))
        a(f"{Lj}:")
        self.stamp2(4)
        nh = 0
        while free and nh < self.opt("h0", 6):
            for x in hl(nh): vm(x)
            nh += 1
        nd = ND
        def putp(t):
            l2, d2 = divmod(t, 4); r = ACC + 4 * t
            a(f"v_cvt_pk_bf16_f32 v{r}, v{r}, v{r+1}", f"v_cvt_pk_bf16_f32 v{r+1}, v{r+2}, v{r+3}")
            a(f"ds_write_b64 v{vt+d2}, v[{r}:{r+1}] offset:{16384*l2}")
        for s_ in range(14):
            self.wait_vm(f"h{s_}")
            need_w(s_)
            if s_ in (0, 7): self.stamp2({0: 5, 7: 6}[s_])
            if s_ % 2 == 0: self.cstamp2(s_ // 2)
            if s_ == self.opt("mup", 99): a("s_setprio 2")
            rd = []; vq = []; nd0 = nd; nw0_ = nw
            if nd < NM and nd - 7 < nw and s_ >= nd - self.opt("dj", 99):
                need_w(nd - 7); vq += dd(nd); nd += 1
            while nw < 14 and (nw <= s_ + self.opt("wa", 2) or (nw < 7 and nd < NM and not rd and self.opt("dj", 99) == 99)) and free:
                assert nw < nd0 or nw >= NM
                if nw == NM:
                    L = self.lab("Lv")
                    need_w(-11)
                    a(f"v_cmp_ne_u32 vcc, s{sTAG}, v{vFL}", "s_nop 4", f"s_cbranch_vccz {L}")
                    self.await_(11, free[0], "same")
                    a(f"{L}:")
                self.wait_vm(f"d{nw}")
                rd += wdread(nw); nw += 1
            while nh < 14 and nh < s_ + self.opt("hd", 5) and len(free) > (1 if nw < 14 else 0):
                vq += hl(nh); nh += 1
            if s_ == self.opt("yw", -1):
                self.signal(10, free[0]); lq.append(-1)
            if s_ == self.opt("ys", 6):
                assert nw0_ >= 7
                self.signal(4, free[0]); lq.append(-1)
            if s_ == 12:
                a(f"v_and_b32 v{vt}, 7, v1", f"v_lshrrev_b32 v{vt+1}, 5, v1", f"v_xor_b32 v{vt+1}, v{vt+1}, v{vt}", f"v_lshlrev_b32 v{vt+1}, 4, v{vt+1}")
                a(f"v_and_b32 v{vt}, 15, v1", f"v_lshl_add_u32 v{vt}, v{vt}, 7, s{sM}", f"v_add_u32 v{vt}, v{vt}, v{vt+1}")
                a(f"v_bfe_u32 v{vt+1}, v1, 4, 1", f"v_lshl_add_u32 v{vt}, v{vt+1}, 3, v{vt}")
                for dt in range(1, 4): a(f"v_xor_b32 v{vt+dt}, {32*dt}, v{vt}")
            if self.NV and s_ + 1 + self.opt("wa", 2) == NM:
                a(f"s_lshl_b32 s{sA}, s{sAW}, 2", f"v_mov_b32 v{vFO}, s{sA}")
                rd = rd + [(f"ds_read_b32 v{vFL}, v{vFO} offset:{AUXCNT + 16*11}", -11)]
            wb, hb = wbuf[s_], hbuf[s_]
            i = 0; nvq = len(vq)
            TIDY = self.opt("tidy", 1) and nvq <= 4
            if TIDY:
                fl_ = []
                for x in vq: fl_ += [("s", y) for y in x[0]] + [("v", x)]
                vq = []
                spos = [k for k in range(16) if k % 2 == 1]
            for lb in range(4):
                for dt in range(4):
                    d = ACC + 4 * (4 * lb + dt)
                    c = "0" if s_ == 0 else f"v[{d}:{d+3}]"
                    a(f"v_mfma_f32_16x16x32_bf16 v[{d}:{d+3}], v[{wb+4*dt}:{wb+4*dt+3}], v[{hb+4*lb}:{hb+4*lb+3}], {c}")
                    if rd and (not TIDY or i % 2 == 0 or len(rd) > (16 - i) // 2):
                        r_ = rd.pop(0)
                        if r_: lds(r_)
                    PD = self.opt("pd", 4)
                    if s_ == 13 and i >= PD: putp(i - PD)
                    if TIDY and i % 2 == 1 and fl_:
                        k_, x = fl_.pop(0)
                        if k_ == "s": a(x)
                        else: self.vmem(x[1], x[2])
                    if vq and i % (4 if nvq <= 4 else 2) == 1: vm(vq.pop(0))
                    i += 1
            assert not rd
            if TIDY: assert not fl_
            for x in vq: vm(x)
            free += [wb, hb]
        self.stamp2(7)
        self.cstamp2(7)
        for t in range(16 - self.opt('pd', 4), 16): putp(t)
        a("s_waitcnt lgkmcnt(0)")
        self.cstamp2(8)
        a("s_barrier")
        self.cstamp2(9)
        self.stamp(8)
        self.write_stamps(0)
        a("s_endpgm")

    def dma_ops(self, u):
        base = slot_addr(self.uslot(u)) if u < 26 else 16384 * (u - 26)
        tag = f"u{u}"
        if u < 21 and u % 3 == 1: vo, sr, pre = voX, S_X, [f"s_add_u32 s{sA}, s{sXB}, {128 * (u // 3)}"]
        elif u < 21:              vo, sr, pre = voW, S_WG, [f"s_add_u32 s{sA}, s{sWB}, {(64 * (u // 3) + 16 * (u % 3)) * 3584}"]
        else:                     vo, sr, pre = voD, S_WD, self.ksoff(u - 21 + self.NX if u < 26 else u - 26, 32 * 896, sDB)
        m0cmd = f"s_add_u32 m0, s{sM0}, {base}"
        return [(pre, f"buffer_load_dwordx4 v{vo+k}, {srd(sr)}, s{sA} offen offset:{1024*k} lds", tag, m0cmd) for k in range(4)]
    @staticmethod
    def ksoff(step, mul, sbase, dst=sA):
        return [f"s_mul_i32 s{dst}, s{sKS + step // 2}, {2*mul}", f"s_add_u32 s{dst}, s{dst}, s{sbase}"] + ([f"s_add_u32 s{dst}, s{dst}, {mul}"] if step & 1 else [])
    def emit_aux(self, x):
        a = self.a
        if isinstance(x, tuple):
            if self.m0 != x[3]: a(x[3]); self.m0 = x[3]
            if self.sa_tag != x[2]:
                for y in x[0]: a(y)
                self.sa_tag = x[2]
            self.vmem(x[1], x[2])
        elif x == "@prm": self.wait_vm("prm")
        else:
            if x.startswith("ds_write_addtid") and self.m0 != "sb":
                a(f"s_mov_b32 m0, s{sSB}"); self.m0 = "sb"
            a(x)

    def signal(self, k, vt):
        a = self.a
        a(f"s_lshl_b32 s{sA}, s{sAW}, 2", f"v_mov_b32 v{vt}, s{sA}", f"v_mov_b32 v{vt+1}, s{sTAG}")
        a(f"ds_write_b32 v{vt}, v{vt+1} offset:{AUXCNT + 16*k}")
    def await_(self, k, vt, who, extra=(), sleep=0):
        a = self.a
        L0, L1 = self.lab("Lab"), self.lab("Lae")
        if who == "all": a(f"v_and_b32 v{vt}, 3, v1", f"v_lshlrev_b32 v{vt}, 2, v{vt}")
        elif who == "zero": a(f"v_mov_b32 v{vt}, 0")
        else:
            a(f"s_lshl_b32 s{sA}, s{sAW}, 2")
            if who == "pair": a(f"s_xor_b32 s{sA}, s{sA}, 4")
            a(f"v_mov_b32 v{vt}, s{sA}")
        a(f"s_mov_b32 s{sSPIN}, {SPIN_MAX*10}")
        a(f"{L0}:", f"ds_read_b32 v{vt+1}, v{vt} offset:{AUXCNT + 16*k}")
        for x in extra: a(x)
        a("s_waitcnt lgkmcnt(0)", f"v_cmp_ne_u32 vcc, s{sTAG}, v{vt+1}", f"s_sub_u32 s{sSPIN}, s{sSPIN}, 1", "s_nop 3", f"s_cbranch_vccz {L1}")
        if sleep: a(f"s_sleep {sleep}")
        a(f"s_cmp_lg_u32 s{sSPIN}, 0", f"s_cbranch_scc1 {L0}")
        a(f"{L1}:")
    def auxbar(self, k, vt, pair=False, extra=()):
        self.signal(k, vt)
        self.await_(k, vt, "pair" if pair else "all", extra)

    def aux(self):
        a = self.a
        self.role = 'A'; self.m0 = None; self.sa_tag = None
        self.sCH_, self.sPT = sCH_, sPT = 48, 47
        self.cACC, self.cAF, self.cBF, self.vQA, self.vUA = 12, 44, 108, 172, 180
        vN, vt, UR = 181, 182, 192
        GATE = self.opt("gate", 8)
        def gate():
            if len(self.vm) > GATE:
                a(f"s_waitcnt vmcnt({GATE})"); self.vm = self.vm[-GATE:]
        def units(us, g=True):
            for u in us:
                self.sa_tag = None
                if g: gate()
                for x in self.dma_ops(u): self.emit_aux(x)
        N0 = self.opt("n0", 3)
        TA = self.opt("ta", 99)
        def touch():
            mask = self.opt("tk", 3)
            a(f"s_and_b32 s{sB}, s{sAW}, 1", f"s_lshl1_add_u32 s{sB}, s{sT}, s{sB}")
            if mask & 1:
                a(f"s_mul_i32 s{sA}, s{sB}, {28*128}", f"v_min_u32 v236, 27, v1", f"v_lshlrev_b32 v236, 7, v236")
                self.vmem(f"buffer_load_dword v237, v236, {srd(S_WG)}, s{sA} offen", "tch")
            if mask & 2:
                a(f"s_lshl2_add_u32 s{sB}, s{sT}, s{sAW}", f"s_mul_i32 s{sA}, s{sB}, {14*128}", f"v_min_u32 v236, 13, v1", f"v_lshlrev_b32 v236, 7, v236")
                self.vmem(f"buffer_load_dword v238, v236, {srd(S_WD)}, s{sA} offen", "tch")
        E0 = self.opt("e0", 0)
        setup = self.kgen_setup()
        def params():
            for b in range(2):
                for k in range(4):
                    self.vmem(f"global_load_ushort v{self.kregs[0]+4*b+k}, v19, s[{S_P+2*k}:{S_P+2*k+1}] offset:{128*b}", "prm")
        if E0: params()
        for u in range(N0):
            if u == TA: touch()
            units([u], False)
        if TA == N0: touch()
        PRM = self.kregs[0]; kv = self.kvt
        a(f"s_load_dword s{sLD}, s[{S_P+8}:{S_P+9}], s{sF}", f"s_load_dword s{sDS}, s[{S_P+10}:{S_P+11}], s{sF}")
        for k in range(1, 4): a(f"v_add_u32 v{voD+k}, {k*(7168-1024)}, v{voD}")
        a(f"s_mul_i32 s{sA}, s{sAW}, {448*896}", f"s_lshl_b32 s{sB}, s{sJ2}, 7", f"s_add_u32 s{sDB}, s{sA}, s{sB}")
        a(f"s_lshr_b32 s{sCH_}, s{sAW}, 1", f"s_and_b32 s{sPT}, s{sAW}, 1")
        for x in setup: a(x)
        V0, B0, M0 = self.kgen_body(True, 0); V1, B1, M1 = self.kgen_body(False, 1)
        work = ["@prm"] + self.kgen_scale() + V0 + V1; nV1 = len(V1)
        const_row = [f"v_lshlrev_b32 v{kv}, 2, v1", f"v_mov_b32 v{kv+1}, 0x3c00", f"ds_write_b32 v{kv}, v{kv+1} offset:31984"]
        if E0:
            for x in self.ks_table(): a(x)
            for x in const_row: a(x)
            for x in work[:len(work) - nV1]: self.emit_aux(x)
            work = V1
            self.stamp3(6)
            nb = self.opt("eb0", len(B0))
            for x in B0[:nb]: self.emit_aux(x)
            del B0[:nb]
        if "eb" in self.opts:
            sv = self.a; self.a = Asm(); self.conv_addr(236, 39, 40); work += [c.text for c in self.a.ins]; self.a = sv
        SL = self.opt("sl", 20 if E0 else 32); KS = self.opt("ks", 2); PI = self.opt("pi", 0)
        fx = f"buffer_load_dword v{vt+1}, v{vt}, {srd(S_WS)}, 0 offen sc1"
        LB = self.opt("lb", 11)
        SCHED = {0: [[3,4],[5,6,7],[8],[9,10],[26],[11,12],[13,14],[27],[15,16],[17,18],[19,20],[21]],
                 1: [[3,4],[5,6,7],[8,26],[9,10],[11],[12,13],[14,27],[15,16],[17],[18,19],[20],[21]],
                 2: [[3,4],[5,6],[7,8],[9,10],[11,26],[12,13],[14,27],[15,16],[17],[18,19],[20],[21,22]],
                 3: [[3,4],[5,6],[7,8],[9,10],[26],[11,12],[13,14],[27],[15,16],[17,18],[19,20],[21]],
                 6: [[3,4],[5,6],[7,8],[9,10],[26],[11,12],[13,14],[27],[15,16],[17,18],[19,20],[21,22]],
                }[self.opt("sch", 3)]
        IG = self.opt("ig", 0)
        done = set(range(N0))
        regq = [(u, o) for u in range(N0, 22) for o in self.dma_ops(u)]
        xq = (self.dma_ops(26) + self.dma_ops(27))[:4 * self.NX]
        def wait_unit(u):
            assert not any(x[0] == u for x in regq) and not any(o[2] == f"u{u}" for o in xq) or not self.opt("bud", 7), (u, "not issued")
            self.wait_vm(f"u{u}")
        for n in range(LB + 1):
            if n == LB and not self.opt("fl", 1): self.vmem(fx, "fxf")
            self.sa_tag = None
            nsl = 0 if n < KS else SL
            sl = work[:nsl]; del work[:nsl]
            if "nokg" in self.opts: sl = []
            BUD = self.opt("bud", 7)
            if BUD:
                lim = 8 + (3 * ((n - 1) // 2) + ((n - 1) % 2) if n else 0)
                bud = 8 if n == 0 else (self.opt("bud1", 8) if n <= 2 else BUD)
                ops = []
                XT = []
                if n in (self.opt("xa", 4), self.opt("xb", 6)): XT = xq[:4]; del xq[:4]; bud -= len(XT)
                while len(ops) < bud:
                    if regq and regq[0][0] < lim: ops.append(regq.pop(0)[1])
                    elif xq and n >= self.opt("x0", 99): ops.append(xq.pop(0))
                    else: break
                ops += XT
                print("interval", n, [o[2] for o in ops], file=sys.stderr) if "v" in self.opts else None
                if n == LB: assert not regq and not xq
            else:
                us = [u for u in SCHED[n] if u not in done]; done.update(us)
                ops = []
                for u in us: ops += self.dma_ops(u)
            gap = max(1, len(sl) // (len(ops) + 1)) if ops else 0
            if "noil" in self.opts: gap = 0
            for i, x in enumerate(sl):
                while ops and (gap == 0 or i % gap == 0):
                    self.emit_aux(ops.pop(0))
                    if gap: break
                self.emit_aux(x)
            for o in ops: self.emit_aux(o)
            if n == 0 and TA == 5: touch()
            if n == PI and not E0:
                params()
                for x in self.ks_table(): a(x)
            if E0 and n == self.opt("em", 1):
                for x in B0: self.emit_aux(x)
                B0.clear()
                a("s_waitcnt lgkmcnt(0)", "s_setprio 3")
                for x in M0: a(x)
                M0.clear()
                a("s_setprio 0")
            if n == 0: self.stamp(1)
            if n == self.opt("xi", 4): self.final_pre()
            if n == self.opt("fw", 8):
                L = self.lab("Lfw")
                a(f"s_cmp_lg_u32 s{sAW}, 0", f"s_cbranch_scc1 {L}")
                a(f"s_lshl4_add_u32 s{sB}, s{sI}, s{sJ}", f"s_lshl_b32 s{sB}, s{sB}, 7", f"s_add_u32 s{sB}, s{sB}, {WS_FH}")
                a(f"v_mov_b32 v253, 0", f"v_lshlrev_b32 v252, 2, v1", "s_mov_b32 exec_hi, 0", f"buffer_store_dword v253, v252, {srd(S_WS)}, s{sB} offen" + ("" if "fpl" in self.opts else " sc1"), "s_mov_b32 exec_hi, -1")
                a(f"{L}:")
            if n == 5: self.vmem(self.nonce_load(vN), "non")
            if n == 1:
                a(f"s_lshl_b32 s{sB}, s{sAW}, 10", f"s_add_u32 s{sB}, s{sB}, {WS_FX}", f"v_lshrrev_b32 v{vt}, 3, v1", f"v_lshl_add_u32 v{vt}, v{vt}, 7, s{sB}")
                a(f"v_lshrrev_b32 v{vt+2}, 4, v1", f"v_mul_u32_u24 v{vt+2}, {448*128}, v{vt+2}", f"v_bfe_u32 v{vt+3}, v1, 1, 3", f"v_lshl_add_u32 v{vt+2}, v{vt+3}, 6, v{vt+2}")
                a(f"v_and_b32 v{vt+3}, 1, v1", f"v_lshl_add_u32 v{vt+2}, v{vt+3}, 4, v{vt+2}")
                a(f"v_mul_u32_u24 v{vt+3}, {UB[1]-UB[0]}, v{vt+3}", f"v_lshrrev_b32 v{vt+4}, 1, v1", f"v_lshl_add_u32 v{vt+3}, v{vt+4}, 4, v{vt+3}")
                a(f"s_lshl_b32 s{sB}, s{sAW}, 10", f"s_add_u32 s{sB}, s{sB}, {UB[0] + 512}", f"v_add_u32 v{vt+3}, s{sB}, v{vt+3}")
                a(f"s_lshl1_add_u32 s{sE}, s{sT}, s{sCH_}")
                a(f"s_lshr_b32 s{sC}, s{sT}, 1", f"s_lshl_b32 s{sC}, s{sC}, 9", f"s_and_b32 s{sB}, s{sT}, 1", f"s_lshl_b32 s{sB}, s{sB}, 5", f"s_add_u32 s{sC}, s{sC}, s{sB}")
                a(f"s_mul_i32 s{sB}, s{sAW}, {8*448*128}", f"s_add_u32 s{sC}, s{sC}, s{sB}", f"s_add_u32 s{sC}, s{sC}, {WS_XNT}", f"s_add_u32 s{sD}, s{sC}, {4*448*128}")
            if n == 10: self.get_nonce(vN, issued="non")
            if n == LB - 2: wait_unit(26)
            if n == LB - 1: wait_unit(27)
            wait_unit(3 * (n // 2) + 1 + (n % 2) if n < LB else 20)
            a("s_barrier")
            if n == 0: self.stamp(2)
        self.stamp(3)
        print("K-gen instrs left after the last barrier:", len(work), file=sys.stderr)
        NDA = self.NDA
        def ublock():
            self.spin([fx], [vt + 1], first_issued_tag="fxf", note=1)
            self.stamp(4)
            for k in range(2):
                self.vmem(f"buffer_load_dwordx4 v[{UR+4*k}:{UR+4*k+3}], v{vt+2}, {srd(S_WS)}, s{sD if k else sC} offen sc1", "uu")
            for x in self.r2load: self.vmem(x, "fx")
        FL = self.opt("fl", 1)
        self.VG = [200, 204, 208, 212, 216, 236, 240, 244, 188, 252]
        def vdload(i, g=True):
            if g: gate()
            for x in self.ksoff(14 - self.NV + i, 32 * 896, sDB): a(x)
            for k in range(4):
                r = self.VG[4 * i + k]
                self.vmem(f"buffer_load_dwordx4 v[{r}:{r+3}], v{voD+k}, {srd(S_WD)}, s{sA} offen offset:{1024*k}", "vd")
        if FL == 4:
            def burst(n):
                for _ in range(n): self.emit_aux(B0.pop(0))
            self.vmem(fx, "fxf")
            units([u for u in range(22, 21 + min(NDA, 3)) if u not in done], False); done.update((22, 23))
            a(f"s_setprio {self.opt('ap2', 1)}")
            sv = self.a; self.a = Asm(); self.conv_addr(236, 39, 40); work += [c.text for c in self.a.ins]; self.a = sv
            for x in const_row: a(x)
            const_row = []
            while work:
                for x in work[:4]: self.emit_aux(x)
                del work[:4]; burst(1)
            for i in range(self.NV): vdload(i, False); burst(self.opt("bv", 3))
            ublock()
        else:
            if not FL: ublock()
            if FL == 1: self.vmem(fx, "fxf")
            if FL: units([u for u in range(22, 21 + min(NDA, 3)) if u not in done]); done.update((22, 23))
            if FL == 2: self.vmem(fx, "fxf")
            for x in work: self.emit_aux(x)
            self.conv_addr(236, 39, 40)
            for i in range(self.NV): vdload(i)
            if FL: ublock()
            units([u for u in range(22, 21 + min(NDA, 3)) if u not in done])
        if NDA > 3:
            self.await_(8, kv, "all", sleep=1)
            units(range(24, 21 + NDA))
        if "auxidle" in self.opts:
            self.wait_vm_all(); self.signal(0, kv); a("s_barrier"); self.write_stamps(1); a("s_endpgm"); return
        self.stamp3(1)
        a(f"s_setprio {self.opt('ap2', 1)}")
        for x in const_row: a(x)
        for x in B0: self.emit_aux(x)
        if E0:
            for x in B1[:39]: self.emit_aux(x)
            del B1[:39]
        self.wait_vm(f"u{20 + NDA}")
        self.signal(0, kv)
        self.stamp3(2)
        a(f"v_and_b32 v{kv}, 3, v1", f"v_lshlrev_b32 v{kv}, 2, v{kv}")
        B1.insert(len(B1) - 8, f"ds_read_b32 v{kv+2}, v{kv} offset:{AUXCNT + 16*9}")
        for i, x in enumerate(B1):
            self.emit_aux(x)
            if i == 14 and M0: a("s_waitcnt lgkmcnt(15)")
            if i >= 14 and i % 4 == 2 and M0: a(M0.pop(0))
        assert not M0
        for k, x in enumerate(M1):
            a(f"s_waitcnt lgkmcnt({7-k})"); a(x)
        self.stamp3(3)
        L = self.lab("Lv")
        a(f"v_cmp_ne_u32 vcc, s{sTAG}, v{kv+2}", "s_nop 4", f"s_cbranch_vccz {L}")
        self.await_(9, kv + 1, "all")
        a(f"{L}:")
        self.image(UR, vt)
        a(f"s_setprio {self.opt('ap3', 1)}")
        self.conv()

    def image(self, UR, vt):
        a = self.a
        KD, BF, AF, vA = self.KD, self.kBF, self.kAF, self.kvt
        sCH_, sPT = self.sCH_, self.sPT
        def by_part(f):
            L1, L2 = self.lab("Lp"), self.lab("Lp")
            a(f"s_cmp_eq_u32 s{sPT}, 0", f"s_cbranch_scc0 {L1}")
            f(0); a(f"s_branch {L2}", f"{L1}:"); f(1); a(f"{L2}:")
        keep = {0: range(0, 12), 1: range(12, 16)}
        a(f"s_add_u32 s{sC}, s{sM0}, {slot_addr(2) if 'eb' in self.opts else XCH}", f"v_lshl_add_u32 v{vA}, v1, 4, s{sC}")
        a(f"v_xor_b32 v10, 0x1000, v{vA}")
        O = AF
        blocks = [[KD + i for i in range(9)], [KD + 9] * 3 + [KD + 10] * 3 + [KD + 11] * 3]
        for k, r0 in enumerate((KD + 12, KD + 14)):
            blocks.append([r0] * 4 + [BF + k] + [r0 + 1] * 4)
        a(f"s_mul_i32 s{sD}, s{sCH_}, {QB[1]}")
        self.wait_vm("uu")
        def f(pt):
            K = list(keep[pt])
            for r in list(keep[1 - pt])[::4]:
                for q in (r, r + 2): a(f"v_pk_mul_f32 v[{KD+q}:{KD+q+1}], v[{KD+q}:{KD+q+1}], v[18:19] op_sel_hi:[1,0]")
                a(f"ds_write_b128 v{vA}, v[{KD+r}:{KD+r+3}] offset:{256*r}")
            self.auxbar(1, vA + 1, extra=[f"ds_read_b128 v[{BF+16+r}:{BF+16+r+3}], v10 offset:{256*r}" for r in K[::4]])
            self.stamp3(4)
            for k in range(2): a(f"ds_write_b128 v{vt+3}, v[{UR+4*k}:{UR+4*k+3}] offset:{512*k}")
            a(f"v_lshl_add_u32 v{vA}, v1, 5, s{sD}")
            if pt == 0:
                a(f"v_cmp_eq_u32 vcc, 0, v1", f"v_mov_b32 v{vA+2}, s{sDS}", f"v_cndmask_b32 v{vA+2}, 0, v{vA+2}, vcc", f"v_add_f32 v{BF+16}, v{BF+16}, v{vA+2}")
            else:
                a(f"v_and_b32 v{vA+1}, 1, v1", f"v_cmp_eq_u32 vcc, 1, v{vA+1}")
            for r in K[::2]: a(f"v_pk_fma_f32 v[{KD+r}:{KD+r+1}], v[{KD+r}:{KD+r+1}], v[18:19], v[{BF+16+r}:{BF+16+r+1}] op_sel_hi:[1,0,1]")
            if pt:
                for k, r0 in enumerate((KD + 12, KD + 14)): a(f"v_cndmask_b32 v{BF+k}, v{r0}, v{r0+1}, vcc")
            for bi in (2 * pt, 2 * pt + 1):
                v = blocks[bi]
                for e_ in range(8): a(f"v_cvt_pk_bf16_f32 v{O+8*bi+e_}, v{v[e_+1]}, v{v[e_]}")
                for h in range(2): a(f"ds_write_b128 v{vA}, v[{O+8*bi+4*h}:{O+8*bi+4*h+3}] offset:{64 + 2048*bi + 16*h}")
            if pt == 0:
                a(f"v_readfirstlane_b32 s{sA}, v{O}")
                a(f"s_lshr_b32 s{sA}, s{sA}, 16", f"v_mov_b32 v{vA+1}, s{sA}", f"v_and_b32 v{vA+2}, 15, v1", f"v_cmp_eq_u32 vcc, 15, v{vA+2}")
                a(f"v_cndmask_b32 v{vA+1}, 0, v{vA+1}, vcc", f"v_lshl_add_u32 v{vA+2}, v{vA+2}, 2, s{sD}")
                a(f"ds_write_b32 v{vA+2}, v{vA+1}")
            else:
                a(f"s_mul_i32 s{sD}, s{sCH_}, {UB[1]-UB[0]}", f"v_lshl_add_u32 v{vA+2}, v1, 3, s{sD}")
                a(f"v_mov_b32 v{O}, 0", f"v_mov_b32 v{O+1}, 0")
                a(f"ds_write_b64 v{vA+2}, v[{O}:{O+1}] offset:{UB[0]}")
        by_part(f)
        self.stamp3(5)
        self.auxbar(2, vA + 1, extra=self.areads(0)[:2] + self.breads(0))
        self.stamp3(7)
        for r in self.areads(0)[2:]: a(r)

    def conv_addr(self, vt, sC=sC, sD=sD):
        a = self.a
        sCH_, sPT, vQA, vUA = self.sCH_, self.sPT, self.vQA, self.vUA
        a(f"v_and_b32 v{vt+1}, 15, v1", f"v_lshrrev_b32 v{vt+2}, 4, v1")
        a(f"v_lshlrev_b32 v{vt+3}, 3, v{vt+2}", f"v_sub_u32 v{vt+3}, v{vt+1}, v{vt+3}")
        a(f"s_mul_i32 s{sC}, s{sCH_}, {QB[1]}", f"s_lshl_b32 s{sD}, s{sPT}, 9", f"s_add_u32 s{sC}, s{sC}, s{sD}", f"s_add_u32 s{sC}, s{sC}, 100")
        a(f"v_lshl_add_u32 v{vQA}, v{vt+3}, 2, s{sC}")
        for q in range(1, 8): a(f"v_add_u32 v{vQA+q}, {1024*q}, v{vQA}")
        a(f"s_mul_i32 s{sC}, s{sCH_}, {UB[1]-UB[0]}")
        a(f"s_lshl_b32 s{sD}, s{sPT}, 8", f"s_sub_u32 s{sC}, s{sC}, s{sD}", f"s_add_u32 s{sC}, s{sC}, {UB[0] + 480 - 192}")
        a(f"v_lshlrev_b32 v{vt+3}, 5, v{vt+1}", f"v_lshl_add_u32 v{vt+3}, v{vt+2}, 4, v{vt+3}", f"v_add_u32 v{vUA}, s{sC}, v{vt+3}")
    def areads(self, rr):
        buf = self.cAF + 32 * (rr & 1); R = []
        for q in range(8):
            R.append(f"ds_read2_b32 v[{buf+4*q}:{buf+4*q+1}], v{self.vQA+q} offset0:{32*rr+6} offset1:{32*rr+4}")
            R.append(f"ds_read2_b32 v[{buf+4*q+2}:{buf+4*q+3}], v{self.vQA+q} offset0:{32*rr+2} offset1:{32*rr}")
        return R
    def breads(self, rr):
        buf = self.cBF + 32 * (rr & 1)
        return [f"ds_read_b128 v[{buf+4*c}:{buf+4*c+3}], v{self.vUA} offset:{512*c + 192 - 64*rr}" for c in range(8)]

    def conv(self):
        a = self.a
        vt = 5
        ACC, AF, BF = self.cACC, self.cAF, self.cBF
        sCH_, sPT = self.sCH_, self.sPT
        self.stamp(5)
        for rr in range(4):
            if rr: a("s_waitcnt lgkmcnt(0)")
            pend = (self.breads(rr + 1) + self.areads(rr + 1)) if rr < 3 else []
            ab, bb = AF + 32 * (rr & 1), BF + 32 * (rr & 1)
            for q in range(8):
                if rr == 0 and q == 1: a("s_waitcnt lgkmcnt(8)")
                for c in range(q, 8):
                    d = ACC + 4 * c
                    cc = "0" if (rr == 0 and q == 0) else f"v[{d}:{d+3}]"
                    a(f"v_mfma_f32_16x16x32_bf16 v[{d}:{d+3}], v[{ab+4*q}:{ab+4*q+3}], v[{bb+4*(c-q)}:{bb+4*(c-q)+3}], {cc}")
                    if pend: a(pend.pop(0))
        self.stamp(6)
        KP = AF; RX = AF + 16
        if "eb" in self.opts: self.await_(9, vt, "all")
        a(f"s_lshl_b32 s{sA}, s{sAW}, 12", f"s_add_u32 s{sA}, s{sA}, {XCH}", f"v_lshl_add_u32 v{vt}, v1, 4, s{sA}")
        a("s_nop 3")
        L1, L2 = self.lab("Lx"), self.lab("Lx")
        a(f"s_cmp_eq_u32 s{sPT}, 0", f"s_cbranch_scc0 {L1}")
        for pt in range(2):
            if pt: a(f"{L1}:")
            for t in range(4): a(f"ds_write_b128 v{vt}, v[{ACC+16*(1-pt)+4*t}:{ACC+16*(1-pt)+4*t+3}] offset:{1024*t}")
            for i in range(0, 16, 2): a(f"v_mov_b64 v[{KP+i}:{KP+i+1}], v[{ACC+16*pt+i}:{ACC+16*pt+i+1}]")
            if not pt: a(f"s_branch {L2}")
        a(f"{L2}:")
        a(f"v_bfe_u32 v{vt+3}, v1, 2, 2", f"v_mul_u32_u24 v{vt+3}, {448*256}, v{vt+3}", f"v_and_b32 v{vt+4}, 3, v1", f"v_lshl_add_u32 v{vt+3}, v{vt+4}, 4, v{vt+3}")
        a(f"v_and_b32 v{vt+4}, 48, v1", f"v_lshl_add_u32 v{vt+3}, v{vt+4}, 2, v{vt+3}")
        if "ylin" in self.opts: a(f"v_lshlrev_b32 v{vt+3}, 4, v1")
        a(f"s_mul_i32 s{sC}, s{sPT}, {16*448*256}", f"s_lshl_b32 s{sB}, s{sE}, 8", f"s_add_u32 s{sC}, s{sC}, s{sB}", f"s_add_u32 s{sC}, s{sC}, {WS_YT}")
        a(f"v_xor_b32 v{vt}, 0x1000, v{vt}")
        self.auxbar(3, vt + 1, pair=True, extra=[f"ds_read_b128 v[{RX+4*t}:{RX+4*t+3}], v{vt} offset:{1024*t}" for t in range(4)])
        if self.opt("yw", -1) >= 0:
            a("s_setprio 0"); self.await_(10, vt + 1, "same", sleep=2)
        for t in range(4):
            k = KP + 4 * t
            for i in range(4): a(f"v_add_f32 v{k+i}, v{k+i}, v{RX+4*t+i}")
            a(f"v_cvt_pk_bf16_f32 v{k}, v{k}, v{k+1}", f"v_cvt_pk_bf16_f32 v{k+2}, v{k+2}, v{k+3}", f"v_mov_b32 v{k+1}, s{sTAG}", f"v_mov_b32 v{k+3}, s{sTAG}")
            if "noyst" not in self.opts: self.vmem(f"buffer_store_dwordx4 v[{k}:{k+3}], v{vt+3}, {srd(S_WS)}, s{sC} offen" + ("" if "yplain" in self.opts else " sc1"), "yst")
            if t < 3: a(f"s_add_u32 s{sC}, s{sC}, {4*448*256}")
        a("s_setprio 0")
        self.stamp(7)
        if self.stage < 4:
            self.write_stamps(1)
            a("s_endpgm"); return
        YR = 12
        self.final_addr(76)
        a(f"s_lshl_b32 s{sB}, s{sJ2}, 6", f"s_lshl_b32 s{sC}, s{sAW}, 4", f"s_add_u32 s{sB}, s{sB}, s{sC}")
        a(f"s_mul_i32 s{sA}, s{sI2}, 448", f"s_add_u32 s{sA}, s{sA}, s{sB}", f"s_lshl_b32 s{sA}, s{sA}, 8", f"s_add_u32 s{sA}, s{sA}, {WS_YT}")
        a(f"v_lshlrev_b32 v{vt}, 4, v1")
        a(f"v_lshrrev_b32 v{vt+1}, 4, v1", f"v_mul_u32_u24 v{vt+1}, 144, v{vt+1}", f"v_and_b32 v{vt+2}, 3, v1", f"v_lshl_add_u32 v{vt+1}, v{vt+2}, 5, v{vt+1}")
        a(f"v_bfe_u32 v{vt+3}, v1, 2, 2", f"v_lshl_add_u32 v{vt+1}, v{vt+3}, 3, v{vt+1}")
        a(f"s_mul_i32 s{sC}, s{sCH_}, {QB[1]}", f"s_lshl_b32 s{sB}, s{sPT}, 12", f"s_add_u32 s{sC}, s{sC}, s{sB}", f"v_add_u32 v{vt+1}, s{sC}, v{vt+1}")
        a(f"v_mul_u32_u24 v{vt+3}, 144, v{vt+3}", f"v_lshl_add_u32 v{vt+3}, v{vt+2}, 3, v{vt+3}", f"v_and_b32 v{vt+2}, 48, v1", f"v_lshl_add_u32 v{vt+3}, v{vt+2}, 1, v{vt+3}")
        a(f"v_add_u32 v{vt+3}, s{sC}, v{vt+3}", f"v_mul_u32_u24 v{vt+4}, 48, v1", f"v_add_u32 v{vt+4}, s{sC}, v{vt+4}")
        a(f"v_add_u32 v{vt+2}, 1152, v{vt+1}")
        a(f"s_mov_b32 s{sD}, s{sA}")
        self.await_(4, YR, "same", sleep=self.opt("ysl", 2))
        loads = [f"buffer_load_dwordx4 v[{YR+4*k}:{YR+4*k+3}], v{vt}, {srd(S_WS)}, s{sD} offen offset:{1024*k} sc1" for k in range(4)]
        for x in loads: self.vmem(x, "yl")
        if self.NV:
            T2 = YR + 16
            self.wait_vm("vd")
            VB = 16384 * ((14 - self.NV - self.NX) % 7)
            a(f"s_add_u32 s{sA}, s{sM0}, {DBASE + VB}", f"v_add_u32 v{T2}, s{sA}, v{vt}")
            for i in range(self.NV):
                for k in range(4):
                    r = self.VG[4 * i + k]
                    a(f"ds_write_b128 v{T2}, v[{r}:{r+3}] offset:{16384*i + 1024*k}")
            self.signal(11, T2 + 2)
        self.final_x(76)
        if "noy" not in self.opts: self.spin(loads, [YR + 2 * i + 1 for i in range(8)], first_issued_tag="yl", sleep=self.opt("ysp", 4), note=2)
        for k in range(4): a(f"ds_write2_b32 v{vt+1}, v{YR+4*k}, v{YR+4*k+2} offset0:{144*k} offset1:{144*k+1}" if 144 * k + 1 < 256 else
                             f"ds_write2_b32 v{vt+2}, v{YR+4*k}, v{YR+4*k+2} offset0:{144*(k-2)} offset1:{144*(k-2)+1}")
        for t in range(4): a(f"ds_read_b64_tr_b16 v[{YR+16+2*t}:{YR+17+2*t}], v{vt+3} offset:{4*144*t}")
        a("s_waitcnt lgkmcnt(0)")
        for h in range(2): a(f"ds_write_b128 v{vt+4}, v[{YR+16+4*h}:{YR+19+4*h}] offset:{16*h}")
        self.final(76)

    def build(self):
        a = self.a
        a(".text", f".globl {NAME}_kernel", ".p2align 8", f".type {NAME}_kernel,@function", f"{NAME}_kernel:")
        self.prologue()
        self.aux()
        self.mwave()
        self.helper()
        a("L_exit:", "s_endpgm")
        added = a.fix_hazards()
        errs = a.check_waits()
        for e in errs[:5]: print("WAITERR:", e, file=sys.stderr)
        errs = [e for e in errs if "s_load_dword s5" not in e]
        if errs and not (self.opts & {"nokg", "nod", "nolds", "lax"}): raise SystemExit("wait errors")
        mv, ma, ms = a.max_regs()
        print(f"instrs {sum(1 for c in a.ins if c.kind not in ('dir','label'))} nops added {added} maxv {mv} maxs {ms}", file=sys.stderr)
        head = HEADER + f"; @launch grid=(256,1,1) block=(512,1,1) lds=163840\n.amdgcn_target \"amdgcn-amd-amdhsa--gfx950\"\n"
        return head + a.text() + kernel_desc(NAME + "_kernel", 256, 256)

if __name__ == "__main__":
    import argparse
    ap = argparse.ArgumentParser()
    ap.add_argument("--stage", type=int, default=9); ap.add_argument("--stamps", action="store_true"); ap.add_argument("-o", default="k.s"); ap.add_argument("--opts", default="")
    x = ap.parse_args()
    open(x.o, "w").write(Gen(x.stage, x.stamps, [o for o in x.opts.split(',') if o]).build())
```

```python
import sys, struct
import numpy as np
from asmlib import Asm, kernel_desc
NAME = "parallel_sum__ssm_conv_s4d__glu_gated_reglu__prompt"

HS     = 225 * 1024
WS_H   = 0x0000000
WS_XNT = 0x0800000
WS_YT  = 0x0A00400
WS_CS  = 0x0E00000
WS_NM  = 0x0E10000
WS_R2  = 0x0E20000
WS_FH  = 0x0E30000
WS_FX  = 0x0E58000
WS_ST  = 0xF000000
RING = 32768
def slot_addr(s): return RING + 16384 * s
DBASE = RING
QB = [0, 8320]
UB = [16640, 21248]
AUXCNT = 32256
XCH = slot_addr(7)
SPIN_MAX = 20000

def f32(x): return "0x%08x" % struct.unpack("<I", struct.pack("<f", x))[0]
LOG2E = 1.4426950408889634

S_X, S_WG, S_WU, S_WD, S_WS, S_OUT, S_DBG = 4, 8, 12, 16, 20, 24, 28
def srd(b): return f"s[{b}:{b+3}]"
S_P = 32
sCH = 48
sXB, sWB, sDB, sM0, sAW, sSB = 55, 56, 57, 58, 59, 46
sW, sI, sJ, sI2, sJ2, sT, sST, sTAG, sSPIN = 60, 61, 62, 63, 64, 65, 44, 67, 68
sF, sA, sB, sC, sD, sE, sG = 69, 70, 71, 72, 73, 74, 75
sEX = 76
sLD, sDS = 78, 79
sKS = 32
sQI = 53
S_STAMP = 80
voX, voW, voD = 240, 244, 248

class Gen:
    def __init__(self, stage=9, stamps=False, opts=()):
        self.a = Asm(); self.stage = stage; self.stamps = stamps; self.opts = set(opts)
        self.nlab = 0; self.role = ''
        self.NDA = self.opt("nda", 2)
        self.NX = self.opt('nx', 2)
        self.NV = self.opt('nv', 2)
        self.vm = []
    def opt(self, name, default):
        for o in self.opts:
            if o.startswith(name + "="): return int(o[len(name) + 1:])
        return default
    def lab(self, p="L"):
        self.nlab += 1; return f"{p}_{self.nlab}"
    def cstamp2(self, k):
        if self.stamps and "cyc2" in self.opts: self.a(f"s_memtime s[{S_STAMP+2*k}:{S_STAMP+2*k+1}]")
    def cstamp(self, k):
        if self.stamps and "cyc" in self.opts and "cyc2" not in self.opts: self.a(f"s_memtime s[{S_STAMP+2*k}:{S_STAMP+2*k+1}]")
    def stamp2(self, k):
        if self.stamps and "g2" in self.opts: self.a(f"s_memrealtime s[{S_STAMP+2*k}:{S_STAMP+2*k+1}]")
    def stamp3(self, k):
        if self.stamps and "g3" in self.opts: self.a(f"s_memrealtime s[{S_STAMP+2*k}:{S_STAMP+2*k+1}]")
    def stampk(self, k):
        if self.stamps: self.a(f"s_memrealtime s[{S_STAMP+2*k}:{S_STAMP+2*k+1}]")
    def stamp(self, k):
        if "k1" in self.opts and self.role in "MA" and self.role and 3 <= k <= 7: return
        if "spins" in self.opts: return
        if "g3" in self.opts and self.role == "A" and 1 <= k <= 7: return
        if "g2" in self.opts and self.role == "M" and 1 <= k <= 7: return
        if self.stamps and "cyc" not in self.opts: self.a(f"s_memrealtime s[{S_STAMP+2*k}:{S_STAMP+2*k+1}]")
    def vmem(self, text, tag=None):
        import re
        for o in self.opts:
            if o.startswith("drop_") and tag and re.fullmatch(o[5:], tag): return
        self.a(text); self.vm.append(tag)
    def wait_vm(self, tag):
        idx = [i for i, t in enumerate(self.vm) if t == tag]
        if not idx: return
        n = len(self.vm) - 1 - idx[-1]
        assert n <= 63
        self.a(f"s_waitcnt vmcnt({n})")
        self.vm = self.vm[idx[-1] + 1:]
    def wait_vm_all(self):
        self.a("s_waitcnt vmcnt(0)"); self.vm = []

    def spin(self, loads, checks, first_issued_tag=None, sleep=2, note=None):
        a = self.a
        L0, L1 = self.lab("Lspin"), self.lab("Lok")
        if "spins" in self.opts: a(f"s_mov_b32 s{sSPIN}, {SPIN_MAX+1}")
        if first_issued_tag is not None:
            self.wait_vm(first_issued_tag)
            self._check(checks)
            a(f"s_cbranch_vccz {L1}")
        a(f"s_mov_b32 s{sSPIN}, {SPIN_MAX}")
        a(f"{L0}:")
        for l in loads: a(l)
        a("s_waitcnt vmcnt(0)")
        self._check(checks)
        a(f"s_cbranch_vccz {L1}")
        if sleep: a(f"s_sleep {sleep}")
        a(f"s_sub_u32 s{sSPIN}, s{sSPIN}, 1", f"s_cmp_lg_u32 s{sSPIN}, 0", f"s_cbranch_scc1 {L0}")
        a(f"{L1}:")
        if "spins" in self.opts and note is not None: a(f"s_sub_u32 s{S_STAMP+2*note}, {SPIN_MAX+2}, s{sSPIN}")
        if first_issued_tag is None: self.vm = []
    def _check(self, checks):
        a = self.a
        a(f"v_cmp_ne_u32 vcc, s{sTAG}, v{checks[0]}")
        for c in checks[1:]:
            a(f"v_cmp_ne_u32 s[{sEX}:{sEX+1}], s{sTAG}, v{c}")
            a(f"s_or_b64 vcc, vcc, s[{sEX}:{sEX+1}]")
        a("s_nop 4" if len(checks) == 1 else "s_nop 0")
    def nonce_load(self, vt): return f"buffer_load_dword v{vt}, off, {srd(S_DBG)}, 0 sc1"
    def get_nonce(self, vt, issued=None):
        a = self.a
        L0, L1, L2 = self.lab("Lnon"), self.lab("Lnok"), self.lab("Lnx")
        def test():
            a(f"v_readfirstlane_b32 s{sTAG}, v{vt}", "s_nop 0")
            a(f"s_sub_u32 s{sEX}, s{sST}, s{sTAG}", f"s_cmp_lt_i32 s{sEX}, s{sEX+1}", f"s_cselect_b32 s{sEX}, s{sTAG}, 0")
            a(f"s_cmp_lg_u32 s{sEX}, 0", f"s_cbranch_scc1 {L1}")
        a(f"s_movk_i32 s{sEX+1}, 600")
        if issued is not None:
            self.wait_vm(issued); test()
        a(f"s_mov_b32 s{sSPIN}, {SPIN_MAX}")
        a(f"{L0}:")
        a(self.nonce_load(vt), "s_waitcnt vmcnt(0)")
        test()
        a(f"s_sub_u32 s{sSPIN}, s{sSPIN}, 1", f"s_cmp_lt_u32 s{sSPIN}, {SPIN_MAX-100}", f"s_cselect_b32 s{sEX+1}, 0x7fffffff, s{sEX+1}")
        a(f"s_cmp_lg_u32 s{sSPIN}, 0", f"s_cbranch_scc1 {L0}")
        a(f"{L1}:")
        if issued is None: self.vm = []
    def write_stamps(self, which):
        if not self.stamps: return
        a = self.a
        L = self.lab("Lst")
        a("s_waitcnt lgkmcnt(0)")
        a(f"s_cmp_lg_u32 s{sW}, {4*which}", f"s_cbranch_scc1 {L}")
        a(f"s_lshl_b32 s{sA}, s2, 8", f"s_add_u32 s{sA}, s{sA}, {WS_ST + 128*which}")
        a(f"s_mov_b64 s[{sEX}:{sEX+1}], exec", "s_mov_b64 exec, 1")
        for k in range(10):
            a(f"v_mov_b32 v2, s{S_STAMP+2*k}", f"v_mov_b32 v3, s{S_STAMP+2*k+1}")
            a(f"buffer_store_dwordx2 v[2:3], off, {srd(S_WS)}, s{sA} offset:{8*k}")
        a(f"s_mov_b64 exec, s[{sEX}:{sEX+1}]")
        a(f"{L}:")

    def prologue(self):
        a = self.a
        for (r, off) in ((S_X, 0), (S_WG, 64), (S_WU, 72)):
            a(f"s_load_dwordx2 s[{r}:{r+1}], s[0:1], {off}")
        a(f"s_load_dwordx8 s[{S_P}:{S_P+7}], s[0:1], 8", f"s_load_dwordx4 s[{S_P+8}:{S_P+11}], s[0:1], 40")
        a("s_cmp_ge_u32 s2, 256", "s_cbranch_scc1 L_exit")
        if "nopf" not in self.opts:
            L = self.lab("Lpc"); L2 = self.lab("Lpc")
            a(f"s_getpc_b64 s[{sA}:{sB}]", f"{L}:")
            a("v_lshlrev_b32 v254, 7, v0", f"v_cmp_gt_u32 vcc, L_exit-{L}, v254")
            a(f"s_and_saveexec_b64 s[{sEX}:{sEX+1}], vcc", f"s_cbranch_execz {L2}")
            a(f"global_load_dword v255, v254, s[{sA}:{sB}]")
            a(f"{L2}:", f"s_mov_b64 exec, s[{sEX}:{sEX+1}]")
        for (r, off) in ((S_WD, 80), (S_OUT, 88), (S_DBG, 96), (S_WS, 104)):
            a(f"s_load_dwordx2 s[{r}:{r+1}], s[0:1], {off}")
        a(f"s_memrealtime s[{sST}:{sST+1}]")
        if self.stamps:
            for k in range(1, 10): a(f"s_mov_b64 s[{S_STAMP+2*k}:{S_STAMP+2*k+1}], 0")
        self.stamp(0)
        vt = 5
        a(f"v_lshrrev_b32 v{vt}, 6, v0", "v_and_b32 v1, 63, v0")
        a(f"v_readfirstlane_b32 s{sW}, v{vt}")
        a(f"s_mov_b32 s{S_X+2}, 1835008", f"s_mov_b32 s{S_X+3}, 0x20000", f"s_mov_b32 s{S_WG+2}, 1605632", f"s_mov_b32 s{S_WG+3}, 0x20000")
        a(f"s_mov_b64 s[{S_WU+2}:{S_WU+3}], s[{S_WG+2}:{S_WG+3}]", f"s_mov_b64 s[{S_WD+2}:{S_WD+3}], s[{S_WG+2}:{S_WG+3}]", f"s_mov_b64 s[{S_OUT+2}:{S_OUT+3}], s[{S_X+2}:{S_X+3}]")
        a(f"s_mov_b32 s{S_WS+2}, 0x10000000", f"s_mov_b32 s{S_WS+3}, s{S_X+3}", f"s_movk_i32 s{S_DBG+2}, 256", f"s_mov_b32 s{S_DBG+3}, s{S_X+3}")
        a(f"s_and_b32 s{sA}, s2, 7", f"s_lshr_b32 s{sB}, s2, 3")
        a("s_cmp_lt_u32 s2, 32", "s_cbranch_scc1 L_helper")
        a(f"s_sub_u32 s{sB}, s{sB}, 4")
        a(f"s_mul_i32 s{sC}, s{sB}, 37", f"s_lshr_b32 s{sC}, s{sC}, 8")
        a(f"s_mul_i32 s{sD}, s{sC}, 7", f"s_sub_u32 s{sJ2}, s{sB}, s{sD}")
        if "xl" in self.opts:
            a(f"s_lshr_b32 s{sD}, s{sC}, 1", f"s_lshl1_add_u32 s{sI}, s{sA}, s{sD}")
            a(f"s_and_b32 s{sD}, s{sC}, 1", f"s_mul_i32 s{sD}, s{sD}, 7", f"s_add_u32 s{sJ}, s{sD}, s{sJ2}")
        else:
            a(f"s_lshr_b32 s{sD}, s{sA}, 1", f"s_lshl2_add_u32 s{sI}, s{sD}, s{sC}")
            a(f"s_and_b32 s{sD}, s{sA}, 1", f"s_mul_i32 s{sD}, s{sD}, 7", f"s_add_u32 s{sJ}, s{sD}, s{sJ2}")
        a(f"s_lshl2_add_u32 s{sI2}, s{sA}, s{sC}")
        a(f"s_sub_u32 s{sT}, s2, 32")
        a(f"s_mov_b32 s{sQI}, s{sC}", f"s_and_b32 s{sAW}, s{sW}, 3")
        a(f"s_lshl_b32 s{sD}, s{sT}, 10", f"s_lshl_b32 s{sE}, s{sAW}, 8", f"s_add_u32 s{sD}, s{sD}, s{sE}")
        a(f"v_lshl_add_u32 v19, v1, 1, s{sD}", f"s_lshl_b32 s{sF}, s{sT}, 2")
        a(f"v_lshrrev_b32 v{vt}, 3, v1", f"v_and_b32 v{vt+1}, 7, v1", f"v_lshrrev_b32 v{vt+2}, 4, v1")
        a(f"v_mul_u32_u24 v15, 896, v{vt}")
        a(f"v_lshlrev_b32 v14, 1, v{vt+2}", f"v_xor_b32 v14, v14, v{vt+1}", f"v_lshl_add_u32 v{voD}, v14, 4, v15")
        a(f"s_lshl_b32 s{sM0}, s{sAW}, 12")
        a(f"s_cmp_lt_u32 s{sW}, 4", "s_cbranch_scc1 L_m")
        a(f"v_xor_b32 v14, v{vt+2}, v{vt+1}", f"v_lshl_add_u32 v{voX}, v14, 4, v15")
        a(f"v_xor_b32 v14, 64, v{voX}", f"v_add_u32 v{voX+1}, {7168-1024}, v14", f"v_add_u32 v{voX+2}, {2*(7168-1024)}, v{voX}", f"v_add_u32 v{voX+3}, {3*(7168-1024)}, v14")
        a(f"v_lshlrev_b32 v14, 1, v{vt+2}", f"v_and_b32 v15, 15, v1", f"v_xor_b32 v14, v14, v15")
        a(f"v_mul_u32_u24 v15, 3584, v{vt+2}", f"v_lshl_add_u32 v{voW}, v14, 4, v15")
        a(f"v_xor_b32 v14, 0x80, v{voW}", f"v_add_u32 v{voW+1}, {14336-1024}, v{voW}", f"v_add_u32 v{voW+2}, {2*(14336-1024)}, v14", f"v_add_u32 v{voW+3}, {3*(14336-1024)}, v14")
        a(f"s_lshl2_add_u32 s{sA}, s{sI}, s{sAW}", f"s_mul_i32 s{sXB}, s{sA}, {32*896}")
        a(f"s_and_b32 s{sA}, s{sAW}, 1", f"s_mul_i32 s{sA}, s{sA}, {16*3584}", f"s_lshl_b32 s{sB}, s{sJ}, 8", f"s_add_u32 s{sWB}, s{sA}, s{sB}")
        a(f"s_cmp_ge_u32 s{sAW}, 2")
        a("s_waitcnt lgkmcnt(0)")
        self.vm = ["pf"]
        a(f"s_cselect_b32 s{S_WG}, s{S_WU}, s{S_WG}", f"s_cselect_b32 s{S_WG+1}, s{S_WU+1}, s{S_WG+1}")

    def ks_table(self):
        L = []
        for p in range(7):
            lo, mod = (0, 4) if p < 4 else (4, 3)
            d = sKS + p
            if self.opt("rot2", 1):
                L += [f"s_add_u32 s{d}, s{sQI}, {p - lo}", f"s_cmp_ge_u32 s{d}, {mod}", f"s_cselect_b32 s{sB}, {mod}, 0", f"s_sub_u32 s{d}, s{d}, s{sB}"]
                if self.opt("r2j", 1): L += [f"s_add_u32 s{d}, s{d}, s{sJ2}"]
                if lo: L += [f"s_add_u32 s{d}, s{d}, {lo}"]
                if self.opt("r2j", 1): L += [f"s_cmp_ge_u32 s{d}, 7", f"s_cselect_b32 s{sB}, 7, 0", f"s_sub_u32 s{d}, s{d}, s{sB}"]
            else: L += [f"s_mov_b32 s{d}, {p}"]
        return L

    def colsum_partial(self, regs, C, vt, area):
        a = self.a
        for n, R in enumerate(regs):
            for i in range(4):
                if n == 0: a(f"v_lshlrev_b32 v{C+2*i}, 16, v{R+i}", f"v_and_b32 v{C+2*i+1}, 0xffff0000, v{R+i}")
                else: a(f"v_dot2c_f32_bf16 v{C+2*i}, s{self.sLO}, v{R+i}", f"v_dot2c_f32_bf16 v{C+2*i+1}, s{self.sHI}, v{R+i}")
        for i in range(4): a(f"v_permlane32_swap_b32 v{C+i}, v{C+i+4}")
        for i in range(4): a(f"v_add_f32 v{C+i}, v{C+i}, v{C+i+4}")
        for i in range(2): a(f"v_permlane16_swap_b32 v{C+i}, v{C+i+2}")
        for i in range(2): a(f"v_add_f32 v{C+i}, v{C+i}, v{C+i+2}")
        a(f"ds_write_b64 v{self.hCSW}, v[{C}:{C+1}] offset:{area}")
    def colsum_final(self, area, C, vt):
        a = self.a
        L = self.lab("Lcs")
        a(f"s_cmp_ge_u32 s{sW}, 2", f"s_cbranch_scc1 {L}")
        a(f"v_lshlrev_b32 v{vt}, 2, v0")
        for w in range(8): a(f"ds_read_b32 v{C+w}, v{vt} offset:{area + 512*w}")
        a(f"v_lshlrev_b32 v{vt}, 4, v0")
        a(f"s_add_u32 s{sA}, s{sJ}, {WS_CS}")
        a("s_waitcnt lgkmcnt(0)")
        for (x, y) in ((0,1),(2,3),(4,5),(6,7),(0,2),(4,6),(0,4)): a(f"v_add_f32 v{C+x}, v{C+x}, v{C+y}")
        a(f"v_mov_b32 v{C+1}, s{sTAG}")
        a(f"buffer_store_dwordx2 v[{C}:{C+1}], v{vt}, {srd(S_WS)}, s{sA} offen sc1")
        a(f"{L}:")

    def helper(self):
        a = self.a
        self.vm = []; self.role = 'H'
        a("L_helper:")
        WA, XR, WB, C, XF = 4, 32, 60, 88, 100
        vt = 96; vR, vP = 160, 161; vW, vX = 162, 163; self.hCSW = 164
        vS, vM, vMB, vQ, vRr = 165, 166, 172, 168, 170
        self.sLO, self.sHI, sONE = 48, 49, 50
        TS = 912; CSA = 61440
        a(f"v_lshrrev_b32 v{vR}, 3, v0", f"v_and_b32 v{vP}, 7, v0")
        a(f"v_lshlrev_b32 v{vt}, 4, v{vP}")
        a(f"v_lshrrev_b32 v{vW}, 4, v0", f"v_mul_u32_u24 v{vW}, 3584, v{vW}", f"v_and_b32 v{vt+1}, 15, v1", f"v_lshl_add_u32 v{vW}, v{vt+1}, 4, v{vW}")
        a(f"v_mul_u32_u24 v{vX}, 896, v{vR}", f"v_add_u32 v{vX}, v{vX}, v{vt}")
        a(f"s_lshl2_add_u32 s{sI}, s{sA}, s{sB}")
        a(f"s_lshr_b32 s{sC}, s{sA}, 1", f"s_lshl2_add_u32 s{sT}, s{sC}, s{sB}")
        a(f"s_and_b32 s{sA}, s{sA}, 1", f"s_mul_i32 s{sA}, s{sA}, 7", f"s_add_u32 s{sA}, s{sA}, s{sT}")
        a(f"s_cmp_ge_u32 s{sT}, 7", f"s_cselect_b32 s{sB}, 7, 0", f"s_cselect_b32 s{sJ}, 8, 0", f"s_sub_u32 s{sB}, s{sA}, s{sB}", f"s_lshl_b32 s{sB}, s{sB}, 8")
        a(f"s_lshl3_add_u32 s{sJ}, s{sB}, s{sJ}")
        a(f"s_cmp_ge_u32 s{sT}, 14", f"s_cselect_b32 s{S_WG+2}, 0, s{S_WG+2}", f"s_cselect_b32 s{sJ}, 0x8000, s{sJ}")
        a(f"s_mul_i32 s{sC}, s{sI}, {64*896}")
        a("s_waitcnt lgkmcnt(0)")
        Ln = self.lab("Lnn")
        a(f"s_or_b32 s{sD}, s2, s{sW}", f"s_cmp_lg_u32 s{sD}, 0", f"s_cbranch_scc1 {Ln}")
        a(f"s_or_b32 s{sA}, s{sST}, 1", f"v_mov_b32 v2, s{sA}")
        a("s_mov_b64 exec, 1", f"buffer_store_dword v2, off, {srd(S_DBG)}, 0 sc1", "s_mov_b64 exec, -1")
        a(f"{Ln}:")
        a(f"s_cmp_ge_u32 s{sT}, 7", f"s_cselect_b32 s{S_WG}, s{S_WU}, s{S_WG}", f"s_cselect_b32 s{S_WG+1}, s{S_WU+1}, s{S_WG+1}")
        for t in range(7):
            self.vmem(f"buffer_load_dwordx4 v[{XR+4*t}:{XR+4*t+3}], v{vX}, {srd(S_X)}, s{sC} offen offset:{128*t}", "XR")
        if self.opt("tl", 0):
            L = self.lab("Ltl")
            a(f"s_cmp_lg_u32 s{sW}, 7", f"s_cbranch_scc1 {L}")
            holes = [229376, 10*HS + 229376, 19*HS + 229376, 28*HS + 229376, 0x9F0000, 0xA00000, 0xDF0000, 0xFF0000]
            a(f"s_load_dword s51, s[{S_WD}:{S_WD+1}], 0", f"s_load_dword s52, s[{S_OUT}:{S_OUT+1}], 0")
            for i, h in enumerate(holes):
                a(f"s_mov_b32 s{sD}, {h}", f"s_load_dword s{53+i%4}, s[{S_WS}:{S_WS+1}], s{sD}")
            a(f"{L}:")
        a(f"s_mov_b32 s{self.sLO}, 0x3f80", f"s_mov_b32 s{self.sHI}, 0x3f800000", f"s_mov_b32 s{sONE}, 0x3f803f80")
        wregs = [WA + 4 * t for t in range(7)] + [WB + 4 * t for t in range(7)]
        wl = [(n + self.opt("hwo", 0)) % 14 for n in range(14)]
        HWM = self.opt("hwm", 14)
        def wload(force=False):
            if not wl or (14 - len(wl) >= HWM and not force): return
            n = wl.pop(0); R = wregs[n]
            a(f"s_add_u32 s{sD}, s{sB}, {n*32*3584}")
            self.vmem(f"buffer_load_dwordx4 v[{R}:{R+3}], v{vW}, {srd(S_WG)}, s{sD} offen", "W")
        for _ in range(self.opt("hw0", 0)): wload()
        a(f"v_lshrrev_b32 v{vt}, 4, v1", f"v_lshlrev_b32 v{vt}, 3, v{vt}", f"v_lshl_add_u32 v{vt}, v{vt+1}, 5, v{vt}")
        a(f"s_lshl_b32 s{sD}, s{sW}, 9", f"v_add_u32 v{self.hCSW}, s{sD}, v{vt}")
        for k in range(4): a(f"v_mov_b32 v{C+k}, 0")
        a(f"v_lshlrev_b32 v{vt+2}, 3, v{vR}")
        a(f"s_lshl_b32 s{sE}, s{sI}, 9")
        self.wait_vm("XR")
        self.stamp(1)
        for i in range(28): a(f"v_dot2c_f32_bf16 v{C+i%4}, s{sONE}, v{XR+i}")
        a(f"v_add_f32 v{C}, v{C}, v{C+1}", f"v_add_f32 v{C+2}, v{C+2}, v{C+3}", f"v_add_f32 v{vS}, v{C}, v{C+2}")
        for ctl in ("quad_perm:[1,0,3,2]", "quad_perm:[2,3,0,1]", "row_half_mirror"):
            a(f"v_add_f32_dpp v{vS}, v{vS}, v{vS} {ctl} row_mask:0xf bank_mask:0xf")
        a(f"v_mul_f32 v{vM}, {f32(-1.0/448)}, v{vS}")
        a(f"v_cvt_pk_bf16_f32 v{vMB}, 0, v{vM}")
        self.vmem(self.nonce_load(vQ), "non")
        if self.opt("ht", 0):
            a(f"s_lshl3_add_u32 s{sD}, s2, s{sW}", f"s_mul_i32 s{sD}, s{sD}, {49*128}", f"v_min_u32 v174, 48, v1", f"v_lshlrev_b32 v174, 7, v174")
            self.vmem(f"buffer_load_dword v175, v174, {srd(S_WD)}, s{sD} offen", "t")
        for i in range(28):
            a(f"v_dot2_f32_bf16 v{XF+2*i}, v{XR+i}, s{self.sLO}, v{vMB}", f"v_dot2_f32_bf16 v{XF+2*i+1}, v{XR+i}, s{self.sHI}, v{vMB}")
            if i % 7 == 6: wload()
        for k in range(2): a(f"v_pk_mul_f32 v[{C+2*k}:{C+2*k+1}], v[{XF+2*k}:{XF+2*k+1}], v[{XF+2*k}:{XF+2*k+1}]")
        for i in range(2, 28):
            k = i % 2
            a(f"v_pk_fma_f32 v[{C+2*k}:{C+2*k+1}], v[{XF+2*i}:{XF+2*i+1}], v[{XF+2*i}:{XF+2*i+1}], v[{C+2*k}:{C+2*k+1}]")
            if i % 13 == 12: wload()
        a(f"v_add_f32 v{C}, v{C}, v{C+1}", f"v_add_f32 v{C+2}, v{C+2}, v{C+3}", f"v_add_f32 v{vS}, v{C}, v{C+2}")
        a(f"v_sub_f32 v{vM}, v{vM}, v{vMB}")
        rnd = [f"v_cvt_pk_bf16_f32 v{XF+i}, 0, v{XF+i}" for i in range(56)]
        def fill(n):
            for _ in range(n):
                if rnd: a(rnd.pop(0))
        chain = []
        for ctl in ("quad_perm:[1,0,3,2]", "quad_perm:[2,3,0,1]", "row_half_mirror"):
            chain.append(f"v_add_f32_dpp v{vS}, v{vS}, v{vS} {ctl} row_mask:0xf bank_mask:0xf")
        chain += [f"v_mul_f32 v{vM}, v{vM}, v{vM}", f"v_mul_f32 v{vS}, {f32(1.0/448)}, v{vS}", f"v_sub_f32 v{vS}, v{vS}, v{vM}", f"v_max_f32 v{vS}, 0, v{vS}",
                  f"v_cvt_pk_bf16_f32 v{vS}, 0, v{vS}", f"v_add_f32 v{vS}, {f32(1e-5)}, v{vS}", f"v_cvt_pk_bf16_f32 v{vS}, 0, v{vS}",
                  f"v_sqrt_f32 v{vS}, v{vS}", f"v_cvt_pk_bf16_f32 v{vS}, 0, v{vS}", f"v_rcp_f32 v{vRr}, v{vS}",
                  f"v_mul_f32 v{C+6}, v{vRr}, v{vRr}", f"v_mov_b32 v{vRr+1}, v{vRr}"]
        for i, c in enumerate(chain):
            fill(2); a(c)
            if i % 5 == 4: wload()
        self.get_nonce(vQ, issued="non")
        a(f"v_mov_b32 v{C+7}, s{sTAG}", f"v_mov_b32 v{vMB+1}, s{sTAG}", f"s_add_u32 s{sA}, s{sE}, {WS_R2}", f"s_add_u32 s{sD}, s{sE}, {WS_NM}")
        a("s_mov_b32 exec_lo, 0x01010101", "s_mov_b32 exec_hi, 0x01010101")
        self.vmem(f"buffer_store_dwordx2 v[{vMB}:{vMB+1}], v{vt+2}, {srd(S_WS)}, s{sD} offen sc1", "st")
        self.vmem(f"buffer_store_dwordx2 v[{C+6}:{C+7}], v{vt+2}, {srd(S_WS)}, s{sA} offen sc1", "st")
        a("s_mov_b64 exec, -1")
        self.stamp(2)
        fill(13); wload(); fill(99)
        a(f"v_mul_u32_u24 v{vt}, {TS}, v{vR}", f"v_lshl_add_u32 v{vt}, v{vP}, 4, v{vt}")
        for t in range(7):
            for i in range(4 * t, 4 * t + 4): a(f"v_pk_mul_f32 v[{XF+2*i}:{XF+2*i+1}], v[{XF+2*i}:{XF+2*i+1}], v[{vRr}:{vRr+1}]")
            for i in range(4 * t, 4 * t + 4): a(f"v_cvt_pk_bf16_f32 v{XR+i}, v{XF+2*i}, v{XF+2*i+1}")
            a(f"ds_write_b128 v{vt}, v[{XR+4*t}:{XR+4*t+3}] offset:{128*t}")
            wload()
        a(f"v_bfe_u32 v{vt+1}, v1, 4, 1", f"v_and_b32 v{vt+3}, 3, v1", f"v_lshl_add_u32 v{vt+1}, v{vt+1}, 2, v{vt+3}")
        a(f"v_bfe_u32 v{vt+3}, v1, 2, 2", f"v_lshl_add_u32 v{vt+1}, v{vt+1}, 3, v{vt+3}", f"v_mul_u32_u24 v{vt+1}, {TS}, v{vt+1}")
        a(f"v_lshrrev_b32 v{vt+3}, 5, v1", f"v_lshl_add_u32 v{vt+1}, v{vt+3}, 3, v{vt+1}")
        a(f"s_lshl_b32 s{sD}, s{sW}, 4", f"v_add_u32 v{vt+1}, s{sD}, v{vt+1}")
        a(f"v_lshlrev_b32 v{vt+2}, 4, v1")
        a(f"s_mul_i32 s{sC}, s{sI}, {448*128}", f"s_lshl_b32 s{sA}, s{sW}, 10", f"s_add_u32 s{sC}, s{sC}, s{sA}", f"s_add_u32 s{sC}, s{sC}, {WS_XNT}")
        a("s_waitcnt lgkmcnt(0)", "s_barrier")
        self.stamp(3)
        for n in range(7):
            for t in range(2):
                a(f"ds_read_b64_tr_b16 v[{XR+4*n+2*t}:{XR+4*n+2*t+1}], v{vt+1} offset:{128*n + 4*TS*t}")
        for n in range(7):
            a(f"s_waitcnt lgkmcnt({12-2*n})")
            self.vmem(f"buffer_store_dwordx4 v[{XR+4*n}:{XR+4*n+3}], v{vt+2}, {srd(S_WS)}, s{sC} offen sc1", "st")
            if n < 6: a(f"s_add_u32 s{sC}, s{sC}, 8192")
        late = len(wl) > 0
        while wl: wload(True)
        def fxflag():
            L = self.lab("Lfx")
            a(f"s_cmp_lg_u32 s{sW}, 2", f"s_cbranch_scc1 {L}")
            a(f"v_mov_b32 v2, s{sTAG}", f"s_lshl_b32 s{sA}, s{sI}, 7", f"s_add_u32 s{sA}, s{sA}, {WS_FX}")
            a("v_lshlrev_b32 v3, 2, v1", "s_mov_b32 exec_hi, 0", f"buffer_store_dword v2, v3, {srd(S_WS)}, s{sA} offen sc1", "s_mov_b32 exec_hi, -1")
            a(f"{L}:")
        if late:
            self.wait_vm("st")
            a("s_barrier")
            fxflag()
            self.stamp(7)
        self.wait_vm("W")
        self.colsum_partial(wregs, C, vt, CSA)
        a("s_waitcnt vmcnt(0) lgkmcnt(0)", "s_barrier")
        if not late: fxflag()
        self.stamp(5)
        self.colsum_final(CSA, WA, vt)
        self.stamp(4)
        if self.opt("hp", 1):
            L = self.lab("Lhp")
            a(f"s_cmp_eq_u32 s{sW}, 7", f"s_cbranch_scc1 {L}")
            a(f"s_lshr_b32 s{sA}, s2, 3", f"s_mul_i32 s{sA}, s{sA}, {448*896}", f"s_lshl_b32 s{sB}, s{sW}, 7", f"s_add_u32 s{sA}, s{sA}, s{sB}")
            a(f"v_mul_u32_u24 v{vt}, 896, v1")
            for k in range(3):
                if self.opt("r2j", 1): a(f"s_add_u32 s{sB}, s{sW}, {4+k}", f"s_cmp_ge_u32 s{sB}, 7", f"s_cselect_b32 s{sC}, 7, 0", f"s_sub_u32 s{sB}, s{sB}, s{sC}")
                else: a(f"s_mov_b32 s{sB}, {4+k}")
                a(f"s_mul_i32 s{sB}, s{sB}, {64*896}", f"s_add_u32 s{sB}, s{sB}, s{sA}")
                a(f"buffer_load_dword v{WB+k}, v{vt}, {srd(S_WD)}, s{sB} offen")
            a("s_waitcnt vmcnt(0)", f"{L}:")
            self.stamp(6)
        self.write_stamps(0)
        a("s_endpgm")

    @staticmethod
    def uslot(u): return (u + 3) % 8

    def kgen_setup(self):
        base = 8
        PRM, vDT, vt, vRA, vRB, KD, BF, AF, T = base + 12, base + 4, base + 5, base + 8, base + 9, 28, 44, 76, 200
        self.KD, self.kBF, self.kAF, self.kvt = KD, BF, AF, vt
        self.kregs = (PRM, vDT, vt, vRA, vRB, KD, BF, AF, T)
        L = []
        e = lambda *x: L.extend(x)
        e(f"s_lshl_b32 s{sSB}, s{sAW}, 8")
        def rowaddr(dst, sig):
            e(f"v_and_b32 v{dst}, 15, v{sig}", f"v_mul_u32_u24 v{dst}, 2064, v{dst}", f"v_lshrrev_b32 v{sig}, 4, v{sig}", f"v_lshl_add_u32 v{dst}, v{sig}, 10, v{dst}")
            e(f"v_add_u32 v{dst}, v{dst}, v{vt+2}")
        e(f"v_lshrrev_b32 v{vt+2}, 5, v1", f"v_lshlrev_b32 v{vt+2}, 4, v{vt+2}", f"v_and_b32 v{vt}, 31, v1")
        e(f"v_cmp_eq_u32 vcc, 5, v{vt}", f"v_cndmask_b32_e64 v{vt+1}, v{vt}, 4, vcc", f"v_cmp_eq_u32 vcc, 31, v{vt}", f"v_cndmask_b32_e64 v{vt+1}, v{vt+1}, 5, vcc")
        rowaddr(vRA, vt + 1)
        e(f"v_add_u32 v{vRA}, s{sSB}, v{vRA}")
        e(f"v_add_u32 v{vt+1}, -1, v{vt}", f"v_and_b32 v{vt+1}, 31, v{vt+1}")
        rowaddr(vRB, vt + 1)
        e(f"v_cmp_eq_u32 vcc, 0, v{vt}", f"v_mov_b32 v{vt}, s{sSB}", f"v_cndmask_b32_e64 v{vt}, v{vt}, 0, vcc", f"v_add_u32 v{vRB}, v{vRB}, v{vt}")
        e("s_waitcnt lgkmcnt(0)")
        e(f"s_lshr_b32 s{sC}, s{sAW}, 1", f"s_lshl_b32 s{sC}, s{sC}, 4")
        for r in (sLD, sDS): e(f"s_lshr_b32 s{r}, s{r}, s{sC}", f"s_lshl_b32 s{r}, s{r}, 16")
        chi = float(np.frombuffer(np.uint32(np.float32(LOG2E).view(np.uint32) & 0xFFFFFF00).tobytes(), np.float32)[0]); clo = LOG2E - chi
        e(f"v_mov_b32 v{vt+2}, s{sLD}", f"v_mul_f32 v{vDT}, {f32(chi)}, v{vt+2}", f"v_mul_f32 v{vt+2}, {f32(clo)}, v{vt+2}")
        e(f"v_exp_f32 v{vDT}, v{vDT}", f"v_exp_f32 v{vt+2}, v{vt+2}", f"v_mul_f32 v{vDT}, v{vDT}, v{vt+2}")
        e(f"v_cvt_pk_bf16_f32 v{vDT}, 0, v{vDT}")
        return L

    @staticmethod
    def soff(sig): return (sig & 15) * 2064 + (sig >> 4) * 1024

    def kgen_scale(self):
        PRM, vDT, vt, vRA, vRB, KD, BF, AF, T = self.kregs
        L = []
        e = lambda *x: L.extend(x)
        e(f"v_and_b32 v{T}, 0x7fff, v{PRM+2}", f"v_and_b32 v{T+1}, 0x7fff, v{PRM+3}", f"v_and_b32 v{T+2}, 0x7fff, v{PRM+6}", f"v_and_b32 v{T+3}, 0x7fff, v{PRM+7}")
        e(f"v_max_u32 v{T}, v{T}, v{T+1}", f"v_max3_u32 v{T}, v{T}, v{T+2}, v{T+3}")
        sh = [f"v_lshlrev_b32 v{PRM+k}, 16, v{PRM+k}" for k in range(8)]
        for ctl in ("row_shr:1", "row_shr:2", "row_shr:4", "row_shr:8", "row_bcast:15 row_mask:0xa", "row_bcast:31 row_mask:0xc"):
            for _ in range(2):
                if sh: e(sh.pop(0))
            e(f"v_max_u32_dpp v{T}, v{T}, v{T} {ctl}" + (" row_mask:0xf" if "row_mask" not in ctl else "") + " bank_mask:0xf")
        e(f"v_readlane_b32 s50, v{T}, 63")
        e("s_lshr_b32 s50, s50, 7", "s_sub_u32 s50, 267, s50", "s_min_u32 s50, s50, 253", f"s_sub_u32 s51, 255, s50")
        e("s_lshl_b32 s50, s50, 23", "s_lshl_b32 s51, s51, 23", f"v_mul_f32 v18, s51, v{vDT}")
        return L

    def kgen_body(self, czero, batch):
        PRM, vDT, vt, vRA, vRB, KD, BF, AF, T = self.kregs
        L = []
        e = lambda *x: L.extend(x)
        tt = 172; ti = [0]
        pendf = []
        def cmul(d, x, y):
            t = tt + ti[0] % 8; ti[0] += 1
            if any(x == p[0] or y == p[0] for p in pendf): flush()
            e(f"v_pk_mul_f16 v{t}, v{x}, v{y} op_sel:[1,1] op_sel_hi:[0,1]")
            flush()
            pendf.append((d, f"v_pk_fma_f16 v{d}, v{x}, v{y}, v{t} op_sel_hi:[1,0,1] neg_lo:[0,0,1]"))
        def flush():
            for p in pendf: e(p[1])
            pendf.clear()
        BF += 64 * batch; AF += 64 * batch
        def arow(hh, reg): return 8 * (reg >> 2) + 4 * hh + (reg & 3)
        P1 = {}
        for reg, p in enumerate(list(range(9)) + [512, 516, 520, 1024, 1032, 1536, 1544]): P1.setdefault(p, []).append(arow(0, reg))
        for reg, p in enumerate([256, 256, 258, 260, 260, 260, 262, 264, 264, 768, 772, 776, 1280, 1288, 1792, 1800]): P1.setdefault(p, []).append(arow(1, reg))
        assert P1[256] == [4, 5] and P1[1800] == [31]
        P1[256] = [4]; P1[1800] = [5]
        E = {j: BF + j for j in range(1, 32)}
        V = {p: AF + i for i, p in enumerate(sorted(P1))}
        va, vb = T, T + 1
        S = T + 2
        A = T + 10
        W1, W8, W256 = T + 18, T + 19, T + 20
        p_ = PRM + 4 * batch
        e(f"v_mul_f32 v{va}, {f32(LOG2E)}, v{p_}", f"v_mul_f32 v{vb}, v{p_+1}, v{vDT}", f"v_exp_f32 v{va}, v{va}")
        e(f"v_mul_f32 v{vb}, 0.15915494, v{vb}", f"v_mul_f32 v{p_+2}, s50, v{p_+2}")
        e(f"v_cvt_pk_bf16_f32 v{va}, 0, v{va}", f"v_mul_f32 v{p_+3}, s50, v{p_+3}")
        e(f"v_mul_f32 v{va}, v{va}, v{vDT}", f"v_cvt_pk_f16_f32 v{V[0]}, v{p_+2}, v{p_+3}")
        e(f"v_mul_f32 v{va}, {f32(-LOG2E)}, v{va}")
        seeds = (8, 32, 1, 256)
        for i, p in enumerate(seeds):
            if p != 1: e(f"v_mul_f32 v{A+2*i+1}, {f32(p)}, v{vb}", f"v_mul_f32 v{A+2*i}, {f32(p)}, v{va}")
        for i, p in enumerate(seeds):
            e(f"v_fract_f32 v{A+2*i+1}, v{A+2*i+1 if p != 1 else vb}", f"v_exp_f32 v{A+2*i}, v{A+2*i if p != 1 else va}")
        for i, p in enumerate(seeds):
            e(f"v_cos_f32 v{S+2*i}, v{A+2*i+1}", f"v_sin_f32 v{S+2*i+1}, v{A+2*i+1}")
        for i, p in enumerate(seeds):
            e(f"v_mul_f32 v{S+2*i}, v{S+2*i}, v{A+2*i}", f"v_mul_f32 v{S+2*i+1}, v{S+2*i+1}, v{A+2*i}")
        e(f"v_cvt_pk_f16_f32 v{E[1]}, v{S}, -v{S+1}", f"v_cvt_pk_f16_f32 v{W8}, v{S}, v{S+1}", f"v_cvt_pk_f16_f32 v{E[4]}, v{S+2}, -v{S+3}")
        e(f"v_cvt_pk_f16_f32 v{W1}, v{S+4}, v{S+5}", f"v_cvt_pk_f16_f32 v{W256}, v{S+6}, v{S+7}")
        jobs = [(E[2], E[1], E[1]), (V[8], V[0], W8), (V[1], V[0], W1), (E[3], E[2], E[1])]
        vj = [(V[k], V[k - 1], W1) for k in range(2, 8)]
        far = [(V[p], V[p - 256], W256) for p in sorted(P1) if p >= 256]
        far.sort(key=lambda x: 0)
        f08 = [(V[p], V[p - 256], W256) for p in sorted(P1) if p >= 256 and p % 256 in (0, 8)]
        fo = [(V[p], V[p - 256], W256) for p in sorted(P1) if p >= 256 and p % 256 not in (0, 8)]
        ej = [(E[j], E[j - 4], E[4]) for j in range(5, 32)]
        while ej or vj or f08 or fo:
            for q_ in (ej, vj, ej, f08) if vj else (ej, fo, ej, f08):
                if q_: jobs.append(q_.pop(0))
        for j in jobs: cmul(*j)
        flush()
        B = [f"ds_write_addtid_b32 v{E[j]} offset:{self.soff(j-1)}" for j in range(1, 32)]
        B += [f"ds_read_b128 v[{BF+4*k}:{BF+4*k+3}], v{vRB} offset:{32*k}" for k in range(8)]
        B += [f"ds_write_addtid_b32 v{V[p]} offset:{self.soff(sig)}" for p in sorted(P1) for sig in P1[p]]
        B += [f"ds_read_b128 v[{AF+4*k}:{AF+4*k+3}], v{vRA} offset:{32*k}" for k in range(8)]
        M = []
        for k in range(8):
            c = "0" if (czero and k == 0) else f"v[{KD}:{KD+15}]"
            M.append(f"v_mfma_f32_32x32x16_f16 v[{KD}:{KD+15}], v[{AF+4*k}:{AF+4*k+3}], v[{BF+4*k}:{BF+4*k+3}], {c}")
        return L, B, M

    def mwave(self):
        a = self.a
        self.role = 'M'
        a("L_m:")
        ACC, AB, XB, CSX, NMX = 4, 132, 164, 228, 232
        vAX, vAW = 234, 248
        vt = 239; vHO = 2; vCSO = 3; vN = 238
        sLH, sFH = 48, 49
        def acc(mat, b, ft): return ACC + 4 * (b + 4 * (ft + 4 * mat))
        a(f"v_mov_b32 v0, v{voD}")
        a(f"s_lshr_b32 s{sLH}, s{sW}, 1", f"s_and_b32 s{sFH}, s{sW}, 1")
        a(f"v_and_b32 v{vt}, 15, v1")
        a(f"v_lshrrev_b32 v{vt+2}, 4, v1", f"v_bfe_u32 v{vt+3}, v1, 1, 3")
        a(f"v_xor_b32 v{vt+3}, v{vt+3}, v{vt+2}", f"v_lshlrev_b32 v{vt+3}, 4, v{vt+3}")
        a(f"s_lshl_b32 s{sA}, s{sLH}, 13", f"s_add_u32 s{sA}, s{sA}, {RING}")
        a(f"v_lshl_add_u32 v{vt}, v{vt}, 7, s{sA}")
        for s_ in range(2):
            a(f"v_xad_u32 v{vAX+s_}, v{vt+3}, {64*s_}, v{vt}", f"v_add_u32 v{vAX+2+s_}, 0x10000, v{vAX+s_}")
        a(f"v_bfe_u32 v{vt}, v1, 2, 2", f"v_lshl_add_u32 v{vt}, v{vt+2}, 3, v{vt}", f"v_lshlrev_b32 v{vt}, 8, v{vt}")
        a(f"v_and_b32 v{vt+3}, 3, v1", f"v_lshl_add_u32 v{vt}, v{vt+3}, 3, v{vt}")
        a(f"v_bfe_u32 v{vt+3}, v1, 2, 3", f"v_lshl_add_u32 v{vt}, v{vt+3}, 5, v{vt}")
        a(f"s_lshl_b32 s{sA}, s{sFH}, 7", f"v_xor_b32 v{vt}, s{sA}, v{vt}", f"v_add_u32 v{vt}, {RING}, v{vt}")
        a("s_waitcnt vmcnt(0)")
        for ft in range(4):
            a(f"v_xor_b32 v{vAW+ft}, {32*ft}, v{vt}", f"v_add_u32 v{vAW+4+ft}, 0x10000, v{vAW+ft}")
        a(f"v_lshlrev_b32 v{vCSO}, 3, v1", f"v_lshlrev_b32 v{vHO}, 4, v1")
        self.vm = []
        self.gemm2_setup(vt)
        a(f"s_setprio {self.opt('mp', 2)}")
        a("s_waitcnt lgkmcnt(0)")
        for x in self.ks_table(): a(x)
        a(f"s_lshl1_add_u32 s{sF}, s{sJ}, s{sFH}")
        a(f"s_lshl_b32 s{sB}, s{sF}, 10", f"s_add_u32 s{sB}, s{sB}, {WS_CS}")
        a(f"s_lshl1_add_u32 s{sA}, s{sI}, s{sLH}")
        a(f"s_lshl_b32 s{sD}, s{sA}, 9", f"s_add_u32 s{sD}, s{sD}, {WS_NM}")
        a(f"s_mul_i32 s{sE}, s{sA}, {HS}", f"s_lshl_b32 s{sC}, s{sF}, 13", f"s_add_u32 s{sE}, s{sE}, s{sC}")
        a(f"s_lshl4_add_u32 s{sG}, s{sI}, s{sJ}", f"s_lshl_b32 s{sG}, s{sG}, 7", f"s_add_u32 s{sG}, s{sG}, {WS_FH}")
        FR = [(ft, mat) for ft in range(4) for mat in range(2)]
        def reads(g):
            c, s_ = divmod(g, 2)
            sl = self.uslot(3 * c + 1); win = sl // 4
            xb = XB + 16 * (g & 1)
            xr = [f"ds_read_b128 v[{xb+4*b}:{xb+4*b+3}], v{vAX+2*win+s_} offset:{16384*(sl%4) + 2048*b}" for b in range(4)]
            sl = self.uslot(3 * c + 2 * s_); win = sl // 4
            wr = []
            for k, (ft, mat) in enumerate(FR):
                wr.append([f"ds_read_b64_tr_b16 v[{AB+4*k+2*t}:{AB+4*k+2*t+1}], v{vAW+4*win+ft} offset:{16384*(sl%4) + 1024*t + 8192*mat}" for t in range(2)])
            return xr, wr
        def mfma(g, k, b):
            ft, mat = FR[k]
            d = acc(mat, b, ft); xb = XB + 16 * (g & 1)
            c = "0" if g == 0 else f"v[{d}:{d+3}]"
            return f"v_mfma_f32_16x16x32_bf16 v[{d}:{d+3}], v[{AB+4*k}:{AB+4*k+3}], v[{xb+4*b}:{xb+4*b+3}], {c}"
        corr_loads = [f"buffer_load_dwordx4 v[{CSX}:{CSX+3}], v{vHO}, {srd(S_WS)}, s{sB} offen sc1",
                      f"buffer_load_dwordx2 v[{NMX}:{NMX+1}], v{vCSO}, {srd(S_WS)}, s{sD} offen sc1"]
        a("s_waitcnt lgkmcnt(0)")
        if "k1" in self.opts: self.stampk(7)
        a("s_barrier")
        self.stamp(2)
        q = []; pend = []
        def need(key):
            idx = [i for i, t in enumerate(q) if t[0] == key[0] and t[1] <= key[1]]
            if not idx: return
            n = len(q) - 1 - idx[-1]
            a(f"s_waitcnt lgkmcnt({min(n, 15)})")
            del q[:len(q) - min(n, 15)]
        def drain(maxn):
            n = 0
            while pend and n < maxn:
                r, key = pend.pop(0); a(r); q.append(key); n += 1
        xr, wr = reads(0)
        for r in xr: a(r); q.append((0, 0))
        for k in range(8):
            for r in wr[k]: a(r); q.append((0, k))
        self.vmem(self.nonce_load(vN), "non")
        if self.opt("tlb", 0) == 1: self.tlbtouch(vt)
        DELAY = self.opt("dl", 8); WG_ = self.opt("wg", 2)
        cl = list(corr_loads); extra = []
        for g in range(14):
            xr, wr = reads(g + 1) if g < 13 else ([], [[]] * 8)
            if g == 0: self.cstamp(0)
            if g == 8: self.get_nonce(vN, issued="non")
            blocked = True; held = []
            i = 0
            for k in range(8):
                for b in range(4):
                    if k % WG_ == 0 and b == 0:
                        key = (g, k + WG_ - 1)
                        while any(x[1][0] == g and x[1][1] <= key[1] for x in pend): drain(1)
                        need(key)
                    a(mfma(g, k, b)); i += 1
                    if b == 3:
                        new_r = [(r, (g + 1, k)) for r in wr[k]]
                        if blocked: held += new_r
                        else: pend += new_r
                    if blocked and i == DELAY:
                        pend += [(x, (-1, 0)) for x in extra]; extra = []
                        drain(99)
                        LB = self.opt("lb", 11)
                        if g + 1 <= LB:
                            a("s_waitcnt lgkmcnt(0)"); q.clear()
                            a("s_barrier")
                        elif g == 11 and self.NDA > 3:
                            self.signal(8, vt); q.append((-1, 0))
                        C0 = self.opt("c0", -1)
                        if C0 < 0 and g % 2 == 1: self.cstamp(1 + g // 2)
                        if C0 >= 0 and 0 <= g - C0 < 7: self.cstamp(1 + g - C0)
                        pend += held + [(r, (g + 1, 0)) for r in xr]
                        if g in (LB - 3, LB - 2)[:self.NX]: extra += [r[0] for r in self.G.wdread(g - LB + 3)]
                        blocked = False
                    if not pend and extra: pend.append((extra.pop(0), (-1, 0)))
                    drain(1)
                    if g == self.opt("corr", 11) and cl and i % 4 == 2: self.vmem(cl.pop(0), "corr")
        self.stamp(3)
        self.cstamp(8)
        self.spin(corr_loads, [CSX + 1, CSX + 3, NMX + 1], first_issued_tag="corr", note=1)
        for ft in range(4):
            for mat in range(2):
                d = acc(mat, 0, ft)
                a(f"v_mfma_f32_16x16x1_4b_f32 v[{d}:{d+15}], v{CSX+2*mat}, v{NMX}, v[{d}:{d+15}] cbsz:2 abid:{ft}")
        self.signal(9, vt)
        if self.opt("ep", 2) != 2: a(f"s_setprio {self.opt('ep', 2)}")
        a(f"s_add_u32 s{sC}, s{sE}, 4096")
        for e in range(2):
            for b in range(4):
                o = acc(0, b, 2 * e)
                T_ = [(acc(0, b, ft), acc(1, b, ft)) for ft in (2 * e, 2 * e + 1)]
                for g_, u_ in T_:
                    for i in range(4): a(f"v_max_f32 v{g_+i}, 0, v{g_+i}")
                for g_, u_ in T_:
                    if "epk" in self.opts:
                        for i in (0, 2): a(f"v_pk_mul_f32 v[{u_+i}:{u_+i+1}], v[{g_+i}:{g_+i+1}], v[{u_+i}:{u_+i+1}]")
                    else:
                        for i in range(4): a(f"v_mul_f32 v{u_+i}, v{g_+i}, v{u_+i}")
                for t, (g_, u_) in enumerate(T_):
                    for i in range(2): a(f"v_cvt_pk_bf16_f32 v{o+2*t+i}, v{u_+2*i}, v{u_+2*i+1}")
                SG = self.opt("sg", 99)
                if len(self.vm) > SG: a(f"s_waitcnt vmcnt({SG})"); self.vm = self.vm[-SG:]
                self.vmem(f"buffer_store_dwordx4 v[{o}:{o+3}], v{vHO}, {srd(S_WS)}, s{sC if e else sE} offen offset:{1024*b}" + ("" if "hpl" in self.opts else " sc1"), "hst")
        self.stamp(4)
        self.cstamp(9)
        self.gemm2()

    def mtouch(self, vt):
        mask = self.opt("tm", 0)
        if not mask: return
        a = self.a
        for w, (sr, n) in enumerate(((S_WD, 56), (S_WG, 56), (S_WU, 56), (S_X, 64))):
            if not (mask >> w) & 1: continue
            L = self.lab("Lt")
            a(f"s_cmp_lg_u32 s{sW}, {w}", f"s_cbranch_scc1 {L}")
            a(f"s_mul_i32 s{sA}, s{sT}, {n*128}", f"v_min_u32 v{vt}, {n-1}, v1", f"v_lshlrev_b32 v{vt}, 7, v{vt}")
            a(f"buffer_load_dword v{vt+1+w}, v{vt}, {srd(sr)}, s{sA} offen")
            a(f"{L}:")

    def tlbtouch(self, vt):
        a = self.a
        L = self.lab("Lt")
        a(f"s_cmp_lg_u32 s{sW}, 0", f"s_cbranch_scc1 {L}")
        holes = [229376, 10*HS + 229376, 19*HS + 229376, 28*HS + 229376, 0x9F0000, 0xA00000, 0xDF0000, 0xFF0000]
        a(f"v_mov_b32 v{vt}, {holes[0]}")
        for i, h in enumerate(holes[1:]):
            a(f"s_mov_b32 s{sA}, {h}", f"v_writelane_b32 v{vt}, s{sA}, {i+1}")
        a(f"buffer_load_dword v{vt+6}, v{vt}, {srd(S_WS)}, 0 offen")
        a(f"buffer_load_dword v{vt+7}, off, {srd(S_OUT)}, 0")
        a(f"{L}:")

    FX_, FR_, FO_ = 222, 230, 234
    def final_pre(self):
        a = self.a
        vX, vR2, vt = self.FX_, self.FR_, self.FO_
        a(f"s_lshl_b32 s{sA}, s{sAW}, 4", f"s_lshl_b32 s{sB}, s{sI2}, 6", f"s_add_u32 s{sA}, s{sA}, s{sB}")
        a(f"v_lshrrev_b32 v{vt+1}, 3, v1", f"v_add_u32 v{vt+1}, s{sA}, v{vt+1}")
        a(f"v_mul_u32_u24 v{vt}, 896, v{vt+1}")
        a(f"s_lshl_b32 s{sA}, s{sJ2}, 7", f"s_movk_i32 s{sB}, {8*896}")
        a(f"v_and_b32 v{vR2}, 7, v1", f"v_lshlrev_b32 v{vR2}, 4, v{vR2}", f"v_add3_u32 v{vt}, v{vt}, v{vR2}, s{sA}")
        a(f"v_lshlrev_b32 v{vt+1}, 3, v{vt+1}", f"v_add_u32 v{vt+1}, {WS_R2}, v{vt+1}")
        self.vmem(f"buffer_load_dwordx4 v[{vX}:{vX+3}], v{vt}, {srd(S_X)}, 0 offen", "fx")
        self.vmem(f"buffer_load_dwordx4 v[{vX+4}:{vX+7}], v{vt}, {srd(S_X)}, s{sB} offen", "fx")
        self.r2load = [f"buffer_load_dwordx2 v[{vR2+2*h}:{vR2+2*h+1}], v{vt+1}, {srd(S_WS)}, 0 offen offset:{64*h} sc1" for h in range(2)]

    def final_addr(self, T):
        a = self.a
        vA, vB = T, T + 4
        a(f"v_lshrrev_b32 v{vA+2}, 3, v1", f"s_lshl_b32 s{sC}, s{sAW}, 4", f"v_add_u32 v{vA+3}, s{sC}, v{vA+2}")
        a(f"v_mul_u32_u24 v{vB}, 48, v{vA+3}")
        a(f"v_and_b32 v{vA+3}, 7, v1", f"v_xor_b32 v{vA+3}, v{vA+3}, v{vA+2}")
        a(f"v_lshlrev_b32 v{vA+3}, 4, v{vA+3}", f"v_lshl_add_u32 v{vA}, v{vA+2}, 7, v{vA+3}")
        a(f"s_lshl_b32 s{sC}, s{sAW}, 14", f"s_add_u32 s{sC}, s{sC}, {DBASE}")
        a(f"v_bfe_u32 v{vA+3}, v1, 2, 1", f"v_mul_u32_u24 v{vA+3}, {QB[1]}, v{vA+3}", f"v_add_u32 v{vB}, v{vB}, v{vA+3}")
        a(f"v_bfe_u32 v{vA+3}, v1, 1, 1", f"v_lshl_add_u32 v{vB}, v{vA+3}, 12, v{vB}")
        a(f"v_and_b32 v{vA+3}, 1, v1", f"v_lshl_add_u32 v{vB}, v{vA+3}, 4, v{vB}")
        a(f"v_add_u32 v{vA}, s{sC}, v{vA}")

    def final_x(self, T):
        a = self.a
        vX, vR2 = self.FX_, self.FR_
        E = T + 8
        if "fx" not in self.vm: self.vm.insert(0, "fx")
        self.spin(self.r2load, [vR2 + 1, vR2 + 3], first_issued_tag="fx", note=3)
        for i in range(8): a(f"v_lshlrev_b32 v{E+2*i}, 16, v{vX+i}", f"v_and_b32 v{E+2*i+1}, 0xffff0000, v{vX+i}")

    def final(self, T):
        a = self.a
        vX, vR2, vO = self.FX_, self.FR_, self.FO_
        vA, vB = T, T + 4
        E = T + 8; Y = T + 24; P = T + 32
        self.auxbar(7, T + 6, extra=[f"ds_read_b128 v[{Y+4*h}:{Y+4*h+3}], v{vB} offset:{8*48*h}" for h in range(2)])
        for i in range(8):
            a(f"v_lshlrev_b32 v{vX}, 16, v{Y+i}", f"v_and_b32 v{vX+1}, 0xffff0000, v{Y+i}")
            a(f"v_add_f32 v{E+2*i}, v{E+2*i}, v{vX}", f"v_add_f32 v{E+2*i+1}, v{E+2*i+1}, v{vX+1}")
        a(f"s_movk_i32 s{sB}, {8*896}")
        a("s_barrier")
        self.stamp(8)
        for h in range(2):
            for m in range(4):
                r = P + 16 * h + 4 * m
                a(f"ds_read_b128 v[{r}:{r+3}], v{vA} offset:{4096*m + 1024*h}")
        S = P + 32
        a(f"s_mov_b32 s{sC}, 0x3f80", f"s_mov_b32 s{sD}, 0x3f800000")
        for h in range(2):
            p = P + 16 * h; e = E + 8 * h; t = S + 8 * h
            for m in range(4):
                a(f"s_waitcnt lgkmcnt({7 - 4*h - m})")
                for i in range(4):
                    if m == 0: a(f"v_lshlrev_b32 v{t+2*i}, 16, v{p+i}", f"v_and_b32 v{t+2*i+1}, 0xffff0000, v{p+i}")
                    else: a(f"v_dot2c_f32_bf16 v{t+2*i}, s{sC}, v{p+4*m+i}", f"v_dot2c_f32_bf16 v{t+2*i+1}, s{sD}, v{p+4*m+i}")
            for i in range(0, 8, 2): a(f"v_pk_fma_f32 v[{e+i}:{e+i+1}], v[{t+i}:{t+i+1}], v[{vR2+2*h}:{vR2+2*h+1}], v[{e+i}:{e+i+1}] op_sel_hi:[1,0,1]")
            if self.opt("tol", 0) and h == 0:
                a(f"s_cmp_lt_u32 s2, {32 + self.opt('tolw', 1)}", f"s_cselect_b32 s{sA}, {f32(self.opt('tol', 0) * 1e-4)}, 0", f"v_add_f32 v{e}, s{sA}, v{e}")
            for i in range(4): a(f"v_cvt_pk_bf16_f32 v{p+i}, v{e+2*i}, v{e+2*i+1}")
            a(f"buffer_store_dwordx4 v[{p}:{p+3}], v{vO}, {srd(S_OUT)}, {'s%d' % sB if h else 0} offen")
        self.stamp(9)
        self.write_stamps(1)
        a("s_endpgm")

    def gemm2_setup(self, vt):
        a = self.a
        vAD = 244; vD = [0, 252, 253, 254]
        sH, sDo, sM = 50, 51, 52
        a(f"v_lshrrev_b32 v{vt}, 2, v1", f"v_lshlrev_b32 v{vt}, 7, v{vt}", f"v_and_b32 v{vt+1}, 3, v1", f"v_lshl_add_u32 v{vt}, v{vt+1}, 3, v{vt}")
        a(f"v_bfe_u32 v{vt+1}, v1, 3, 2", f"v_lshl_add_u32 v{vt}, v{vt+1}, 5, v{vt}")
        a(f"v_add_u32 v{vt}, s{sM0}, v{vt}", f"s_add_u32 s{sM}, s{sM0}, {DBASE}")
        for dt in range(4): a(f"v_xor_b32 v{vAD+dt}, {32*dt}, v{vt}")
        a(f"s_mul_i32 s{sDo}, s{sW}, {448*896}", f"s_lshl_b32 s{sA}, s{sJ2}, 7", f"s_add_u32 s{sDo}, s{sDo}, s{sA}")
        a(f"s_mul_i32 s{sH}, s{sI2}, {HS}", f"s_mul_i32 s{sA}, s{sW}, {14*4096}", f"s_add_u32 s{sH}, s{sH}, s{sA}")
        G = self.G = type("G", (), {})()
        G.free = [196, 212]; G.wbuf = {}; G.hbuf = {}; G.lq = []
        def wdread(ks):
            G.wbuf[ks] = buf = G.free.pop(0); n = ks if ks < self.NX else (ks - self.NX) % 7; win = n // 4
            return [(f"ds_read_b64_tr_b16 v[{buf+4*dt+2*t}:{buf+4*dt+2*t+1}], v{vAD+4*win+dt} offset:{16384*(n%4) + 2048*t}", ks) for dt in range(4) for t in range(2)]
        def lds(r): a(r[0]); G.lq.append(r[1])
        def need_w(ks):
            lq = G.lq
            if ks not in lq: return
            k = len(lq) - 1 - max(i for i, x in enumerate(lq) if x == ks)
            a(f"s_waitcnt lgkmcnt({min(k, 15)})")
            del lq[:len(lq) - min(k, 15)]
        def dd(ks):
            out = []
            for k in range(4):
                pre = [f"s_add_u32 m0, s{sM}, {16384*((ks-self.NX)%7)}"] + self.ksoff(ks, 32 * 896, sDo) if k == 0 else []
                out.append((pre, f"buffer_load_dwordx4 v{vD[k]}, {srd(S_WD)}, s{sA} offen offset:{1024*k} lds", f"d{ks}"))
            return out
        def hl(ks):
            G.hbuf[ks] = buf = G.free.pop(0)
            return [(self.ksoff(ks, 4096, sH, sD) if b == 0 else [],
                     f"buffer_load_dwordx4 v[{buf+4*b}:{buf+4*b+3}], v2, {srd(S_WS)}, s{sD} offen offset:{1024*b}" + (" sc0" if "hl0" in self.opts else "" if "hlp" in self.opts else " sc1"), f"h{ks}") for b in range(4)]
        def vm(x):
            for y in x[0]: a(y)
            self.vmem(x[1], x[2])
        G.wdread, G.lds, G.need_w, G.dd, G.hl, G.vm = wdread, lds, need_w, dd, hl, vm

    def gemm2(self):
        a = self.a
        G = self.G
        wdread, lds, need_w, dd, hl, vm = G.wdread, G.lds, G.need_w, G.dd, G.hl, G.vm
        free, wbuf, hbuf, lq = G.free, G.wbuf, G.hbuf, G.lq
        ACC = 68
        vFO = 3; vFL = 255; vt = 252; sM = 52
        self.stamp2(1)
        a(f"s_lshr_b32 s{sB}, s{sI2}, 1", f"s_lshl_b32 s{sB}, s{sB}, 11", f"s_add_u32 s{sA}, s{sB}, {WS_FH}")
        a(f"v_lshrrev_b32 v{vFO}, 2, v1", f"v_min_u32 v{vFO}, 13, v{vFO}", f"v_lshl_add_u32 v{vFO}, v{vFO}, 7, s{sA}")
        for dt in range(4): a(f"v_add_u32 v{244+dt}, {DBASE}, v{244+dt}", f"v_add_u32 v{248+dt}, 0x10000, v{244+dt}")
        for k in range(1, 4): a(f"v_add_u32 v{251+k}, {k*(7168-1024)}, v0")
        free += [132, 148, 164, 180, 228, 4, 20, 36, 52]
        fl = f"buffer_load_dword v{vFL}, v{vFO}, {srd(S_WS)}, 0 offen " + ("nt" if "flnt" in self.opts else "sc1")
        if self.opt("lp", 0): a("s_setprio 0")
        self.await_(0, ACC, "same", sleep=self.opt("asl", 0))
        NDA = self.NDA + self.NX
        for ks in range(self.NX, NDA):
            for r in wdread(ks): lds(r)
        self.wait_vm("hst")
        self.signal(5, ACC)
        self.stamp2(2)
        self.await_(5, ACC, "all", sleep=self.opt("asl", 0)); lq.clear()
        Lw = self.lab("Lg")
        a(f"s_cmp_lg_u32 s{sW}, 0", f"s_cbranch_scc1 {Lw}")
        a(f"v_mov_b32 v{vFL}, s{sTAG}", f"v_lshlrev_b32 v{ACC}, 2, v1", "s_mov_b32 exec_hi, 0")
        a(f"buffer_store_dword v{vFL}, v{ACC}, {srd(S_WS)}, s{sG} offen" + ("" if "fpl" in self.opts else " sc1"))
        a("s_mov_b32 exec_hi, -1", f"{Lw}:")
        if self.opt("wi", 1): self.await_(2, ACC, "all", sleep=self.opt("asl", 0))
        a("s_setprio 0")
        ND = min(self.opt("nd", 14), 7 + NDA)
        nw = NDA
        NM = 14 - self.NV
        NE = min(self.opt("ne", 14), NM)
        ND = min(ND, NE)
        FP = NE - self.opt("fp", 3)
        def ddu(ks):
            if ks == FP:
                L = self.lab("Lg")
                a(f"s_cmp_lg_u32 s{sW}, 0", f"s_cbranch_scc1 {L}", fl, f"{L}:")
            for x in dd(ks): vm(x)
        for ks in range(NDA, ND): ddu(ks)
        while ND < NE:
            for _ in range(min(2, NE - ND)):
                self.wait_vm(f"d{nw}")
                for r in wdread(nw): lds(r)
                nw += 1
            while ND < NE and ND - 7 < nw:
                need_w(ND - 7); ddu(ND); ND += 1
        Lw, Lj = self.lab("Lg"), self.lab("Lg")
        vm0 = list(self.vm)
        a(f"s_cmp_lg_u32 s{sW}, 0", f"s_cbranch_scc1 {Lw}")
        self.stamp2(3)
        if FP < NE: self.vm.insert(self.vm.index(f"d{FP}") if f"d{FP}" in self.vm else len(self.vm), "fl")
        self.spin([fl], [vFL], first_issued_tag=("fl" if FP < NE else None), sleep=self.opt("fsl", 1), note=2)
        self.signal(6, ACC)
        a(f"s_branch {Lj}", f"{Lw}:")
        self.vm = vm0
        self.await_(6, ACC, "zero", sleep=self.opt("asl", 0))
        a(f"{Lj}:")
        self.stamp2(4)
        nh = 0
        while free and nh < self.opt("h0", 6):
            for x in hl(nh): vm(x)
            nh += 1
        nd = ND
        def putp(t):
            l2, d2 = divmod(t, 4); r = ACC + 4 * t
            a(f"v_cvt_pk_bf16_f32 v{r}, v{r}, v{r+1}", f"v_cvt_pk_bf16_f32 v{r+1}, v{r+2}, v{r+3}")
            a(f"ds_write_b64 v{vt+d2}, v[{r}:{r+1}] offset:{16384*l2}")
        for s_ in range(14):
            self.wait_vm(f"h{s_}")
            need_w(s_)
            if s_ in (0, 7): self.stamp2({0: 5, 7: 6}[s_])
            if s_ % 2 == 0: self.cstamp2(s_ // 2)
            if s_ == self.opt("mup", 99): a("s_setprio 2")
            rd = []; vq = []; nd0 = nd; nw0_ = nw
            if nd < NM and nd - 7 < nw and s_ >= nd - self.opt("dj", 99):
                need_w(nd - 7); vq += dd(nd); nd += 1
            while nw < 14 and (nw <= s_ + self.opt("wa", 2) or (nw < 7 and nd < NM and not rd and self.opt("dj", 99) == 99)) and free:
                assert nw < nd0 or nw >= NM
                if nw == NM:
                    L = self.lab("Lv")
                    need_w(-11)
                    a(f"v_cmp_ne_u32 vcc, s{sTAG}, v{vFL}", "s_nop 4", f"s_cbranch_vccz {L}")
                    self.await_(11, free[0], "same")
                    a(f"{L}:")
                self.wait_vm(f"d{nw}")
                rd += wdread(nw); nw += 1
            while nh < 14 and nh < s_ + self.opt("hd", 5) and len(free) > (1 if nw < 14 else 0):
                vq += hl(nh); nh += 1
            if s_ == self.opt("yw", -1):
                self.signal(10, free[0]); lq.append(-1)
            if s_ == self.opt("ys", 6):
                assert nw0_ >= 7
                self.signal(4, free[0]); lq.append(-1)
            if s_ == 12:
                a(f"v_and_b32 v{vt}, 7, v1", f"v_lshrrev_b32 v{vt+1}, 5, v1", f"v_xor_b32 v{vt+1}, v{vt+1}, v{vt}", f"v_lshlrev_b32 v{vt+1}, 4, v{vt+1}")
                a(f"v_and_b32 v{vt}, 15, v1", f"v_lshl_add_u32 v{vt}, v{vt}, 7, s{sM}", f"v_add_u32 v{vt}, v{vt}, v{vt+1}")
                a(f"v_bfe_u32 v{vt+1}, v1, 4, 1", f"v_lshl_add_u32 v{vt}, v{vt+1}, 3, v{vt}")
                for dt in range(1, 4): a(f"v_xor_b32 v{vt+dt}, {32*dt}, v{vt}")
            if self.NV and s_ + 1 + self.opt("wa", 2) == NM:
                a(f"s_lshl_b32 s{sA}, s{sAW}, 2", f"v_mov_b32 v{vFO}, s{sA}")
                rd = rd + [(f"ds_read_b32 v{vFL}, v{vFO} offset:{AUXCNT + 16*11}", -11)]
            wb, hb = wbuf[s_], hbuf[s_]
            i = 0; nvq = len(vq)
            TIDY = self.opt("tidy", 1) and nvq <= 4
            if TIDY:
                fl_ = []
                for x in vq: fl_ += [("s", y) for y in x[0]] + [("v", x)]
                vq = []
                spos = [k for k in range(16) if k % 2 == 1]
            for lb in range(4):
                for dt in range(4):
                    d = ACC + 4 * (4 * lb + dt)
                    c = "0" if s_ == 0 else f"v[{d}:{d+3}]"
                    a(f"v_mfma_f32_16x16x32_bf16 v[{d}:{d+3}], v[{wb+4*dt}:{wb+4*dt+3}], v[{hb+4*lb}:{hb+4*lb+3}], {c}")
                    if rd and (not TIDY or i % 2 == 0 or len(rd) > (16 - i) // 2):
                        r_ = rd.pop(0)
                        if r_: lds(r_)
                    PD = self.opt("pd", 4)
                    if s_ == 13 and i >= PD: putp(i - PD)
                    if TIDY and i % 2 == 1 and fl_:
                        k_, x = fl_.pop(0)
                        if k_ == "s": a(x)
                        else: self.vmem(x[1], x[2])
                    if vq and i % (4 if nvq <= 4 else 2) == 1: vm(vq.pop(0))
                    i += 1
            assert not rd
            if TIDY: assert not fl_
            for x in vq: vm(x)
            free += [wb, hb]
        self.stamp2(7)
        self.cstamp2(7)
        for t in range(16 - self.opt('pd', 4), 16): putp(t)
        a("s_waitcnt lgkmcnt(0)")
        self.cstamp2(8)
        a("s_barrier")
        self.cstamp2(9)
        self.stamp(8)
        self.write_stamps(0)
        a("s_endpgm")

    def dma_ops(self, u):
        base = slot_addr(self.uslot(u)) if u < 26 else 16384 * (u - 26)
        tag = f"u{u}"
        if u < 21 and u % 3 == 1: vo, sr, pre = voX, S_X, [f"s_add_u32 s{sA}, s{sXB}, {128 * (u // 3)}"]
        elif u < 21:              vo, sr, pre = voW, S_WG, [f"s_add_u32 s{sA}, s{sWB}, {(64 * (u // 3) + 16 * (u % 3)) * 3584}"]
        else:                     vo, sr, pre = voD, S_WD, self.ksoff(u - 21 + self.NX if u < 26 else u - 26, 32 * 896, sDB)
        m0cmd = f"s_add_u32 m0, s{sM0}, {base}"
        return [(pre, f"buffer_load_dwordx4 v{vo+k}, {srd(sr)}, s{sA} offen offset:{1024*k} lds", tag, m0cmd) for k in range(4)]
    @staticmethod
    def ksoff(step, mul, sbase, dst=sA):
        return [f"s_mul_i32 s{dst}, s{sKS + step // 2}, {2*mul}", f"s_add_u32 s{dst}, s{dst}, s{sbase}"] + ([f"s_add_u32 s{dst}, s{dst}, {mul}"] if step & 1 else [])
    def emit_aux(self, x):
        a = self.a
        if isinstance(x, tuple):
            if self.m0 != x[3]: a(x[3]); self.m0 = x[3]
            if self.sa_tag != x[2]:
                for y in x[0]: a(y)
                self.sa_tag = x[2]
            self.vmem(x[1], x[2])
        elif x == "@prm": self.wait_vm("prm")
        else:
            if x.startswith("ds_write_addtid") and self.m0 != "sb":
                a(f"s_mov_b32 m0, s{sSB}"); self.m0 = "sb"
            a(x)

    def signal(self, k, vt):
        a = self.a
        a(f"s_lshl_b32 s{sA}, s{sAW}, 2", f"v_mov_b32 v{vt}, s{sA}", f"v_mov_b32 v{vt+1}, s{sTAG}")
        a(f"ds_write_b32 v{vt}, v{vt+1} offset:{AUXCNT + 16*k}")
    def await_(self, k, vt, who, extra=(), sleep=0):
        a = self.a
        L0, L1 = self.lab("Lab"), self.lab("Lae")
        if who == "all": a(f"v_and_b32 v{vt}, 3, v1", f"v_lshlrev_b32 v{vt}, 2, v{vt}")
        elif who == "zero": a(f"v_mov_b32 v{vt}, 0")
        else:
            a(f"s_lshl_b32 s{sA}, s{sAW}, 2")
            if who == "pair": a(f"s_xor_b32 s{sA}, s{sA}, 4")
            a(f"v_mov_b32 v{vt}, s{sA}")
        a(f"s_mov_b32 s{sSPIN}, {SPIN_MAX*10}")
        a(f"{L0}:", f"ds_read_b32 v{vt+1}, v{vt} offset:{AUXCNT + 16*k}")
        for x in extra: a(x)
        a("s_waitcnt lgkmcnt(0)", f"v_cmp_ne_u32 vcc, s{sTAG}, v{vt+1}", f"s_sub_u32 s{sSPIN}, s{sSPIN}, 1", "s_nop 3", f"s_cbranch_vccz {L1}")
        if sleep: a(f"s_sleep {sleep}")
        a(f"s_cmp_lg_u32 s{sSPIN}, 0", f"s_cbranch_scc1 {L0}")
        a(f"{L1}:")
    def auxbar(self, k, vt, pair=False, extra=()):
        self.signal(k, vt)
        self.await_(k, vt, "pair" if pair else "all", extra)

    def aux(self):
        a = self.a
        self.role = 'A'; self.m0 = None; self.sa_tag = None
        self.sCH_, self.sPT = sCH_, sPT = 48, 47
        self.cACC, self.cAF, self.cBF, self.vQA, self.vUA = 12, 44, 108, 172, 180
        vN, vt, UR = 181, 182, 192
        GATE = self.opt("gate", 8)
        def gate():
            if len(self.vm) > GATE:
                a(f"s_waitcnt vmcnt({GATE})"); self.vm = self.vm[-GATE:]
        def units(us, g=True):
            for u in us:
                self.sa_tag = None
                if g: gate()
                for x in self.dma_ops(u): self.emit_aux(x)
        N0 = self.opt("n0", 3)
        TA = self.opt("ta", 99)
        def touch():
            mask = self.opt("tk", 3)
            a(f"s_and_b32 s{sB}, s{sAW}, 1", f"s_lshl1_add_u32 s{sB}, s{sT}, s{sB}")
            if mask & 1:
                a(f"s_mul_i32 s{sA}, s{sB}, {28*128}", f"v_min_u32 v236, 27, v1", f"v_lshlrev_b32 v236, 7, v236")
                self.vmem(f"buffer_load_dword v237, v236, {srd(S_WG)}, s{sA} offen", "tch")
            if mask & 2:
                a(f"s_lshl2_add_u32 s{sB}, s{sT}, s{sAW}", f"s_mul_i32 s{sA}, s{sB}, {14*128}", f"v_min_u32 v236, 13, v1", f"v_lshlrev_b32 v236, 7, v236")
                self.vmem(f"buffer_load_dword v238, v236, {srd(S_WD)}, s{sA} offen", "tch")
        E0 = self.opt("e0", 0)
        setup = self.kgen_setup()
        def params():
            for b in range(2):
                for k in range(4):
                    self.vmem(f"global_load_ushort v{self.kregs[0]+4*b+k}, v19, s[{S_P+2*k}:{S_P+2*k+1}] offset:{128*b}", "prm")
        if E0: params()
        for u in range(N0):
            if u == TA: touch()
            units([u], False)
        if TA == N0: touch()
        PRM = self.kregs[0]; kv = self.kvt
        a(f"s_load_dword s{sLD}, s[{S_P+8}:{S_P+9}], s{sF}", f"s_load_dword s{sDS}, s[{S_P+10}:{S_P+11}], s{sF}")
        for k in range(1, 4): a(f"v_add_u32 v{voD+k}, {k*(7168-1024)}, v{voD}")
        a(f"s_mul_i32 s{sA}, s{sAW}, {448*896}", f"s_lshl_b32 s{sB}, s{sJ2}, 7", f"s_add_u32 s{sDB}, s{sA}, s{sB}")
        a(f"s_lshr_b32 s{sCH_}, s{sAW}, 1", f"s_and_b32 s{sPT}, s{sAW}, 1")
        for x in setup: a(x)
        V0, B0, M0 = self.kgen_body(True, 0); V1, B1, M1 = self.kgen_body(False, 1)
        work = ["@prm"] + self.kgen_scale() + V0 + V1; nV1 = len(V1)
        const_row = [f"v_lshlrev_b32 v{kv}, 2, v1", f"v_mov_b32 v{kv+1}, 0x3c00", f"ds_write_b32 v{kv}, v{kv+1} offset:31984"]
        if E0:
            for x in self.ks_table(): a(x)
            for x in const_row: a(x)
            for x in work[:len(work) - nV1]: self.emit_aux(x)
            work = V1
            self.stamp3(6)
            nb = self.opt("eb0", len(B0))
            for x in B0[:nb]: self.emit_aux(x)
            del B0[:nb]
        if "eb" in self.opts:
            sv = self.a; self.a = Asm(); self.conv_addr(236, 39, 40); work += [c.text for c in self.a.ins]; self.a = sv
        SL = self.opt("sl", 20 if E0 else 32); KS = self.opt("ks", 2); PI = self.opt("pi", 0)
        fx = f"buffer_load_dword v{vt+1}, v{vt}, {srd(S_WS)}, 0 offen sc1"
        LB = self.opt("lb", 11)
        SCHED = {0: [[3,4],[5,6,7],[8],[9,10],[26],[11,12],[13,14],[27],[15,16],[17,18],[19,20],[21]],
                 1: [[3,4],[5,6,7],[8,26],[9,10],[11],[12,13],[14,27],[15,16],[17],[18,19],[20],[21]],
                 2: [[3,4],[5,6],[7,8],[9,10],[11,26],[12,13],[14,27],[15,16],[17],[18,19],[20],[21,22]],
                 3: [[3,4],[5,6],[7,8],[9,10],[26],[11,12],[13,14],[27],[15,16],[17,18],[19,20],[21]],
                 6: [[3,4],[5,6],[7,8],[9,10],[26],[11,12],[13,14],[27],[15,16],[17,18],[19,20],[21,22]],
                }[self.opt("sch", 3)]
        IG = self.opt("ig", 0)
        done = set(range(N0))
        regq = [(u, o) for u in range(N0, 22) for o in self.dma_ops(u)]
        xq = (self.dma_ops(26) + self.dma_ops(27))[:4 * self.NX]
        def wait_unit(u):
            assert not any(x[0] == u for x in regq) and not any(o[2] == f"u{u}" for o in xq) or not self.opt("bud", 7), (u, "not issued")
            self.wait_vm(f"u{u}")
        for n in range(LB + 1):
            if n == LB and not self.opt("fl", 1): self.vmem(fx, "fxf")
            self.sa_tag = None
            nsl = 0 if n < KS else SL
            sl = work[:nsl]; del work[:nsl]
            if "nokg" in self.opts: sl = []
            BUD = self.opt("bud", 7)
            if BUD:
                lim = 8 + (3 * ((n - 1) // 2) + ((n - 1) % 2) if n else 0)
                bud = 8 if n == 0 else (self.opt("bud1", 8) if n <= 2 else BUD)
                ops = []
                XT = []
                if n in (self.opt("xa", 4), self.opt("xb", 6)): XT = xq[:4]; del xq[:4]; bud -= len(XT)
                while len(ops) < bud:
                    if regq and regq[0][0] < lim: ops.append(regq.pop(0)[1])
                    elif xq and n >= self.opt("x0", 99): ops.append(xq.pop(0))
                    else: break
                ops += XT
                print("interval", n, [o[2] for o in ops], file=sys.stderr) if "v" in self.opts else None
                if n == LB: assert not regq and not xq
            else:
                us = [u for u in SCHED[n] if u not in done]; done.update(us)
                ops = []
                for u in us: ops += self.dma_ops(u)
            gap = max(1, len(sl) // (len(ops) + 1)) if ops else 0
            if "noil" in self.opts: gap = 0
            for i, x in enumerate(sl):
                while ops and (gap == 0 or i % gap == 0):
                    self.emit_aux(ops.pop(0))
                    if gap: break
                self.emit_aux(x)
            for o in ops: self.emit_aux(o)
            if n == 0 and TA == 5: touch()
            if n == PI and not E0:
                params()
                for x in self.ks_table(): a(x)
            if E0 and n == self.opt("em", 1):
                for x in B0: self.emit_aux(x)
                B0.clear()
                a("s_waitcnt lgkmcnt(0)", "s_setprio 3")
                for x in M0: a(x)
                M0.clear()
                a("s_setprio 0")
            if n == 0: self.stamp(1)
            if n == self.opt("xi", 4): self.final_pre()
            if n == self.opt("fw", 8):
                L = self.lab("Lfw")
                a(f"s_cmp_lg_u32 s{sAW}, 0", f"s_cbranch_scc1 {L}")
                a(f"s_lshl4_add_u32 s{sB}, s{sI}, s{sJ}", f"s_lshl_b32 s{sB}, s{sB}, 7", f"s_add_u32 s{sB}, s{sB}, {WS_FH}")
                a(f"v_mov_b32 v253, 0", f"v_lshlrev_b32 v252, 2, v1", "s_mov_b32 exec_hi, 0", f"buffer_store_dword v253, v252, {srd(S_WS)}, s{sB} offen" + ("" if "fpl" in self.opts else " sc1"), "s_mov_b32 exec_hi, -1")
                a(f"{L}:")
            if n == 5: self.vmem(self.nonce_load(vN), "non")
            if n == 1:
                a(f"s_lshl_b32 s{sB}, s{sAW}, 10", f"s_add_u32 s{sB}, s{sB}, {WS_FX}", f"v_lshrrev_b32 v{vt}, 3, v1", f"v_lshl_add_u32 v{vt}, v{vt}, 7, s{sB}")
                a(f"v_lshrrev_b32 v{vt+2}, 4, v1", f"v_mul_u32_u24 v{vt+2}, {448*128}, v{vt+2}", f"v_bfe_u32 v{vt+3}, v1, 1, 3", f"v_lshl_add_u32 v{vt+2}, v{vt+3}, 6, v{vt+2}")
                a(f"v_and_b32 v{vt+3}, 1, v1", f"v_lshl_add_u32 v{vt+2}, v{vt+3}, 4, v{vt+2}")
                a(f"v_mul_u32_u24 v{vt+3}, {UB[1]-UB[0]}, v{vt+3}", f"v_lshrrev_b32 v{vt+4}, 1, v1", f"v_lshl_add_u32 v{vt+3}, v{vt+4}, 4, v{vt+3}")
                a(f"s_lshl_b32 s{sB}, s{sAW}, 10", f"s_add_u32 s{sB}, s{sB}, {UB[0] + 512}", f"v_add_u32 v{vt+3}, s{sB}, v{vt+3}")
                a(f"s_lshl1_add_u32 s{sE}, s{sT}, s{sCH_}")
                a(f"s_lshr_b32 s{sC}, s{sT}, 1", f"s_lshl_b32 s{sC}, s{sC}, 9", f"s_and_b32 s{sB}, s{sT}, 1", f"s_lshl_b32 s{sB}, s{sB}, 5", f"s_add_u32 s{sC}, s{sC}, s{sB}")
                a(f"s_mul_i32 s{sB}, s{sAW}, {8*448*128}", f"s_add_u32 s{sC}, s{sC}, s{sB}", f"s_add_u32 s{sC}, s{sC}, {WS_XNT}", f"s_add_u32 s{sD}, s{sC}, {4*448*128}")
            if n == 10: self.get_nonce(vN, issued="non")
            if n == LB - 2: wait_unit(26)
            if n == LB - 1: wait_unit(27)
            wait_unit(3 * (n // 2) + 1 + (n % 2) if n < LB else 20)
            a("s_barrier")
            if n == 0: self.stamp(2)
        self.stamp(3)
        print("K-gen instrs left after the last barrier:", len(work), file=sys.stderr)
        NDA = self.NDA
        def ublock():
            self.spin([fx], [vt + 1], first_issued_tag="fxf", note=1)
            self.stamp(4)
            for k in range(2):
                self.vmem(f"buffer_load_dwordx4 v[{UR+4*k}:{UR+4*k+3}], v{vt+2}, {srd(S_WS)}, s{sD if k else sC} offen sc1", "uu")
            for x in self.r2load: self.vmem(x, "fx")
        FL = self.opt("fl", 1)
        if not FL: ublock()
        if FL == 1: self.vmem(fx, "fxf")
        if FL: units([u for u in range(22, 21 + min(NDA, 3)) if u not in done]); done.update((22, 23))
        if FL == 2: self.vmem(fx, "fxf")
        for x in work: self.emit_aux(x)
        if "eb" not in self.opts: self.conv_addr(236, 39, 40)
        if FL == 3:
            self.vmem(fx, "fxf")
            a(f"v_lshlrev_b32 v{kv}, 2, v1", f"v_mov_b32 v{kv+1}, 0x3c00", f"ds_write_b32 v{kv}, v{kv+1} offset:31984")
            for _ in range(8): self.emit_aux(B0.pop(0))
        self.VG = [200, 204, 208, 212, 216, 236, 240, 244, 188, 252]
        def vdload(i):
            gate()
            for x in self.ksoff(14 - self.NV + i, 32 * 896, sDB): a(x)
            for k in range(4):
                r = self.VG[4 * i + k]
                self.vmem(f"buffer_load_dwordx4 v[{r}:{r+3}], v{voD+k}, {srd(S_WD)}, s{sA} offen offset:{1024*k}", "vd")
        VP = self.opt("vp", 0)
        if VP == 0:
            for i in range(self.NV): vdload(i)
        if FL: ublock()
        if VP == 1:
            for i in range(self.NV): vdload(i)
        units([u for u in range(22, 21 + min(NDA, 3)) if u not in done])
        if NDA > 3:
            self.await_(8, kv, "all", sleep=1)
            units(range(24, 21 + NDA))
        if "auxidle" in self.opts:
            self.wait_vm_all(); self.signal(0, kv); a("s_barrier"); self.write_stamps(1); a("s_endpgm"); return
        self.stamp3(1)
        a(f"s_setprio {self.opt('ap2', 1)}")
        for x in const_row: a(x)
        for x in B0: self.emit_aux(x)
        if E0:
            for x in B1[:39]: self.emit_aux(x)
            del B1[:39]
        self.wait_vm(f"u{20 + NDA}")
        self.signal(0, kv)
        self.stamp3(2)
        a(f"v_and_b32 v{kv}, 3, v1", f"v_lshlrev_b32 v{kv}, 2, v{kv}")
        B1.insert(len(B1) - 8, f"ds_read_b32 v{kv+2}, v{kv} offset:{AUXCNT + 16*9}")
        for i, x in enumerate(B1):
            self.emit_aux(x)
            if i == 14 and M0: a("s_waitcnt lgkmcnt(15)")
            if i >= 14 and i % 4 == 2 and M0: a(M0.pop(0))
        assert not M0
        for k, x in enumerate(M1):
            a(f"s_waitcnt lgkmcnt({7-k})"); a(x)
        self.stamp3(3)
        L = self.lab("Lv")
        a(f"v_cmp_ne_u32 vcc, s{sTAG}, v{kv+2}", "s_nop 4", f"s_cbranch_vccz {L}")
        self.await_(9, kv + 1, "all")
        a(f"{L}:")
        self.image(UR, vt)
        a(f"s_setprio {self.opt('ap3', 1)}")
        self.conv()

    def image(self, UR, vt):
        a = self.a
        KD, BF, AF, vA = self.KD, self.kBF, self.kAF, self.kvt
        sCH_, sPT = self.sCH_, self.sPT
        def by_part(f):
            L1, L2 = self.lab("Lp"), self.lab("Lp")
            a(f"s_cmp_eq_u32 s{sPT}, 0", f"s_cbranch_scc0 {L1}")
            f(0); a(f"s_branch {L2}", f"{L1}:"); f(1); a(f"{L2}:")
        keep = {0: range(0, 12), 1: range(12, 16)}
        a(f"s_add_u32 s{sC}, s{sM0}, {slot_addr(2) if 'eb' in self.opts else XCH}", f"v_lshl_add_u32 v{vA}, v1, 4, s{sC}")
        a(f"v_xor_b32 v10, 0x1000, v{vA}")
        O = AF
        blocks = [[KD + i for i in range(9)], [KD + 9] * 3 + [KD + 10] * 3 + [KD + 11] * 3]
        for k, r0 in enumerate((KD + 12, KD + 14)):
            blocks.append([r0] * 4 + [BF + k] + [r0 + 1] * 4)
        a(f"s_mul_i32 s{sD}, s{sCH_}, {QB[1]}")
        self.wait_vm("uu")
        def f(pt):
            K = list(keep[pt])
            for r in list(keep[1 - pt])[::4]:
                for q in (r, r + 2): a(f"v_pk_mul_f32 v[{KD+q}:{KD+q+1}], v[{KD+q}:{KD+q+1}], v[18:19] op_sel_hi:[1,0]")
                a(f"ds_write_b128 v{vA}, v[{KD+r}:{KD+r+3}] offset:{256*r}")
            self.auxbar(1, vA + 1, extra=[f"ds_read_b128 v[{BF+16+r}:{BF+16+r+3}], v10 offset:{256*r}" for r in K[::4]])
            self.stamp3(4)
            for k in range(2): a(f"ds_write_b128 v{vt+3}, v[{UR+4*k}:{UR+4*k+3}] offset:{512*k}")
            a(f"v_lshl_add_u32 v{vA}, v1, 5, s{sD}")
            if pt == 0:
                a(f"v_cmp_eq_u32 vcc, 0, v1", f"v_mov_b32 v{vA+2}, s{sDS}", f"v_cndmask_b32 v{vA+2}, 0, v{vA+2}, vcc", f"v_add_f32 v{BF+16}, v{BF+16}, v{vA+2}")
            else:
                a(f"v_and_b32 v{vA+1}, 1, v1", f"v_cmp_eq_u32 vcc, 1, v{vA+1}")
            for r in K[::2]: a(f"v_pk_fma_f32 v[{KD+r}:{KD+r+1}], v[{KD+r}:{KD+r+1}], v[18:19], v[{BF+16+r}:{BF+16+r+1}] op_sel_hi:[1,0,1]")
            if pt:
                for k, r0 in enumerate((KD + 12, KD + 14)): a(f"v_cndmask_b32 v{BF+k}, v{r0}, v{r0+1}, vcc")
            for bi in (2 * pt, 2 * pt + 1):
                v = blocks[bi]
                for e_ in range(8): a(f"v_cvt_pk_bf16_f32 v{O+8*bi+e_}, v{v[e_+1]}, v{v[e_]}")
                for h in range(2): a(f"ds_write_b128 v{vA}, v[{O+8*bi+4*h}:{O+8*bi+4*h+3}] offset:{64 + 2048*bi + 16*h}")
            if pt == 0:
                a(f"v_readfirstlane_b32 s{sA}, v{O}")
                a(f"s_lshr_b32 s{sA}, s{sA}, 16", f"v_mov_b32 v{vA+1}, s{sA}", f"v_and_b32 v{vA+2}, 15, v1", f"v_cmp_eq_u32 vcc, 15, v{vA+2}")
                a(f"v_cndmask_b32 v{vA+1}, 0, v{vA+1}, vcc", f"v_lshl_add_u32 v{vA+2}, v{vA+2}, 2, s{sD}")
                a(f"ds_write_b32 v{vA+2}, v{vA+1}")
            else:
                a(f"s_mul_i32 s{sD}, s{sCH_}, {UB[1]-UB[0]}", f"v_lshl_add_u32 v{vA+2}, v1, 3, s{sD}")
                a(f"v_mov_b32 v{O}, 0", f"v_mov_b32 v{O+1}, 0")
                a(f"ds_write_b64 v{vA+2}, v[{O}:{O+1}] offset:{UB[0]}")
        by_part(f)
        self.stamp3(5)
        self.auxbar(2, vA + 1, extra=self.areads(0)[:2] + self.breads(0))
        self.stamp3(7)
        for r in self.areads(0)[2:]: a(r)

    def conv_addr(self, vt, sC=sC, sD=sD):
        a = self.a
        sCH_, sPT, vQA, vUA = self.sCH_, self.sPT, self.vQA, self.vUA
        a(f"v_and_b32 v{vt+1}, 15, v1", f"v_lshrrev_b32 v{vt+2}, 4, v1")
        a(f"v_lshlrev_b32 v{vt+3}, 3, v{vt+2}", f"v_sub_u32 v{vt+3}, v{vt+1}, v{vt+3}")
        a(f"s_mul_i32 s{sC}, s{sCH_}, {QB[1]}", f"s_lshl_b32 s{sD}, s{sPT}, 9", f"s_add_u32 s{sC}, s{sC}, s{sD}", f"s_add_u32 s{sC}, s{sC}, 100")
        a(f"v_lshl_add_u32 v{vQA}, v{vt+3}, 2, s{sC}")
        for q in range(1, 8): a(f"v_add_u32 v{vQA+q}, {1024*q}, v{vQA}")
        a(f"s_mul_i32 s{sC}, s{sCH_}, {UB[1]-UB[0]}")
        a(f"s_lshl_b32 s{sD}, s{sPT}, 8", f"s_sub_u32 s{sC}, s{sC}, s{sD}", f"s_add_u32 s{sC}, s{sC}, {UB[0] + 480 - 192}")
        a(f"v_lshlrev_b32 v{vt+3}, 5, v{vt+1}", f"v_lshl_add_u32 v{vt+3}, v{vt+2}, 4, v{vt+3}", f"v_add_u32 v{vUA}, s{sC}, v{vt+3}")
    def areads(self, rr):
        buf = self.cAF + 32 * (rr & 1); R = []
        for q in range(8):
            R.append(f"ds_read2_b32 v[{buf+4*q}:{buf+4*q+1}], v{self.vQA+q} offset0:{32*rr+6} offset1:{32*rr+4}")
            R.append(f"ds_read2_b32 v[{buf+4*q+2}:{buf+4*q+3}], v{self.vQA+q} offset0:{32*rr+2} offset1:{32*rr}")
        return R
    def breads(self, rr):
        buf = self.cBF + 32 * (rr & 1)
        return [f"ds_read_b128 v[{buf+4*c}:{buf+4*c+3}], v{self.vUA} offset:{512*c + 192 - 64*rr}" for c in range(8)]

    def conv(self):
        a = self.a
        vt = 5
        ACC, AF, BF = self.cACC, self.cAF, self.cBF
        sCH_, sPT = self.sCH_, self.sPT
        self.stamp(5)
        for rr in range(4):
            if rr: a("s_waitcnt lgkmcnt(0)")
            pend = (self.breads(rr + 1) + self.areads(rr + 1)) if rr < 3 else []
            ab, bb = AF + 32 * (rr & 1), BF + 32 * (rr & 1)
            for q in range(8):
                if rr == 0 and q == 1: a("s_waitcnt lgkmcnt(8)")
                for c in range(q, 8):
                    d = ACC + 4 * c
                    cc = "0" if (rr == 0 and q == 0) else f"v[{d}:{d+3}]"
                    a(f"v_mfma_f32_16x16x32_bf16 v[{d}:{d+3}], v[{ab+4*q}:{ab+4*q+3}], v[{bb+4*(c-q)}:{bb+4*(c-q)+3}], {cc}")
                    if pend: a(pend.pop(0))
        self.stamp(6)
        KP = AF; RX = AF + 16
        if "eb" in self.opts: self.await_(9, vt, "all")
        a(f"s_lshl_b32 s{sA}, s{sAW}, 12", f"s_add_u32 s{sA}, s{sA}, {XCH}", f"v_lshl_add_u32 v{vt}, v1, 4, s{sA}")
        a("s_nop 3")
        L1, L2 = self.lab("Lx"), self.lab("Lx")
        a(f"s_cmp_eq_u32 s{sPT}, 0", f"s_cbranch_scc0 {L1}")
        for pt in range(2):
            if pt: a(f"{L1}:")
            for t in range(4): a(f"ds_write_b128 v{vt}, v[{ACC+16*(1-pt)+4*t}:{ACC+16*(1-pt)+4*t+3}] offset:{1024*t}")
            for i in range(0, 16, 2): a(f"v_mov_b64 v[{KP+i}:{KP+i+1}], v[{ACC+16*pt+i}:{ACC+16*pt+i+1}]")
            if not pt: a(f"s_branch {L2}")
        a(f"{L2}:")
        a(f"v_bfe_u32 v{vt+3}, v1, 2, 2", f"v_mul_u32_u24 v{vt+3}, {448*256}, v{vt+3}", f"v_and_b32 v{vt+4}, 3, v1", f"v_lshl_add_u32 v{vt+3}, v{vt+4}, 4, v{vt+3}")
        a(f"v_and_b32 v{vt+4}, 48, v1", f"v_lshl_add_u32 v{vt+3}, v{vt+4}, 2, v{vt+3}")
        if "ylin" in self.opts: a(f"v_lshlrev_b32 v{vt+3}, 4, v1")
        a(f"s_mul_i32 s{sC}, s{sPT}, {16*448*256}", f"s_lshl_b32 s{sB}, s{sE}, 8", f"s_add_u32 s{sC}, s{sC}, s{sB}", f"s_add_u32 s{sC}, s{sC}, {WS_YT}")
        a(f"v_xor_b32 v{vt}, 0x1000, v{vt}")
        self.auxbar(3, vt + 1, pair=True, extra=[f"ds_read_b128 v[{RX+4*t}:{RX+4*t+3}], v{vt} offset:{1024*t}" for t in range(4)])
        if self.opt("yw", -1) >= 0:
            a("s_setprio 0"); self.await_(10, vt + 1, "same", sleep=2)
        for t in range(4):
            k = KP + 4 * t
            for i in range(4): a(f"v_add_f32 v{k+i}, v{k+i}, v{RX+4*t+i}")
            a(f"v_cvt_pk_bf16_f32 v{k}, v{k}, v{k+1}", f"v_cvt_pk_bf16_f32 v{k+2}, v{k+2}, v{k+3}", f"v_mov_b32 v{k+1}, s{sTAG}", f"v_mov_b32 v{k+3}, s{sTAG}")
            if "noyst" not in self.opts: self.vmem(f"buffer_store_dwordx4 v[{k}:{k+3}], v{vt+3}, {srd(S_WS)}, s{sC} offen" + ("" if "yplain" in self.opts else " sc1"), "yst")
            if t < 3: a(f"s_add_u32 s{sC}, s{sC}, {4*448*256}")
        a("s_setprio 0")
        self.stamp(7)
        if self.stage < 4:
            self.write_stamps(1)
            a("s_endpgm"); return
        YR = 12
        self.final_addr(76)
        a(f"s_lshl_b32 s{sB}, s{sJ2}, 6", f"s_lshl_b32 s{sC}, s{sAW}, 4", f"s_add_u32 s{sB}, s{sB}, s{sC}")
        a(f"s_mul_i32 s{sA}, s{sI2}, 448", f"s_add_u32 s{sA}, s{sA}, s{sB}", f"s_lshl_b32 s{sA}, s{sA}, 8", f"s_add_u32 s{sA}, s{sA}, {WS_YT}")
        a(f"v_lshlrev_b32 v{vt}, 4, v1")
        a(f"v_lshrrev_b32 v{vt+1}, 4, v1", f"v_mul_u32_u24 v{vt+1}, 144, v{vt+1}", f"v_and_b32 v{vt+2}, 3, v1", f"v_lshl_add_u32 v{vt+1}, v{vt+2}, 5, v{vt+1}")
        a(f"v_bfe_u32 v{vt+3}, v1, 2, 2", f"v_lshl_add_u32 v{vt+1}, v{vt+3}, 3, v{vt+1}")
        a(f"s_mul_i32 s{sC}, s{sCH_}, {QB[1]}", f"s_lshl_b32 s{sB}, s{sPT}, 12", f"s_add_u32 s{sC}, s{sC}, s{sB}", f"v_add_u32 v{vt+1}, s{sC}, v{vt+1}")
        a(f"v_mul_u32_u24 v{vt+3}, 144, v{vt+3}", f"v_lshl_add_u32 v{vt+3}, v{vt+2}, 3, v{vt+3}", f"v_and_b32 v{vt+2}, 48, v1", f"v_lshl_add_u32 v{vt+3}, v{vt+2}, 1, v{vt+3}")
        a(f"v_add_u32 v{vt+3}, s{sC}, v{vt+3}", f"v_mul_u32_u24 v{vt+4}, 48, v1", f"v_add_u32 v{vt+4}, s{sC}, v{vt+4}")
        a(f"v_add_u32 v{vt+2}, 1152, v{vt+1}")
        a(f"s_mov_b32 s{sD}, s{sA}")
        self.await_(4, YR, "same", sleep=self.opt("ysl", 2))
        loads = [f"buffer_load_dwordx4 v[{YR+4*k}:{YR+4*k+3}], v{vt}, {srd(S_WS)}, s{sD} offen offset:{1024*k} sc1" for k in range(4)]
        for x in loads: self.vmem(x, "yl")
        if self.NV:
            T2 = YR + 16
            self.wait_vm("vd")
            VB = 16384 * ((14 - self.NV - self.NX) % 7)
            a(f"s_add_u32 s{sA}, s{sM0}, {DBASE + VB}", f"v_add_u32 v{T2}, s{sA}, v{vt}")
            for i in range(self.NV):
                for k in range(4):
                    r = self.VG[4 * i + k]
                    a(f"ds_write_b128 v{T2}, v[{r}:{r+3}] offset:{16384*i + 1024*k}")
            self.signal(11, T2 + 2)
        self.final_x(76)
        if "noy" not in self.opts: self.spin(loads, [YR + 2 * i + 1 for i in range(8)], first_issued_tag="yl", sleep=self.opt("ysp", 4), note=2)
        for k in range(4): a(f"ds_write2_b32 v{vt+1}, v{YR+4*k}, v{YR+4*k+2} offset0:{144*k} offset1:{144*k+1}" if 144 * k + 1 < 256 else
                             f"ds_write2_b32 v{vt+2}, v{YR+4*k}, v{YR+4*k+2} offset0:{144*(k-2)} offset1:{144*(k-2)+1}")
        for t in range(4): a(f"ds_read_b64_tr_b16 v[{YR+16+2*t}:{YR+17+2*t}], v{vt+3} offset:{4*144*t}")
        a("s_waitcnt lgkmcnt(0)")
        for h in range(2): a(f"ds_write_b128 v{vt+4}, v[{YR+16+4*h}:{YR+19+4*h}] offset:{16*h}")
        self.final(76)

    def build(self):
        a = self.a
        a(".text", f".globl {NAME}_kernel", ".p2align 8", f".type {NAME}_kernel,@function", f"{NAME}_kernel:")
        self.prologue()
        self.aux()
        self.mwave()
        self.helper()
        a("L_exit:", "s_endpgm")
        added = a.fix_hazards()
        errs = a.check_waits()
        for e in errs[:5]: print("WAITERR:", e, file=sys.stderr)
        errs = [e for e in errs if "s_load_dword s5" not in e]
        if errs and not (self.opts & {"nokg", "nod", "nolds", "lax"}): raise SystemExit("wait errors")
        mv, ma, ms = a.max_regs()
        print(f"instrs {sum(1 for c in a.ins if c.kind not in ('dir','label'))} nops added {added} maxv {mv} maxs {ms}", file=sys.stderr)
        head = f"; fused LN + S4D conv + ReGLU FFN\n; @launch grid=(256,1,1) block=(512,1,1) lds=163840\n.amdgcn_target \"amdgcn-amd-amdhsa--gfx950\"\n"
        return head + a.text() + kernel_desc(NAME + "_kernel", 256, 256)

if __name__ == "__main__":
    import argparse
    ap = argparse.ArgumentParser()
    ap.add_argument("--stage", type=int, default=9); ap.add_argument("--stamps", action="store_true"); ap.add_argument("-o", default="k.s"); ap.add_argument("--opts", default="")
    x = ap.parse_args()
    open(x.o, "w").write(Gen(x.stage, x.stamps, [o for o in x.opts.split(',') if o]).build())
```

```python
import sys, struct
import numpy as np
from asmlib import Asm, kernel_desc
NAME = "parallel_sum__ssm_conv_s4d__glu_gated_reglu__prompt"

HS     = 225 * 1024
WS_H   = 0x0000000
WS_XNT = 0x0800000
WS_YT  = 0x0A00400
WS_CS  = 0x0E00000
WS_NM  = 0x0E10000
WS_R2  = 0x0E20000
WS_FH  = 0x0E30000
WS_FX  = 0x0E58000
WS_ST  = 0xF000000
RING = 32768
def slot_addr(s): return RING + 16384 * s
DBASE = RING
QB = [0, 8320]
UB = [16640, 21248]
AUXCNT = 32256
XCH = slot_addr(7)
SPIN_MAX = 200000

def f32(x): return "0x%08x" % struct.unpack("<I", struct.pack("<f", x))[0]
LOG2E = 1.4426950408889634

S_X, S_WG, S_WU, S_WD, S_WS, S_OUT, S_DBG = 4, 8, 12, 16, 20, 24, 28
def srd(b): return f"s[{b}:{b+3}]"
S_P = 32
sCH = 48
sXB, sWB, sDB, sM0, sAW, sSB = 55, 56, 57, 58, 59, 46
sW, sI, sJ, sI2, sJ2, sT, sST, sTAG, sSPIN = 60, 61, 62, 63, 64, 65, 44, 67, 68
sF, sA, sB, sC, sD, sE, sG = 69, 70, 71, 72, 73, 74, 75
sEX = 76
sLD, sDS = 78, 79
sKS = 32
sQI = 53
S_STAMP = 80
voX, voW, voD = 240, 244, 248

def shift_ws(off):
    g = globals()
    for n in ("WS_H", "WS_XNT", "WS_YT", "WS_CS", "WS_NM", "WS_R2", "WS_FH", "WS_FX"): g[n] += off

HEADER = """; out = x + S4D_conv(LN(x)) + D*LN(x) + ReGLU_FFN(LN(x)), one launch, 256 workgroups x 8 waves (one per CU).
; wg 0..31  : helpers - layer-norm statistics, transposed LN(x), column sums of Wg / Wu.
; wg 32..255: waves 0-3 run GEMM1 (raw x, mean removed by a rank-1 update, 1/sigma^2 applied after GEMM2) and GEMM2;
;             waves 4-7 stream the operands into LDS, build the SSM kernel of two channels, convolve, and finish the tile.
; workgroup 0 publishes in d_debug[0]; every poll loop is bounded.
"""

class Gen:
    def __init__(self, stage=9, stamps=False, opts=()):
        self.a = Asm(); self.stage = stage; self.stamps = stamps; self.opts = set(opts)
        self.nlab = 0; self.role = ''
        shift_ws(self.opt('wo', 0) << 20)
        self.NDA = self.opt("nda", 2)
        self.BARS = {0: list(range(12)), 1: [0, 1, 2, 4, 6, 8, 10, 11], 2: [0, 1, 2, 3, 4, 6, 8, 10, 11], 3: [0, 1, 2, 4, 6, 8, 9, 10, 11]}[self.opt('bs', 0)]
        self.CB = self.opt('cb0', 0)
        self.CL = self.opt('cl', 6)
        self.NX = self.opt('nx', 2)
        self.NV = self.opt('nv', 2)
        self.vm = []
    def opt(self, name, default):
        for o in self.opts:
            if o.startswith(name + "="): return int(o[len(name) + 1:])
        return default
    def lab(self, p="L"):
        self.nlab += 1; return f"{p}_{self.nlab}"
    def cstamp2(self, k):
        if self.stamps and "cyc2" in self.opts: self.a(f"s_memtime s[{S_STAMP+2*k}:{S_STAMP+2*k+1}]")
    def cstamp(self, k):
        if self.stamps and "cyc" in self.opts and "cyc2" not in self.opts: self.a(f"s_memtime s[{S_STAMP+2*k}:{S_STAMP+2*k+1}]")
    def stamp2(self, k):
        if self.stamps and "g2" in self.opts: self.a(f"s_memrealtime s[{S_STAMP+2*k}:{S_STAMP+2*k+1}]")
    def stamp3(self, k):
        if self.stamps and "g3" in self.opts: self.a(f"s_memrealtime s[{S_STAMP+2*k}:{S_STAMP+2*k+1}]")
    def stampk(self, k):
        if self.stamps: self.a(f"s_memrealtime s[{S_STAMP+2*k}:{S_STAMP+2*k+1}]")
    def stamp(self, k):
        if self.opts & {"k1", "k2"} and self.role in "MA" and self.role and 3 <= k <= 7: return
        if "spins" in self.opts: return
        if "g3" in self.opts and self.role == "A" and 1 <= k <= 7: return
        if "g2" in self.opts and self.role == "M" and 1 <= k <= 7: return
        if self.stamps and "cyc" not in self.opts: self.a(f"s_memrealtime s[{S_STAMP+2*k}:{S_STAMP+2*k+1}]")
    def vmem(self, text, tag=None):
        import re
        for o in self.opts:
            if o.startswith("drop_") and tag and re.fullmatch(o[5:], tag): return
        self.a(text); self.vm.append(tag)
    def wait_vm(self, tag):
        idx = [i for i, t in enumerate(self.vm) if t == tag]
        if not idx: return
        n = len(self.vm) - 1 - idx[-1]
        assert n <= 63
        self.a(f"s_waitcnt vmcnt({n})")
        self.vm = self.vm[idx[-1] + 1:]
    def wait_vm_all(self):
        self.a("s_waitcnt vmcnt(0)"); self.vm = []

    def spin(self, loads, checks, first_issued_tag=None, sleep=2, note=None):
        a = self.a
        L0, L1 = self.lab("Lspin"), self.lab("Lok")
        if "spins" in self.opts: a(f"s_mov_b32 s{sSPIN}, {SPIN_MAX+1}")
        if first_issued_tag is not None:
            self.wait_vm(first_issued_tag)
            self._check(checks)
            a(f"s_cbranch_vccz {L1}")
        a(f"s_mov_b32 s{sSPIN}, {SPIN_MAX}")
        a(f"{L0}:")
        for l in loads: a(l)
        a("s_waitcnt vmcnt(0)")
        self._check(checks)
        a(f"s_cbranch_vccz {L1}")
        if sleep: a(f"s_sleep {sleep}")
        a(f"s_sub_u32 s{sSPIN}, s{sSPIN}, 1", f"s_cmp_lg_u32 s{sSPIN}, 0", f"s_cbranch_scc1 {L0}")
        a(f"{L1}:")
        if "spins" in self.opts and note is not None: a(f"s_sub_u32 s{S_STAMP+2*note}, {SPIN_MAX+2}, s{sSPIN}")
        if first_issued_tag is None: self.vm = []
    def _check(self, checks):
        a = self.a
        a(f"v_cmp_ne_u32 vcc, s{sTAG}, v{checks[0]}")
        for c in checks[1:]:
            a(f"v_cmp_ne_u32 s[{sEX}:{sEX+1}], s{sTAG}, v{c}")
            a(f"s_or_b64 vcc, vcc, s[{sEX}:{sEX+1}]")
        a("s_nop 4" if len(checks) == 1 else "s_nop 0")
    def nonce_load(self, vt): return f"buffer_load_dword v{vt}, off, {srd(S_DBG)}, 0 sc1"
    def get_nonce(self, vt, issued=None):
        a = self.a
        L0, L1, L2 = self.lab("Lnon"), self.lab("Lnok"), self.lab("Lnx")
        def test():
            a(f"v_readfirstlane_b32 s{sTAG}, v{vt}", "s_nop 0")
            a(f"s_sub_u32 s{sEX}, s{sST}, s{sTAG}", f"s_cmp_lt_i32 s{sEX}, s{sEX+1}", f"s_cselect_b32 s{sEX}, s{sTAG}, 0")
            a(f"s_cmp_lg_u32 s{sEX}, 0", f"s_cbranch_scc1 {L1}")
        a(f"s_movk_i32 s{sEX+1}, 600")
        if issued is not None:
            self.wait_vm(issued); test()
        a(f"s_mov_b32 s{sSPIN}, {SPIN_MAX}")
        a(f"{L0}:")
        a(self.nonce_load(vt), "s_waitcnt vmcnt(0)")
        test()
        a(f"s_sub_u32 s{sSPIN}, s{sSPIN}, 1", f"s_cmp_lt_u32 s{sSPIN}, {SPIN_MAX-100}", f"s_cselect_b32 s{sEX+1}, 0x7fffffff, s{sEX+1}")
        a(f"s_cmp_lg_u32 s{sSPIN}, 0", f"s_cbranch_scc1 {L0}")
        a(f"{L1}:")
        if issued is None: self.vm = []
    def write_stamps(self, which):
        if not self.stamps: return
        a = self.a
        L = self.lab("Lst")
        a("s_waitcnt lgkmcnt(0)")
        a(f"s_cmp_lg_u32 s{sW}, {4*which}", f"s_cbranch_scc1 {L}")
        a(f"s_lshl_b32 s{sA}, s2, 8", f"s_add_u32 s{sA}, s{sA}, {WS_ST + 128*which}")
        a(f"s_mov_b64 s[{sEX}:{sEX+1}], exec", "s_mov_b64 exec, 1")
        for k in range(10):
            a(f"v_mov_b32 v2, s{S_STAMP+2*k}", f"v_mov_b32 v3, s{S_STAMP+2*k+1}")
            a(f"buffer_store_dwordx2 v[2:3], off, {srd(S_WS)}, s{sA} offset:{8*k}")
        a(f"s_mov_b64 exec, s[{sEX}:{sEX+1}]")
        a(f"{L}:")

    def code_prefetch(self):
        a = self.a
        L = self.lab("Lpc")
        a(f"s_getpc_b64 s[{sEX}:{sEX+1}]", f"{L}:")
        a(f"s_sub_u32 s{sEX}, s{sEX}, {L}-{NAME}_kernel", f"s_subb_u32 s{sEX+1}, s{sEX+1}, 0")
        a("v_lshlrev_b32 v254, 7, v0", f"v_min_u32 v254, L_exit-{NAME}_kernel, v254")
        a(f"global_load_dword v255, v254, s[{sEX}:{sEX+1}]")
    def rest_srd(self):
        a = self.a
        a(f"s_mov_b64 s[{S_WD+2}:{S_WD+3}], s[{S_WG+2}:{S_WG+3}]", f"s_mov_b64 s[{S_OUT+2}:{S_OUT+3}], s[{S_X+2}:{S_X+3}]")
        a(f"s_mov_b32 s{S_WS+2}, 0x10000000", f"s_mov_b32 s{S_WS+3}, s{S_X+3}", f"s_movk_i32 s{S_DBG+2}, 256", f"s_mov_b32 s{S_DBG+3}, s{S_X+3}")
    def rest_ids(self):
        a = self.a
        a(f"s_and_b32 s{sD}, s2, 7", f"s_lshr_b32 s{sB}, s2, 3", f"s_sub_u32 s{sB}, s{sB}, 4")
        a(f"s_mul_i32 s{sQI}, s{sB}, 37", f"s_lshr_b32 s{sQI}, s{sQI}, 8")
        a(f"s_mul_i32 s{sC}, s{sQI}, 7", f"s_sub_u32 s{sJ2}, s{sB}, s{sC}")
        a(f"s_lshl2_add_u32 s{sI2}, s{sD}, s{sQI}")
        a(f"s_mul_i32 s{sT}, s{sD}, 28", f"s_add_u32 s{sT}, s{sT}, s{sB}")
        a(f"v_lshrrev_b32 v5, 3, v1", f"v_and_b32 v6, 7, v1", f"v_lshrrev_b32 v7, 4, v1", f"v_mul_u32_u24 v15, 896, v5")
        a(f"v_lshlrev_b32 v14, 1, v7", f"v_xor_b32 v14, v14, v6", f"v_lshl_add_u32 v{voD}, v14, 4, v15")

    def prologue(self):
        a = self.a
        for (r, off) in ((S_WG, 64), (S_WU, 72), (S_X, 0)):
            a(f"s_load_dwordx2 s[{r}:{r+1}], s[0:1], {off}")
        a("v_lshrrev_b32 v5, 6, v0", "v_and_b32 v1, 63, v0")
        a(f"s_load_dwordx8 s[{S_P}:{S_P+7}], s[0:1], 8", f"s_load_dwordx4 s[{S_P+8}:{S_P+11}], s[0:1], 40")
        a(f"v_readfirstlane_b32 s{sW}, v5")
        for (r, off) in ((S_WD, 80), (S_OUT, 88), (S_DBG, 96), (S_WS, 104)):
            a(f"s_load_dwordx2 s[{r}:{r+1}], s[0:1], {off}")
        a(f"s_memrealtime s[{sST}:{sST+1}]")
        a("s_cmp_ge_u32 s2, 256", "s_cbranch_scc1 L_exit")
        L = self.lab("Lnp")
        a(f"s_cmp_ge_u32 s{sW}, 4", f"s_cbranch_scc1 {L}")
        self.code_prefetch()
        a(f"{L}:")
        if self.stamps:
            for k in range(1, 10): a(f"s_mov_b64 s[{S_STAMP+2*k}:{S_STAMP+2*k+1}], 0")
        self.stamp(0)
        a(f"s_mov_b32 s{S_X+2}, 1835008", f"s_mov_b32 s{S_X+3}, 0x20000", f"s_mov_b32 s{S_WG+2}, 1605632", f"s_mov_b32 s{S_WG+3}, 0x20000")
        a(f"s_and_b32 s{sA}, s2, 7", f"s_lshr_b32 s{sB}, s2, 3")
        a("s_cmp_lt_u32 s2, 32", "s_cbranch_scc1 L_helper")
        a(f"s_sub_u32 s{sB}, s{sB}, 4")
        a(f"s_and_b32 s{sD}, s{sA}, 1", f"s_lshl_b32 s{sD}, s{sD}, 2")
        a(f"s_lshr_b32 s{sE}, s{sB}, 3", f"s_add_u32 s{sE}, s{sE}, s{sD}", f"s_and_b32 s{sI}, s{sB}, 7")
        a(f"s_cmp_ge_u32 s{sB}, 24", f"s_cselect_b32 s{sJ}, 3, s{sE}", f"s_cselect_b32 s{sD}, s{sD}, 0", f"s_add_u32 s{sI}, s{sI}, s{sD}")
        a(f"s_bfe_u32 s{sD}, s{sA}, 0x10001", f"s_mul_i32 s{sD}, s{sD}, 7", f"s_add_u32 s{sJ}, s{sJ}, s{sD}")
        a(f"s_lshr_b32 s{sD}, s{sA}, 2", f"s_lshl3_add_u32 s{sI}, s{sD}, s{sI}")
        a(f"s_and_b32 s{sAW}, s{sW}, 3", f"s_lshl_b32 s{sM0}, s{sAW}, 12")
        a(f"s_cmp_lt_u32 s{sW}, 4", "s_cbranch_scc1 L_m")
        a("v_lshrrev_b32 v7, 4, v1", "v_and_b32 v15, 15, v1", "v_lshlrev_b32 v14, 1, v7", "v_xor_b32 v14, v14, v15")
        a(f"v_mul_u32_u24 v15, 3584, v7", f"v_lshl_add_u32 v{voW}, v14, 4, v15")
        a(f"s_and_b32 s{sA}, s{sAW}, 1", f"s_mul_i32 s{sA}, s{sA}, {16*3584}", f"s_lshl_b32 s{sB}, s{sJ}, 8", f"s_add_u32 s{sWB}, s{sA}, s{sB}")
        a(f"v_xor_b32 v14, 0x80, v{voW}", f"v_add_u32 v{voW+1}, {14336-1024}, v{voW}", f"v_add_u32 v{voW+2}, {2*(14336-1024)}, v14", f"v_add_u32 v{voW+3}, {3*(14336-1024)}, v14")
        if "k2" in self.opts: self.stampk(3)
        a(f"s_cmp_ge_u32 s{sAW}, 2")
        a("s_waitcnt lgkmcnt(0)")
        if "k2" in self.opts: self.stampk(4)
        self.vm = []
        a(f"s_cselect_b32 s{S_WG}, s{S_WU}, s{S_WG}", f"s_cselect_b32 s{S_WG+1}, s{S_WU+1}, s{S_WG+1}")

    def ks_table(self):
        L = []
        R = self.opt("r2j", 0); sO = sKS + 7
        if R == 1: L += [f"s_mov_b32 s{sO}, s{sJ2}"]
        if R == 2: L += [f"s_and_b32 s{sO}, s{sJ2}, 1", f"s_mul_i32 s{sO}, s{sO}, {self.opt('r2o', 4)}"]
        if R == 3: L += [f"s_mul_i32 s{sO}, s{sJ2}, 3", f"s_lshr_b32 s{sO}, s{sO}, 3", f"s_lshl_b32 s{sO}, s{sO}, 1"]
        if R == 4: L += [f"s_and_b32 s{sO}, s{sJ2}, 6"]
        for p in range(7):
            lo, mod = (0, 4) if p < 4 else (4, 3)
            d = sKS + p
            if self.opt("rot2", 1):
                L += [f"s_add_u32 s{d}, s{sQI}, {p - lo}", f"s_cmp_ge_u32 s{d}, {mod}", f"s_cselect_b32 s{sB}, {mod}, 0", f"s_sub_u32 s{d}, s{d}, s{sB}"]
                if self.opt("r2j", 0): L += [f"s_add_u32 s{d}, s{d}, s{sO}"]
                if lo: L += [f"s_add_u32 s{d}, s{d}, {lo}"]
                if self.opt("r2j", 0): L += [f"s_cmp_ge_u32 s{d}, 7", f"s_cselect_b32 s{sB}, 7, 0", f"s_sub_u32 s{d}, s{d}, s{sB}"]
            else: L += [f"s_mov_b32 s{d}, {p}"]
        return L

    def colsum_partial(self, regs, C, vt, area):
        a = self.a
        for n, R in enumerate(regs):
            for i in range(4):
                if n == 0: a(f"v_lshlrev_b32 v{C+2*i}, 16, v{R+i}", f"v_and_b32 v{C+2*i+1}, 0xffff0000, v{R+i}")
                else: a(f"v_dot2c_f32_bf16 v{C+2*i}, s{self.sLO}, v{R+i}", f"v_dot2c_f32_bf16 v{C+2*i+1}, s{self.sHI}, v{R+i}")
        for i in range(4): a(f"v_permlane32_swap_b32 v{C+i}, v{C+i+4}")
        for i in range(4): a(f"v_add_f32 v{C+i}, v{C+i}, v{C+i+4}")
        for i in range(2): a(f"v_permlane16_swap_b32 v{C+i}, v{C+i+2}")
        for i in range(2): a(f"v_add_f32 v{C+i}, v{C+i}, v{C+i+2}")
        a(f"ds_write_b64 v{self.hCSW}, v[{C}:{C+1}] offset:{area}")
    def colsum_final(self, area, C, vt):
        a = self.a
        L = self.lab("Lcs")
        a(f"s_cmp_ge_u32 s{sW}, 2", f"s_cbranch_scc1 {L}")
        a(f"v_lshlrev_b32 v{vt}, 2, v0")
        for w in range(8): a(f"ds_read_b32 v{C+w}, v{vt} offset:{area + 512*w}")
        a(f"v_lshlrev_b32 v{vt}, 4, v0")
        a(f"s_add_u32 s{sA}, s{sJ}, {WS_CS}")
        a("s_waitcnt lgkmcnt(0)")
        for (x, y) in ((0,1),(2,3),(4,5),(6,7),(0,2),(4,6),(0,4)): a(f"v_add_f32 v{C+x}, v{C+x}, v{C+y}")
        a(f"v_mov_b32 v{C+1}, s{sTAG}")
        a(f"buffer_store_dwordx2 v[{C}:{C+1}], v{vt}, {srd(S_WS)}, s{sA} offen sc1")
        a(f"{L}:")

    def helper(self):
        a = self.a
        self.vm = []; self.role = 'H'
        a("L_helper:")
        self.rest_srd()
        WA, XR, WB, C, XF = 4, 32, 60, 88, 100
        vt = 96; vR, vP = 160, 161; vW, vX = 162, 163; self.hCSW = 164
        vS, vM, vMB, vQ, vRr = 165, 166, 172, 168, 170
        self.sLO, self.sHI, sONE = 48, 49, 50
        TS = 912; CSA = 61440
        a(f"v_lshrrev_b32 v{vR}, 3, v0", f"v_and_b32 v{vP}, 7, v0")
        a(f"v_lshlrev_b32 v{vt}, 4, v{vP}")
        a(f"v_lshrrev_b32 v{vW}, 4, v0", f"v_mul_u32_u24 v{vW}, 3584, v{vW}", f"v_and_b32 v{vt+1}, 15, v1", f"v_lshl_add_u32 v{vW}, v{vt+1}, 4, v{vW}")
        a(f"v_mul_u32_u24 v{vX}, 896, v{vR}", f"v_add_u32 v{vX}, v{vX}, v{vt}")
        a(f"s_lshl2_add_u32 s{sI}, s{sA}, s{sB}")
        if self.opt("m8", 1):
            a(f"s_and_b32 s{sC}, s{sA}, 1", f"s_lshl2_add_u32 s{sC}, s{sC}, s{sB}")
            a(f"s_bfe_u32 s{sD}, s{sA}, 0x10001", f"s_mul_i32 s{sD}, s{sD}, 7", f"s_add_u32 s{sB}, s{sC}, s{sD}", f"s_lshl_b32 s{sB}, s{sB}, 8")
            a(f"s_lshr_b32 s{sT}, s{sA}, 2", f"s_lshl_b32 s{sT}, s{sT}, 3", f"s_lshl3_add_u32 s{sJ}, s{sB}, s{sT}")
            a(f"s_cmp_eq_u32 s{sC}, 7", f"s_cselect_b32 s{S_WG+2}, 0, s{S_WG+2}", f"s_cselect_b32 s{sJ}, 0x8000, s{sJ}")
        else:
            a(f"s_lshr_b32 s{sC}, s{sA}, 1", f"s_lshl2_add_u32 s{sT}, s{sC}, s{sB}")
            a(f"s_and_b32 s{sA}, s{sA}, 1", f"s_mul_i32 s{sA}, s{sA}, 7", f"s_add_u32 s{sA}, s{sA}, s{sT}")
            a(f"s_cmp_ge_u32 s{sT}, 7", f"s_cselect_b32 s{sB}, 7, 0", f"s_cselect_b32 s{sJ}, 8, 0", f"s_sub_u32 s{sB}, s{sA}, s{sB}", f"s_lshl_b32 s{sB}, s{sB}, 8")
            a(f"s_lshl3_add_u32 s{sJ}, s{sB}, s{sJ}")
            a(f"s_cmp_ge_u32 s{sT}, 14", f"s_cselect_b32 s{S_WG+2}, 0, s{S_WG+2}", f"s_cselect_b32 s{sJ}, 0x8000, s{sJ}")
        a(f"s_mul_i32 s{sC}, s{sI}, {64*896}")
        a("s_waitcnt lgkmcnt(0)")
        Ln = self.lab("Lnn")
        a(f"s_or_b32 s{sD}, s2, s{sW}", f"s_cmp_lg_u32 s{sD}, 0", f"s_cbranch_scc1 {Ln}")
        a(f"s_or_b32 s{sA}, s{sST}, 1", f"v_mov_b32 v2, s{sA}")
        a("s_mov_b64 exec, 1", f"buffer_store_dword v2, off, {srd(S_DBG)}, 0 sc1", "s_mov_b64 exec, -1")
        a(f"{Ln}:")
        a(f"s_cmp_ge_u32 s{sT}, 7", f"s_cselect_b32 s{S_WG}, s{S_WU}, s{S_WG}", f"s_cselect_b32 s{S_WG+1}, s{S_WU+1}, s{S_WG+1}")
        for t in range(7):
            self.vmem(f"buffer_load_dwordx4 v[{XR+4*t}:{XR+4*t+3}], v{vX}, {srd(S_X)}, s{sC} offen offset:{128*t}", "XR")
        if self.opt("tl", 0):
            L = self.lab("Ltl")
            a(f"s_cmp_lg_u32 s{sW}, 7", f"s_cbranch_scc1 {L}")
            holes = [229376, 10*HS + 229376, 19*HS + 229376, 28*HS + 229376, 0x9F0000, 0xA00000, 0xDF0000, 0xFF0000]
            a(f"s_load_dword s51, s[{S_WD}:{S_WD+1}], 0", f"s_load_dword s52, s[{S_OUT}:{S_OUT+1}], 0")
            for i, h in enumerate(holes):
                a(f"s_mov_b32 s{sD}, {h}", f"s_load_dword s{53+i%4}, s[{S_WS}:{S_WS+1}], s{sD}")
            a(f"{L}:")
        a(f"s_mov_b32 s{self.sLO}, 0x3f80", f"s_mov_b32 s{self.sHI}, 0x3f800000", f"s_mov_b32 s{sONE}, 0x3f803f80")
        wregs = [WA + 4 * t for t in range(7)] + [WB + 4 * t for t in range(7)]
        wl = [n for n in range(14) if not self.CB <= n < self.CL]; wuse = list(wl)
        HWM = self.opt("hwm", 14)
        def wload(force=False):
            if not wl or (len(wuse) - len(wl) >= HWM and not force): return
            n = wl.pop(0); R = wregs[n]
            a(f"s_add_u32 s{sD}, s{sB}, {n*32*3584}")
            self.vmem(f"buffer_load_dwordx4 v[{R}:{R+3}], v{vW}, {srd(S_WG)}, s{sD} offen", "W")
        for _ in range(self.opt("hw0", 0)): wload()
        a(f"v_lshrrev_b32 v{vt}, 4, v1", f"v_lshlrev_b32 v{vt}, 3, v{vt}", f"v_lshl_add_u32 v{vt}, v{vt+1}, 5, v{vt}")
        a(f"s_lshl_b32 s{sD}, s{sW}, 9", f"v_add_u32 v{self.hCSW}, s{sD}, v{vt}")
        for k in range(4): a(f"v_mov_b32 v{C+k}, 0")
        a(f"v_lshlrev_b32 v{vt+2}, 3, v{vR}")
        a(f"s_lshl_b32 s{sE}, s{sI}, 9")
        self.wait_vm("XR")
        self.stamp(1)
        for i in range(28): a(f"v_dot2c_f32_bf16 v{C+i%4}, s{sONE}, v{XR+i}")
        a(f"v_add_f32 v{C}, v{C}, v{C+1}", f"v_add_f32 v{C+2}, v{C+2}, v{C+3}", f"v_add_f32 v{vS}, v{C}, v{C+2}")
        for ctl in ("quad_perm:[1,0,3,2]", "quad_perm:[2,3,0,1]", "row_half_mirror"):
            a(f"v_add_f32_dpp v{vS}, v{vS}, v{vS} {ctl} row_mask:0xf bank_mask:0xf")
        a(f"v_mul_f32 v{vM}, {f32(-1.0/448)}, v{vS}")
        a(f"v_cvt_pk_bf16_f32 v{vMB}, 0, v{vM}")
        self.vmem(self.nonce_load(vQ), "non")
        if self.opt("ht", 0):
            a(f"s_lshl3_add_u32 s{sD}, s2, s{sW}", f"s_mul_i32 s{sD}, s{sD}, {49*128}", f"v_min_u32 v174, 48, v1", f"v_lshlrev_b32 v174, 7, v174")
            self.vmem(f"buffer_load_dword v175, v174, {srd(S_WD)}, s{sD} offen", "t")
        for i in range(28):
            a(f"v_dot2_f32_bf16 v{XF+2*i}, v{XR+i}, s{self.sLO}, v{vMB}", f"v_dot2_f32_bf16 v{XF+2*i+1}, v{XR+i}, s{self.sHI}, v{vMB}")
            if i % 7 == 6: wload()
        for k in range(2): a(f"v_pk_mul_f32 v[{C+2*k}:{C+2*k+1}], v[{XF+2*k}:{XF+2*k+1}], v[{XF+2*k}:{XF+2*k+1}]")
        for i in range(2, 28):
            k = i % 2
            a(f"v_pk_fma_f32 v[{C+2*k}:{C+2*k+1}], v[{XF+2*i}:{XF+2*i+1}], v[{XF+2*i}:{XF+2*i+1}], v[{C+2*k}:{C+2*k+1}]")
            if i % 13 == 12: wload()
        a(f"v_add_f32 v{C}, v{C}, v{C+1}", f"v_add_f32 v{C+2}, v{C+2}, v{C+3}", f"v_add_f32 v{vS}, v{C}, v{C+2}")
        a(f"v_sub_f32 v{vM}, v{vM}, v{vMB}")
        rnd = [f"v_cvt_pk_bf16_f32 v{XF+i}, 0, v{XF+i}" for i in range(56)]
        def fill(n):
            for _ in range(n):
                if rnd: a(rnd.pop(0))
        chain = []
        for ctl in ("quad_perm:[1,0,3,2]", "quad_perm:[2,3,0,1]", "row_half_mirror"):
            chain.append(f"v_add_f32_dpp v{vS}, v{vS}, v{vS} {ctl} row_mask:0xf bank_mask:0xf")
        chain += [f"v_mul_f32 v{vM}, v{vM}, v{vM}", f"v_mul_f32 v{vS}, {f32(1.0/448)}, v{vS}", f"v_sub_f32 v{vS}, v{vS}, v{vM}", f"v_max_f32 v{vS}, 0, v{vS}",
                  f"v_cvt_pk_bf16_f32 v{vS}, 0, v{vS}", f"v_add_f32 v{vS}, {f32(1e-5)}, v{vS}", f"v_cvt_pk_bf16_f32 v{vS}, 0, v{vS}",
                  f"v_sqrt_f32 v{vS}, v{vS}", f"v_cvt_pk_bf16_f32 v{vS}, 0, v{vS}", f"v_rcp_f32 v{vRr}, v{vS}",
                  f"v_mul_f32 v{C+6}, v{vRr}, v{vRr}", f"v_mov_b32 v{vRr+1}, v{vRr}"]
        for i, c in enumerate(chain):
            fill(2); a(c)
            if i % 5 == 4: wload()
        self.get_nonce(vQ, issued="non")
        a(f"v_mov_b32 v{C+7}, s{sTAG}", f"v_mov_b32 v{vMB+1}, s{sTAG}", f"s_add_u32 s{sA}, s{sE}, {WS_R2}", f"s_add_u32 s{sD}, s{sE}, {WS_NM}")
        a("s_mov_b32 exec_lo, 0x01010101", "s_mov_b32 exec_hi, 0x01010101")
        self.vmem(f"buffer_store_dwordx2 v[{vMB}:{vMB+1}], v{vt+2}, {srd(S_WS)}, s{sD} offen sc1", "st")
        self.vmem(f"buffer_store_dwordx2 v[{C+6}:{C+7}], v{vt+2}, {srd(S_WS)}, s{sA} offen sc1", "st")
        a("s_mov_b64 exec, -1")
        self.stamp(2)
        fill(13); wload(); fill(99)
        a(f"v_mul_u32_u24 v{vt}, {TS}, v{vR}", f"v_lshl_add_u32 v{vt}, v{vP}, 4, v{vt}")
        for t in range(7):
            for i in range(4 * t, 4 * t + 4): a(f"v_pk_mul_f32 v[{XF+2*i}:{XF+2*i+1}], v[{XF+2*i}:{XF+2*i+1}], v[{vRr}:{vRr+1}]")
            for i in range(4 * t, 4 * t + 4): a(f"v_cvt_pk_bf16_f32 v{XR+i}, v{XF+2*i}, v{XF+2*i+1}")
            a(f"ds_write_b128 v{vt}, v[{XR+4*t}:{XR+4*t+3}] offset:{128*t}")
            wload()
        a(f"v_bfe_u32 v{vt+1}, v1, 4, 1", f"v_and_b32 v{vt+3}, 3, v1", f"v_lshl_add_u32 v{vt+1}, v{vt+1}, 2, v{vt+3}")
        a(f"v_bfe_u32 v{vt+3}, v1, 2, 2", f"v_lshl_add_u32 v{vt+1}, v{vt+1}, 3, v{vt+3}", f"v_mul_u32_u24 v{vt+1}, {TS}, v{vt+1}")
        a(f"v_lshrrev_b32 v{vt+3}, 5, v1", f"v_lshl_add_u32 v{vt+1}, v{vt+3}, 3, v{vt+1}")
        a(f"s_lshl_b32 s{sD}, s{sW}, 4", f"v_add_u32 v{vt+1}, s{sD}, v{vt+1}")
        a(f"v_lshlrev_b32 v{vt+2}, 4, v1")
        a(f"s_mul_i32 s{sC}, s{sI}, {448*128}", f"s_lshl_b32 s{sA}, s{sW}, 10", f"s_add_u32 s{sC}, s{sC}, s{sA}", f"s_add_u32 s{sC}, s{sC}, {WS_XNT}")
        a("s_waitcnt lgkmcnt(0)", "s_barrier")
        self.stamp(3)
        for n in range(7):
            for t in range(2):
                a(f"ds_read_b64_tr_b16 v[{XR+4*n+2*t}:{XR+4*n+2*t+1}], v{vt+1} offset:{128*n + 4*TS*t}")
        for n in range(7):
            a(f"s_waitcnt lgkmcnt({12-2*n})")
            self.vmem(f"buffer_store_dwordx4 v[{XR+4*n}:{XR+4*n+3}], v{vt+2}, {srd(S_WS)}, s{sC} offen sc1", "st")
            if n < 6: a(f"s_add_u32 s{sC}, s{sC}, 8192")
        late = len(wl) > 0
        while wl: wload(True)
        def fxflag():
            L = self.lab("Lfx")
            a(f"s_cmp_lg_u32 s{sW}, 2", f"s_cbranch_scc1 {L}")
            a(f"v_mov_b32 v2, s{sTAG}", f"s_lshl_b32 s{sA}, s{sI}, 7", f"s_add_u32 s{sA}, s{sA}, {WS_FX}")
            a("v_lshlrev_b32 v3, 2, v1", "s_mov_b32 exec_hi, 0", f"buffer_store_dword v2, v3, {srd(S_WS)}, s{sA} offen sc1", "s_mov_b32 exec_hi, -1")
            a(f"{L}:")
        if late:
            self.wait_vm("st")
            a("s_barrier")
            fxflag()
            self.stamp(7)
        self.wait_vm("W")
        self.colsum_partial([wregs[n] for n in wuse], C, vt, CSA)
        a("s_waitcnt vmcnt(0) lgkmcnt(0)", "s_barrier")
        if not late: fxflag()
        self.stamp(5)
        self.colsum_final(CSA, WA, vt)
        self.stamp(4)
        if self.opt("hp", 0):
            L = self.lab("Lhp")
            a(f"s_cmp_eq_u32 s{sW}, 7", f"s_cbranch_scc1 {L}")
            a(f"s_lshr_b32 s{sA}, s2, 3", f"s_mul_i32 s{sA}, s{sA}, {448*896}", f"s_lshl_b32 s{sB}, s{sW}, 7", f"s_add_u32 s{sA}, s{sA}, s{sB}")
            a(f"v_mul_u32_u24 v{vt}, 896, v1")
            for k in range(3):
                if self.opt("r2j", 0): a(f"s_add_u32 s{sB}, s{sW}, {4+k}", f"s_cmp_ge_u32 s{sB}, 7", f"s_cselect_b32 s{sC}, 7, 0", f"s_sub_u32 s{sB}, s{sB}, s{sC}")
                else: a(f"s_mov_b32 s{sB}, {4+k}")
                a(f"s_mul_i32 s{sB}, s{sB}, {64*896}", f"s_add_u32 s{sB}, s{sB}, s{sA}")
                a(f"buffer_load_dword v{WB+k}, v{vt}, {srd(S_WD)}, s{sB} offen")
            a("s_waitcnt vmcnt(0)", f"{L}:")
            self.stamp(6)
        if self.opt("hh", 0):
            L = self.lab("Lhh")
            a(f"s_lshr_b32 s{sQI}, s2, 3")
            for x in self.ks_table(): a(x)
            a(f"s_and_b32 s{sA}, s{sW}, 3", f"s_mul_i32 s{sA}, s{sA}, {14*4096}", f"s_mul_i32 s{sC}, s{sI}, {HS}", f"s_add_u32 s{sC}, s{sC}, s{sA}")
            if WS_H: a(f"s_add_u32 s{sC}, s{sC}, {WS_H}")
            a(f"s_cmp_ge_u32 s{sW}, 4")
            for k in range(4): a(f"s_cselect_b32 s{sKS+k}, s{sKS+min(2*k+1, 6)}, s{sKS+2*k}")
            a(f"v_lshlrev_b32 v{vt+2}, 7, v1")
            a(f"s_cmp_lg_u32 s{sW}, 3", f"s_cbranch_scc1 {L}")
            a(f"s_lshr_b32 s{sB}, s{sI}, 1", f"s_lshl_b32 s{sB}, s{sB}, 11", f"s_add_u32 s{sA}, s{sB}, {WS_FH}")
            a(f"v_lshrrev_b32 v{vt}, 2, v1", f"v_min_u32 v{vt}, 13, v{vt}", f"v_lshl_add_u32 v{vt}, v{vt}, 7, s{sA}")
            self.spin([f"buffer_load_dword v{vt+1}, v{vt}, {srd(S_WS)}, 0 offen sc1"], [vt + 1], sleep=self.opt("hsl", 4))
            a(f"{L}:", "s_barrier")
            self.stamp(8)
            for k in range(4):
                a(f"s_lshl_b32 s{sA}, s{sKS+k}, 13", f"s_add_u32 s{sA}, s{sA}, s{sC}")
                a(f"buffer_load_dword v{WB+k}, v{vt+2}, {srd(S_WS)}, s{sA} offen sc1")
            a("s_waitcnt vmcnt(0)")
            self.stamp(9)
        self.write_stamps(0)
        a("s_endpgm")

    @staticmethod
    def uslot(u): return (u + 3) % 8

    def kgen_setup(self):
        base = 8
        PRM, vDT, vt, vRA, vRB, KD, BF, AF, T = base + 12, base + 4, base + 5, base + 8, base + 9, 28, 44, 76, 28
        self.KD, self.kBF, self.kAF, self.kvt = KD, BF, AF, vt
        self.kregs = (PRM, vDT, vt, vRA, vRB, KD, BF, AF, T)
        L = []
        e = lambda *x: L.extend(x)
        e(f"s_lshl_b32 s{sSB}, s{sAW}, 8")
        def rowaddr(dst, sig):
            e(f"v_and_b32 v{dst}, 15, v{sig}", f"v_mul_u32_u24 v{dst}, 2064, v{dst}", f"v_lshrrev_b32 v{sig}, 4, v{sig}", f"v_lshl_add_u32 v{dst}, v{sig}, 10, v{dst}")
            e(f"v_add_u32 v{dst}, v{dst}, v{vt+2}")
        e(f"v_lshrrev_b32 v{vt+2}, 5, v1", f"v_lshlrev_b32 v{vt+2}, 4, v{vt+2}", f"v_and_b32 v{vt}, 31, v1")
        e(f"v_cmp_eq_u32 vcc, 5, v{vt}", f"v_cndmask_b32_e64 v{vt+1}, v{vt}, 4, vcc", f"v_cmp_eq_u32 vcc, 31, v{vt}", f"v_cndmask_b32_e64 v{vt+1}, v{vt+1}, 5, vcc")
        rowaddr(vRA, vt + 1)
        e(f"v_add_u32 v{vRA}, s{sSB}, v{vRA}")
        e(f"v_add_u32 v{vt+1}, -1, v{vt}", f"v_and_b32 v{vt+1}, 31, v{vt+1}")
        rowaddr(vRB, vt + 1)
        e(f"v_cmp_eq_u32 vcc, 0, v{vt}", f"v_mov_b32 v{vt}, s{sSB}", f"v_cndmask_b32_e64 v{vt}, v{vt}, 0, vcc", f"v_add_u32 v{vRB}, v{vRB}, v{vt}")
        e("s_waitcnt lgkmcnt(0)")
        e(f"s_lshr_b32 s{sC}, s{sAW}, 1", f"s_lshl_b32 s{sC}, s{sC}, 4")
        for r in (sLD, sDS): e(f"s_lshr_b32 s{r}, s{r}, s{sC}", f"s_lshl_b32 s{r}, s{r}, 16")
        chi = float(np.frombuffer(np.uint32(np.float32(LOG2E).view(np.uint32) & 0xFFFFFF00).tobytes(), np.float32)[0]); clo = LOG2E - chi
        e(f"v_mov_b32 v{vt+2}, s{sLD}", f"v_mul_f32 v{vDT}, {f32(chi)}, v{vt+2}", f"v_mul_f32 v{vt+2}, {f32(clo)}, v{vt+2}")
        e(f"v_exp_f32 v{vDT}, v{vDT}", f"v_exp_f32 v{vt+2}, v{vt+2}", f"v_mul_f32 v{vDT}, v{vDT}, v{vt+2}")
        e(f"v_cvt_pk_bf16_f32 v{vDT}, 0, v{vDT}")
        return L

    @staticmethod
    def soff(sig): return (sig & 15) * 2064 + (sig >> 4) * 1024

    def kgen_scale(self):
        PRM, vDT, vt, vRA, vRB, KD, BF, AF, T = self.kregs
        L = []
        e = lambda *x: L.extend(x)
        e(f"v_and_b32 v{T}, 0x7fff, v{PRM+2}", f"v_and_b32 v{T+1}, 0x7fff, v{PRM+3}", f"v_and_b32 v{T+2}, 0x7fff, v{PRM+6}", f"v_and_b32 v{T+3}, 0x7fff, v{PRM+7}")
        e(f"v_max_u32 v{T}, v{T}, v{T+1}", f"v_max3_u32 v{T}, v{T}, v{T+2}, v{T+3}")
        sh = [f"v_lshlrev_b32 v{PRM+k}, 16, v{PRM+k}" for k in range(8)]
        for ctl in ("row_shr:1", "row_shr:2", "row_shr:4", "row_shr:8", "row_bcast:15 row_mask:0xa", "row_bcast:31 row_mask:0xc"):
            for _ in range(2):
                if sh: e(sh.pop(0))
            e(f"v_max_u32_dpp v{T}, v{T}, v{T} {ctl}" + (" row_mask:0xf" if "row_mask" not in ctl else "") + " bank_mask:0xf")
        e(f"v_readlane_b32 s50, v{T}, 63")
        e("s_lshr_b32 s50, s50, 7", "s_sub_u32 s50, 267, s50", "s_min_u32 s50, s50, 253", f"s_sub_u32 s51, 255, s50")
        e("s_lshl_b32 s50, s50, 23", "s_lshl_b32 s51, s51, 23", f"v_mul_f32 v18, s51, v{vDT}")
        return L

    def kgen_body(self, czero, batch):
        PRM, vDT, vt, vRA, vRB, KD, BF, AF, T = self.kregs
        L = []
        e = lambda *x: L.extend(x)
        tt = 172; ti = [0]
        pendf = []
        def cmul(d, x, y):
            t = tt + ti[0] % 8; ti[0] += 1
            if any(x == p[0] or y == p[0] for p in pendf): flush()
            e(f"v_pk_mul_f16 v{t}, v{x}, v{y} op_sel:[1,1] op_sel_hi:[0,1]")
            flush()
            pendf.append((d, f"v_pk_fma_f16 v{d}, v{x}, v{y}, v{t} op_sel_hi:[1,0,1] neg_lo:[0,0,1]"))
        def flush():
            for p in pendf: e(p[1])
            pendf.clear()
        BF += 64 * batch; AF += 64 * batch
        def arow(hh, reg): return 8 * (reg >> 2) + 4 * hh + (reg & 3)
        P1 = {}
        for reg, p in enumerate(list(range(9)) + [512, 516, 520, 1024, 1032, 1536, 1544]): P1.setdefault(p, []).append(arow(0, reg))
        for reg, p in enumerate([256, 256, 258, 260, 260, 260, 262, 264, 264, 768, 772, 776, 1280, 1288, 1792, 1800]): P1.setdefault(p, []).append(arow(1, reg))
        assert P1[256] == [4, 5] and P1[1800] == [31]
        P1[256] = [4]; P1[1800] = [5]
        E = {j: BF + j for j in range(1, 32)}
        V = {p: AF + i for i, p in enumerate(sorted(P1))}
        va, vb = 4, 5
        S = T
        A = T + 8
        W1, W8, W256 = 6, 7, 8
        p_ = PRM + 4 * batch
        e(f"v_mul_f32 v{va}, {f32(LOG2E)}, v{p_}", f"v_mul_f32 v{vb}, v{p_+1}, v{vDT}", f"v_exp_f32 v{va}, v{va}")
        e(f"v_mul_f32 v{vb}, 0.15915494, v{vb}", f"v_mul_f32 v{p_+2}, s50, v{p_+2}")
        e(f"v_cvt_pk_bf16_f32 v{va}, 0, v{va}", f"v_mul_f32 v{p_+3}, s50, v{p_+3}")
        e(f"v_mul_f32 v{va}, v{va}, v{vDT}", f"v_cvt_pk_f16_f32 v{V[0]}, v{p_+2}, v{p_+3}")
        e(f"v_mul_f32 v{va}, {f32(-LOG2E)}, v{va}")
        seeds = (8, 32, 1, 256)
        for i, p in enumerate(seeds):
            if p != 1: e(f"v_mul_f32 v{A+2*i+1}, {f32(p)}, v{vb}", f"v_mul_f32 v{A+2*i}, {f32(p)}, v{va}")
        for i, p in enumerate(seeds):
            e(f"v_fract_f32 v{A+2*i+1}, v{A+2*i+1 if p != 1 else vb}", f"v_exp_f32 v{A+2*i}, v{A+2*i if p != 1 else va}")
        for i, p in enumerate(seeds):
            e(f"v_cos_f32 v{S+2*i}, v{A+2*i+1}", f"v_sin_f32 v{S+2*i+1}, v{A+2*i+1}")
        for i, p in enumerate(seeds):
            e(f"v_mul_f32 v{S+2*i}, v{S+2*i}, v{A+2*i}", f"v_mul_f32 v{S+2*i+1}, v{S+2*i+1}, v{A+2*i}")
        e(f"v_cvt_pk_f16_f32 v{E[1]}, v{S}, -v{S+1}", f"v_cvt_pk_f16_f32 v{W8}, v{S}, v{S+1}", f"v_cvt_pk_f16_f32 v{E[4]}, v{S+2}, -v{S+3}")
        e(f"v_cvt_pk_f16_f32 v{W1}, v{S+4}, v{S+5}", f"v_cvt_pk_f16_f32 v{W256}, v{S+6}, v{S+7}")
        jobs = [(E[2], E[1], E[1]), (V[8], V[0], W8), (V[1], V[0], W1), (E[3], E[2], E[1])]
        vj = [(V[k], V[k - 1], W1) for k in range(2, 8)]
        far = [(V[p], V[p - 256], W256) for p in sorted(P1) if p >= 256]
        far.sort(key=lambda x: 0)
        f08 = [(V[p], V[p - 256], W256) for p in sorted(P1) if p >= 256 and p % 256 in (0, 8)]
        fo = [(V[p], V[p - 256], W256) for p in sorted(P1) if p >= 256 and p % 256 not in (0, 8)]
        ej = [(E[j], E[j - 4], E[4]) for j in range(5, 32)]
        while ej or vj or f08 or fo:
            for q_ in (ej, vj, ej, f08) if vj else (ej, fo, ej, f08):
                if q_: jobs.append(q_.pop(0))
        for j in jobs: cmul(*j)
        flush()
        B = [f"ds_write_addtid_b32 v{E[j]} offset:{self.soff(j-1)}" for j in range(1, 32)]
        B += [f"ds_read_b128 v[{BF+4*k}:{BF+4*k+3}], v{vRB} offset:{32*k}" for k in range(8)]
        B += [f"ds_write_addtid_b32 v{V[p]} offset:{self.soff(sig)}" for p in sorted(P1) for sig in P1[p]]
        B += [f"ds_read_b128 v[{AF+4*k}:{AF+4*k+3}], v{vRA} offset:{32*k}" for k in range(8)]
        M = []
        for k in range(8):
            c = "0" if (czero and k == 0) else f"v[{KD}:{KD+15}]"
            M.append(f"v_mfma_f32_32x32x16_f16 v[{KD}:{KD+15}], v[{AF+4*k}:{AF+4*k+3}], v[{BF+4*k}:{BF+4*k+3}], {c}")
        return L, B, M

    def mwave(self):
        a = self.a
        self.role = 'M'
        a("L_m:")
        ACC, AB, XB, CSX, NMX = 4, 132, 164, 228, 232
        vAX, vAW = 234, 248
        vt = 239; vHO = 2; vCSO = 3; vN = 238
        sLH, sFH = 48, 49
        def acc(mat, b, ft): return ACC + 4 * (b + 4 * (ft + 4 * mat))
        self.rest_srd(); self.rest_ids()
        a(f"v_mov_b32 v0, v{voD}")
        a(f"s_lshr_b32 s{sLH}, s{sW}, 1", f"s_and_b32 s{sFH}, s{sW}, 1")
        a(f"v_and_b32 v{vt}, 15, v1")
        a(f"v_lshrrev_b32 v{vt+2}, 4, v1", f"v_bfe_u32 v{vt+3}, v1, 1, 3")
        a(f"v_xor_b32 v{vt+3}, v{vt+3}, v{vt+2}", f"v_lshlrev_b32 v{vt+3}, 4, v{vt+3}")
        a(f"s_lshl_b32 s{sA}, s{sLH}, 13", f"s_add_u32 s{sA}, s{sA}, {RING}")
        a(f"v_lshl_add_u32 v{vt}, v{vt}, 7, s{sA}")
        for s_ in range(2):
            a(f"v_xad_u32 v{vAX+s_}, v{vt+3}, {64*s_}, v{vt}", f"v_add_u32 v{vAX+2+s_}, 0x10000, v{vAX+s_}")
        a(f"v_bfe_u32 v{vt}, v1, 2, 2", f"v_lshl_add_u32 v{vt}, v{vt+2}, 3, v{vt}", f"v_lshlrev_b32 v{vt}, 8, v{vt}")
        a(f"v_and_b32 v{vt+3}, 3, v1", f"v_lshl_add_u32 v{vt}, v{vt+3}, 3, v{vt}")
        a(f"v_bfe_u32 v{vt+3}, v1, 2, 3", f"v_lshl_add_u32 v{vt}, v{vt+3}, 5, v{vt}")
        a(f"s_lshl_b32 s{sA}, s{sFH}, 7", f"v_xor_b32 v{vt}, s{sA}, v{vt}", f"v_add_u32 v{vt}, {RING}, v{vt}")
        a("s_waitcnt vmcnt(0)")
        for ft in range(4):
            a(f"v_xor_b32 v{vAW+ft}, {32*ft}, v{vt}", f"v_add_u32 v{vAW+4+ft}, 0x10000, v{vAW+ft}")
        a(f"v_lshlrev_b32 v{vCSO}, 3, v1", f"v_lshlrev_b32 v{vHO}, 4, v1")
        self.vm = []
        self.gemm2_setup(vt)
        a(f"s_setprio {self.opt('mp', 2)}")
        a("s_waitcnt lgkmcnt(0)")
        for x in self.ks_table(): a(x)
        a(f"s_lshl1_add_u32 s{sF}, s{sJ}, s{sFH}")
        a(f"s_lshl_b32 s{sB}, s{sF}, 10", f"s_add_u32 s{sB}, s{sB}, {WS_CS}")
        a(f"s_lshl1_add_u32 s{sA}, s{sI}, s{sLH}")
        a(f"s_lshl_b32 s{sD}, s{sA}, 9", f"s_add_u32 s{sD}, s{sD}, {WS_NM}")
        a(f"s_mul_i32 s{sE}, s{sA}, {HS}", f"s_lshl_b32 s{sC}, s{sF}, 13", f"s_add_u32 s{sE}, s{sE}, s{sC}")
        if WS_H: a(f"s_add_u32 s{sE}, s{sE}, {WS_H}")
        a(f"s_lshl4_add_u32 s{sG}, s{sI}, s{sJ}", f"s_lshl_b32 s{sG}, s{sG}, 7", f"s_add_u32 s{sG}, s{sG}, {WS_FH}")
        FR = [(ft, mat) for ft in range(4) for mat in range(2)]
        def reads(g):
            c, s_ = divmod(g, 2)
            sl = self.uslot(3 * c + 1); win = sl // 4
            xb = XB + 16 * (g & 1)
            xr = [f"ds_read_b128 v[{xb+4*b}:{xb+4*b+3}], v{vAX+2*win+s_} offset:{16384*(sl%4) + 2048*b}" for b in range(4)]
            sl = self.uslot(3 * c + 2 * s_); win = sl // 4
            wr = []
            for k, (ft, mat) in enumerate(FR):
                wr.append([f"ds_read_b64_tr_b16 v[{AB+4*k+2*t}:{AB+4*k+2*t+1}], v{vAW+4*win+ft} offset:{16384*(sl%4) + 1024*t + 8192*mat}" for t in range(2)])
            return xr, wr
        def mfma(g, k, b):
            ft, mat = FR[k]
            d = acc(mat, b, ft); xb = XB + 16 * (g & 1)
            c = "0" if g == 0 else f"v[{d}:{d+3}]"
            return f"v_mfma_f32_16x16x32_bf16 v[{d}:{d+3}], v[{AB+4*k}:{AB+4*k+3}], v[{xb+4*b}:{xb+4*b+3}], {c}"
        CL0 = 212
        if self.CL:
            assert self.CL <= 8
            a("s_mov_b32 s54, 0x3f803f80")
            for r in range(8): a(f"v_mov_b32 v{CL0+r}, 0")
        corr_loads = [f"buffer_load_dwordx4 v[{CSX}:{CSX+3}], v{vHO}, {srd(S_WS)}, s{sB} offen sc1",
                      f"buffer_load_dwordx2 v[{NMX}:{NMX+1}], v{vCSO}, {srd(S_WS)}, s{sD} offen sc1"]
        a("s_waitcnt lgkmcnt(0)")
        if "k1" in self.opts: self.stampk(7)
        a("s_barrier")
        self.stamp(2)
        q = []; pend = []
        def need(key):
            idx = [i for i, t in enumerate(q) if t[0] == key[0] and t[1] <= key[1]]
            if not idx: return
            n = len(q) - 1 - idx[-1]
            a(f"s_waitcnt lgkmcnt({min(n, 15)})")
            del q[:len(q) - min(n, 15)]
        def drain(maxn):
            n = 0
            while pend and n < maxn:
                r, key = pend.pop(0); a(r); q.append(key); n += 1
        xr, wr = reads(0)
        for r in xr: a(r); q.append((0, 0))
        for k in range(8):
            for r in wr[k]: a(r); q.append((0, k))
        self.vmem(self.nonce_load(vN), "non")
        if self.opt("tlb", 0) == 1: self.tlbtouch(vt)
        DELAY = self.opt("dl", 8); WG_ = self.opt("wg", 2)
        cl = list(corr_loads); extra = []
        cred = []
        for m_ in range(2):
            c_ = CL0 + 4 * m_
            cred += [f"v_permlane32_swap_b32 v{c_}, v{c_+2}", f"v_permlane32_swap_b32 v{c_+1}, v{c_+3}", f"v_add_f32 v{c_}, v{c_}, v{c_+2}", f"v_add_f32 v{c_+1}, v{c_+1}, v{c_+3}"]
        for m_ in range(2):
            c_ = CL0 + 4 * m_
            cred += [f"v_permlane16_swap_b32 v{c_}, v{c_+1}"]
        for m_ in range(2):
            c_ = CL0 + 4 * m_
            cred += [f"v_add_f32 v{vt+3+m_}, v{c_}, v{c_+1}"]
        for g in range(14):
            xr, wr = reads(g + 1) if g < 13 else ([], [[]] * 8)
            if g == 0: self.cstamp(0)
            if g == 8: self.get_nonce(vN, issued="non")
            blocked = True; held = []
            i = 0
            for k in range(8):
                for b in range(4):
                    if k % WG_ == 0 and b == 0:
                        key = (g, k + WG_ - 1)
                        while any(x[1][0] == g and x[1][1] <= key[1] for x in pend): drain(1)
                        need(key)
                    a(mfma(g, k, b)); i += 1
                    if self.CB <= g < self.CL:
                        ft_, mat_ = FR[k]
                        if g < self.opt("sp", 0): ts_ = [b]
                        elif g < self.opt("sp2", 0): ts_ = {0: [0, 1], 2: [2, 3]}.get(b, [])
                        else: ts_ = range(4) if b == self.opt("cb", 1) else []
                        for t_ in ts_: a(f"v_dot2c_f32_bf16 v{CL0 + 4*mat_ + ft_}, s54, v{AB+4*k+t_}")
                    if self.CL and g == self.CL and cred and i >= 4: a(cred.pop(0))
                    if self.opt("pad", 0) and b == 3 and self.opt("padb", 0) <= g < self.opt("padg", 14): a(f"s_nop {self.opt('pad', 0)}")
                    if b == 3:
                        new_r = [(r, (g + 1, k)) for r in wr[k]]
                        if blocked: held += new_r
                        else: pend += new_r
                    if blocked and i == (DELAY if (g + 1 in self.BARS or (g == 11 and self.NDA > 3)) else self.opt("dn", 1)):
                        if g + 1 in self.BARS or (g == 11 and self.NDA > 3):
                            pend += [(x, (-1, 0)) for x in extra]; extra = []
                            drain(99)
                        LB = self.opt("lb", 11)
                        if g + 1 in self.BARS:
                            a("s_waitcnt lgkmcnt(0)"); q.clear()
                            a("s_barrier")
                        elif g == 11 and self.NDA > 3:
                            self.signal(8, vt); q.append((-1, 0))
                        C0 = self.opt("c0", -1)
                        if C0 < 0 and g % 2 == 1: self.cstamp(1 + g // 2)
                        if C0 >= 0 and 0 <= g - C0 < 7: self.cstamp(1 + g - C0)
                        pend += held + [(r, (g + 1, 0)) for r in xr]
                        if g in (LB - 3, LB - 2)[:self.NX]: extra += [r[0] for r in self.G.wdread(g - LB + 3)]
                        blocked = False
                    if not pend and extra: pend.append((extra.pop(0), (-1, 0)))
                    drain(1)
                    if g == self.opt("corr", 11) and cl and i % 4 == 2: self.vmem(cl.pop(0), "corr")
        self.stamp(3)
        self.cstamp(8)
        self.spin(corr_loads, [CSX + 1, CSX + 3, NMX + 1], first_issued_tag="corr", note=1)
        if self.CL:
            assert not cred
            a(f"v_add_f32 v{CSX}, v{CSX}, v{vt+3}", f"v_add_f32 v{CSX+2}, v{CSX+2}, v{vt+4}")
        for ft in range(4):
            for mat in range(2):
                d = acc(mat, 0, ft)
                a(f"v_mfma_f32_16x16x1_4b_f32 v[{d}:{d+15}], v{CSX+2*mat}, v{NMX}, v[{d}:{d+15}] cbsz:2 abid:{ft}")
        self.signal(9, vt)
        if self.opt("ep", 2) != 2: a(f"s_setprio {self.opt('ep', 2)}")
        a(f"s_add_u32 s{sC}, s{sE}, 4096")
        for e in range(2):
            for b in range(4):
                o = acc(0, b, 2 * e)
                T_ = [(acc(0, b, ft), acc(1, b, ft)) for ft in (2 * e, 2 * e + 1)]
                for g_, u_ in T_:
                    for i in range(4): a(f"v_max_f32 v{g_+i}, 0, v{g_+i}")
                for g_, u_ in T_:
                    if "epk" in self.opts:
                        for i in (0, 2): a(f"v_pk_mul_f32 v[{u_+i}:{u_+i+1}], v[{g_+i}:{g_+i+1}], v[{u_+i}:{u_+i+1}]")
                    else:
                        for i in range(4): a(f"v_mul_f32 v{u_+i}, v{g_+i}, v{u_+i}")
                for t, (g_, u_) in enumerate(T_):
                    for i in range(2): a(f"v_cvt_pk_bf16_f32 v{o+2*t+i}, v{u_+2*i}, v{u_+2*i+1}")
                SG = self.opt("sg", 99)
                if len(self.vm) > SG: a(f"s_waitcnt vmcnt({SG})"); self.vm = self.vm[-SG:]
                self.vmem(f"buffer_store_dwordx4 v[{o}:{o+3}], v{vHO}, {srd(S_WS)}, s{sC if e else sE} offen offset:{1024*b}" + ("" if "hpl" in self.opts else " sc1"), "hst")
        self.stamp(4)
        self.cstamp(9)
        self.gemm2()

    def mtouch(self, vt):
        mask = self.opt("tm", 0)
        if not mask: return
        a = self.a
        for w, (sr, n) in enumerate(((S_WD, 56), (S_WG, 56), (S_WU, 56), (S_X, 64))):
            if not (mask >> w) & 1: continue
            L = self.lab("Lt")
            a(f"s_cmp_lg_u32 s{sW}, {w}", f"s_cbranch_scc1 {L}")
            a(f"s_mul_i32 s{sA}, s{sT}, {n*128}", f"v_min_u32 v{vt}, {n-1}, v1", f"v_lshlrev_b32 v{vt}, 7, v{vt}")
            a(f"buffer_load_dword v{vt+1+w}, v{vt}, {srd(sr)}, s{sA} offen")
            a(f"{L}:")

    def tlbtouch(self, vt):
        a = self.a
        L = self.lab("Lt")
        a(f"s_cmp_lg_u32 s{sW}, 0", f"s_cbranch_scc1 {L}")
        holes = [229376, 10*HS + 229376, 19*HS + 229376, 28*HS + 229376, 0x9F0000, 0xA00000, 0xDF0000, 0xFF0000]
        a(f"v_mov_b32 v{vt}, {holes[0]}")
        for i, h in enumerate(holes[1:]):
            a(f"s_mov_b32 s{sA}, {h}", f"v_writelane_b32 v{vt}, s{sA}, {i+1}")
        a(f"buffer_load_dword v{vt+6}, v{vt}, {srd(S_WS)}, 0 offen")
        a(f"buffer_load_dword v{vt+7}, off, {srd(S_OUT)}, 0")
        a(f"{L}:")

    FX_, FR_, FO_ = 222, 230, 234
    def final_pre(self):
        a = self.a
        vX, vR2, vt = self.FX_, self.FR_, self.FO_
        a(f"s_lshl_b32 s{sA}, s{sAW}, 4", f"s_lshl_b32 s{sB}, s{sI2}, 6", f"s_add_u32 s{sA}, s{sA}, s{sB}")
        a(f"v_lshrrev_b32 v{vt+1}, 3, v1", f"v_add_u32 v{vt+1}, s{sA}, v{vt+1}")
        a(f"v_mul_u32_u24 v{vt}, 896, v{vt+1}")
        a(f"s_lshl_b32 s{sA}, s{sJ2}, 7", f"s_movk_i32 s{sB}, {8*896}")
        a(f"v_and_b32 v{vR2}, 7, v1", f"v_lshlrev_b32 v{vR2}, 4, v{vR2}", f"v_add3_u32 v{vt}, v{vt}, v{vR2}, s{sA}")
        a(f"v_lshlrev_b32 v{vt+1}, 3, v{vt+1}", f"v_add_u32 v{vt+1}, {WS_R2}, v{vt+1}")
        self.vmem(f"buffer_load_dwordx4 v[{vX}:{vX+3}], v{vt}, {srd(S_X)}, 0 offen", "fx")
        self.vmem(f"buffer_load_dwordx4 v[{vX+4}:{vX+7}], v{vt}, {srd(S_X)}, s{sB} offen", "fx")
        self.r2load = [f"buffer_load_dwordx2 v[{vR2+2*h}:{vR2+2*h+1}], v{vt+1}, {srd(S_WS)}, 0 offen offset:{64*h} sc1" for h in range(2)]

    def final_addr(self, T):
        a = self.a
        vA, vB = T, T + 4
        a(f"v_lshrrev_b32 v{vA+2}, 3, v1", f"s_lshl_b32 s{sC}, s{sAW}, 4", f"v_add_u32 v{vA+3}, s{sC}, v{vA+2}")
        a(f"v_mul_u32_u24 v{vB}, 48, v{vA+3}")
        a(f"v_and_b32 v{vA+3}, 7, v1", f"v_xor_b32 v{vA+3}, v{vA+3}, v{vA+2}")
        a(f"v_lshlrev_b32 v{vA+3}, 4, v{vA+3}", f"v_lshl_add_u32 v{vA}, v{vA+2}, 7, v{vA+3}")
        a(f"s_lshl_b32 s{sC}, s{sAW}, 14", f"s_add_u32 s{sC}, s{sC}, {DBASE}")
        a(f"v_bfe_u32 v{vA+3}, v1, 2, 1", f"v_mul_u32_u24 v{vA+3}, {QB[1]}, v{vA+3}", f"v_add_u32 v{vB}, v{vB}, v{vA+3}")
        a(f"v_bfe_u32 v{vA+3}, v1, 1, 1", f"v_lshl_add_u32 v{vB}, v{vA+3}, 12, v{vB}")
        a(f"v_and_b32 v{vA+3}, 1, v1", f"v_lshl_add_u32 v{vB}, v{vA+3}, 4, v{vB}")
        a(f"v_add_u32 v{vA}, s{sC}, v{vA}")

    def final_x(self, T):
        a = self.a
        vX, vR2 = self.FX_, self.FR_
        E = T + 8
        if "fx" not in self.vm: self.vm.insert(0, "fx")
        self.spin(self.r2load, [vR2 + 1, vR2 + 3], first_issued_tag="fx", note=3)
        for i in range(8): a(f"v_lshlrev_b32 v{E+2*i}, 16, v{vX+i}", f"v_and_b32 v{E+2*i+1}, 0xffff0000, v{vX+i}")

    def final_rows(self, p, e, t, r2, vO, soff, w0):
        a = self.a
        for m in range(4):
            a(f"s_waitcnt lgkmcnt({w0 - m})")
            for i in range(4):
                if m == 0: a(f"v_lshlrev_b32 v{t+2*i}, 16, v{p+i}", f"v_and_b32 v{t+2*i+1}, 0xffff0000, v{p+i}")
                else: a(f"v_dot2c_f32_bf16 v{t+2*i}, s{sC}, v{p+4*m+i}", f"v_dot2c_f32_bf16 v{t+2*i+1}, s{sD}, v{p+4*m+i}")
        for i in range(0, 8, 2): a(f"v_pk_fma_f32 v[{e+i}:{e+i+1}], v[{t+i}:{t+i+1}], v[{r2}:{r2+1}], v[{e+i}:{e+i+1}] op_sel_hi:[1,0,1]")
        for i in range(4): a(f"v_cvt_pk_bf16_f32 v{p+i}, v{e+2*i}, v{e+2*i+1}")
        a(f"buffer_store_dwordx4 v[{p}:{p+3}], v{vO}, {srd(S_OUT)}, {soff} offen")

    def final(self, T):
        a = self.a
        vX, vR2, vO = self.FX_, self.FR_, self.FO_
        vA, vB = T, T + 4
        E = T + 8; Y = T + 24; P = T + 32
        self.auxbar(7, T + 6, extra=[f"ds_read_b128 v[{Y+4*h}:{Y+4*h+3}], v{vB} offset:{8*48*h}" for h in range(2)])
        for i in range(8):
            a(f"v_lshlrev_b32 v{vX}, 16, v{Y+i}", f"v_and_b32 v{vX+1}, 0xffff0000, v{Y+i}")
            a(f"v_add_f32 v{E+2*i}, v{E+2*i}, v{vX}", f"v_add_f32 v{E+2*i+1}, v{E+2*i+1}, v{vX+1}")
        F8 = self.opt("f8", 0)
        if F8:
            a(f"s_add_u32 s{sA}, s{sM0}, {XCH}", f"v_lshl_add_u32 v{T+6}, v1, 4, s{sA}")
            a(f"v_mov_b32 v{Y}, v{vR2+2}", f"v_add_u32 v{Y+1}, {8*896}, v{vO}")
            a(f"ds_write_b128 v{T+6}, v[{E+8}:{E+11}]", f"ds_write_b128 v{T+6}, v[{E+12}:{E+15}] offset:1024", f"ds_write_b64 v{T+6}, v[{Y}:{Y+1}] offset:2048")
            a("s_waitcnt lgkmcnt(0)")
        a(f"s_movk_i32 s{sB}, {8*896}")
        a(f"s_mov_b32 s{sC}, 0x3f80", f"s_mov_b32 s{sD}, 0x3f800000")
        a("s_barrier")
        self.stamp(8)
        NH = 1 if F8 else 2
        for h in range(NH):
            for m in range(4):
                r = P + 16 * h + 4 * m
                a(f"ds_read_b128 v[{r}:{r+3}], v{vA} offset:{4096*m + 1024*h}")
        for h in range(NH):
            self.final_rows(P + 16 * h, E + 8 * h, P + 32 + 8 * h, vR2 + 2 * h, vO, f"s{sB}" if h else "0", 4 * NH - 1 - 4 * h)
        self.stamp(9)
        self.write_stamps(1)
        a("s_endpgm")

    def gemm2_setup(self, vt):
        a = self.a
        vAD = 244; vD = [0, 252, 253, 254]
        sH, sDo, sM = 50, 51, 52
        a(f"v_lshrrev_b32 v{vt}, 2, v1", f"v_lshlrev_b32 v{vt}, 7, v{vt}", f"v_and_b32 v{vt+1}, 3, v1", f"v_lshl_add_u32 v{vt}, v{vt+1}, 3, v{vt}")
        a(f"v_bfe_u32 v{vt+1}, v1, 3, 2", f"v_lshl_add_u32 v{vt}, v{vt+1}, 5, v{vt}")
        a(f"v_add_u32 v{vt}, s{sM0}, v{vt}", f"s_add_u32 s{sM}, s{sM0}, {DBASE}")
        for dt in range(4): a(f"v_xor_b32 v{vAD+dt}, {32*dt}, v{vt}")
        a(f"s_mul_i32 s{sDo}, s{sW}, {448*896}", f"s_lshl_b32 s{sA}, s{sJ2}, 7", f"s_add_u32 s{sDo}, s{sDo}, s{sA}")
        a(f"s_mul_i32 s{sH}, s{sI2}, {HS}", f"s_mul_i32 s{sA}, s{sW}, {14*4096}", f"s_add_u32 s{sH}, s{sH}, s{sA}")
        if WS_H: a(f"s_add_u32 s{sH}, s{sH}, {WS_H}")
        G = self.G = type("G", (), {})()
        G.free = [196, 212]; G.wbuf = {}; G.hbuf = {}; G.lq = []
        def wdread(ks):
            G.wbuf[ks] = buf = G.free.pop(0); n = ks if ks < self.NX else (ks - self.NX) % 7; win = n // 4
            return [(f"ds_read_b64_tr_b16 v[{buf+4*dt+2*t}:{buf+4*dt+2*t+1}], v{vAD+4*win+dt} offset:{16384*(n%4) + 2048*t}", ks) for dt in range(4) for t in range(2)]
        def lds(r): a(r[0]); G.lq.append(r[1])
        def need_w(ks):
            lq = G.lq
            if ks not in lq: return
            k = len(lq) - 1 - max(i for i, x in enumerate(lq) if x == ks)
            a(f"s_waitcnt lgkmcnt({min(k, 15)})")
            del lq[:len(lq) - min(k, 15)]
        def dd(ks):
            out = []
            for k in range(4):
                pre = [f"s_add_u32 m0, s{sM}, {16384*((ks-self.NX)%7)}"] + self.ksoff(ks, 32 * 896, sDo) if k == 0 else []
                out.append((pre, f"buffer_load_dwordx4 v{vD[k]}, {srd(S_WD)}, s{sA} offen offset:{1024*k} lds", f"d{ks}"))
            return out
        def hl(ks):
            G.hbuf[ks] = buf = G.free.pop(0)
            return [(self.ksoff(ks, 4096, sH, sD) if b == 0 else [],
                     f"buffer_load_dwordx4 v[{buf+4*b}:{buf+4*b+3}], v2, {srd(S_WS)}, s{sD} offen offset:{1024*b}" + (" sc0" if "hl0" in self.opts else "" if "hlp" in self.opts else " sc1"), f"h{ks}") for b in range(4)]
        def vm(x):
            for y in x[0]: a(y)
            self.vmem(x[1], x[2])
        G.wdread, G.lds, G.need_w, G.dd, G.hl, G.vm = wdread, lds, need_w, dd, hl, vm

    def gemm2(self):
        a = self.a
        G = self.G
        wdread, lds, need_w, dd, hl, vm = G.wdread, G.lds, G.need_w, G.dd, G.hl, G.vm
        free, wbuf, hbuf, lq = G.free, G.wbuf, G.hbuf, G.lq
        ACC = 68
        vFO = 3; vFL = 255; vt = 252; sM = 52
        self.stamp2(1)
        a(f"s_lshr_b32 s{sB}, s{sI2}, 1", f"s_lshl_b32 s{sB}, s{sB}, 11", f"s_add_u32 s{sA}, s{sB}, {WS_FH}")
        a(f"v_lshrrev_b32 v{vFO}, 2, v1", f"v_min_u32 v{vFO}, 13, v{vFO}", f"v_lshl_add_u32 v{vFO}, v{vFO}, 7, s{sA}")
        for dt in range(4): a(f"v_add_u32 v{244+dt}, {DBASE}, v{244+dt}", f"v_add_u32 v{248+dt}, 0x10000, v{244+dt}")
        for k in range(1, 4): a(f"v_add_u32 v{251+k}, {k*(7168-1024)}, v0")
        free += [132, 148, 164, 180, 228, 4, 20, 36, 52]
        fl = f"buffer_load_dword v{vFL}, v{vFO}, {srd(S_WS)}, 0 offen " + ("nt" if "flnt" in self.opts else "sc1")
        if self.opt("lp", 0): a("s_setprio 0")
        self.await_(0, ACC, "same", sleep=self.opt("asl", 0))
        NDA = self.NDA + self.NX
        for ks in range(self.NX, NDA):
            for r in wdread(ks): lds(r)
        self.wait_vm("hst")
        self.signal(5, ACC)
        self.stamp2(2)
        self.await_(5, ACC, "all", sleep=self.opt("asl", 0)); lq.clear()
        Lw = self.lab("Lg")
        a(f"s_cmp_lg_u32 s{sW}, 0", f"s_cbranch_scc1 {Lw}")
        a(f"v_mov_b32 v{vFL}, s{sTAG}", f"v_lshlrev_b32 v{ACC}, 2, v1", "s_mov_b32 exec_hi, 0")
        a(f"buffer_store_dword v{vFL}, v{ACC}, {srd(S_WS)}, s{sG} offen" + ("" if "fpl" in self.opts else " sc1"))
        a("s_mov_b32 exec_hi, -1", f"{Lw}:")
        if self.opt("wi", 1): self.await_(2, ACC, "all", sleep=self.opt("asl", 0))
        a("s_setprio 0")
        ND = min(self.opt("nd", 14), 7 + NDA)
        nw = NDA
        NM = 14 - self.NV
        NE = min(self.opt("ne", 14), NM)
        ND = min(ND, NE)
        FP = NE - self.opt("fp", 3)
        def ddu(ks):
            if ks == FP:
                L = self.lab("Lg")
                a(f"s_cmp_lg_u32 s{sW}, 0", f"s_cbranch_scc1 {L}", fl, f"{L}:")
            for x in dd(ks): vm(x)
        for ks in range(NDA, ND): ddu(ks)
        while ND < NE:
            for _ in range(min(2, NE - ND)):
                self.wait_vm(f"d{nw}")
                for r in wdread(nw): lds(r)
                nw += 1
            while ND < NE and ND - 7 < nw:
                need_w(ND - 7); ddu(ND); ND += 1
        Lw, Lj = self.lab("Lg"), self.lab("Lg")
        vm0 = list(self.vm)
        a(f"s_cmp_lg_u32 s{sW}, 0", f"s_cbranch_scc1 {Lw}")
        self.stamp2(3)
        if FP < NE: self.vm.insert(self.vm.index(f"d{FP}") if f"d{FP}" in self.vm else len(self.vm), "fl")
        self.spin([fl], [vFL], first_issued_tag=("fl" if FP < NE else None), sleep=self.opt("fsl", 1), note=2)
        self.signal(6, ACC)
        a(f"s_branch {Lj}", f"{Lw}:")
        self.vm = vm0
        self.await_(6, ACC, "zero", sleep=self.opt("asl", 0))
        a(f"{Lj}:")
        self.stamp2(4)
        nh = 0
        while free and nh < self.opt("h0", 6):
            for x in hl(nh): vm(x)
            nh += 1
        nd = ND
        def putp(t):
            l2, d2 = divmod(t, 4); r = ACC + 4 * t
            a(f"v_cvt_pk_bf16_f32 v{r}, v{r}, v{r+1}", f"v_cvt_pk_bf16_f32 v{r+1}, v{r+2}, v{r+3}")
            a(f"ds_write_b64 v{vt+d2}, v[{r}:{r+1}] offset:{16384*l2}")
        for s_ in range(14):
            self.wait_vm(f"h{s_}")
            need_w(s_)
            if s_ in (0, 7): self.stamp2({0: 5, 7: 6}[s_])
            if s_ % 2 == 0: self.cstamp2(s_ // 2)
            if s_ == self.opt("mup", 99): a("s_setprio 2")
            rd = []; vq = []; nd0 = nd; nw0_ = nw
            if nd < NM and nd - 7 < nw and s_ >= nd - self.opt("dj", 99):
                need_w(nd - 7); vq += dd(nd); nd += 1
            while nw < 14 and (nw <= s_ + self.opt("wa", 2) or (nw < 7 and nd < NM and not rd and self.opt("dj", 99) == 99)) and free:
                assert nw < nd0 or nw >= NM
                if nw == NM:
                    L = self.lab("Lv")
                    need_w(-11)
                    a(f"v_cmp_ne_u32 vcc, s{sTAG}, v{vFL}", "s_nop 4", f"s_cbranch_vccz {L}")
                    self.await_(11, free[0], "same")
                    a(f"{L}:")
                self.wait_vm(f"d{nw}")
                rd += wdread(nw); nw += 1
            while nh < 14 and nh < s_ + self.opt("hd", 5) and len(free) > (1 if nw < 14 else 0):
                vq += hl(nh); nh += 1
            if s_ == self.opt("yw", -1):
                assert nd == NM; self.signal(10, vt); lq.append(-1)
            if s_ == self.opt("ys", 6):
                assert nw0_ >= 7
                self.signal(4, free[0]); lq.append(-1)
            if s_ == 12:
                a(f"v_and_b32 v{vt}, 7, v1", f"v_lshrrev_b32 v{vt+1}, 5, v1", f"v_xor_b32 v{vt+1}, v{vt+1}, v{vt}", f"v_lshlrev_b32 v{vt+1}, 4, v{vt+1}")
                a(f"v_and_b32 v{vt}, 15, v1", f"v_lshl_add_u32 v{vt}, v{vt}, 7, s{sM}", f"v_add_u32 v{vt}, v{vt}, v{vt+1}")
                a(f"v_bfe_u32 v{vt+1}, v1, 4, 1", f"v_lshl_add_u32 v{vt}, v{vt+1}, 3, v{vt}")
                for dt in range(1, 4): a(f"v_xor_b32 v{vt+dt}, {32*dt}, v{vt}")
            if self.NV and s_ + 1 + self.opt("wa", 2) == NM:
                a(f"s_lshl_b32 s{sA}, s{sAW}, 2", f"v_mov_b32 v{vFO}, s{sA}")
                rd = rd + [(f"ds_read_b32 v{vFL}, v{vFO} offset:{AUXCNT + 16*11}", -11)]
            wb, hb = wbuf[s_], hbuf[s_]
            i = 0; nvq = len(vq)
            TIDY = self.opt("tidy", 1) and nvq <= 4
            if TIDY:
                fl_ = []
                for x in vq: fl_ += [("s", y) for y in x[0]] + [("v", x)]
                vq = []
                spos = [k for k in range(16) if k % 2 == 1]
            for lb in range(4):
                for dt in range(4):
                    d = ACC + 4 * (4 * lb + dt)
                    c = "0" if s_ == 0 else f"v[{d}:{d+3}]"
                    a(f"v_mfma_f32_16x16x32_bf16 v[{d}:{d+3}], v[{wb+4*dt}:{wb+4*dt+3}], v[{hb+4*lb}:{hb+4*lb+3}], {c}")
                    if rd and (not TIDY or i % 2 == 0 or len(rd) > (16 - i) // 2):
                        r_ = rd.pop(0)
                        if r_: lds(r_)
                    PD = self.opt("pd", 4)
                    if s_ == 13 and i >= PD: putp(i - PD)
                    if TIDY and i % 2 == 1 and fl_:
                        k_, x = fl_.pop(0)
                        if k_ == "s": a(x)
                        else: self.vmem(x[1], x[2])
                    if vq and i % (4 if nvq <= 4 else 2) == 1: vm(vq.pop(0))
                    i += 1
            assert not rd
            if TIDY: assert not fl_
            for x in vq: vm(x)
            free += [wb, hb]
        self.stamp2(7)
        self.cstamp2(7)
        for t in range(16 - self.opt('pd', 4), 16): putp(t)
        if self.opt("f8", 0):
            T = 132
            a(f"v_lshrrev_b32 v{T}, 3, v1", f"v_and_b32 v{T+1}, 7, v1", f"v_xor_b32 v{T+1}, v{T+1}, v{T}", f"v_lshlrev_b32 v{T+1}, 4, v{T+1}", f"v_lshl_add_u32 v{T}, v{T}, 7, v{T+1}")
            a(f"s_lshl_b32 s{sA}, s{sAW}, 14", f"s_add_u32 s{sA}, s{sA}, {DBASE + 1024}", f"v_add_u32 v{T}, s{sA}, v{T}")
            a(f"s_add_u32 s{sA}, s{sM0}, {XCH}", f"v_add_u32 v{T+1}, s{sA}, v2")
            a(f"s_mov_b32 s{sC}, 0x3f80", f"s_mov_b32 s{sD}, 0x3f800000")
        a("s_waitcnt lgkmcnt(0)")
        self.cstamp2(8)
        a("s_barrier")
        self.cstamp2(9)
        self.stamp(8)
        if self.opt("f8", 0):
            a(f"ds_read_b128 v[{T+4}:{T+7}], v{T+1}", f"ds_read_b128 v[{T+8}:{T+11}], v{T+1} offset:1024", f"ds_read_b64 v[{T+2}:{T+3}], v{T+1} offset:2048")
            for m in range(4): a(f"ds_read_b128 v[{T+12+4*m}:{T+15+4*m}], v{T} offset:{4096*m}")
            self.final_rows(T + 12, T + 4, T + 28, T + 2, T + 3, "0", 3)
            self.stamp(9)
        self.write_stamps(0)
        a("s_endpgm")

    def dma_ops(self, u):
        base = slot_addr(self.uslot(u)) if u < 26 else 16384 * (u - 26)
        tag = f"u{u}"
        ROT = self.opt("ri", 0) or self.opt("rj", 0)
        def rot(c, mul, sb, extra):
            if not ROT: return [f"s_add_u32 s{sA}, s{sb}, {c * mul + extra}"]
            return [f"s_cmp_ge_u32 s54, {7 - c}", f"s_cselect_b32 s{sA}, {7 * mul}, 0", f"s_sub_u32 s{sA}, s{sb}, s{sA}", f"s_add_u32 s{sA}, s{sA}, {c * mul + extra}"]
        if u < 21 and u % 3 == 1: vo, sr, pre = voX, S_X, rot(u // 3, 128, sXB, 0)
        elif u < 21:              vo, sr, pre = voW, S_WG, rot(u // 3, 64 * 3584, sWB, 16 * (u % 3) * 3584)
        else:                     vo, sr, pre = voD, S_WD, self.ksoff(u - 21 + self.NX if u < 26 else u - 26, 32 * 896, sDB)
        m0cmd = f"s_add_u32 m0, s{sM0}, {base}"
        return [(pre, f"buffer_load_dwordx4 v{vo+k}, {srd(sr)}, s{sA} offen offset:{1024*k} lds", tag, m0cmd) for k in range(4)]
    @staticmethod
    def ksoff(step, mul, sbase, dst=sA):
        return [f"s_mul_i32 s{dst}, s{sKS + step // 2}, {2*mul}", f"s_add_u32 s{dst}, s{dst}, s{sbase}"] + ([f"s_add_u32 s{dst}, s{dst}, {mul}"] if step & 1 else [])
    def emit_aux(self, x):
        a = self.a
        if isinstance(x, tuple):
            if x[3] and self.m0 != x[3]: a(x[3]); self.m0 = x[3]
            if self.sa_tag != x[2]:
                for y in x[0]: a(y)
                self.sa_tag = x[2]
            self.vmem(x[1], x[2])
        elif x == "@prm": self.wait_vm("prm")
        else:
            if x.startswith("ds_write_addtid") and self.m0 != "sb":
                a(f"s_mov_b32 m0, s{sSB}"); self.m0 = "sb"
            a(x)

    def signal(self, k, vt):
        a = self.a
        a(f"s_lshl_b32 s{sA}, s{sAW}, 2", f"v_mov_b32 v{vt}, s{sA}", f"v_mov_b32 v{vt+1}, s{sTAG}")
        a(f"ds_write_b32 v{vt}, v{vt+1} offset:{AUXCNT + 16*k}")
    def await_(self, k, vt, who, extra=(), sleep=0):
        a = self.a
        L0, L1 = self.lab("Lab"), self.lab("Lae")
        if who == "all": a(f"v_and_b32 v{vt}, 3, v1", f"v_lshlrev_b32 v{vt}, 2, v{vt}")
        elif who == "zero": a(f"v_mov_b32 v{vt}, 0")
        else:
            a(f"s_lshl_b32 s{sA}, s{sAW}, 2")
            if who == "pair": a(f"s_xor_b32 s{sA}, s{sA}, 4")
            a(f"v_mov_b32 v{vt}, s{sA}")
        a(f"s_mov_b32 s{sSPIN}, {SPIN_MAX*10}")
        a(f"{L0}:", f"ds_read_b32 v{vt+1}, v{vt} offset:{AUXCNT + 16*k}")
        for x in extra: a(x)
        a("s_waitcnt lgkmcnt(0)", f"v_cmp_ne_u32 vcc, s{sTAG}, v{vt+1}", f"s_sub_u32 s{sSPIN}, s{sSPIN}, 1", "s_nop 3", f"s_cbranch_vccz {L1}")
        if sleep: a(f"s_sleep {sleep}")
        a(f"s_cmp_lg_u32 s{sSPIN}, 0", f"s_cbranch_scc1 {L0}")
        a(f"{L1}:")
    def auxbar(self, k, vt, pair=False, extra=()):
        self.signal(k, vt)
        self.await_(k, vt, "pair" if pair else "all", extra)

    def aux(self):
        a = self.a
        self.role = 'A'; self.m0 = None; self.sa_tag = None
        self.sCH_, self.sPT = sCH_, sPT = 48, 47
        self.cACC, self.cAF, self.cBF, self.vQA, self.vUA = 12, 44, 108, 172, 180
        vN, vt, UR = 181, 182, 192
        GATE = self.opt("gate", 8)
        def gate():
            if len(self.vm) > GATE:
                a(f"s_waitcnt vmcnt({GATE})"); self.vm = self.vm[-GATE:]
        def units(us, g=True):
            for u in us:
                self.sa_tag = None
                if g: gate()
                for x in self.dma_ops(u): self.emit_aux(x)
        N0 = self.opt("n0", 3)
        TA = self.opt("ta", 99)
        def touch():
            mask = self.opt("tk", 3)
            a(f"s_and_b32 s{sB}, s{sAW}, 1", f"s_lshl1_add_u32 s{sB}, s{sT}, s{sB}")
            if mask & 1:
                a(f"s_mul_i32 s{sA}, s{sB}, {28*128}", f"v_min_u32 v236, 27, v1", f"v_lshlrev_b32 v236, 7, v236")
                self.vmem(f"buffer_load_dword v237, v236, {srd(S_WG)}, s{sA} offen", "tch")
            if mask & 2:
                a(f"s_lshl2_add_u32 s{sB}, s{sT}, s{sAW}", f"s_mul_i32 s{sA}, s{sB}, {14*128}", f"v_min_u32 v236, 13, v1", f"v_lshlrev_b32 v236, 7, v236")
                self.vmem(f"buffer_load_dword v238, v236, {srd(S_WD)}, s{sA} offen", "tch")
        E0 = self.opt("e0", 0)
        setup = self.kgen_setup()
        def params():
            for b in range(2):
                for k in range(4):
                    self.vmem(f"global_load_ushort v{self.kregs[0]+4*b+k}, v19, s[{S_P+2*k}:{S_P+2*k+1}] offset:{128*b}", "prm")
        assert not E0
        units([0], False)
        a("v_lshrrev_b32 v5, 3, v1", "v_and_b32 v6, 7, v1", "v_mul_u32_u24 v15, 896, v5", "v_xor_b32 v14, v7, v6", f"v_lshl_add_u32 v{voX}, v14, 4, v15")
        a(f"s_lshl2_add_u32 s{sB}, s{sI}, s{sAW}", f"s_mul_i32 s{sXB}, s{sB}, {32*896}")
        a(f"v_xor_b32 v14, 64, v{voX}", f"v_add_u32 v{voX+1}, {7168-1024}, v14", f"v_add_u32 v{voX+2}, {2*(7168-1024)}, v{voX}", f"v_add_u32 v{voX+3}, {3*(7168-1024)}, v14")
        units(range(1, N0), False)
        self.rest_srd(); self.rest_ids()
        a(f"s_lshl_b32 s{sD}, s{sT}, 10", f"s_lshl_b32 s{sE}, s{sAW}, 8", f"s_add_u32 s{sD}, s{sD}, s{sE}")
        a(f"v_lshl_add_u32 v19, v1, 1, s{sD}", f"s_lshl_b32 s{sF}, s{sT}, 2")
        if "k2" in self.opts:
            self.stampk(5); a("s_waitcnt vmcnt(8)"); self.stampk(6); a("s_waitcnt vmcnt(4)"); self.stampk(7)
        PRM = self.kregs[0]; kv = self.kvt
        a(f"s_load_dword s{sLD}, s[{S_P+8}:{S_P+9}], s{sF}", f"s_load_dword s{sDS}, s[{S_P+10}:{S_P+11}], s{sF}")
        setup = [f"v_add_u32 v{voD+k}, {k*(7168-1024)}, v{voD}" for k in range(1, 4)] + \
                [f"s_mul_i32 s{sDB}, s{sAW}, {448*896}", f"s_lshl_b32 s{sB}, s{sJ2}, 7", f"s_add_u32 s{sDB}, s{sDB}, s{sB}",
                 f"s_lshr_b32 s{sCH_}, s{sAW}, 1", f"s_and_b32 s{sPT}, s{sAW}, 1"] + setup
        DS = self.opt("ds", 0)
        if not DS:
            for x in setup: a(x)
        V0, B0, M0 = self.kgen_body(True, 0); V1, B1, M1 = self.kgen_body(False, 1)
        work = ["@prm"] + self.kgen_scale() + V0 + V1; nV1 = len(V1)
        const_row = [f"v_lshlrev_b32 v{kv}, 2, v1", f"v_mov_b32 v{kv+1}, 0x3c00", f"ds_write_b32 v{kv}, v{kv+1} offset:31984"]
        if E0:
            for x in self.ks_table(): a(x)
            for x in const_row: a(x)
            for x in work[:len(work) - nV1]: self.emit_aux(x)
            work = V1
            self.stamp3(6)
            nb = self.opt("eb0", len(B0))
            for x in B0[:nb]: self.emit_aux(x)
            del B0[:nb]
        if "eb" in self.opts:
            sv = self.a; self.a = Asm(); self.conv_addr(8, 39, 40); work += [c.text for c in self.a.ins]; self.a = sv
        SL = self.opt("sl", 20 if E0 else 32); KS = self.opt("ks", 2); PI = self.opt("pi", 0)
        fx = f"buffer_load_dword v{vt+1}, v{vt}, {srd(S_WS)}, 0 offen sc1"
        LB = self.opt("lb", 11)
        SCHED = {0: [[3,4],[5,6,7],[8],[9,10],[26],[11,12],[13,14],[27],[15,16],[17,18],[19,20],[21]],
                 1: [[3,4],[5,6,7],[8,26],[9,10],[11],[12,13],[14,27],[15,16],[17],[18,19],[20],[21]],
                 2: [[3,4],[5,6],[7,8],[9,10],[11,26],[12,13],[14,27],[15,16],[17],[18,19],[20],[21,22]],
                 3: [[3,4],[5,6],[7,8],[9,10],[26],[11,12],[13,14],[27],[15,16],[17,18],[19,20],[21]],
                 6: [[3,4],[5,6],[7,8],[9,10],[26],[11,12],[13,14],[27],[15,16],[17,18],[19,20],[21,22]],
                }[self.opt("sch", 3)]
        IG = self.opt("ig", 0)
        done = set(range(N0))
        regq = [(u, o) for u in range(N0, 22) for o in self.dma_ops(u)]
        xq = (self.dma_ops(26) + self.dma_ops(27))[:4 * self.NX]
        self.VG = [200, 204, 208, 212, 216, 236, 188, 252, 240, 244]
        def vdops(i):
            return [(self.ksoff(14 - self.NV + i, 32 * 896, sDB), f"buffer_load_dwordx4 v[{self.VG[4*i+k]}:{self.VG[4*i+k]+3}], v{voD+k}, {srd(S_WD)}, s{sA} offen offset:{1024*k}", f"vd{i}", None) for k in range(4)]
        vearly = {self.opt("va", -1): 0, self.opt("vb2", -2): 1}
        vdone = set()
        def wait_unit(u):
            assert not any(x[0] == u for x in regq) and not any(o[2] == f"u{u}" for o in xq) or not self.opt("bud", 7), (u, "not issued")
            self.wait_vm(f"u{u}")
        for n in range(LB + 1):
            if n == LB and not self.opt("fl", 1): self.vmem(fx, "fxf")
            self.sa_tag = None
            nsl = 0 if n < KS else SL
            E1 = self.opt("e1", 0)
            if E1:
                rest0 = max(0, len(work) - nV1)
                VB_, VE_ = self.opt("vb", 1), self.opt("ve", 2)
                nsl = 0 if n < VB_ else (-(-rest0 // (VE_ - n + 1)) if n <= VE_ else self.opt("sl1", 20))
            sl = work[:nsl]; del work[:nsl]
            if DS and n == DS: sl = setup + sl
            if "nokg" in self.opts: sl = []
            BUD = self.opt("bud", 7)
            if BUD:
                lb_ = max([b for b in self.BARS if b < n], default=0)
                lim = 8 + 3 * (lb_ // 2) + (lb_ % 2)
                bud = (5 - N0) * 4 if n == 0 else (self.opt("bud1", 8) if n <= 2 else 8 if n == LB else BUD)
                ops = []
                XT = []
                if n in (self.opt("xa", 4), self.opt("xb", 6)): XT = xq[:4]; del xq[:4]; bud -= len(XT) * self.opt("xc", 1)
                while len(ops) < bud:
                    if regq and regq[0][0] < lim: ops.append(regq.pop(0)[1])
                    elif xq and n >= self.opt("x0", 99): ops.append(xq.pop(0))
                    else: break
                ops += XT
                if n in vearly and vearly[n] < self.NV: ops += vdops(vearly[n]); vdone.add(vearly[n])
                print("interval", n, [o[2] for o in ops], file=sys.stderr) if "v" in self.opts else None
                if n == LB: assert not regq and not xq
            else:
                us = [u for u in SCHED[n] if u not in done]; done.update(us)
                ops = []
                for u in us: ops += self.dma_ops(u)
            gap = max(1, len(sl) // (len(ops) + 1)) if ops else 0
            if "noil" in self.opts: gap = 0
            for i, x in enumerate(sl):
                while ops and (gap == 0 or i % gap == 0):
                    self.emit_aux(ops.pop(0))
                    if gap: break
                self.emit_aux(x)
            for o in ops: self.emit_aux(o)
            if n == 0 and TA == 5: touch()
            if n == PI and not E0:
                params()
                for x in self.ks_table(): a(x)
            if E0 and n == self.opt("em", 1):
                for x in B0: self.emit_aux(x)
                B0.clear()
                a("s_waitcnt lgkmcnt(0)", "s_setprio 3")
                for x in M0: a(x)
                M0.clear()
                a("s_setprio 0")
            if E1 and n > VE_ and (B0 or M0):
                assert len(work) <= nV1
                if n == VE_ + 1:
                    for x in const_row: a(x)
                if B0:
                    if self.opt("bp", 0): a(f"s_setprio {self.opt('bp', 0)}")
                    k_ = self.opt("bn", 20)
                    for x in B0[:k_]: self.emit_aux(x)
                    del B0[:k_]
                    if not B0: a("s_waitcnt lgkmcnt(0)")
                    if self.opt("bp", 0): a("s_setprio 0")
                    assert len(xq) == 4 * self.NX, "scratch still in use"
                else:
                    a("s_setprio 3")
                    for x in M0: a(x)
                    M0.clear()
                    a("s_setprio 0")
            if n == 0: self.stamp(1)
            if n == self.opt("xi", 4): self.final_pre()
            if n == self.opt("fw", 8):
                L = self.lab("Lfw")
                a(f"s_cmp_lg_u32 s{sAW}, 0", f"s_cbranch_scc1 {L}")
                a(f"s_lshl4_add_u32 s{sB}, s{sI}, s{sJ}", f"s_lshl_b32 s{sB}, s{sB}, 7", f"s_add_u32 s{sB}, s{sB}, {WS_FH}")
                a(f"v_mov_b32 v10, 0", f"v_lshlrev_b32 v9, 2, v1", "s_mov_b32 exec_hi, 0", f"buffer_store_dword v10, v9, {srd(S_WS)}, s{sB} offen" + ("" if "fpl" in self.opts else " sc1"), "s_mov_b32 exec_hi, -1")
                a(f"{L}:")
            if n == 5: self.vmem(self.nonce_load(vN), "non")
            if n == max(1, DS + 1):
                a(f"s_lshl_b32 s{sB}, s{sAW}, 10", f"s_add_u32 s{sB}, s{sB}, {WS_FX}", f"v_lshrrev_b32 v{vt}, 3, v1", f"v_lshl_add_u32 v{vt}, v{vt}, 7, s{sB}")
                a(f"v_lshrrev_b32 v{vt+2}, 4, v1", f"v_mul_u32_u24 v{vt+2}, {448*128}, v{vt+2}", f"v_bfe_u32 v{vt+3}, v1, 1, 3", f"v_lshl_add_u32 v{vt+2}, v{vt+3}, 6, v{vt+2}")
                a(f"v_and_b32 v{vt+3}, 1, v1", f"v_lshl_add_u32 v{vt+2}, v{vt+3}, 4, v{vt+2}")
                a(f"v_mul_u32_u24 v{vt+3}, {UB[1]-UB[0]}, v{vt+3}", f"v_lshrrev_b32 v{vt+4}, 1, v1", f"v_lshl_add_u32 v{vt+3}, v{vt+4}, 4, v{vt+3}")
                a(f"s_lshl_b32 s{sB}, s{sAW}, 10", f"s_add_u32 s{sB}, s{sB}, {UB[0] + 512}", f"v_add_u32 v{vt+3}, s{sB}, v{vt+3}")
                a(f"s_lshl1_add_u32 s{sE}, s{sT}, s{sCH_}")
                a(f"s_lshr_b32 s{sC}, s{sT}, 1", f"s_lshl_b32 s{sC}, s{sC}, 9", f"s_and_b32 s{sB}, s{sT}, 1", f"s_lshl_b32 s{sB}, s{sB}, 5", f"s_add_u32 s{sC}, s{sC}, s{sB}")
                a(f"s_mul_i32 s{sB}, s{sAW}, {8*448*128}", f"s_add_u32 s{sC}, s{sC}, s{sB}", f"s_add_u32 s{sC}, s{sC}, {WS_XNT}", f"s_add_u32 s{sD}, s{sC}, {4*448*128}")
            if n == 10: self.get_nonce(vN, issued="non")
            if n not in self.BARS: continue
            nxt_ = min([b for b in self.BARS if b > n], default=14)
            if n <= LB - 2 < nxt_: wait_unit(26)
            if n <= LB - 1 < nxt_: wait_unit(27)
            g_ = nxt_ - 1
            wait_unit(3 * (g_ // 2) + 1 + (g_ % 2))
            a("s_barrier")
            if n == 0: self.stamp(2)
        self.stamp(3)
        print("K-gen instrs left after the last barrier:", len(work), file=sys.stderr)
        NDA = self.NDA
        def ublock():
            self.spin([fx], [vt + 1], first_issued_tag="fxf", note=1)
            self.stamp(4)
            for k in range(2):
                self.vmem(f"buffer_load_dwordx4 v[{UR+4*k}:{UR+4*k+3}], v{vt+2}, {srd(S_WS)}, s{sD if k else sC} offen sc1", "uu")
            for x in self.r2load: self.vmem(x, "fx")
        FL = self.opt("fl", 1)
        def vdload(i, g=True):
            if i in vdone: return
            if g: gate()
            self.sa_tag = None
            for x in vdops(i): self.emit_aux(x)
        if FL == 4:
            def burst(n):
                for _ in range(n): self.emit_aux(B0.pop(0))
            self.vmem(fx, "fxf")
            units([u for u in range(22, 21 + min(NDA, 3)) if u not in done], False); done.update((22, 23))
            a(f"s_setprio {self.opt('ap2', 1)}")
            sv = self.a; self.a = Asm(); self.conv_addr(8, 39, 40); work += [c.text for c in self.a.ins]; self.a = sv
            for x in const_row: a(x)
            const_row = []
            while work:
                for x in work[:4]: self.emit_aux(x)
                del work[:4]; burst(1)
            for i in range(self.NV): vdload(i, False); burst(self.opt("bv", 3))
            ublock()
        else:
            if not FL: ublock()
            if FL == 1: self.vmem(fx, "fxf")
            if FL: units([u for u in range(22, 21 + min(NDA, 3)) if u not in done]); done.update((22, 23))
            if FL == 2: self.vmem(fx, "fxf")
            for x in work: self.emit_aux(x)
            self.conv_addr(8, 39, 40)
            for i in range(self.NV): vdload(i)
            if FL: ublock()
            units([u for u in range(22, 21 + min(NDA, 3)) if u not in done])
        if NDA > 3:
            self.await_(8, kv, "all", sleep=1)
            units(range(24, 21 + NDA))
        if "auxidle" in self.opts:
            self.wait_vm_all(); self.signal(0, kv); a("s_barrier"); self.write_stamps(1); a("s_endpgm"); return
        if "nok" in self.opts:
            for i in range(self.opt("xv", 0)):
                gate()
                for x in self.ksoff(11 - i, 32 * 896, sDB): a(x)
                for k in range(4): self.vmem(f"buffer_load_dwordx4 v[{140+4*k}:{143+4*k}], v{voD+k}, {srd(S_WD)}, s{sA} offen offset:{1024*k}", "vd")
            self.wait_vm(f"u{20 + NDA}"); self.signal(0, kv)
            self.wait_vm("uu")
            for k in range(2): a(f"ds_write_b128 v{vt+3}, v[{UR+4*k}:{UR+4*k+3}] offset:{512*k}")
            self.auxbar(2, kv + 1, extra=self.areads(0)[:2] + self.breads(0))
            for r in self.areads(0)[2:]: a(r)
            a(f"s_setprio {self.opt('ap3', 1)}")
            self.conv(); return
        self.stamp3(1)
        a(f"s_setprio {self.opt('ap2', 1)}")
        for x in const_row: a(x)
        for x in B0: self.emit_aux(x)
        if E0 or self.opt("e1", 0):
            for x in B1[:39]: self.emit_aux(x)
            del B1[:39]
        self.wait_vm(f"u{20 + NDA}")
        self.signal(0, kv)
        self.stamp3(2)
        a(f"v_and_b32 v{kv}, 3, v1", f"v_lshlrev_b32 v{kv}, 2, v{kv}")
        B1.insert(len(B1) - 8, f"ds_read_b32 v{kv+2}, v{kv} offset:{AUXCNT + 16*9}")
        for i, x in enumerate(B1):
            self.emit_aux(x)
            if i == 14 and M0: a("s_waitcnt lgkmcnt(15)")
            if i >= 14 and i % 4 == 2 and M0: a(M0.pop(0))
        assert not M0
        for k, x in enumerate(M1):
            a(f"s_waitcnt lgkmcnt({7-k})"); a(x)
        self.stamp3(3)
        L = self.lab("Lv")
        a(f"v_cmp_ne_u32 vcc, s{sTAG}, v{kv+2}", "s_nop 4", f"s_cbranch_vccz {L}")
        self.await_(9, kv + 1, "all")
        a(f"{L}:")
        self.image(UR, vt)
        a(f"s_setprio {self.opt('ap3', 1)}")
        self.conv()

    def image(self, UR, vt):
        a = self.a
        KD, BF, AF, vA = self.KD, self.kBF, self.kAF, self.kvt
        sCH_, sPT = self.sCH_, self.sPT
        def by_part(f):
            L1, L2 = self.lab("Lp"), self.lab("Lp")
            a(f"s_cmp_eq_u32 s{sPT}, 0", f"s_cbranch_scc0 {L1}")
            f(0); a(f"s_branch {L2}", f"{L1}:"); f(1); a(f"{L2}:")
        keep = {0: range(0, 12), 1: range(12, 16)}
        a(f"s_add_u32 s{sC}, s{sM0}, {slot_addr(2) if 'eb' in self.opts else XCH}", f"v_lshl_add_u32 v{vA}, v1, 4, s{sC}")
        a(f"v_xor_b32 v10, 0x1000, v{vA}")
        O = AF
        blocks = [[KD + i for i in range(9)], [KD + 9] * 3 + [KD + 10] * 3 + [KD + 11] * 3]
        for k, r0 in enumerate((KD + 12, KD + 14)):
            blocks.append([r0] * 4 + [BF + k] + [r0 + 1] * 4)
        a(f"s_mul_i32 s{sD}, s{sCH_}, {QB[1]}")
        self.wait_vm("uu")
        def f(pt):
            K = list(keep[pt])
            for r in list(keep[1 - pt])[::4]:
                for q in (r, r + 2): a(f"v_pk_mul_f32 v[{KD+q}:{KD+q+1}], v[{KD+q}:{KD+q+1}], v[18:19] op_sel_hi:[1,0]")
                a(f"ds_write_b128 v{vA}, v[{KD+r}:{KD+r+3}] offset:{256*r}")
            self.auxbar(1, vA + 1, extra=[f"ds_read_b128 v[{BF+16+r}:{BF+16+r+3}], v10 offset:{256*r}" for r in K[::4]])
            self.stamp3(4)
            for k in range(2): a(f"ds_write_b128 v{vt+3}, v[{UR+4*k}:{UR+4*k+3}] offset:{512*k}")
            a(f"v_lshl_add_u32 v{vA}, v1, 5, s{sD}")
            if pt == 0:
                a(f"v_cmp_eq_u32 vcc, 0, v1", f"v_mov_b32 v{vA+2}, s{sDS}", f"v_cndmask_b32 v{vA+2}, 0, v{vA+2}, vcc", f"v_add_f32 v{BF+16}, v{BF+16}, v{vA+2}")
            else:
                a(f"v_and_b32 v{vA+1}, 1, v1", f"v_cmp_eq_u32 vcc, 1, v{vA+1}")
            for r in K[::2]: a(f"v_pk_fma_f32 v[{KD+r}:{KD+r+1}], v[{KD+r}:{KD+r+1}], v[18:19], v[{BF+16+r}:{BF+16+r+1}] op_sel_hi:[1,0,1]")
            if pt:
                for k, r0 in enumerate((KD + 12, KD + 14)): a(f"v_cndmask_b32 v{BF+k}, v{r0}, v{r0+1}, vcc")
            for bi in (2 * pt, 2 * pt + 1):
                v = blocks[bi]
                for e_ in range(8): a(f"v_cvt_pk_bf16_f32 v{O+8*bi+e_}, v{v[e_+1]}, v{v[e_]}")
                for h in range(2): a(f"ds_write_b128 v{vA}, v[{O+8*bi+4*h}:{O+8*bi+4*h+3}] offset:{64 + 2048*bi + 16*h}")
            if pt == 0:
                a(f"v_readfirstlane_b32 s{sA}, v{O}")
                a(f"s_lshr_b32 s{sA}, s{sA}, 16", f"v_mov_b32 v{vA+1}, s{sA}", f"v_and_b32 v{vA+2}, 15, v1", f"v_cmp_eq_u32 vcc, 15, v{vA+2}")
                a(f"v_cndmask_b32 v{vA+1}, 0, v{vA+1}, vcc", f"v_lshl_add_u32 v{vA+2}, v{vA+2}, 2, s{sD}")
                a(f"ds_write_b32 v{vA+2}, v{vA+1}")
            else:
                a(f"s_mul_i32 s{sD}, s{sCH_}, {UB[1]-UB[0]}", f"v_lshl_add_u32 v{vA+2}, v1, 3, s{sD}")
                a(f"v_mov_b32 v{O}, 0", f"v_mov_b32 v{O+1}, 0")
                a(f"ds_write_b64 v{vA+2}, v[{O}:{O+1}] offset:{UB[0]}")
        by_part(f)
        self.stamp3(5)
        self.auxbar(2, vA + 1, extra=self.areads(0)[:2] + self.breads(0))
        self.stamp3(7)
        for r in self.areads(0)[2:]: a(r)

    def conv_addr(self, vt, sC=sC, sD=sD):
        a = self.a
        sCH_, sPT, vQA, vUA = self.sCH_, self.sPT, self.vQA, self.vUA
        a(f"v_and_b32 v{vt+1}, 15, v1", f"v_lshrrev_b32 v{vt+2}, 4, v1")
        a(f"v_lshlrev_b32 v{vt+3}, 3, v{vt+2}", f"v_sub_u32 v{vt+3}, v{vt+1}, v{vt+3}")
        a(f"s_mul_i32 s{sC}, s{sCH_}, {QB[1]}", f"s_lshl_b32 s{sD}, s{sPT}, 9", f"s_add_u32 s{sC}, s{sC}, s{sD}", f"s_add_u32 s{sC}, s{sC}, 100")
        a(f"v_lshl_add_u32 v{vQA}, v{vt+3}, 2, s{sC}")
        for q in range(1, 8): a(f"v_add_u32 v{vQA+q}, {1024*q}, v{vQA}")
        a(f"s_mul_i32 s{sC}, s{sCH_}, {UB[1]-UB[0]}")
        a(f"s_lshl_b32 s{sD}, s{sPT}, 8", f"s_sub_u32 s{sC}, s{sC}, s{sD}", f"s_add_u32 s{sC}, s{sC}, {UB[0] + 480 - 192}")
        a(f"v_lshlrev_b32 v{vt+3}, 5, v{vt+1}", f"v_lshl_add_u32 v{vt+3}, v{vt+2}, 4, v{vt+3}", f"v_add_u32 v{vUA}, s{sC}, v{vt+3}")
    def areads(self, rr):
        buf = self.cAF + 32 * (rr & 1); R = []
        for q in range(8):
            R.append(f"ds_read2_b32 v[{buf+4*q}:{buf+4*q+1}], v{self.vQA+q} offset0:{32*rr+6} offset1:{32*rr+4}")
            R.append(f"ds_read2_b32 v[{buf+4*q+2}:{buf+4*q+3}], v{self.vQA+q} offset0:{32*rr+2} offset1:{32*rr}")
        return R
    def breads(self, rr):
        buf = self.cBF + 32 * (rr & 1)
        return [f"ds_read_b128 v[{buf+4*c}:{buf+4*c+3}], v{self.vUA} offset:{512*c + 192 - 64*rr}" for c in range(8)]

    def conv(self):
        a = self.a
        vt = 5
        ACC, AF, BF = self.cACC, self.cAF, self.cBF
        sCH_, sPT = self.sCH_, self.sPT
        self.stamp(5)
        for rr in range(4):
            if rr: a("s_waitcnt lgkmcnt(0)")
            pend = (self.breads(rr + 1) + self.areads(rr + 1)) if rr < 3 else []
            ab, bb = AF + 32 * (rr & 1), BF + 32 * (rr & 1)
            for q in range(8):
                if rr == 0 and q == 1: a("s_waitcnt lgkmcnt(8)")
                for c in range(q, 8):
                    d = ACC + 4 * c
                    cc = "0" if (rr == 0 and q == 0) else f"v[{d}:{d+3}]"
                    a(f"v_mfma_f32_16x16x32_bf16 v[{d}:{d+3}], v[{ab+4*q}:{ab+4*q+3}], v[{bb+4*(c-q)}:{bb+4*(c-q)+3}], {cc}")
                    if pend: a(pend.pop(0))
        self.stamp(6)
        KP = AF; RX = AF + 16
        if "eb" in self.opts: self.await_(9, vt, "all")
        a(f"s_lshl_b32 s{sA}, s{sAW}, 12", f"s_add_u32 s{sA}, s{sA}, {XCH}", f"v_lshl_add_u32 v{vt}, v1, 4, s{sA}")
        a("s_nop 3")
        L1, L2 = self.lab("Lx"), self.lab("Lx")
        a(f"s_cmp_eq_u32 s{sPT}, 0", f"s_cbranch_scc0 {L1}")
        for pt in range(2):
            if pt: a(f"{L1}:")
            for t in range(4): a(f"ds_write_b128 v{vt}, v[{ACC+16*(1-pt)+4*t}:{ACC+16*(1-pt)+4*t+3}] offset:{1024*t}")
            for i in range(0, 16, 2): a(f"v_mov_b64 v[{KP+i}:{KP+i+1}], v[{ACC+16*pt+i}:{ACC+16*pt+i+1}]")
            if not pt: a(f"s_branch {L2}")
        a(f"{L2}:")
        a(f"v_bfe_u32 v{vt+3}, v1, 2, 2", f"v_mul_u32_u24 v{vt+3}, {448*256}, v{vt+3}", f"v_and_b32 v{vt+4}, 3, v1", f"v_lshl_add_u32 v{vt+3}, v{vt+4}, 4, v{vt+3}")
        a(f"v_and_b32 v{vt+4}, 48, v1", f"v_lshl_add_u32 v{vt+3}, v{vt+4}, 2, v{vt+3}")
        if "ylin" in self.opts: a(f"v_lshlrev_b32 v{vt+3}, 4, v1")
        a(f"s_mul_i32 s{sC}, s{sPT}, {16*448*256}", f"s_lshl_b32 s{sB}, s{sE}, 8", f"s_add_u32 s{sC}, s{sC}, s{sB}", f"s_add_u32 s{sC}, s{sC}, {WS_YT}")
        a(f"v_xor_b32 v{vt}, 0x1000, v{vt}")
        self.auxbar(3, vt + 1, pair=True, extra=[f"ds_read_b128 v[{RX+4*t}:{RX+4*t+3}], v{vt} offset:{1024*t}" for t in range(4)])
        if self.opt("yw", -1) >= 0:
            a("s_setprio 0"); self.await_(10, vt + 1, "same", sleep=2)
        for t in range(4):
            k = KP + 4 * t
            for i in range(4): a(f"v_add_f32 v{k+i}, v{k+i}, v{RX+4*t+i}")
            a(f"v_cvt_pk_bf16_f32 v{k}, v{k}, v{k+1}", f"v_cvt_pk_bf16_f32 v{k+2}, v{k+2}, v{k+3}", f"v_mov_b32 v{k+1}, s{sTAG}", f"v_mov_b32 v{k+3}, s{sTAG}")
            if "noyst" not in self.opts: self.vmem(f"buffer_store_dwordx4 v[{k}:{k+3}], v{vt+3}, {srd(S_WS)}, s{sC} offen" + ("" if "yplain" in self.opts else " sc1"), "yst")
            if t < 3: a(f"s_add_u32 s{sC}, s{sC}, {4*448*256}")
        a("s_setprio 0")
        self.stamp(7)
        if self.stage < 4:
            self.write_stamps(1)
            a("s_endpgm"); return
        YR = 12
        self.final_addr(76)
        a(f"s_lshl_b32 s{sB}, s{sJ2}, 6", f"s_lshl_b32 s{sC}, s{sAW}, 4", f"s_add_u32 s{sB}, s{sB}, s{sC}")
        a(f"s_mul_i32 s{sA}, s{sI2}, 448", f"s_add_u32 s{sA}, s{sA}, s{sB}", f"s_lshl_b32 s{sA}, s{sA}, 8", f"s_add_u32 s{sA}, s{sA}, {WS_YT}")
        a(f"v_lshlrev_b32 v{vt}, 4, v1")
        a(f"v_lshrrev_b32 v{vt+1}, 4, v1", f"v_mul_u32_u24 v{vt+1}, 144, v{vt+1}", f"v_and_b32 v{vt+2}, 3, v1", f"v_lshl_add_u32 v{vt+1}, v{vt+2}, 5, v{vt+1}")
        a(f"v_bfe_u32 v{vt+3}, v1, 2, 2", f"v_lshl_add_u32 v{vt+1}, v{vt+3}, 3, v{vt+1}")
        a(f"s_mul_i32 s{sC}, s{sCH_}, {QB[1]}", f"s_lshl_b32 s{sB}, s{sPT}, 12", f"s_add_u32 s{sC}, s{sC}, s{sB}", f"v_add_u32 v{vt+1}, s{sC}, v{vt+1}")
        a(f"v_mul_u32_u24 v{vt+3}, 144, v{vt+3}", f"v_lshl_add_u32 v{vt+3}, v{vt+2}, 3, v{vt+3}", f"v_and_b32 v{vt+2}, 48, v1", f"v_lshl_add_u32 v{vt+3}, v{vt+2}, 1, v{vt+3}")
        a(f"v_add_u32 v{vt+3}, s{sC}, v{vt+3}", f"v_mul_u32_u24 v{vt+4}, 48, v1", f"v_add_u32 v{vt+4}, s{sC}, v{vt+4}")
        a(f"v_add_u32 v{vt+2}, 1152, v{vt+1}")
        a(f"s_mov_b32 s{sD}, s{sA}")
        self.await_(4, YR, "same", sleep=self.opt("ysl", 2))
        loads = [f"buffer_load_dwordx4 v[{YR+4*k}:{YR+4*k+3}], v{vt}, {srd(S_WS)}, s{sD} offen offset:{1024*k} sc1" for k in range(4)]
        for x in loads: self.vmem(x, "yl")
        if self.NV:
            T2 = YR + 16
            for i in range(self.NV): self.wait_vm(f"vd{i}")
            VB = 16384 * ((14 - self.NV - self.NX) % 7)
            a(f"s_add_u32 s{sA}, s{sM0}, {DBASE + VB}", f"v_add_u32 v{T2}, s{sA}, v{vt}")
            for i in range(self.NV):
                for k in range(4):
                    r = self.VG[4 * i + k]
                    a(f"ds_write_b128 v{T2}, v[{r}:{r+3}] offset:{16384*i + 1024*k}")
            self.signal(11, T2 + 2)
        self.final_x(76)
        if "noy" not in self.opts: self.spin(loads, [YR + 2 * i + 1 for i in range(8)], first_issued_tag="yl", sleep=self.opt("ysp", 4), note=2)
        for k in range(4): a(f"ds_write2_b32 v{vt+1}, v{YR+4*k}, v{YR+4*k+2} offset0:{144*k} offset1:{144*k+1}" if 144 * k + 1 < 256 else
                             f"ds_write2_b32 v{vt+2}, v{YR+4*k}, v{YR+4*k+2} offset0:{144*(k-2)} offset1:{144*(k-2)+1}")
        for t in range(4): a(f"ds_read_b64_tr_b16 v[{YR+16+2*t}:{YR+17+2*t}], v{vt+3} offset:{4*144*t}")
        a("s_waitcnt lgkmcnt(0)")
        for h in range(2): a(f"ds_write_b128 v{vt+4}, v[{YR+16+4*h}:{YR+19+4*h}] offset:{16*h}")
        self.final(76)

    def build(self):
        a = self.a
        a(".text", f".globl {NAME}_kernel", ".p2align 8", f".type {NAME}_kernel,@function", f"{NAME}_kernel:")
        self.prologue()
        self.aux()
        self.mwave()
        self.helper()
        a("L_exit:", "s_endpgm")
        added = a.fix_hazards()
        errs = a.check_waits()
        for e in errs[:5]: print("WAITERR:", e, file=sys.stderr)
        errs = [e for e in errs if "s_load_dword s5" not in e]
        if errs and not (self.opts & {"nokg", "nod", "nolds", "lax"}): raise SystemExit("wait errors")
        mv, ma, ms = a.max_regs()
        print(f"instrs {sum(1 for c in a.ins if c.kind not in ('dir','label'))} nops added {added} maxv {mv} maxs {ms}", file=sys.stderr)
        head = HEADER + f"; @launch grid=(256,1,1) block=(512,1,1) lds=163840\n.amdgcn_target \"amdgcn-amd-amdhsa--gfx950\"\n"
        return head + a.text() + kernel_desc(NAME + "_kernel", 256, 256)

if __name__ == "__main__":
    import argparse
    ap = argparse.ArgumentParser()
    ap.add_argument("--stage", type=int, default=9); ap.add_argument("--stamps", action="store_true"); ap.add_argument("-o", default="k.s"); ap.add_argument("--opts", default="")
    x = ap.parse_args()
    open(x.o, "w").write(Gen(x.stage, x.stamps, [o for o in x.opts.split(',') if o]).build())
```
